```python
import torch

def _softmax(x, axis=-1):
    return torch.softmax(x, dim=axis)
def _gelu(x):
    return torch.nn.functional.gelu(x, approximate="tanh")
def _silu(x):
    return torch.nn.functional.silu(x)
def _sigmoid(x):
    return torch.sigmoid(x)
def _layernorm(x, axis=-1, eps=1e-5):
    m = x.mean(dim=axis, keepdim=True)
    v = x.var(dim=axis, keepdim=True, unbiased=False)
    return (x - m) / torch.sqrt(v + eps)
def _scatter_add(tgt, idx, src, axis=0):
    return tgt.clone().index_add_(axis, idx, src)
def _segment_sum(src, seg, n):
    out = torch.zeros((n,) + src.shape[1:], dtype=src.dtype)
    return out.index_add_(0, seg, src)
def _pad(x, pw):
    flat = tuple(v for pair in reversed(pw) for v in pair)
    return torch.nn.functional.pad(x, flat)

kernel_name = 'standalone__edge_featured_mpnn_gatedgcn__graph'

def setup_inputs():

    _w = (lambda a: (lambda t: t.to(torch.bfloat16) if t.is_floating_point() else t)(torch.as_tensor(a)))
    N, deg, D, De = 12500, 64, 64, max(4, 1)
    E = N * deg
    return {
        "x": _w((lambda *s: torch.randn(*s, dtype=torch.bfloat16) * 0.8)(N, D)),
        "e_attr": _w((lambda *s: torch.randn(*s, dtype=torch.bfloat16) * 0.8)(E, De)),
        "src": _w((lambda lo, hi, *s: torch.randint(lo, hi, s))(0, N, E).to(torch.int64)),
        "dst": _w((lambda lo, hi, *s: torch.randint(lo, hi, s))(0, N, E).to(torch.int64)),
        "w_a": _w((lambda *s: torch.randn(*s, dtype=torch.bfloat16) * 0.8)(D, D)),
        "w_b": _w((lambda *s: torch.randn(*s, dtype=torch.bfloat16) * 0.8)(D, D)),
        "w_c": _w((lambda *s: torch.randn(*s, dtype=torch.bfloat16) * 0.8)(De, D)),
        "w_u": _w((lambda *s: torch.randn(*s, dtype=torch.bfloat16) * 0.05)(D, D)),
        "w_v": _w((lambda *s: torch.randn(*s, dtype=torch.bfloat16) * 0.05)(D, D)),
    }

def reference(x, e_attr, src, dst, w_a, w_b, w_c, w_u, w_v):
    N, D = x.shape
    hv = x @ w_v
    g = x[dst] @ w_a + x[src] @ w_b + e_attr @ w_c
    eta = _sigmoid(g)
    denom = _segment_sum(eta, dst, N) + 1e-6
    eta_n = eta / denom[dst]
    agg = _segment_sum(eta_n * hv[src], dst, N)
    z = x @ w_u + agg
    relu_z = torch.where(z > 0, z, 0 * z)
    return x + relu_z
```

```python
import sys

N = 12500
E = 800000
QCH = 782
CH = QCH * 4
NQ = E // 4
RECB = CH * 12
TAB_ROWS = N + 1
TAB_BYTES = TAB_ROWS * 256
T_OFF = 0x310000
REC_OFF = 0x350000
TR_BYTES = (REC_OFF - T_OFF) + 256 * RECB
BIG = 0x40000000
NLOG2E = 0xbfb8aa3b
CAP = 128
CS = 130

OPT = dict(st_rec="", st_tab="", prefetch=True)
for a in sys.argv[2:]:
    k, v = a.split("=")
    OPT[k] = v


class Asm:
    def __init__(self):
        self.L = []

    def __call__(self, s):
        for l in s.strip("\n").split("\n"):
            l = l.strip()
            if not l:
                continue
            if l.endswith(":"):
                self.L.append(l)
            else:
                self.L.append("    " + l)

    def text(self):
        return "\n".join(self.L) + "\n"


def srd(a, d, lo, hi, nbytes, stride=0):
    a(f"s_mov_b32 s{d}, s{lo}")
    if stride:
        a(f"s_and_b32 s{d+1}, s{hi}, 0xffff")
        a(f"s_or_b32 s{d+1}, s{d+1}, {stride << 16:#x}")
    else:
        a(f"s_and_b32 s{d+1}, s{hi}, 0xffff")
    a(f"s_mov_b32 s{d+2}, {nbytes}")
    a(f"s_mov_b32 s{d+3}, 0x20000")


def scan(a, v, steps16_only=False, op="add_u32"):
    for d in (1, 2, 4, 8):
        a("s_nop 1")
        a(f"v_{op}_dpp v{v}, v{v}, v{v} row_shr:{d} row_mask:0xf bank_mask:0xf")
    if not steps16_only:
        a("s_nop 1")
        a(f"v_{op}_dpp v{v}, v{v}, v{v} row_bcast:15 row_mask:0xa bank_mask:0xf")
        a("s_nop 1")
        a(f"v_{op}_dpp v{v}, v{v}, v{v} row_bcast:31 row_mask:0xc bank_mask:0xf")


K1_W = 0
K1_HIST = 16384
K1_START = 17408
K1_STAGE = 18432
K1_LDS = K1_STAGE + RECB + 32


def k1():
    a = Asm()
    a(f"""
bin_kernel:
s_cmp_ge_u32 s2, 256
s_cbranch_scc1 K1_END
s_load_dwordx8 s[4:11], s[0:1], 0
s_load_dwordx2 s[12:13], s[0:1], 40
s_load_dwordx2 s[14:15], s[0:1], 64
s_load_dwordx2 s[16:17], s[0:1], 88
v_readfirstlane_b32 s3, v0
v_and_b32 v1, 63, v0
v_and_b32 v2, 15, v0
v_bfe_u32 v3, v0, 4, 2
s_lshr_b32 s3, s3, 6
v_and_b32 v4, 511, v0
v_lshlrev_b32 v4, 4, v4
s_lshr_b32 s18, s3, 2
s_lshl_b32 s18, s18, 4
s_and_b32 s19, s3, 3
s_mul_i32 s44, s2, 49
v_add_u32 v5, s18, v2
v_add_u32 v6, s44, v5
v_lshlrev_b32 v7, 7, v6
v_lshl_add_u32 v7, v3, 4, v7
s_mul_i32 s45, s2, {QCH}
v_add_u32 v58, s45, v0
v_cmp_gt_u32 vcc, {QCH}, v0
s_mov_b32 s46, {NQ}
v_cmp_gt_u32_e64 s[48:49], s46, v58
v_lshlrev_b32 v58, 4, v58
v_mov_b32 v59, {BIG:#x}
s_and_b64 s[48:49], s[48:49], vcc
s_nop 1
v_cndmask_b32_e64 v58, v59, v58, s[48:49]
v_lshlrev_b32 v59, 1, v58
s_cmp_lt_u32 s3, 8
s_waitcnt lgkmcnt(0)
s_cselect_b64 s[12:13], s[12:13], s[14:15]
""")
    srd(a, 20, 4, 5, N * 128)
    a("global_load_dwordx4 v[60:63], v4, s[12:13]")
    srd(a, 32, 10, 11, E * 4)
    a("buffer_load_dwordx4 v[8:11], v7, s[20:23], 0 offen")
    a("buffer_load_dwordx4 v[12:15], v7, s[20:23], 0 offen offset:64")
    srd(a, 28, 8, 9, E * 4)
    a("buffer_load_dwordx4 v[16:19], v58, s[32:35], 0 offen")
    srd(a, 24, 6, 7, E * 8)
    a("buffer_load_dwordx4 v[20:23], v58, s[28:31], 0 offen")
    a("buffer_load_dwordx4 v[24:27], v59, s[24:27], 0 offen")
    a("buffer_load_dwordx4 v[28:31], v59, s[24:27], 0 offen offset:16")
    srd(a, 36, 16, 17, TAB_BYTES)
    a(f"""
s_lshl_b32 s46, s2, 10
s_add_u32 s46, s46, {T_OFF:#x}
s_add_u32 s40, s16, s46
s_addc_u32 s41, s17, 0
s_and_b32 s41, s41, 0xffff
s_mov_b32 s42, 1024
s_mov_b32 s43, 0x20000
s_mul_i32 s46, s2, {RECB}
s_add_u32 s46, s46, {REC_OFF:#x}
s_add_u32 s52, s16, s46
s_addc_u32 s53, s17, 0
s_and_b32 s53, s53, 0xffff
s_mov_b32 s54, {RECB}
s_mov_b32 s55, 0x20000
v_and_b32 v56, 255, v0
v_lshlrev_b32 v56, 2, v56
v_mov_b32 v57, 0
ds_write_b32 v56, v57 offset:{K1_HIST}
v_lshlrev_b32 v4, 4, v0
v_lshrrev_b32 v56, 2, v2
v_lshl_add_u32 v56, v3, 3, v56
v_lshlrev_b32 v56, 7, v56
v_and_b32 v57, 3, v2
v_lshl_add_u32 v56, v57, 3, v56
s_lshl_b32 s46, s19, 5
v_add_u32 v56, s46, v56
v_lshlrev_b32 v7, 8, v6
v_lshl_add_u32 v7, v3, 4, v7
s_lshl_b32 s46, s19, 6
v_add_u32 v7, s46, v7
v_cmp_gt_u32 vcc, 49, v5
v_mov_b32 v57, {BIG:#x}
s_mov_b32 s56, 0xffff0000
s_mov_b32 s57, 0x7fffffff
v_cndmask_b32 v7, v57, v7, vcc
s_waitcnt vmcnt(6)
ds_write_b128 v4, v[60:63] offset:{K1_W}
s_waitcnt lgkmcnt(0)
s_barrier
""")
    for m in range(2):
        for s in range(2):
            r = 32 + 8 * m + 4 * s
            a(f"ds_read_b64_tr_b16 v[{r}:{r+1}], v56 offset:{K1_W + m*8192 + s*4096}")
            a(f"ds_read_b64_tr_b16 v[{r+2}:{r+3}], v56 offset:{K1_W + m*8192 + s*4096 + 512}")
    a(f"""
v_cmp_eq_u32 vcc, {N}, v6
s_waitcnt vmcnt(4) lgkmcnt(0)
v_mfma_f32_16x16x32_bf16 v[48:51], v[32:35], v[8:11], 0
v_mfma_f32_16x16x32_bf16 v[52:55], v[40:43], v[8:11], 0
v_mfma_f32_16x16x32_bf16 v[48:51], v[36:39], v[12:15], v[48:51]
v_mfma_f32_16x16x32_bf16 v[52:55], v[44:47], v[12:15], v[52:55]
s_nop 7
s_nop 1
v_cvt_pk_bf16_f32 v32, v52, v53
v_cvt_pk_bf16_f32 v33, v54, v55
""")
    for t in range(4):
        a(f"v_mul_f32 v{48+t}, {NLOG2E:#x}, v{48+t}")
    for t in range(4):
        src = 32 + (t >> 1)
        if t & 1:
            a(f"v_lshrrev_b32 v{36+t}, 16, v{src}")
        else:
            a(f"v_and_b32 v{36+t}, 0xffff, v{src}")
    for t in range(4):
        a(f"v_and_b32 v{40+t}, s57, v{48+t}")
        a(f"v_min_u32 v{40+t}, 0x7f000000, v{40+t}")
        a(f"v_add_u32 v{40+t}, 0x8000, v{40+t}")
        a(f"v_sub_u32_e64 v{40+t}, v{40+t}, v{36+t} clamp")
        a(f"v_and_or_b32 v{40+t}, v{40+t}, s56, v{36+t}")
        a(f"v_bfi_b32 v{40+t}, s57, v{40+t}, v{48+t}")
    a("v_mov_b32 v44, 0x7f000000")
    for t in range(4):
        a(f"v_cndmask_b32 v{40+t}, v{40+t}, v44, vcc")
    a(f"buffer_store_dwordx4 v[40:43], v7, s[36:39], 0 offen {OPT['st_tab']}")
    a(f"""
v_mov_b32 v57, 1
s_waitcnt vmcnt(4)
""")
    for i in range(4):
        a(f"v_and_b32 v{32+i}, 255, v{16+i}")
        a(f"v_lshlrev_b32 v{32+i}, 2, v{32+i}")
    a("s_mov_b64 exec, s[48:49]")
    for i in range(4):
        a(f"ds_add_rtn_u32 v{36+i}, v{32+i}, v57 offset:{K1_HIST}")
    a("s_mov_b64 exec, -1")
    a("s_waitcnt vmcnt(3)")
    for i in range(4):
        a(f"v_and_b32 v{16+i}, 0xffffff00, v{16+i}")
        a(f"v_lshl_or_b32 v{20+i}, v{16+i}, 6, v{20+i}")
    a(f"""
v_lshlrev_b32 v56, 4, v1
s_waitcnt lgkmcnt(0)
s_barrier
ds_read_b128 v[44:47], v56 offset:{K1_HIST}
s_waitcnt lgkmcnt(0)
v_add_u32 v49, v44, v45
v_add_u32 v50, v49, v46
v_add_u32 v52, v50, v47
v_mov_b32 v53, v52
""")
    scan(a, 52)
    a(f"""
v_sub_u32 v48, v52, v53
v_add_u32 v51, v48, v50
v_add_u32 v50, v48, v49
v_add_u32 v49, v48, v44
ds_write_b128 v56, v[48:51] offset:{K1_START}
""")
    for i in range(4):
        a(f"ds_read_b32 v{8+i}, v{32+i} offset:{K1_START}")
    for i in range(4):
        a(f"v_lshl_or_b32 v{44+i}, v{44+i}, 16, v{48+i}")
    a("s_waitcnt lgkmcnt(0)")
    for i in range(4):
        a(f"v_add_u32 v{8+i}, v{8+i}, v{36+i}")
        a(f"v_mul_u32_u24 v{8+i}, 12, v{8+i}")
        a(f"v_add_u32 v{8+i}, {K1_STAGE}, v{8+i}")
    a("s_waitcnt vmcnt(1)")
    a("s_mov_b64 exec, s[48:49]")
    for i in range(4):
        a(f"ds_write2_b32 v{8+i}, v{24+2*i}, v{25+2*i} offset0:0 offset1:1")
        a(f"ds_write_b32 v{8+i}, v{20+i} offset:8")
    a(f"""
s_mov_b64 exec, -1
s_cmp_lg_u32 s3, 0
s_cbranch_scc1 K1_NOT
buffer_store_dwordx4 v[44:47], v56, s[40:43], 0 offen {OPT['st_rec']}
K1_NOT:
v_cmp_gt_u32 vcc, {RECB//16 - 2048}, v0
s_waitcnt lgkmcnt(0)
s_barrier
ds_read_b128 v[8:11], v4 offset:{K1_STAGE}
ds_read_b128 v[12:15], v4 offset:{K1_STAGE + 16384}
s_mov_b64 exec, vcc
ds_read_b128 v[16:19], v4 offset:{K1_STAGE + 32768}
s_mov_b64 exec, -1
v_add_u32 v5, 16384, v4
v_add_u32 v6, 32768, v4
s_waitcnt lgkmcnt(2)
buffer_store_dwordx4 v[8:11], v4, s[52:55], 0 offen {OPT['st_rec']}
s_waitcnt lgkmcnt(1)
buffer_store_dwordx4 v[12:15], v5, s[52:55], 0 offen {OPT['st_rec']}
s_waitcnt lgkmcnt(0)
buffer_store_dwordx4 v[16:19], v6, s[52:55], 0 offen {OPT['st_rec']}
K1_END:
s_endpgm
""")
    return a.text()


L_CNT = 0
L_MASK = 256
L_FLAG = 320
L_MAXL = 324
L_TS = 512
L_TA = 1024
L_TC = 1536
L_RK = 1792
L_EA = 2048
EA_BYTES = 51200
L_KEYS = L_EA + EA_BYTES
KEY_BYTES = 25600
L_ACC = L_KEYS + KEY_BYTES
L_EXT = L_ACC + 52 * 512
L_W = L_EXT
L_AP = L_EXT + 16 * 2048
APS = 136
K2_LDS = L_AP + 64 * APS

G = (8, 16)
Y = (24, 32)
H = (40, 48)
MM, SA, UU = 56, 60, 64
DEN, NUM = 68, 72
AOP = (76, 80)
BOP = 84
ASEL = 88
IDX = (92, 94)
VK, VE, VF, VFN = 96, 97, 98, 99
VU = 100
VXE = 104
TOT = 106
VTK, VTE, VTA, VAL = 114, 115, 116, 117
VTT = 118
VLOC = 122
VOUT = 123
S_MASK = 60
S_AM = 62
S_K = 64
S_IT = 66
S_MODE = 67
S_I = 68
S_MO = 69
S_ML = 70


def lds_init(a):
    a(f"""
v_mov_b32 v24, 0
v_mov_b32 v25, 0
v_mov_b32 v26, 0
v_mov_b32 v27, 0
v_mov_b32 v28, {N}
v_mov_b32 v29, {N}
v_mov_b32 v30, {N}
v_mov_b32 v31, {N}
v_lshlrev_b32 v32, 4, v0
ds_write_b128 v32, v[24:27] offset:{L_EA}
ds_write_b128 v32, v[24:27] offset:{L_EA + 16384}
ds_write_b128 v32, v[24:27] offset:{L_EA + 32768}
v_add_u32 v33, {L_KEYS}, v32
ds_write_b128 v33, v[28:31]
v_cmp_gt_u32 vcc, {(KEY_BYTES - 16384) // 16}, v0
s_mov_b64 exec, vcc
ds_write_b128 v33, v[28:31] offset:16384
v_cmp_gt_u32 vcc, {(EA_BYTES - 49152) // 16}, v0
s_mov_b64 exec, vcc
ds_write_b128 v32, v[24:27] offset:{L_EA + 49152}
v_cmp_gt_u32 vcc, 128, v0
s_mov_b64 exec, vcc
ds_write_b128 v32, v[24:27]
s_mov_b64 exec, -1
""")


def place_atomic(a, r, tmp, one):
    a(f"v_lshrrev_b32 v{tmp}, 12, v{r+2}")
    a(f"v_and_b32 v{tmp}, 0xfc, v{tmp}")
    a(f"ds_add_rtn_u32 v{r+3}, v{tmp}, v{one} offset:{L_CNT}")


def place_write(a, r, tmp, smask, sovf):
    a(f"v_lshrrev_b32 v{tmp}, 14, v{r+2}")
    a(f"v_cmp_gt_u32 vcc, {CAP}, v{r+3}")
    a(f"v_mad_u32_u24 v{tmp}, v{tmp}, s71, v{r+3}")
    a(f"v_and_b32 v{r+2}, 0x3fff, v{r+2}")
    a(f"s_andn2_b64 s[72:73], exec, vcc")
    a(f"s_or_b64 s[{sovf}:{sovf+1}], s[{sovf}:{sovf+1}], s[72:73]")
    a(f"s_mov_b64 exec, vcc")
    a(f"v_lshlrev_b32 v{r+3}, 3, v{tmp}")
    a(f"v_lshlrev_b32 v{tmp}, 2, v{tmp}")
    a(f"ds_write_b64 v{r+3}, v[{r}:{r+1}] offset:{L_EA}")
    a(f"ds_write_b32 v{tmp}, v{r+2} offset:{L_KEYS}")


def ev_k(a, sub):
    a(f"""
v_add_u32 v{VTK}, 16, v{VTK}
ds_read_b32 v{VK}, v{VTK} offset:{L_TS}
s_waitcnt lgkmcnt(0)
v_lshlrev_b32 v{VK}, 2, v{VK}
v_add_u32 v{VK}, {L_KEYS - sub}, v{VK}
""")


def load_bop(a):
    a(f"""
ds_read_b128 v[4:7], v{VTA} offset:{L_TA}
s_waitcnt lgkmcnt(0)
v_add_u32 v4, v4, v{VAL}
v_add_u32 v5, v5, v{VAL}
v_add_u32 v6, v6, v{VAL}
v_add_u32 v7, v7, v{VAL}
ds_read_u16 v4, v4
ds_read_u16 v5, v5
ds_read_u16 v6, v6
ds_read_u16 v7, v7
s_waitcnt lgkmcnt(0)
v_lshl_or_b32 v{BOP+2}, v5, 16, v4
v_lshl_or_b32 v{BOP+3}, v7, 16, v6
""")


def ev_e(a, sub):
    a(f"""
v_add_u32 v{VTE}, 16, v{VTE}
v_add_u32 v{VTA}, 16, v{VTA}
ds_read_b32 v{VE}, v{VTE} offset:{L_TS}
""")
    load_bop(a)
    a(f"""
v_lshlrev_b32 v{VE}, 3, v{VE}
v_add_u32 v{VE}, {L_EA - sub}, v{VE}
""")


def read_keys(a, i0, i1, off):
    a(f"ds_read_b32 v{i0}, v{VK} offset:{off}")
    a(f"ds_read_b32 v{i1}, v{VK} offset:{off+4}")


def read_ea(a, off):
    a(f"s_mov_b64 exec, s[{S_AM}:{S_AM+1}]")
    a(f"ds_read_b64 v[{AOP[0]}:{AOP[0]+1}], v{VE} offset:{off}")
    a(f"ds_read_b64 v[{AOP[1]}:{AOP[1]+1}], v{VE} offset:{off+8}")
    a("s_mov_b64 exec, -1")


def gathers(k, i0, i1):
    g = G[k]
    return [f"buffer_load_dwordx4 v[{g}:{g+3}], v[{i0}:{i0+1}], s[24:27], 0 idxen offen",
            f"buffer_load_dwordx4 v[{g+4}:{g+7}], v[{i1}:{i1+1}], s[24:27], 0 idxen offen"]


def ops(k):
    y, h, g = Y[k], H[k], G[k]
    yn = Y[1 - k]
    d = {}
    for i in range(8):
        d[f"E{i}"] = f"v_exp_f32 v{yn+i}, v{yn+i}"
    for i in range(4):
        d[f"C{i}"] = f"v_pk_fma_f32 v[{y+2*i}:{y+1+2*i}], v[{y+2*i}:{y+1+2*i}], s[{S_K}:{S_K+1}], s[{S_K}:{S_K+1}] clamp"
        d[f"R{i}"] = f"v_rcp_f32 v{MM+i}, v{MM+i}"
    for i in range(2):
        p0 = f"v[{y+2*i}:{y+1+2*i}]"
        p1 = f"v[{y+4+2*i}:{y+5+2*i}]"
        m = f"v[{MM+2*i}:{MM+1+2*i}]"
        s = f"v[{SA+2*i}:{SA+1+2*i}]"
        u = f"v[{UU+2*i}:{UU+1+2*i}]"
        d[f"m{i}"] = f"v_pk_mul_f32 {m}, {p0}, {p1}"
        d[f"a{i}"] = f"v_pk_add_f32 {s}, {p0}, {p1}"
        d[f"u{i}"] = f"v_pk_mul_f32 {u}, {p1}, v[{h+2*i}:{h+1+2*i}]"
        d[f"f{i}"] = f"v_pk_fma_f32 {u}, {p0}, v[{h+4+2*i}:{h+5+2*i}], {u}"
        d[f"d{i}"] = f"v_pk_fma_f32 v[{DEN+2*i}:{DEN+1+2*i}], {s}, {m}, v[{DEN+2*i}:{DEN+1+2*i}]"
        d[f"n{i}"] = f"v_pk_fma_f32 v[{NUM+2*i}:{NUM+1+2*i}], {u}, {m}, v[{NUM+2*i}:{NUM+1+2*i}]"
    d["M0"] = f"v_mfma_f32_16x16x32_bf16 v[{y}:{y+3}], v[{AOP[0]}:{AOP[0]+3}], v[{BOP}:{BOP+3}], v[{g}:{g+3}]"
    d["M1"] = f"v_mfma_f32_16x16x32_bf16 v[{y+4}:{y+7}], v[{AOP[1]}:{AOP[1]+3}], v[{BOP}:{BOP+3}], v[{g+4}:{g+7}]"
    d["M2"] = f"v_mfma_f32_16x16x32_bf16 v[{h}:{h+3}], v[{ASEL}:{ASEL+3}], v[{g}:{g+3}], 0"
    d["M3"] = f"v_mfma_f32_16x16x32_bf16 v[{h+4}:{h+7}], v[{ASEL}:{ASEL+3}], v[{g+4}:{g+7}], 0"
    d["L0"], d["L1"] = gathers(k, IDX[0], IDX[1])
    d["W"] = "s_waitcnt vmcnt(2) lgkmcnt(0)"
    return d


ORDER = "C0 E0 C2 E1 C1 E2 C3 E3 m0 m1 a0 a1 u0 u1 f0 f1 W M0 R0 M1 R1 M2 R2 M3 R3 L0 L1 E4 E5 d0 E6 d1 E7 n0 n1"


def k2():
    a = Asm()
    a(f"""
gate_kernel:
s_cmp_ge_u32 s2, 256
s_cbranch_scc1 K2_END
s_load_dwordx2 s[16:17], s[0:1], 88
s_load_dwordx2 s[4:5], s[0:1], 0
s_load_dwordx2 s[6:7], s[0:1], 32
s_load_dwordx4 s[8:11], s[0:1], 48
s_load_dwordx2 s[12:13], s[0:1], 72
v_readfirstlane_b32 s3, v0
v_and_b32 v1, 63, v0
v_and_b32 v2, 15, v0
v_bfe_u32 v3, v0, 4, 2
s_lshr_b32 s3, s3, 6
; T entry offsets: run c = 16w + 4k + kg -> c*1024 + 4b
s_lshl_b32 s14, s3, 14
s_lshl_b32 s15, s2, 2
s_add_u32 s14, s14, s15
v_lshlrev_b32 v4, 10, v3
v_add_u32 v4, s14, v4
v_add_u32 v5, 8192, v4
; wave tile: nt = w>>2, ft = w&3 ; local = 16nt + col ; node = b + 256*local
s_lshr_b32 s18, s3, 2
s_lshl_b32 s18, s18, 4
s_and_b32 s19, s3, 3
v_add_u32 v{VLOC}, s18, v2
v_lshlrev_b32 v6, 8, v{VLOC}
v_add_u32 v6, s2, v6
v_lshlrev_b32 v6, 7, v6
v_lshl_add_u32 v7, v3, 4, v6
s_lshl_b32 s14, s19, 5
v_lshl_add_u32 v{VOUT}, v3, 3, v6
v_add_u32 v{VOUT}, s14, v{VOUT}
v_and_b32 v40, 511, v0
v_lshlrev_b32 v40, 4, v40
; wc lane offset (4j + kg)*2
v_lshl_add_u32 v{VAL}, v2, 2, v3
v_lshlrev_b32 v{VAL}, 1, v{VAL}
s_cmp_lt_u32 s3, 8
s_waitcnt lgkmcnt(0)
s_cselect_b64 s[6:7], s[6:7], s[10:11]
s_add_u32 s32, s16, {T_OFF:#x}
s_addc_u32 s33, s17, 0
s_and_b32 s33, s33, 0xffff
s_mov_b32 s34, {TR_BYTES}
s_mov_b32 s35, 0x20000
buffer_load_dword v{VTT}, v4, s[32:35], 0 offen
buffer_load_dword v{VTT+1}, v4, s[32:35], 0 offen offset:4095
buffer_load_dword v{VTT+2}, v5, s[32:35], 0 offen
buffer_load_dword v{VTT+3}, v5, s[32:35], 0 offen offset:4095
""".replace("offset:4095", "OFF4096"))
    a.L = [l.replace(", 0 offen OFF4096", ", s74 offen") for l in a.L]
    idx = next(i for i, l in enumerate(a.L) if "s_cmp_lt_u32 s3, 8" in l)
    a.L.insert(idx, "    s_movk_i32 s74, 0x1000")
    srd(a, 20, 4, 5, N * 128)
    a("global_load_dwordx4 v[44:47], v40, s[6:7]")
    a("buffer_load_dwordx4 v[48:51], v7, s[20:23], 0 offen")
    a("buffer_load_dwordx4 v[52:55], v7, s[20:23], 0 offen offset:64")
    a(f"buffer_load_dwordx2 v[{VXE}:{VXE+1}], v{VOUT}, s[20:23], 0 offen")
    for k in range(4):
        a(f"global_load_ushort v{72+k}, v{VAL}, s[8:9] offset:{128*k}")
    srd(a, 24, 16, 17, TAB_ROWS, stride=256)
    srd(a, 28, 16, 17, TAB_BYTES)
    srd(a, 36, 12, 13, N * 128)
    lds_init(a)
    a(f"""
s_mov_b32 s{S_AM}, 0x22221111
s_mov_b32 s{S_AM+1}, 0x88884444
s_mov_b32 s{S_K}, 0x21800000
s_mov_b32 s{S_K+1}, 0x21800000
s_mov_b32 s71, {CS}
s_mov_b32 s{S_MODE}, 0
s_mov_b64 s[76:77], 0
v_mov_b32 v41, 1
s_lshl_b32 s14, s3, 4
v_add_u32 v42, s14, v3
s_mov_b32 s15, {RECB}
v_mul_lo_u32 v42, v42, s15
v_mul_u32_u24 v43, 12, v2
v_add_u32 v42, v42, v43
v_add_u32 v42, {REC_OFF - T_OFF}, v42
v_add_u32 v43, 16, v2
s_waitcnt vmcnt(8)
""")
    for k in range(4):
        a(f"v_and_b32 v4, 0xffff, v{VTT+k}")
        a(f"v_mul_u32_u24 v4, 12, v4")
        a(f"v_lshrrev_b32 v5, 16, v{VTT+k}")
        a(f"v_add_u32 v{56+k}, v4, v42")
        if k < 3:
            a(f"v_add_u32 v42, {4*RECB}, v42")
        a(f"v_cmp_gt_u32_e64 s[{80+2*k}:{81+2*k}], v5, v2")
        a(f"v_cmp_gt_u32_e64 s[{88+2*k}:{89+2*k}], v5, v43")
        a(f"s_mov_b64 exec, s[{80+2*k}:{81+2*k}]")
        a(f"buffer_load_dwordx3 v[{8+4*k}:{10+4*k}], v{56+k}, s[32:35], 0 offen")
        a("s_mov_b64 exec, -1")
    for k in range(4):
        a(f"s_mov_b64 exec, s[{88+2*k}:{89+2*k}]")
        a(f"buffer_load_dwordx3 v[{24+4*k}:{26+4*k}], v{56+k}, s[32:35], 0 offen offset:192")
    a("s_mov_b64 exec, -1")
    a(f"""
s_lshr_b32 s14, s2, 3
s_mul_i32 s14, s14, 100096
v_lshlrev_b32 v4, 6, v0
v_add_u32 v4, s14, v4
v_add_u32 v5, 0x10000, v4
v_cmp_gt_u32 vcc, 540, v0
v_mov_b32 v6, {BIG:#x}
s_nop 0
v_cndmask_b32 v5, v6, v5, vcc
""")
    if OPT["prefetch"] in (True, "1"):
        a("buffer_load_dword v124, v4, s[28:31], 0 offen")
        a("buffer_load_dword v125, v5, s[28:31], 0 offen")
    else:
        a("buffer_load_dword v124, v6, s[28:31], 0 offen")
        a("buffer_load_dword v125, v6, s[28:31], 0 offen")
    a(f"""
v_lshlrev_b32 v4, 4, v0
v_add_u32 v4, {L_W}, v4
v_lshrrev_b32 v5, 2, v2
v_lshl_add_u32 v5, v3, 3, v5
v_lshlrev_b32 v5, 7, v5
v_and_b32 v6, 3, v2
v_lshl_add_u32 v5, v6, 3, v5
s_lshl_b32 s14, s19, 5
s_add_u32 s14, s14, {L_W}
v_add_u32 v5, s14, v5
s_waitcnt vmcnt(17)
ds_write_b128 v4, v[44:47]
s_waitcnt lgkmcnt(0)
s_barrier
""")
    for m in range(2):
        for s in range(2):
            r = 76 + 8 * m + 4 * s
            a(f"ds_read_b64_tr_b16 v[{r}:{r+1}], v5 offset:{m*8192 + s*4096}")
            a(f"ds_read_b64_tr_b16 v[{r+2}:{r+3}], v5 offset:{m*8192 + s*4096 + 512}")
    a(f"""
s_movk_i32 s14, {APS}
v_mul_lo_u32 v4, v{VLOC}, s14
v_lshl_add_u32 v4, v3, 3, v4
s_lshl_b32 s14, s19, 5
s_add_u32 s14, s14, {L_AP}
v_add_u32 v4, s14, v4
v_lshlrev_b32 v{VLOC}, 2, v{VLOC}
s_waitcnt vmcnt(15) lgkmcnt(0)
v_mfma_f32_16x16x32_bf16 v[44:47], v[76:79], v[48:51], 0
v_mfma_f32_16x16x32_bf16 v[{VU}:{VU+3}], v[84:87], v[48:51], 0
v_mfma_f32_16x16x32_bf16 v[44:47], v[80:83], v[52:55], v[44:47]
v_mfma_f32_16x16x32_bf16 v[{VU}:{VU+3}], v[88:91], v[52:55], v[{VU}:{VU+3}]
s_waitcnt vmcnt(10)
""")
    for k in range(4):
        a(f"v_lshlrev_b32 v{72+k}, 16, v{72+k}")
        a(f"v_mul_f32 v{72+k}, {NLOG2E:#x}, v{72+k}")
    a("s_nop 1")
    for t in range(4):
        a(f"v_mul_f32 v{44+t}, {NLOG2E:#x}, v{44+t}")
    a(f"""
v_cvt_pk_bf16_f32 v{BOP}, v72, v73
v_cvt_pk_bf16_f32 v{BOP+1}, v74, v75
v_cvt_pk_bf16_f32 v44, v44, v45
v_cvt_pk_bf16_f32 v45, v46, v47
ds_write_b64 v4, v[44:45]
""")
    a(f"""
v_lshrrev_b32 v4, 2, v2
v_and_b32 v5, 3, v2
v_mov_b32 v6, 0x3f80
v_mov_b32 v7, 0
v_cmp_eq_u32 vcc, v3, v4
s_nop 1
v_cndmask_b32 v44, v7, v6, vcc
""")
    for t in range(4):
        a(f"v_cmp_eq_u32 vcc, {t}, v5")
        a("s_nop 1")
        a(f"v_cndmask_b32 v{ASEL+t}, v7, v44, vcc")
    a(f"""
v_and_b32 v44, 1, v4
v_lshlrev_b32 v44, 4, v44
v_lshlrev_b32 v44, v44, v6
v_cmp_eq_u32 vcc, v3, v5
s_nop 1
v_cndmask_b32 v44, v7, v44, vcc
v_cmp_gt_u32 vcc, 2, v4
s_nop 1
v_cndmask_b32 v{AOP[0]+2}, v7, v44, vcc
v_cndmask_b32 v{AOP[0]+3}, v44, v7, vcc
v_cndmask_b32 v{AOP[1]+2}, v7, v44, vcc
v_cndmask_b32 v{AOP[1]+3}, v44, v7, vcc
v_mov_b32 v{AOP[0]}, 0
v_mov_b32 v{AOP[0]+1}, 0
v_mov_b32 v{AOP[1]}, 0
v_mov_b32 v{AOP[1]+1}, 0
v_lshlrev_b32 v{IDX[0]+1}, 4, v2
v_lshlrev_b32 v{IDX[1]+1}, 4, v2
""")
    for i in range(8):
        a(f"v_mov_b32 v{TOT+i}, 0")
    for j in range(8):
        a(f"s_waitcnt vmcnt({9-j})")
        a(f"s_mov_b64 exec, s[{80+2*j}:{81+2*j}]")
        place_atomic(a, 8 + 4 * j, 4 + (j & 1), 41)
    for j in range(8):
        a(f"s_mov_b64 exec, s[{80+2*j}:{81+2*j}]")
        a(f"s_waitcnt lgkmcnt({min(15, 7 - j + 2*j)})")
        place_write(a, 8 + 4 * j, 4 + (j & 1), 80 + 2 * j, 76)
    a("s_mov_b64 exec, -1")
    a(f"""
v_max_u32 v4, v{VTT}, v{VTT+1}
v_max_u32 v5, v{VTT+2}, v{VTT+3}
v_max_u32 v4, v4, v5
v_lshrrev_b32 v60, 16, v4
v_cmp_lt_u32 vcc, 32, v60
s_cbranch_vccz K2_PLACED
s_mov_b32 s14, 32
K2_LONG:
v_add_u32 v43, s14, v2
s_mul_i32 s15, s14, 12
""")
    for k in range(4):
        a(f"""
s_mov_b64 exec, -1
v_lshrrev_b32 v5, 16, v{VTT+k}
v_cmp_gt_u32 vcc, v5, v43
s_and_saveexec_b64 s[78:79], vcc
s_cbranch_execz K2_LONG_S{k}
buffer_load_dwordx3 v[8:10], v{56+k}, s[32:35], s15 offen
s_waitcnt vmcnt(0)
""")
        place_atomic(a, 8, 4, 41)
        a("s_waitcnt lgkmcnt(0)")
        place_write(a, 8, 4, None, 76)
        a(f"K2_LONG_S{k}:")
    a(f"""
s_mov_b64 exec, -1
s_add_u32 s14, s14, 16
v_cmp_lt_u32 vcc, s14, v60
s_cbranch_vccnz K2_LONG
K2_PLACED:
s_cmp_eq_u64 s[76:77], 0
s_cbranch_scc1 K2_NOOVF
v_mov_b32 v4, 0
ds_write_b32 v4, v41 offset:{L_FLAG}
K2_NOOVF:
s_waitcnt lgkmcnt(0)
s_barrier
v_lshlrev_b32 v4, 2, v1
v_mov_b32 v5, 0
ds_read_b32 v8, v4 offset:{L_CNT}
ds_read_b32 v9, v5 offset:{L_FLAG}
s_waitcnt lgkmcnt(0)
v_readfirstlane_b32 s14, v9
v_lshl_add_u32 v9, v8, 6, v1
v_add_u32 v9, 1, v9
v_cmp_gt_u32 vcc, 48, v1
s_cmp_lg_u32 s14, 0
s_cbranch_scc1 K2_SLOW_ENTRY
v_cndmask_b32 v9, v5, v9, vcc
s_add_u32 s15, s3, 16
s_add_u32 s40, s3, 32
s_nop 0
v_readlane_b32 s41, v9, s3
v_readlane_b32 s42, v9, s15
v_readlane_b32 s43, v9, s40
s_nop 1
v_cmp_lt_u32_e64 s[44:45], s41, v9
v_cmp_lt_u32_e64 s[46:47], s42, v9
v_cmp_lt_u32_e64 s[48:49], s43, v9
s_bcnt1_i32_b64 s44, s[44:45]
s_bcnt1_i32_b64 s46, s[46:47]
s_bcnt1_i32_b64 s48, s[48:49]
v_readlane_b32 s50, v8, 48
v_lshl_add_u32 v10, v1, 4, s3
v_writelane_b32 v11, s41, 0
v_writelane_b32 v11, s42, 1
v_writelane_b32 v11, s43, 2
v_writelane_b32 v12, s44, 0
v_writelane_b32 v12, s46, 1
v_writelane_b32 v12, s48, 2
s_add_u32 s50, s50, 7
s_lshr_b32 s50, s50, 3
s_lshl_b32 s50, s50, 1
v_lshrrev_b32 v11, 6, v11
v_add_u32 v12, 4, v12
v_lshlrev_b32 v13, 2, v12
v_mul_u32_u24 v14, {CS}, v10
s_movk_i32 s51, {APS}
v_mul_lo_u32 v15, v10, s51
v_add_u32 v15, {L_AP}, v15
v_lshlrev_b32 v10, 2, v10
s_mov_b64 exec, 7
ds_write_b32 v13, v14 offset:{L_TS}
ds_write_b32 v13, v15 offset:{L_TA}
ds_write_b32 v13, v11 offset:{L_TC}
ds_write_b32 v10, v12 offset:{L_RK}
s_mov_b64 exec, 15
v_mul_lo_u32 v14, v1, s50
v_add_u32 v14, {48*CS}, v14
v_mov_b32 v15, {L_AP + 48*APS}
v_mov_b32 v11, s50
ds_write_b32 v4, v14 offset:{L_TS}
ds_write_b32 v4, v15 offset:{L_TA}
ds_write_b32 v4, v11 offset:{L_TC}
s_mov_b64 exec, -1
s_waitcnt lgkmcnt(0)
s_barrier
v_lshlrev_b32 v4, 4, v2
ds_read_b32 v8, v4 offset:{L_TC}
v_cmp_gt_u32 vcc, 13, v2
s_waitcnt lgkmcnt(0)
v_add_u32 v8, 1, v8
v_lshrrev_b32 v8, 1, v8
v_cndmask_b32 v8, v5, v8, vcc
v_mov_b32 v9, v8
""")
    scan(a, 9, steps16_only=True)
    a(f"""
s_nop 0
v_readlane_b32 s14, v9, 15
v_sub_u32 v10, v9, v8
s_add_u32 s15, s3, 1
s_mul_i32 s40, s14, s3
s_mul_i32 s41, s14, s15
s_lshr_b32 s40, s40, 4
s_lshr_b32 s41, s41, 4
s_sub_u32 s{S_IT}, s41, s40
s_cmp_eq_u32 s{S_IT}, 0
s_cbranch_scc1 K2_LOOP_DONE
v_cmp_ge_u32_e64 s[42:43], s40, v9
v_subrev_u32 v11, s40, v10
s_and_b32 s42, s42, 0x1fff
s_bcnt1_i32_b32 s42, s42
v_add_u32 v12, -1, v11
v_cmp_gt_u32 vcc, 63, v12
v_cmp_ne_u32_e64 s[44:45], 0, v8
v_mov_b32 v12, 1
v_mov_b32 v13, 0
s_and_b64 vcc, vcc, s[44:45]
v_lshlrev_b64 v[12:13], v11, v[12:13]
v_readlane_b32 s43, v10, s42
v_cndmask_b32 v12, v5, v12, vcc
v_cndmask_b32 v13, v5, v13, vcc
""")
    for d in (1, 2, 4, 8):
        a("s_nop 0")
        a(f"v_or_b32_dpp v12, v12, v12 row_shr:{d} row_mask:0xf bank_mask:0xf")
        a(f"v_or_b32_dpp v13, v13, v13 row_shr:{d} row_mask:0xf bank_mask:0xf")
    a(f"""
s_sub_u32 s43, s40, s43
s_lshl_b32 s44, s42, 4
v_lshl_add_u32 v{VTK}, v3, 2, s44
v_and_b32 v{VTE}, 12, v2
v_add_u32 v{VTE}, s44, v{VTE}
v_mov_b32 v{VTA}, s44
v_readlane_b32 s{S_MASK}, v12, 15
v_readlane_b32 s{S_MASK+1}, v13, 15
ds_read_b32 v{VK}, v{VTK} offset:{L_TS}
ds_read_b32 v{VE}, v{VTE} offset:{L_TS}
""")
    load_bop(a)
    a(f"""
s_bfm_b64 s[46:47], s{S_IT}, 0
s_and_b64 s[{S_MASK}:{S_MASK+1}], s[{S_MASK}:{S_MASK+1}], s[46:47]
s_bitset1_b64 s[{S_MASK}:{S_MASK+1}], s{S_IT}
s_lshl_b32 s45, s43, 3
s_add_u32 s45, s45, {L_KEYS}
v_lshl_add_u32 v{VK}, v{VK}, 2, s45
s_lshl_b32 s45, s43, 4
s_add_u32 s45, s45, {L_EA}
v_lshl_add_u32 v{VE}, v{VE}, 3, s45
""")
    read_keys(a, IDX[0], IDX[1], 0)
    read_ea(a, 0)
    a(f"""
v_add_u32 v{VK}, 8, v{VK}
s_bitcmp1_b32 s{S_MASK}, 1
s_cbranch_scc0 K2_P1
""")
    ev_k(a, 0)
    a(f"""
K2_P1:
v_mov_b32 v25, v{IDX[0]+1}
v_mov_b32 v27, v{IDX[0]+1}
""")
    read_keys(a, 24, 26, 0)
    a(f"""
v_lshlrev_b32 v4, 9, v3
v_lshl_add_u32 v4, v2, 4, v4
s_lshl_b32 s45, s42, 11
s_add_u32 s45, s45, {L_ACC}
s_add_u32 s46, s45, 2048
v_add_u32 v{VFN}, s46, v4
s_cmp_eq_u32 s43, 0
s_cbranch_scc1 K2_P2
s_lshl_b32 s45, s3, 11
s_add_u32 s45, s45, {L_EXT}
s_lshl_b32 s46, 1, s3
s_lshl_b32 s47, s42, 2
v_mov_b32 v6, s46
v_mov_b32 v7, s47
s_mov_b64 exec, 1
ds_or_b32 v7, v6 offset:{L_MASK}
s_mov_b64 exec, -1
K2_P2:
v_add_u32 v{VF}, s45, v4
s_waitcnt lgkmcnt(0)
""")
    for l in gathers(0, IDX[0], IDX[1]) + gathers(1, 24, 26):
        a(l)
    a(f"""
v_add_u32 v{VK}, 8, v{VK}
s_bitcmp1_b32 s{S_MASK}, 2
s_cbranch_scc0 K2_P3
""")
    ev_k(a, 0)
    a("K2_P3:")
    read_keys(a, IDX[0], IDX[1], 0)
    for i in range(8):
        a(f"v_mov_b32 v{DEN+i}, 0")
    d0, d1 = ops(0), ops(1)
    a("s_waitcnt vmcnt(2) lgkmcnt(0)")
    for x in ("M0", "M1", "M2", "M3", "L0", "L1"):
        a(d0[x])
    a(f"""
v_add_u32 v{VE}, 16, v{VE}
s_bitcmp1_b32 s{S_MASK}, 1
s_cbranch_scc0 K2_P4
""")
    ev_e(a, 0)
    a(f"""
K2_P4:
v_add_u32 v{VK}, 8, v{VK}
s_bitcmp1_b32 s{S_MASK}, 3
s_cbranch_scc0 K2_P5
""")
    ev_k(a, 0)
    a("K2_P5:")
    read_ea(a, 0)
    read_keys(a, IDX[0], IDX[1], 0)
    for i in range(8):
        a(d1[f"E{i}"])
    a("s_waitcnt vmcnt(2) lgkmcnt(0)")
    for x in ("M0", "M1", "M2", "M3", "L0", "L1"):
        a(d1[x])
    a(f"""
v_add_u32 v{VK}, 8, v{VK}
v_add_u32 v{VE}, 16, v{VE}
s_nop 3
""")
    a("K2_LOOP:")
    for k in range(2):
        d = ops(k)
        a(f"""
s_and_b32 s14, s{S_MASK}, 0x14
s_cbranch_scc1 K2_EV{k}
K2_RET{k}:
""")
        read_keys(a, IDX[0], IDX[1], 8 * k)
        read_ea(a, 16 * k)
        if k == 1:
            a(f"v_add_u32 v{VK}, 16, v{VK}")
            a(f"v_add_u32 v{VE}, 32, v{VE}")
        for x in ORDER.split():
            a(d[x])
        a(f"""
s_lshr_b64 s[{S_MASK}:{S_MASK+1}], s[{S_MASK}:{S_MASK+1}], 1
s_bitcmp1_b32 s{S_MASK}, 0
s_cbranch_scc1 K2_FL{k}
""")
        if k == 1:
            a("s_branch K2_LOOP")
        else:
            a("K2_FRET0:")
    for k in range(2):
        a(f"""
K2_EV{k}:
s_bitcmp1_b32 s{S_MASK}, 4
s_cbranch_scc0 K2_EV{k}B
""")
        ev_k(a, 8 * k)
        a(f"""
K2_EV{k}B:
s_bitcmp1_b32 s{S_MASK}, 2
s_cbranch_scc0 K2_RET{k}
""")
        ev_e(a, 16 * k)
        a(f"s_branch K2_RET{k}")
        a(f"""
K2_FL{k}:
ds_write_b128 v{VF}, v[{DEN}:{DEN+3}]
ds_write_b128 v{VF}, v[{NUM}:{NUM+3}] offset:256
s_cmp_eq_u64 s[{S_MASK}:{S_MASK+1}], 1
s_cbranch_scc1 K2_LOOP_DONE
v_mov_b32 v{VF}, v{VFN}
v_add_u32 v{VFN}, 2048, v{VFN}
""")
        for i in range(8):
            a(f"v_mov_b32 v{DEN+i}, 0")
        a(f"s_branch {'K2_FRET0' if k == 0 else 'K2_LOOP'}")
    a(f"""
K2_LOOP_DONE:
s_waitcnt vmcnt(0) lgkmcnt(0)
s_barrier
ds_read_b32 v8, v{VLOC} offset:{L_RK}
ds_read_b32 v9, v{VLOC} offset:{L_CNT}
s_lshl_b32 s14, s19, 6
v_lshl_add_u32 v10, v3, 4, s14
s_waitcnt lgkmcnt(0)
v_cmp_ne_u32 vcc, 0, v9
s_and_saveexec_b64 s[40:41], vcc
s_cbranch_execz K2_COMB_DONE
s_mov_b32 s15, 0
K2_COMB:
v_lshrrev_b32 v11, 2, v8
v_lshlrev_b32 v11, 2, v11
ds_read_b32 v12, v11 offset:{L_MASK}
v_lshl_add_u32 v13, v8, 9, v10
v_add_u32 v13, {L_ACC}, v13
ds_read_b128 v[16:19], v13
ds_read_b128 v[20:23], v13 offset:256
v_and_b32 v14, 3, v8
v_lshl_add_u32 v14, v14, 9, v10
v_add_u32 v14, {L_EXT}, v14
s_mov_b64 s[42:43], exec
K2_COMB_X:
s_waitcnt lgkmcnt(0)
""")
    for i in range(8):
        a(f"v_add_f32 v{TOT+i}, v{TOT+i}, v{16+i}")
    a(f"""
v_cmp_ne_u32 vcc, 0, v12
s_and_b64 exec, exec, vcc
s_cbranch_execz K2_COMB_E
v_ffbl_b32 v13, v12
v_add_u32 v11, -1, v12
v_and_b32 v12, v12, v11
v_lshl_add_u32 v13, v13, 11, v14
ds_read_b128 v[16:19], v13
ds_read_b128 v[20:23], v13 offset:256
s_branch K2_COMB_X
K2_COMB_E:
s_mov_b64 exec, s[42:43]
v_cmp_eq_u32 vcc, {48*4}, v{VLOC}
s_add_u32 s15, s15, 1
s_and_b64 exec, exec, vcc
s_cbranch_execz K2_COMB_DONE
v_mov_b32 v8, s15
s_cmp_lt_u32 s15, 4
s_cbranch_scc1 K2_COMB
K2_COMB_DONE:
s_mov_b64 exec, -1
s_cmp_lg_u32 s{S_MODE}, 0
s_cbranch_scc1 K2_SLOW_NEXT
K2_FINAL:
""")
    eps = 0x53863f
    import struct
    eps = struct.unpack("<I", struct.pack("<f", 1e-6 * 2.0**60))[0]
    for t in range(4):
        a(f"v_add_f32 v{TOT+t}, {eps:#x}, v{TOT+t}")
    for t in range(4):
        a(f"v_rcp_f32 v{TOT+t}, v{TOT+t}")
    a(f"""
v_lshlrev_b32 v8, 16, v{VXE}
v_and_b32 v9, 0xffff0000, v{VXE}
v_lshlrev_b32 v10, 16, v{VXE+1}
v_and_b32 v11, 0xffff0000, v{VXE+1}
""")
    for t in range(4):
        a(f"v_fma_f32 v{VU+t}, v{TOT+4+t}, v{TOT+t}, v{VU+t}")
    for t in range(4):
        a(f"v_max_f32 v{VU+t}, 0, v{VU+t}")
    for t in range(4):
        a(f"v_add_f32 v{8+t}, v{8+t}, v{VU+t}")
    a(f"""
v_cvt_pk_bf16_f32 v8, v8, v9
v_cvt_pk_bf16_f32 v9, v10, v11
buffer_store_dwordx2 v[8:9], v{VOUT}, s[36:39], 0 offen
K2_END:
s_endpgm
K2_SLOW_ENTRY:
v_mov_b32 v4, 0
ds_max_u32 v4, v60 offset:{L_MAXL}
s_waitcnt lgkmcnt(0)
s_barrier
ds_read_b32 v5, v4 offset:{L_MAXL}
s_mov_b32 s{S_MODE}, 1
s_mov_b32 s{S_I}, 0
s_mov_b32 s{S_MO}, 0
s_waitcnt lgkmcnt(0)
v_readfirstlane_b32 s{S_ML}, v5
s_branch K2_SLOW_BATCH
K2_SLOW_NEXT:
s_add_u32 s{S_I}, s{S_I}, 1
s_cmp_lt_u32 s{S_I}, 64
s_cbranch_scc1 K2_SLOW_BATCH
s_mov_b32 s{S_I}, 0
s_add_u32 s{S_MO}, s{S_MO}, 16
s_cmp_ge_u32 s{S_MO}, s{S_ML}
s_cbranch_scc1 K2_FINAL
K2_SLOW_BATCH:
s_barrier
""")
    lds_init(a)
    a(f"""
s_mov_b64 s[76:77], 0
v_mov_b32 v41, 1
s_waitcnt lgkmcnt(0)
s_barrier
s_cmp_lg_u32 s3, 0
s_cbranch_scc1 K2_NOOVF
s_lshl_b32 s14, s{S_I}, 2
v_add_u32 v42, s14, v3
s_lshl_b32 s15, s2, 2
v_lshl_add_u32 v4, v42, 10, s15
buffer_load_dword v5, v4, s[32:35], 0 offen
s_mov_b32 s15, {RECB}
v_mul_lo_u32 v42, v42, s15
v_add_u32 v43, s{S_MO}, v2
v_add_u32 v42, {REC_OFF - T_OFF}, v42
s_waitcnt vmcnt(0)
v_and_b32 v4, 0xffff, v5
v_add_u32 v4, v4, v43
v_mul_u32_u24 v4, 12, v4
v_add_u32 v4, v4, v42
v_lshrrev_b32 v5, 16, v5
v_cmp_gt_u32 vcc, v5, v43
s_and_saveexec_b64 s[78:79], vcc
s_cbranch_execz K2_SLOW_S
buffer_load_dwordx3 v[8:10], v4, s[32:35], 0 offen
s_waitcnt vmcnt(0)
""")
    place_atomic(a, 8, 4, 41)
    a("s_waitcnt lgkmcnt(0)")
    place_write(a, 8, 4, None, 76)
    a("""
K2_SLOW_S:
s_mov_b64 exec, -1
s_branch K2_NOOVF
""")
    return a.text()


def desc(name, vgpr, sgpr):
    return f""".amdhsa_kernel {name}
  .amdhsa_next_free_vgpr {vgpr}
  .amdhsa_next_free_sgpr {sgpr}
  .amdhsa_accum_offset {(vgpr + 3) // 4 * 4}
  .amdhsa_group_segment_fixed_size 0
  .amdhsa_kernarg_size 96
  .amdhsa_user_sgpr_count 2
  .amdhsa_user_sgpr_kernarg_segment_ptr 1
  .amdhsa_system_sgpr_workgroup_id_x 1
.end_amdhsa_kernel
"""


HEADER = open("standalone__edge_featured_mpnn_gatedgcn__graph.s.ref").read().split("; Override launch")[0]


def main():
    out = HEADER
    out += f"; @launch kernel=bin_kernel grid=(256,1,1) block=(1024,1,1) lds={K1_LDS}\n"
    out += f"; @launch kernel=gate_kernel grid=(256,1,1) block=(1024,1,1) lds={K2_LDS}\n"
    out += '.amdgcn_target "amdgcn-amd-amdhsa--gfx950"\n.text\n'
    out += ".globl bin_kernel\n.p2align 8\n.type bin_kernel,@function\n" + k1()
    out += ".globl gate_kernel\n.p2align 8\n.type gate_kernel,@function\n" + k2()
    out += '.section .rodata,"a"\n.p2align 6\n' + desc("bin_kernel", 64, 64)
    out += ".p2align 6\n" + desc("gate_kernel", 128, 96)
    open(sys.argv[1], "w").write(out)


main()
```

```python
import sys
import struct

N = 12500
E = 800000
QCH = 782
QH = QCH // 2
CH = QCH * 4
NQ = E // 4
RECB = CH * 12
TAB_ROWS = N + 1
TAB_BYTES = TAB_ROWS * 256
T_OFF = 0x310000
REC_OFF = 0x350000
TR_BYTES = (REC_OFF - T_OFF) + 256 * RECB
BIG = 0x40000000
NLOG2E = 0xbfb8aa3b
CAP = 128
CS = 132
XSS = 144

OPT = dict(st_rec="nt", st_tab="nt", prefetch="2", prio="1", order="a", ld1="", ld2="", ldp="")
for a_ in sys.argv[2:]:
    k_, v_ = a_.split("=")
    OPT[k_] = v_
STAMPS = bool(OPT.get("stamps"))
DBG_OFF = 0x1000000


class Asm:
    def __init__(self, vs, kidx):
        self.L = []
        self.vs = vs
        self.kidx = kidx

    def __call__(self, s):
        for l in s.strip("\n").split("\n"):
            l = l.strip()
            if not l:
                continue
            if l.startswith("@"):
                if STAMPS:
                    self.special(l)
                continue
            if l.endswith(":"):
                self.L.append(l)
            else:
                self.L.append("    " + l)

    def special(self, l):
        vs = self.vs
        if l.startswith("@S") or l.startswith("@C"):
            self(f"{'s_memtime' if l[1] == 'C' else 's_memrealtime'} s[98:99]")
            self("s_waitcnt lgkmcnt(0)")
            self(f"v_writelane_b32 v{vs}, s98, {int(l[2:])}")
        elif l.startswith("@W"):
            self("s_waitcnt " + l[2:])
        elif l.startswith("@V"):
            r, i = l[2:].split(",")
            self(f"v_writelane_b32 v{vs}, {r}, {i}")
        elif l.startswith("@OUT"):
            self(f"""
s_mov_b64 exec, -1
s_lshl_b32 s100, s2, 4
s_add_u32 s100, s100, s3
s_lshl_b32 s100, s100, 8
s_add_u32 s100, s100, {DBG_OFF + self.kidx * 0x100000:#x}
v_and_b32 v{vs+1}, 63, v0
v_lshl_add_u32 v{vs+1}, v{vs+1}, 2, s100
global_store_dword v{vs+1}, v{vs}, s[16:17]
""")

    def text(self):
        return "\n".join(self.L) + "\n"


def srd(a, d, lo, hi, nbytes, stride=0):
    a(f"s_mov_b32 s{d}, s{lo}")
    a(f"s_and_b32 s{d+1}, s{hi}, 0xffff")
    if stride:
        a(f"s_or_b32 s{d+1}, s{d+1}, {stride << 16:#x}")
    a(f"s_mov_b32 s{d+2}, {nbytes}")
    a(f"s_mov_b32 s{d+3}, 0x20000")


def scan(a, v, steps16_only=False, op="add_u32"):
    for d in (1, 2, 4, 8):
        a("s_nop 1")
        a(f"v_{op}_dpp v{v}, v{v}, v{v} row_shr:{d} row_mask:0xf bank_mask:0xf")
    if not steps16_only:
        a("s_nop 1")
        a(f"v_{op}_dpp v{v}, v{v}, v{v} row_bcast:15 row_mask:0xa bank_mask:0xf")
        a("s_nop 1")
        a(f"v_{op}_dpp v{v}, v{v}, v{v} row_bcast:31 row_mask:0xc bank_mask:0xf")


SDWA_B0 = "dst_sel:DWORD dst_unused:UNUSED_PAD src0_sel:DWORD src1_sel:BYTE_0"


def tr_reads(a, vaddr, base, r0):
    for mat in range(2):
        for t in range(2):
            for s in range(2):
                r = r0 + 16 * mat + 8 * t + 4 * s
                o = base + mat * 8192 + s * 4096 + t * 32
                a(f"ds_read_b64_tr_b16 v[{r}:{r+1}], v{vaddr} offset:{o}")
                a(f"ds_read_b64_tr_b16 v[{r+2}:{r+3}], v{vaddr} offset:{o + 512}")


def tile_mfmas(a, r0, x0, d0):
    for s in range(2):
        for mat in range(2):
            for t in range(2):
                f = r0 + 16 * mat + 8 * t + 4 * s
                d = d0 + 8 * mat + 4 * t
                c = "0" if s == 0 else f"v[{d}:{d+3}]"
                a(f"v_mfma_f32_16x16x32_bf16 v[{d}:{d+3}], v[{f}:{f+3}], v[{x0+4*s}:{x0+4*s+3}], {c}")


K1_W = 0
K1_XS = 16384
K1_HIST = K1_XS + 64 * XSS
K1_START = K1_HIST + 1024
K1_STAGE = K1_START + 1024
K1_LDS = K1_STAGE + RECB + 32


def k1():
    a = Asm(120, 0)
    a(f"""
bin_kernel:
s_cmp_ge_u32 s2, 256
s_cbranch_scc1 K1_END
@S0
@C30
s_load_dwordx8 s[4:11], s[0:1], 0
s_load_dwordx2 s[12:13], s[0:1], 40
s_load_dwordx2 s[14:15], s[0:1], 64
s_load_dwordx2 s[16:17], s[0:1], 88
v_readfirstlane_b32 s3, v0
s_mul_i32 s45, s2, {QCH}
v_add_u32 v4, s45, v0
v_add_u32 v5, {QH}, v4
v_cmp_gt_u32 vcc, {QH}, v0
s_mov_b32 s46, {NQ}
v_cmp_gt_u32_e64 s[50:51], s46, v5
v_lshlrev_b32 v4, 4, v4
v_lshlrev_b32 v5, 4, v5
v_mov_b32 v6, {BIG:#x}
s_mov_b64 s[48:49], vcc
s_and_b64 s[50:51], s[50:51], vcc
s_lshr_b32 s3, s3, 6
v_cndmask_b32 v4, v6, v4, vcc
v_cndmask_b32_e64 v5, v6, v5, s[50:51]
v_and_b32 v7, 255, v0
v_lshlrev_b32 v52, 4, v7
s_mul_i32 s44, s2, {49*128}
v_lshl_add_u32 v53, v0, 4, s44
v_cmp_gt_u32 vcc, 392, v0
s_cmp_lt_u32 s3, 4
s_mov_b32 s35, 0x20000
s_mov_b32 s34, {E*4}
v_cndmask_b32 v53, v6, v53, vcc
s_waitcnt lgkmcnt(0)
s_cselect_b64 s[12:13], s[12:13], s[14:15]
s_mov_b32 s32, s10
s_and_b32 s33, s11, 0xffff
buffer_load_dwordx4 v[8:11], v4, s[32:35], 0 offen {OPT['ld1']}
buffer_load_dwordx4 v[12:15], v5, s[32:35], 0 offen {OPT['ld1']}
v_lshlrev_b32 v7, 2, v7
v_mov_b32 v6, 0
ds_write_b32 v7, v6 offset:{K1_HIST}
s_add_u32 s14, s12, 4096
s_addc_u32 s15, s13, 0
""")
    srd(a, 20, 4, 5, N * 128)
    srd(a, 28, 8, 9, E * 4)
    srd(a, 24, 6, 7, E * 8)
    a(f"""
s_waitcnt lgkmcnt(0)
@S1
s_barrier
global_load_dwordx4 v[40:43], v52, s[12:13]
global_load_dwordx4 v[44:47], v52, s[14:15]
buffer_load_dwordx4 v[48:51], v53, s[20:23], 0 offen
buffer_load_dwordx4 v[16:19], v4, s[28:31], 0 offen {OPT['ld1']}
buffer_load_dwordx4 v[20:23], v5, s[28:31], 0 offen {OPT['ld1']}
v_lshlrev_b32 v118, 1, v4
v_lshlrev_b32 v119, 1, v5
v_and_b32 v1, 63, v0
v_and_b32 v2, 15, v0
v_bfe_u32 v3, v0, 4, 2
""")
    srd(a, 36, 16, 17, TAB_BYTES)
    a(f"""
s_lshl_b32 s46, s2, 10
s_add_u32 s46, s46, {T_OFF:#x}
s_add_u32 s40, s16, s46
s_addc_u32 s41, s17, 0
s_and_b32 s41, s41, 0xffff
s_mov_b32 s42, 1024
s_mov_b32 s43, 0x20000
s_mul_i32 s46, s2, {RECB}
s_add_u32 s46, s46, {REC_OFF:#x}
s_add_u32 s52, s16, s46
s_addc_u32 s53, s17, 0
s_and_b32 s53, s53, 0xffff
s_mov_b32 s54, {RECB}
s_mov_b32 s55, 0x20000
s_lshr_b32 s18, s3, 1
s_lshl_b32 s18, s18, 4
s_and_b32 s19, s3, 1
s_lshr_b32 s46, s3, 2
s_lshl_b32 s46, s46, 13
v_add_u32 v4, s46, v52
v_lshrrev_b32 v5, 3, v0
v_mul_u32_u24 v5, {XSS}, v5
v_and_b32 v6, 7, v0
v_lshl_add_u32 v5, v6, 4, v5
v_mov_b32 v6, 1
@S2
s_waitcnt vmcnt(6)
@S3
""")
    for i in range(4):
        a(f"v_lshlrev_b32_sdwa v{52+i}, 2, v{8+i} {SDWA_B0}")
    a("s_mov_b64 exec, s[48:49]")
    for i in range(4):
        a(f"ds_add_rtn_u32 v{60+i}, v{52+i}, v6 offset:{K1_HIST}")
    a("s_mov_b64 exec, -1")
    a("s_waitcnt vmcnt(5)")
    for i in range(4, 8):
        a(f"v_lshlrev_b32_sdwa v{52+i}, 2, v{8+i} {SDWA_B0}")
    a("s_mov_b64 exec, s[50:51]")
    for i in range(4, 8):
        a(f"ds_add_rtn_u32 v{60+i}, v{52+i}, v6 offset:{K1_HIST}")
    a("s_mov_b64 exec, -1")
    a(f"""
buffer_load_dwordx4 v[24:27], v118, s[24:27], 0 offen {OPT['ld1']}
buffer_load_dwordx4 v[28:31], v118, s[24:27], 0 offen offset:16 {OPT['ld1']}
buffer_load_dwordx4 v[32:35], v119, s[24:27], 0 offen {OPT['ld1']}
buffer_load_dwordx4 v[36:39], v119, s[24:27], 0 offen offset:16 {OPT['ld1']}
""")
    for i in range(8):
        a(f"v_lshrrev_b32 v{8+i}, 6, v{8+i}")
    a(f"""
s_waitcnt vmcnt(6)
ds_write_b128 v4, v[40:43] offset:{K1_W}
ds_write_b128 v4, v[44:47] offset:{K1_W + 4096}
ds_write_b128 v5, v[48:51] offset:{K1_XS}
v_lshlrev_b32 v7, 4, v1
v_lshrrev_b32 v4, 2, v2
v_lshl_add_u32 v4, v3, 3, v4
v_lshlrev_b32 v4, 7, v4
v_and_b32 v5, 3, v2
v_lshl_add_u32 v4, v5, 3, v4
s_lshl_b32 s46, s19, 6
v_add_u32 v4, s46, v4
v_add_u32 v116, s18, v2
v_mul_u32_u24 v5, {XSS}, v116
v_lshl_add_u32 v5, v3, 4, v5
s_waitcnt lgkmcnt(0)
@S4
s_barrier
@S5
ds_read_b128 v[40:43], v7 offset:{K1_HIST}
""")
    tr_reads(a, 4, K1_W, 68)
    a(f"""
s_waitcnt lgkmcnt(15)
v_add_u32 v45, v40, v41
v_add_u32 v46, v45, v42
v_add_u32 v48, v46, v43
v_mov_b32 v49, v48
""")
    scan(a, 48)
    a(f"""
v_sub_u32 v44, v48, v49
v_add_u32 v47, v44, v46
v_add_u32 v46, v44, v45
v_add_u32 v45, v44, v40
ds_write_b128 v7, v[44:47] offset:{K1_START}
""")
    for i in range(8):
        a(f"ds_read_b32 v{52+i}, v{52+i} offset:{K1_START}")
    for i in range(4):
        a(f"v_lshl_or_b32 v{48+i}, v{40+i}, 16, v{44+i}")
    a(f"""
ds_read_b128 v[40:43], v5 offset:{K1_XS}
ds_read_b128 v[44:47], v5 offset:{K1_XS + 64}
s_waitcnt vmcnt(4)
""")
    for i in range(8):
        a(f"v_lshl_or_b32 v{16+i}, v{16+i}, 8, v{8+i}")
    a("s_movk_i32 s46, " + str(K1_STAGE))
    a("s_waitcnt lgkmcnt(2)")
    for i in range(8):
        a(f"v_add_u32 v{52+i}, v{52+i}, v{60+i}")
        a(f"v_mad_u32_u24 v{52+i}, v{52+i}, 12, s46")
    a("s_waitcnt lgkmcnt(0)")
    tile_mfmas(a, 68, 40, 100)
    a("s_mov_b64 exec, s[48:49]")
    for i in range(4):
        a(f"ds_write_b32 v{52+i}, v{16+i} offset:8")
    a("s_mov_b64 exec, s[50:51]")
    for i in range(4, 8):
        a(f"ds_write_b32 v{52+i}, v{16+i} offset:8")
    a(f"""
s_mov_b64 exec, -1
s_mul_i32 s44, s2, 49
v_add_u32 v117, s44, v116
v_lshlrev_b32 v4, 8, v117
v_lshl_add_u32 v4, v3, 4, v4
s_lshl_b32 s46, s19, 7
v_add_u32 v4, s46, v4
v_cmp_gt_u32 vcc, 49, v116
v_mov_b32 v5, {BIG:#x}
s_mov_b32 s56, 0xffff0000
s_mov_b32 s57, 0x7fffffff
v_cndmask_b32 v4, v5, v4, vcc
v_cmp_eq_u32 vcc, {N}, v117
v_mov_b32 v5, 0x7f000000
@S6
""")
    def near(o, hsrc, lo):
        return [f"v_and_b32 v{o}, s57, v{hsrc}",
                f"v_min_u32 v{o}, v5, v{o}",
                f"v_add_u32 v{o}, 0x8000, v{o}",
                f"v_sub_u32_e64 v{o}, v{o}, v{lo} clamp",
                f"v_and_or_b32 v{o}, v{o}, s56, v{lo}",
                f"v_bfi_b32 v{o}, s57, v{o}, v{hsrc}"]
    seqs = []
    for t in range(2):
        b, h, o, tm = 100 + 4 * t, 108 + 4 * t, 68 + 4 * t, 8 + 4 * t
        q = [f"v_cvt_pk_bf16_f32 v{tm}, v{h}, v{h}", f"v_and_b32 v{tm}, 0xffff, v{tm}"]
        q += near(o + 2, h + 2, tm)
        q += [f"v_lshrrev_b32 v{tm}, 16, v{o+2}"]
        q += near(tm + 1, h + 1, tm)
        q += [f"v_lshrrev_b32 v{tm}, 16, v{tm+1}"]
        q += near(o + 3, h + 3, tm)
        q += [f"v_mul_f32 v{b+i}, {NLOG2E:#x}, v{b+i}" for i in range(4)]
        q += [f"v_med3_f32 v{b+i}, v{b+i}, v5, -v5" for i in range(4)]
        q += [f"v_cvt_pk_bf16_f32 v{o}, v{b}, v{b+1}", f"v_cvt_pk_bf16_f32 v{o+1}, v{b+2}, v{b+3}"]
        q += [f"v_cndmask_b32 v{o}, v{o}, v6, vcc", f"v_cndmask_b32 v{o+1}, v{o+1}, v6, vcc"]
        seqs.append(q)
    a("v_mov_b32 v6, 0x7f007f00")
    for x, y in zip(*seqs):
        a(x)
        a(y)
    for t in range(2):
        o = 68 + 4 * t
        a(f"buffer_store_dwordx4 v[{o}:{o+3}], v4, s[36:39], 0 offen offset:{64*t} {OPT['st_tab']}")
    a("""
@S7
s_waitcnt vmcnt(4)
@S8
s_mov_b64 exec, s[48:49]
""")
    for i in range(4):
        a(f"ds_write2_b32 v{52+i}, v{24+2*i}, v{25+2*i} offset0:0 offset1:1")
    a("s_waitcnt vmcnt(2)")
    a("s_mov_b64 exec, s[50:51]")
    for i in range(4, 8):
        a(f"ds_write2_b32 v{52+i}, v{24+2*i}, v{25+2*i} offset0:0 offset1:1")
    a(f"""
s_mov_b64 exec, -1
s_cmp_lg_u32 s3, 0
s_cbranch_scc1 K1_NOT
buffer_store_dwordx4 v[48:51], v7, s[40:43], 0 offen {OPT['st_rec']}
K1_NOT:
v_cmp_gt_u32 vcc, {RECB//16 - 2048}, v0
v_lshlrev_b32 v4, 4, v0
s_movk_i32 s44, 0x2000
s_movk_i32 s45, 0x4000
s_movk_i32 s46, 0x6000
s_mov_b32 s47, 0x8000
s_waitcnt lgkmcnt(0)
@S9
s_barrier
@S10
""")
    for i in range(4):
        a(f"ds_read_b128 v[{8+4*i}:{11+4*i}], v4 offset:{K1_STAGE + 8192*i}")
    a(f"""
s_mov_b64 exec, vcc
ds_read_b128 v[24:27], v4 offset:{K1_STAGE + 32768}
s_mov_b64 exec, -1
""")
    for i in range(4):
        a(f"s_waitcnt lgkmcnt({4-i})")
        so = "0" if i == 0 else f"s{43+i}"
        a(f"buffer_store_dwordx4 v[{8+4*i}:{11+4*i}], v4, s[52:55], {so} offen {OPT['st_rec']}")
    a(f"""
s_mov_b64 exec, vcc
s_cbranch_execz K1_DONE
s_waitcnt lgkmcnt(0)
buffer_store_dwordx4 v[24:27], v4, s[52:55], s47 offen {OPT['st_rec']}
K1_DONE:
@S11
@Wvmcnt(0)
@S12
@S13
@C31
@OUT
K1_END:
s_endpgm
""")
    return a.text()


L_CNT = 0
L_MASK = 256
L_MAXL = 324
L_ZERO = 384
L_TS = 512
L_TC = 1536
L_RK = 1792
L_EA = 2048
EA_BYTES = 49 * CS * 8 + 32
L_KEYS = L_EA + EA_BYTES
KEY_BYTES = 49 * CS * 4 + 16
L_ACC = L_KEYS + KEY_BYTES
L_EXT = L_ACC + 52 * 512
L_W = L_EXT
US = 272
L_AP = L_EXT + 8 * 2048
L_U = L_AP + 49 * US
L_XS = L_U + 49 * US
L_WC = L_XS + 64 * XSS
K2_LDS = L_WC + 512
NB = 6
MINPS = 7
MAXIT = 62

GB = 8
Y = (80, 88)
HL = 96
MM, SA, UU = 100, 104, 108
DEN, NUM = 112, 116
AOP = (120, 124)
CA = 128
CN = 132
IDX = (136, 138)
NX = 140
VK, VE, VF, VFN = 142, 143, 144, 145
VTK, VTE, NXE, VINC = 146, 147, 148, 149
TOT = 150
VTT = 166
VRA = 174
VCA = 182
VMAXL, VPF = 198, 199
K2_VGPR = 204
S_IT, S_MODE, S_I, S_MO, S_ML, S_CNT = 4, 5, 6, 7, 8, 9
S_K = 10
S_B = 13
S_CM = 56
S_PR = 58
S_CS = 59
S_MASK = 60
S_AM = 62


def stepbuf(p, i):
    return GB + 12 * (p % NB) + 6 * i


def lds_init(a):
    a(f"""
v_mov_b32 v40, 0
v_mov_b32 v41, 0
v_mov_b32 v42, 0
v_mov_b32 v43, 0
v_mov_b32 v44, {N}
v_mov_b32 v45, {N}
v_mov_b32 v46, {N}
v_mov_b32 v47, {N}
v_lshlrev_b32 v48, 4, v0
v_add_u32 v49, {L_KEYS}, v48
""")
    nz = L_KEYS // 16
    for i in range(nz // 512):
        a(f"ds_write_b128 v48, v[40:43] offset:{8192*i}")
    nk = KEY_BYTES // 16
    for i in range(nk // 512):
        a(f"ds_write_b128 v49, v[44:47] offset:{8192*i}")
    r1, r2 = nz % 512, nk % 512
    for r, reg, data, cnt in sorted([(r1, 48, 40, nz), (r2, 49, 44, nk)], reverse=True):
        a(f"v_cmp_gt_u32 vcc, {r}, v0")
        a("s_mov_b64 exec, vcc")
        a(f"ds_write_b128 v{reg}, v[{data}:{data+3}] offset:{8192*(cnt//512)}")
    a("s_mov_b64 exec, -1")


def place_atomic(a, r, ca, four):
    a(f"v_and_b32 v{ca}, 0xfc, v{r+2}")
    a(f"ds_add_rtn_u32 v{r+3}, v{ca}, v{four} offset:{L_CNT}")


def place_write(a, r, ca):
    a(f"v_min_u32 v{r+3}, {CAP*4}, v{r+3}")
    a(f"v_mad_u32_u24 v{ca}, v{ca}, s{S_CS}, v{r+3}")
    a(f"v_lshrrev_b32 v{r+2}, 8, v{r+2}")
    a(f"v_add_u32 v{r+3}, v{ca}, v{ca}")
    a(f"ds_write_b32 v{ca}, v{r+2} offset:{L_KEYS}")
    a(f"ds_write_b64 v{r+3}, v[{r}:{r+1}] offset:{L_EA}")


def ev_k(a, sub):
    a(f"""
v_add_u32 v{VK}, {L_KEYS - sub}, v{NX}
v_add_u32 v4, v{NX+1}, v{IDX[0]+1}
v_add_u32 v{VTK}, 32, v{VTK}
v_add_u32 v{VTE}, 32, v{VTE}
ds_read_b128 v[{CN}:{CN+3}], v4
ds_read_b32 v{NXE}, v{VTE} offset:{L_TS}
ds_read_b64 v[{NX}:{NX+1}], v{VTK} offset:{L_TS + 32}
""")


def ev_e(a, sub):
    a(f"""
v_lshlrev_b32 v{VE}, 1, v{NXE}
v_add_u32 v{VE}, {L_EA - sub}, v{VE}
v_mov_b32 v4, {L_ZERO}
v_pk_mov_b32 v[{CA}:{CA+1}], v[{CN}:{CN+1}], v[{CN}:{CN+1}] op_sel:[0,1]
v_pk_mov_b32 v[{CA+2}:{CA+3}], v[{CN+2}:{CN+3}], v[{CN+2}:{CN+3}] op_sel:[0,1]
v_cndmask_b32_e64 v{VE}, v4, v{VE}, s[{S_AM}:{S_AM+1}]
""")


def gathers(p, i0, i1):
    g0, g1 = stepbuf(p, 0) + 2, stepbuf(p, 1) + 2
    return [f"buffer_load_dwordx4 v[{g0}:{g0+3}], v[{i0}:{i0+1}], s[24:27], 0 idxen offen",
            f"buffer_load_dwordx4 v[{g1}:{g1+3}], v[{i1}:{i1+1}], s[24:27], 0 idxen offen"]


def mfmas(p):
    y = Y[p & 1]
    return [f"v_mfma_f32_16x16x32_bf16 v[{y+4*i}:{y+4*i+3}], v[{AOP[i]}:{AOP[i]+3}], v[{stepbuf(p, i)}:{stepbuf(p, i)+3}], v[{CA}:{CA+3}]"
            for i in range(2)]


def ops(k):
    y = Y[k & 1]
    yn = Y[1 - (k & 1)]
    b0, b1 = stepbuf(k, 0) + 4, stepbuf(k, 1) + 4
    d = {}
    for i in range(8):
        d[f"E{i}"] = f"v_exp_f32 v{yn+i}, v{yn+i}"
    for i in range(4):
        d[f"C{i}"] = f"v_pk_fma_f32 v[{y+2*i}:{y+1+2*i}], v[{y+2*i}:{y+1+2*i}], s[{S_K}:{S_K+1}], s[{S_K}:{S_K+1}] clamp"
        d[f"R{i}"] = f"v_rcp_f32 v{MM+i}, v{MM+i}"
    for i in range(2):
        p0 = f"v[{y+2*i}:{y+1+2*i}]"
        p1 = f"v[{y+4+2*i}:{y+5+2*i}]"
        m = f"v[{MM+2*i}:{MM+1+2*i}]"
        s = f"v[{SA+2*i}:{SA+1+2*i}]"
        u = f"v[{UU+2*i}:{UU+1+2*i}]"
        h0 = f"v[{HL}:{HL+1}]" if i == 0 else f"v[{b0}:{b0+1}]"
        h1 = f"v[{HL+2}:{HL+3}]" if i == 0 else f"v[{b1}:{b1+1}]"
        d[f"m{i}"] = f"v_pk_mul_f32 {m}, {p0}, {p1}"
        d[f"a{i}"] = f"v_pk_add_f32 {s}, {p0}, {p1}"
        d[f"g{i}"] = f"v_pk_mul_f32 {u}, {p1}, {h0}"
        d[f"h{i}"] = f"v_pk_fma_f32 {u}, {p0}, {h1}, {u}"
        d[f"d{i}"] = f"v_pk_fma_f32 v[{DEN+2*i}:{DEN+1+2*i}], {s}, {m}, v[{DEN+2*i}:{DEN+1+2*i}]"
        d[f"n{i}"] = f"v_pk_fma_f32 v[{NUM+2*i}:{NUM+1+2*i}], {u}, {m}, v[{NUM+2*i}:{NUM+1+2*i}]"
    d["Q0"] = f"v_lshlrev_b64 v[{HL}:{HL+1}], 16, v[{b0}:{b0+1}]"
    d["Q1"] = f"v_lshlrev_b64 v[{HL+2}:{HL+3}], 16, v[{b1}:{b1+1}]"
    d["N0"], d["N1"] = mfmas(k + 2)
    d["L0"], d["L1"] = gathers(k, IDX[0], IDX[1])
    d["k0"] = f"ds_read_b32 v{IDX[0]}, v{VK} offset:{8*k}"
    d["k1"] = f"ds_read_b32 v{IDX[1]}, v{VK} offset:{8*k+4}"
    d["e0"] = f"ds_read_b64 v[{AOP[0]}:{AOP[0]+1}], v{VE} offset:{16*k}"
    d["e1"] = f"ds_read_b64 v[{AOP[1]}:{AOP[1]+1}], v{VE} offset:{16*k+8}"
    d["W"] = f"s_waitcnt vmcnt({2*(NB-3)}) lgkmcnt(0)"
    d["S"] = f"s_sub_u32 s{S_CNT}, s{S_CNT}, 1"
    d["A0"] = f"v_add_u32 v{VK}, {8*NB}, v{VK}" if k == NB - 1 else ""
    d["A1"] = f"v_add_u32 v{VE}, v{VINC}, v{VE}" if k == NB - 1 else ""
    return d


ORDERS = {
    "a": "C0 E0 k0 C2 E1 k1 C1 E2 e0 C3 E3 e1 m0 E4 m1 E5 S Q0 Q1 A0 A1 a0 a1 g0 g1 h0 h1 W N0 R0 L0 R1 N1 R2 L1 R3 E6 d0 E7 d1 n0 n1",
    "b": "k0 k1 e0 e1 C0 E0 C2 E1 C1 E2 C3 E3 m0 E4 m1 E5 S Q0 Q1 A0 A1 a0 a1 g0 g1 h0 h1 W N0 R0 R1 N1 R2 R3 L0 L1 E6 d0 E7 d1 n0 n1",
    "c": "C0 E0 k0 C2 E1 k1 C1 E2 e0 C3 E3 e1 m0 Q0 m1 Q1 a0 E4 S a1 E5 A0 A1 g0 g1 h0 h1 W N0 R0 L0 R1 N1 R2 L1 R3 E6 d0 E7 d1 n0 n1",
}


def k2():
    a = Asm(200, 1)
    a(f"""
gate_kernel:
s_cmp_ge_u32 s2, 256
s_cbranch_scc1 K2_END
@S0
@C30
s_load_dwordx2 s[16:17], s[0:1], 88
s_load_dwordx2 s[4:5], s[0:1], 0
s_load_dwordx2 s[6:7], s[0:1], 32
s_load_dwordx4 s[8:11], s[0:1], 48
s_load_dwordx2 s[48:49], s[0:1], 72
v_readfirstlane_b32 s3, v0
v_bfe_u32 v3, v0, 4, 2
s_and_b32 s{S_B}, s2, 7
s_lshl_b32 s{S_B}, s{S_B}, 5
s_lshr_b32 s15, s2, 3
s_or_b32 s{S_B}, s{S_B}, s15
s_lshl_b32 s15, s{S_B}, 2
v_lshl_add_u32 v4, v3, 10, s15
s_lshr_b32 s3, s3, 6
s_lshl_b32 s40, s3, 15
""")
    for k in range(1, 8):
        a(f"s_add_u32 s{40+k}, s40, {4096*k}")
    a(f"""
s_mov_b32 s34, {TR_BYTES}
s_mov_b32 s35, 0x20000
v_and_b32 v50, 255, v0
v_lshlrev_b32 v50, 4, v50
v_lshrrev_b32 v51, 3, v0
v_lshlrev_b32 v87, 8, v51
v_add_u32 v87, s{S_B}, v87
v_lshlrev_b32 v87, 7, v87
v_and_b32 v52, 7, v0
v_lshl_add_u32 v87, v52, 4, v87
v_and_b32 v88, 127, v0
v_lshlrev_b32 v88, 2, v88
s_cmp_lt_u32 s3, 4
s_waitcnt lgkmcnt(0)
s_cselect_b64 s[6:7], s[6:7], s[10:11]
s_add_u32 s32, s16, {T_OFF:#x}
s_addc_u32 s33, s17, 0
s_and_b32 s33, s33, 0xffff
""")
    for k in range(8):
        a(f"buffer_load_dword v{VTT+k}, v4, s[32:35], s{40+k} offen")
    srd(a, 20, 4, 5, N * 128)
    a(f"""
s_add_u32 s14, s6, 4096
s_addc_u32 s15, s7, 0
global_load_dwordx4 v[72:75], v50, s[6:7]
global_load_dwordx4 v[76:79], v50, s[14:15]
buffer_load_dwordx4 v[80:83], v87, s[20:23], 0 offen
global_load_dword v84, v88, s[8:9]
""")
    lds_init(a)
    srd(a, 24, 16, 17, TAB_ROWS, stride=256)
    srd(a, 28, 16, 17, TAB_BYTES)
    srd(a, 36, 48, 49, N * 128)
    a(f"""
v_and_b32 v1, 63, v0
v_and_b32 v2, 15, v0
s_mov_b32 s{S_CS}, {CS}
s_lshl_b32 s40, s3, 5
v_add_u32 v5, s40, v3
s_mov_b32 s41, {RECB}
v_mul_lo_u32 v5, v5, s41
v_mad_u32_u24 v5, v2, 12, v5
v_add_u32 v5, {REC_OFF - T_OFF}, v5
v_add_u32 v6, 16, v2
s_lshr_b32 s40, s3, 2
s_lshl_b32 s40, s40, 13
s_add_u32 s40, s40, {L_W}
v_add_u32 v86, s40, v50
v_mul_u32_u24 v87, {XSS}, v51
v_lshl_add_u32 v87, v52, 4, v87
v_add_u32 v87, {L_XS}, v87
v_add_u32 v88, {L_WC}, v88
@S1
s_waitcnt vmcnt(4)
@S2
""")
    for k in range(8):
        a(f"v_mad_u32_u16 v{VRA+k}, v{VTT+k}, 12, v5")
        a(f"v_cmp_gt_u32_sdwa s[{64+2*k}:{65+2*k}], v{VTT+k}, v2 src0_sel:WORD_1 src1_sel:DWORD")
        a(f"v_cmp_gt_u32_sdwa s[{80+2*k}:{81+2*k}], v{VTT+k}, v6 src0_sel:WORD_1 src1_sel:DWORD")
        if k < 7:
            a(f"v_add_u32 v5, {4*RECB}, v5")
        a(f"s_mov_b64 exec, s[{64+2*k}:{65+2*k}]")
        a(f"buffer_load_dwordx3 v[{8+4*k}:{10+4*k}], v{VRA+k}, s[32:35], 0 offen {OPT['ld2']}")
        a("s_mov_b64 exec, -1")
    a(f"""
@S16
s_waitcnt vmcnt(8)
@S17
ds_write_b128 v86, v[72:75]
ds_write_b128 v86, v[76:79] offset:4096
ds_write_b128 v87, v[80:83]
ds_write_b32 v88, v84
""")
    for k in range(8):
        a(f"s_mov_b64 exec, s[{80+2*k}:{81+2*k}]")
        a(f"s_cbranch_execz K2_M1L{k}")
        a(f"buffer_load_dwordx3 v[{40+4*k}:{42+4*k}], v{VRA+k}, s[32:35], 0 offen offset:192 {OPT['ld2']}")
        a(f"K2_M1L{k}:")
    P = int(OPT["prefetch"])
    stride = 128 if P == 2 else 64
    a(f"""
s_mov_b64 exec, -1
s_lshr_b32 s40, s2, 3
s_mul_i32 s40, s40, {782*128}
v_mul_u32_u24 v7, {stride}, v0
v_add_u32 v7, s40, v7
s_mov_b32 s{S_MODE}, 0
s_lshr_b32 s18, s3, 1
s_lshl_b32 s18, s18, 4
s_and_b32 s19, s3, 1
v_lshrrev_b32 v72, 2, v2
v_lshl_add_u32 v4, v3, 3, v72
v_lshlrev_b32 v4, 7, v4
v_and_b32 v73, 3, v2
v_lshl_add_u32 v4, v73, 3, v4
s_lshl_b32 s40, s19, 6
s_add_u32 s40, s40, {L_W}
v_add_u32 v4, s40, v4
v_add_u32 v6, s18, v2
v_mul_u32_u24 v5, {XSS}, v6
v_lshl_add_u32 v5, v3, 4, v5
v_add_u32 v5, {L_XS}, v5
v_lshl_add_u32 v74, v2, 2, v3
v_lshlrev_b32 v74, 1, v74
v_add_u32 v74, {L_WC}, v74
s_waitcnt lgkmcnt(0)
@S3
s_barrier
@S4
""")
    tr_reads(a, 4, 0, 80)
    a(f"""
ds_read_b128 v[112:115], v5
ds_read_b128 v[116:119], v5 offset:64
ds_read_u16 v76, v74
ds_read_u16 v77, v74 offset:128
ds_read_u16 v78, v74 offset:256
ds_read_u16 v79, v74 offset:384
""")
    for p in range(P):
        if p == P - 1:
            a(f"v_cmp_gt_u32 vcc, {782*128//stride - 512*p}, v0")
            a("s_mov_b64 exec, vcc")
        a(f"buffer_load_dword v{VPF}, v7, s[28:31], 0 offen {OPT['ldp']}")
        if p < P - 1:
            a(f"v_add_u32 v7, {512*stride}, v7")
    a(f"""
s_mov_b64 exec, -1
s_mov_b32 s{S_AM}, 0x22221111
s_mov_b32 s{S_AM+1}, 0x88884444
s_mov_b32 s{S_K}, 0x21800000
s_mov_b32 s{S_K+1}, 0x21800000
v_and_b32 v7, 1, v73
v_lshlrev_b32 v7, 4, v7
v_mov_b32 v75, 0x3f80
v_lshlrev_b32 v7, v7, v75
v_cmp_eq_u32 vcc, v3, v72
v_cmp_gt_u32_e64 s[40:41], 2, v73
v_cmp_le_u32_e64 s[42:43], 2, v73
v_lshlrev_b32 v{IDX[0]+1}, 4, v2
v_cndmask_b32 v7, 0, v7, vcc
v_lshlrev_b32 v{IDX[1]+1}, 4, v2
v_mov_b32 v75, {16*NB}
v_cndmask_b32_e64 v{AOP[0]+2}, 0, v7, s[40:41]
v_cndmask_b32_e64 v{AOP[1]+2}, 0, v7, s[40:41]
v_cndmask_b32_e64 v{AOP[0]+3}, 0, v7, s[42:43]
v_cndmask_b32_e64 v{AOP[1]+3}, 0, v7, s[42:43]
v_cndmask_b32_e64 v{VINC}, 0, v75, s[{S_AM}:{S_AM+1}]
s_movk_i32 s40, {US}
s_lshl_b32 s41, s19, 7
s_add_u32 s41, s41, {L_AP}
v_mad_u32_u24 v4, v6, s40, 0
v_lshl_add_u32 v4, v3, 4, v4
v_add_u32 v4, s41, v4
v_cmp_gt_u32 vcc, 49, v6
s_waitcnt lgkmcnt(4)
""")
    tile_mfmas(a, 80, 112, TOT)
    a("s_waitcnt lgkmcnt(0)")
    for k in range(4):
        a(f"v_lshlrev_b32 v{76+k}, 16, v{76+k}")
    for k in range(4):
        a(f"v_mul_f32 v{76+k}, {NLOG2E:#x}, v{76+k}")
    a(f"v_cvt_pk_bf16_f32 v{CN}, v76, v77")
    a(f"v_cvt_pk_bf16_f32 v{CN+1}, v78, v79")
    a("v_mov_b32 v72, 4")
    for i in range(8):
        a(f"v_mul_f32 v{TOT+i}, {NLOG2E:#x}, v{TOT+i}")
    a(f"""
s_mov_b64 exec, vcc
ds_write_b128 v4, v[{TOT+8}:{TOT+11}] offset:{L_U - L_AP}
ds_write_b128 v4, v[{TOT+12}:{TOT+15}] offset:{L_U - L_AP + 64}
ds_write_b128 v4, v[{TOT}:{TOT+3}]
ds_write_b128 v4, v[{TOT+4}:{TOT+7}] offset:64
@S5
""")
    def A_(j):
        a(f"s_waitcnt vmcnt({7 - j + P})")
        a(f"s_mov_b64 exec, s[{64+2*j}:{65+2*j}]")
        place_atomic(a, 8 + 4 * j, VCA + j, 72)

    def W_(j, n):
        a(f"s_mov_b64 exec, s[{64+2*j}:{65+2*j}]")
        if n is not None:
            a(f"s_waitcnt lgkmcnt({n})")
        place_write(a, 8 + 4 * j, VCA + j)
    A_(0); A_(1); A_(2)
    for j in range(5):
        W_(j, (2, 4, 6, 6, 6)[j])
        A_(j + 3)
    W_(5, 6)
    a(f"s_waitcnt vmcnt({P})")
    a("@S6")
    for j in range(8):
        a(f"s_mov_b64 exec, s[{80+2*j}:{81+2*j}]")
        a(f"s_cbranch_execz K2_M1A{j}")
        place_atomic(a, 40 + 4 * j, VCA + 8 + j, 72)
        a(f"K2_M1A{j}:")
    W_(6, 0)
    W_(7, None)
    for j in range(8):
        a(f"s_mov_b64 exec, s[{80+2*j}:{81+2*j}]")
        a(f"s_cbranch_execz K2_M1W{j}")
        place_write(a, 40 + 4 * j, VCA + 8 + j)
        a(f"K2_M1W{j}:")
    a(f"""
s_mov_b64 exec, -1
v_max3_u32 v4, v{VTT}, v{VTT+1}, v{VTT+2}
v_max3_u32 v5, v{VTT+3}, v{VTT+4}, v{VTT+5}
v_max3_u32 v4, v4, v{VTT+6}, v{VTT+7}
v_max_u32 v4, v4, v5
v_lshrrev_b32 v{VMAXL}, 16, v4
v_cmp_lt_u32 vcc, 32, v{VMAXL}
s_cbranch_vccnz K2_LONG_ENTRY
K2_PLACED:
""")
    for i in range(0, 16, 2):
        a(f"v_pk_mov_b32 v[{TOT+i}:{TOT+i+1}], 0, 0")
    for p in range(NB):
        for i in range(2):
            b = stepbuf(p, i)
            a(f"v_pk_mov_b32 v[{b}:{b+1}], v[{CN}:{CN+1}], v[{CN}:{CN+1}] op_sel:[0,1]")
    a(f"""
s_waitcnt lgkmcnt(0)
@S7
s_barrier
@S8
K2_RANK:
v_lshlrev_b32 v4, 2, v1
ds_read_b32 v80, v4 offset:{L_CNT}
""")
    for i in range(1, 6):
        a(f"s_add_u32 s{40+i}, s3, {8*i}")
    a(f"""
v_cmp_gt_u32_e64 s[52:53], 48, v1
v_lshl_add_u32 v82, v1, 3, s3
v_mul_u32_u24 v86, {CS*4}, v82
v_mul_u32_u24 v87, {US}, v82
v_add_u32 v87, {L_AP}, v87
v_lshlrev_b32 v82, 2, v82
s_waitcnt lgkmcnt(0)
v_cmp_lt_u32 vcc, {CAP*4}, v80
v_lshl_add_u32 v81, v80, 4, v1
v_add_u32 v81, 1, v81
s_cbranch_vccnz K2_SLOW_ENTRY
v_cndmask_b32_e64 v81, 0, v81, s[52:53]
v_readlane_b32 s50, v80, 48
""")
    for i in range(6):
        a(f"v_readlane_b32 s{64+i}, v81, s{3 if i == 0 else 40+i}")
    a("s_add_u32 s51, s50, 28")
    for i in range(6):
        a(f"v_cmp_lt_u32_e64 s[{72+2*i}:{73+2*i}], s{64+i}, v81")
    a("s_lshr_b32 s51, s51, 5")
    for i in range(6):
        a(f"v_writelane_b32 v83, s{64+i}, {i}")
        a(f"s_bcnt1_i32_b64 s{72+2*i}, s[{72+2*i}:{73+2*i}]")
    a(f"""
s_max_u32 s51, s51, {MINPS}
s_cmp_eq_u32 s50, 0
s_cselect_b32 s50, 0, s51
s_lshl_b32 s50, s50, 1
""")
    for i in range(6):
        a(f"v_writelane_b32 v84, s{72+2*i}, {i}")
    a(f"""
v_lshrrev_b32 v83, 6, v83
v_add_u32 v84, 4, v84
v_lshlrev_b32 v85, 3, v84
v_lshlrev_b32 v88, 2, v84
s_mov_b64 exec, 63
ds_write_b64 v85, v[86:87] offset:{L_TS}
ds_write_b32 v88, v83 offset:{L_TC}
ds_write_b32 v82, v84 offset:{L_RK}
s_mov_b64 exec, 15
v_mul_u32_u24 v90, s50, v4
v_add_u32 v90, {48*CS*4}, v90
v_mov_b32 v91, {L_AP + 48*US}
v_mov_b32 v89, s50
v_lshlrev_b32 v5, 3, v1
ds_write_b64 v5, v[90:91] offset:{L_TS}
ds_write_b32 v4, v89 offset:{L_TC}
ds_write_b32 v4, v1 offset:{L_RK + 192}
s_mov_b64 exec, -1
v_lshlrev_b32 v4, 4, v2
v_cmp_gt_u32_e64 s[52:53], 13, v2
s_add_u32 s15, s3, 1
s_waitcnt lgkmcnt(0)
s_barrier
@S9
ds_read_b32 v80, v4 offset:{L_TC}
v_mov_b32 v84, 1
v_mov_b32 v85, 0
s_waitcnt lgkmcnt(0)
v_cmp_ne_u32 vcc, 0, v80
v_add_u32 v80, 1, v80
v_lshrrev_b32 v80, 1, v80
s_and_b64 s[44:45], vcc, s[52:53]
v_max_u32 v80, {MINPS}, v80
v_cndmask_b32_e64 v80, 0, v80, s[44:45]
v_mov_b32 v81, v80
""")
    scan(a, 81, steps16_only=True)
    a(f"""
s_nop 0
v_readlane_b32 s14, v81, 15
v_sub_u32 v82, v81, v80
s_cmp_gt_u32 s14, {MAXIT*8}
s_cbranch_scc1 K2_SLOW_ENTRY
s_mul_i32 s40, s14, s3
s_mul_i32 s41, s14, s15
s_lshr_b32 s40, s40, 3
s_lshr_b32 s41, s41, 3
s_sub_u32 s{S_IT}, s41, s40
s_cmp_eq_u32 s{S_IT}, 0
s_cbranch_scc1 K2_LOOP_DONE
v_cmp_ge_u32_e64 s[42:43], s40, v81
v_subrev_u32 v83, s40, v82
s_and_b32 s42, s42, 0x1fff
s_bcnt1_i32_b32 s42, s42
s_lshl_b32 s46, s42, 5
v_lshl_add_u32 v{VTK}, v3, 3, s46
v_and_b32 v{VTE}, 12, v2
v_lshl_add_u32 v{VTE}, v{VTE}, 1, s46
v_readlane_b32 s43, v82, s42
ds_read_b64 v[86:87], v{VTK} offset:{L_TS}
ds_read_b32 v{NXE}, v{VTE} offset:{L_TS}
ds_read_b64 v[{NX}:{NX+1}], v{VTK} offset:{L_TS + 32}
v_add_u32 v88, -1, v83
v_cmp_gt_u32 vcc, 63, v88
v_lshlrev_b64 v[84:85], v83, v[84:85]
s_and_b64 vcc, vcc, s[44:45]
s_sub_u32 s43, s40, s43
v_cndmask_b32 v84, 0, v84, vcc
v_cndmask_b32 v85, 0, v85, vcc
s_lshl_b32 s45, s43, 3
s_add_u32 s45, s45, {L_KEYS}
""")
    for d in (1, 2, 4, 8):
        a(f"v_or_b32_dpp v84, v84, v84 row_shr:{d} row_mask:0xf bank_mask:0xf")
        a(f"v_or_b32_dpp v85, v85, v85 row_shr:{d} row_mask:0xf bank_mask:0xf")
        a("s_nop 0")
    a(f"""
s_lshl_b32 s47, s43, 4
s_add_u32 s47, s47, {L_EA}
v_readlane_b32 s{S_MASK}, v84, 15
v_readlane_b32 s{S_MASK+1}, v85, 15
s_bfm_b64 s[48:49], s{S_IT}, 0
s_waitcnt lgkmcnt(1)
v_add_u32 v{VK}, s45, v86
v_add_u32 v87, v87, v{IDX[0]+1}
s_and_b64 s[{S_MASK}:{S_MASK+1}], s[{S_MASK}:{S_MASK+1}], s[48:49]
ds_read_b32 v{IDX[0]}, v{VK}
ds_read_b32 v{IDX[1]}, v{VK} offset:4
ds_read_b128 v[{CA}:{CA+3}], v87
v_lshl_add_u32 v{VE}, v{NXE}, 1, s47
v_mov_b32 v4, {L_ZERO}
""")
    for i in range(10):
        a(f"v_mov_b32 v{81+2*i}, v{IDX[0]+1}")
    a(f"v_cndmask_b32_e64 v{VE}, v4, v{VE}, s[{S_AM}:{S_AM+1}]")
    a("s_waitcnt lgkmcnt(3)")
    for p in range(1, NB):
        a(f"""
s_bitcmp1_b32 s{S_MASK}, {p}
s_cbranch_scc0 K2_PK{p}
""")
        ev_k(a, 8 * p)
        a(f"K2_PK{p}:")
        a(f"ds_read_b32 v{80+4*(p-1)}, v{VK} offset:{8*p}")
        a(f"ds_read_b32 v{82+4*(p-1)}, v{VK} offset:{8*p+4}")
    a(f"""
ds_read_b64 v[{AOP[0]}:{AOP[0]+1}], v{VE}
ds_read_b64 v[{AOP[1]}:{AOP[1]+1}], v{VE} offset:8
s_lshr_b64 s[{S_CM}:{S_CM+1}], s[{S_MASK}:{S_MASK+1}], 3
s_lshr_b64 s[48:49], s[{S_MASK}:{S_MASK+1}], {NB+1}
s_or_b64 s[{S_CM}:{S_CM+1}], s[{S_CM}:{S_CM+1}], s[48:49]
s_bitset1_b64 s[{S_MASK}:{S_MASK+1}], s{S_IT}
s_lshr_b64 s[48:49], s[{S_MASK}:{S_MASK+1}], 1
s_or_b64 s[{S_CM}:{S_CM+1}], s[{S_CM}:{S_CM+1}], s[48:49]
s_waitcnt lgkmcnt(2)
""")
    for l in gathers(0, IDX[0], IDX[1]):
        a(l)
    for p in range(1, NB):
        for l in gathers(p, 80 + 4 * (p - 1), 82 + 4 * (p - 1)):
            a(l)
    if OPT["prio"] == "1":
        t1, t2, t3 = [int(OPT.get(f"thr{i}", d)) for i, d in ((1, 24), (2, 12), (3, 4))]
        a(f"""
s_setprio 3
s_mov_b32 s{S_PR}, 3
s_mov_b64 s[48:49], {0}
s_bitset1_b64 s[48:49], {63 - t1}
s_bitset1_b64 s[48:49], {63 - t2}
s_bitset1_b64 s[48:49], {63 - t3}
s_sub_u32 s46, 63, s{S_IT}
s_lshr_b64 s[48:49], s[48:49], s46
s_or_b64 s[{S_CM}:{S_CM+1}], s[{S_CM}:{S_CM+1}], s[48:49]
s_mov_b64 s[54:55], s[48:49]
""")
    a(f"""
s_ff1_i32_b64 s{S_CNT}, s[{S_CM}:{S_CM+1}]
v_lshlrev_b32 v5, 9, v3
v_lshl_add_u32 v5, v2, 4, v5
s_lshl_b32 s45, s42, 11
s_add_u32 s45, s45, {L_ACC}
s_add_u32 s46, s45, 2048
v_add_u32 v{VFN}, s46, v5
s_cmp_eq_u32 s43, 0
s_cbranch_scc1 K2_P2
s_lshl_b32 s45, s3, 11
s_add_u32 s45, s45, {L_EXT}
s_lshl_b32 s46, 1, s3
s_lshl_b32 s47, s42, 2
v_mov_b32 v6, s46
v_mov_b32 v7, s47
s_mov_b64 exec, 1
ds_or_b32 v7, v6 offset:{L_MASK}
s_mov_b64 exec, -1
K2_P2:
v_add_u32 v{VF}, s45, v5
""")
    for i in range(0, 8, 2):
        a(f"v_pk_mov_b32 v[{DEN+i}:{DEN+i+1}], 0, 0")
    a(f"""
v_add_u32 v{VK}, {8*NB}, v{VK}
s_bitcmp1_b32 s{S_MASK}, {NB}
s_cbranch_scc0 K2_PK{NB}
""")
    ev_k(a, 0)
    a(f"""
K2_PK{NB}:
v_mov_b32 v5, 32
@S10
s_waitcnt vmcnt({2*NB-2}) lgkmcnt(0)
@S15
""")
    for l in mfmas(0):
        a(l)
    a(f"""
s_bitcmp1_b32 s{S_MASK}, 1
s_cbranch_scc0 K2_PE1
s_nop 2
""")
    ev_e(a, 16)
    a(f"""
K2_PE1:
ds_read_b64 v[{AOP[0]}:{AOP[0]+1}], v{VE} offset:16
ds_read_b64 v[{AOP[1]}:{AOP[1]+1}], v{VE} offset:24
v_cndmask_b32_e64 v5, 0, v5, s[{S_AM}:{S_AM+1}]
s_nop 3
""")
    for i in range(8):
        a(f"v_exp_f32 v{Y[0]+i}, v{Y[0]+i}")
    a(f"v_add_u32 v{VE}, v5, v{VE}")
    a(f"s_waitcnt vmcnt({2*NB-4}) lgkmcnt(0)")
    for l in mfmas(1):
        a(l)
    a(f"""
s_bitcmp1_b32 s{S_MASK}, 2
s_cbranch_scc0 K2_PE2
s_nop 2
""")
    ev_e(a, 0)
    a(f"""
K2_PE2:
@C20
s_nop 4
K2_LOOP:
""")
    order = ORDERS[OPT["order"]].split()
    for k in range(NB):
        d = ops(k)
        for x in order:
            ex = OPT.get("exp")
            if ex == "nom" and x in ("N0", "N1"): continue
            if ex == "nold" and x in ("L0", "L1"): continue
            if ex == "notrans" and x[0] in "ER": continue
            a(d[x])
        if k == NB - 1:
            a("s_cbranch_scc0 K2_LOOP")
        else:
            a(f"s_cbranch_scc1 K2_EV{k}")
            a(f"K2_RET{k}:")
    for k in list(range(NB - 1, NB)) + list(range(NB - 1)):
        kn = (k + 1) % NB
        ret = f"K2_RET{k}" if k < NB - 1 else "K2_LOOP"
        a(f"""
K2_EV{k}:
s_ff1_i32_b64 s14, s[{S_CM}:{S_CM+1}]
s_bitset0_b64 s[{S_CM}:{S_CM+1}], s14
s_ff1_i32_b64 s{S_CNT}, s[{S_CM}:{S_CM+1}]
s_lshr_b64 s[40:41], s[{S_MASK}:{S_MASK+1}], s14
s_sub_u32 s{S_CNT}, s{S_CNT}, s14
s_sub_u32 s{S_CNT}, s{S_CNT}, 1
s_bitcmp1_b32 s40, 1
s_cbranch_scc0 K2_EV{k}A
ds_write_b128 v{VF}, v[{DEN}:{DEN+3}]
ds_write_b128 v{VF}, v[{NUM}:{NUM+3}] offset:256
s_lshr_b64 s[42:43], s[40:41], 2
s_cbranch_scc0 K2_LOOP_DONE
v_mov_b32 v{VF}, v{VFN}
v_add_u32 v{VFN}, 2048, v{VFN}
""")
        for i in range(0, 8, 2):
            a(f"v_pk_mov_b32 v[{DEN+i}:{DEN+i+1}], 0, 0")
        a(f"""
K2_EV{k}A:
s_bitcmp1_b32 s40, 3
s_cbranch_scc0 K2_EV{k}B
""")
        ev_e(a, 16 * kn)
        a(f"""
K2_EV{k}B:
s_bitcmp1_b32 s40, {NB+1}
s_cbranch_scc0 K2_EV{k}C
""")
        ev_k(a, 8 * kn)
        a(f"K2_EV{k}C:")
        if OPT["prio"] == "1":
            a(f"""
s_bitcmp1_b64 s[54:55], s14
s_cbranch_scc0 {ret}
s_sub_u32 s{S_PR}, s{S_PR}, 1
s_setprio 0
s_cmp_eq_u32 s{S_PR}, 0
s_cbranch_scc1 {ret}
s_setprio 1
s_cmp_eq_u32 s{S_PR}, 1
s_cbranch_scc1 {ret}
s_setprio 2
""")
        a(f"s_branch {ret}")
    a(f"""
K2_LOOP_DONE:
@C21
@S11
s_setprio 0
v_lshrrev_b32 v80, 3, v0
v_min_u32 v81, 48, v80
v_lshlrev_b32 v82, 2, v80
v_lshlrev_b32 v83, 2, v81
v_and_b32 v84, 7, v0
v_lshlrev_b32 v85, 5, v84
v_cmp_gt_u32_e64 s[40:41], 52, v80
s_movk_i32 s14, {US}
v_mad_u32_u24 v88, v81, s14, v85
v_add_u32 v88, {L_U}, v88
v_mul_u32_u24 v89, {XSS}, v81
v_lshl_add_u32 v89, v84, 4, v89
v_add_u32 v89, {L_XS}, v89
ds_read_b32 v86, v82 offset:{L_RK}
ds_read_b32 v87, v83 offset:{L_CNT}
ds_read_b128 v[112:115], v88
ds_read_b128 v[116:119], v88 offset:16
ds_read_b128 v[{CA}:{CA+3}], v89
s_waitcnt lgkmcnt(0)
v_cmp_ne_u32 vcc, 0, v87
v_and_b32 v90, -4, v86
v_lshl_add_u32 v91, v86, 9, v85
v_add_u32 v91, {L_ACC}, v91
v_and_b32 v92, 3, v86
v_lshl_add_u32 v92, v92, 9, v85
v_add_u32 v92, {L_EXT}, v92
s_barrier
@S12
s_and_b64 exec, vcc, s[40:41]
s_cbranch_execz K2_COMB_DONE
ds_read_b32 v90, v90 offset:{L_MASK}
K2_COMB_X:
ds_read_b128 v[96:99], v91
ds_read_b128 v[100:103], v91 offset:16
ds_read_b128 v[104:107], v91 offset:256
ds_read_b128 v[108:111], v91 offset:272
s_waitcnt lgkmcnt(4)
v_ffbl_b32 v91, v90
v_cmp_ne_u32 vcc, 0, v90
v_add_u32 v93, -1, v90
v_and_b32 v90, v90, v93
v_lshl_add_u32 v91, v91, 11, v92
s_waitcnt lgkmcnt(0)
""")
    for i in range(0, 16, 2):
        a(f"v_pk_add_f32 v[{TOT+i}:{TOT+i+1}], v[{TOT+i}:{TOT+i+1}], v[{96+i}:{97+i}]")
    a(f"""
s_and_b64 exec, exec, vcc
s_cbranch_execnz K2_COMB_X
K2_COMB_DONE:
s_mov_b64 exec, -1
s_cmp_lg_u32 s{S_MODE}, 0
s_cbranch_scc1 K2_SLOW_NEXT
K2_FINAL:
s_cmp_lg_u32 s3, 6
s_cbranch_scc1 K2_FIN2
""")
    for i in range(16):
        a(f"v_add_f32_dpp v{TOT+i}, v{TOT+i}, v{TOT+i} row_ror:8 row_mask:0xf bank_mask:0xf")
    for i in range(16):
        a(f"ds_swizzle_b32 v{96+i}, v{TOT+i} offset:0x401F")
    a("s_waitcnt lgkmcnt(0)")
    for i in range(0, 16, 2):
        a(f"v_pk_add_f32 v[{TOT+i}:{TOT+i+1}], v[{TOT+i}:{TOT+i+1}], v[{96+i}:{97+i}]")
    eps = struct.unpack("<I", struct.pack("<f", 1e-6 * 2.0**60))[0]
    a(f"""
K2_FIN2:
s_mov_b32 s14, {eps:#x}
s_mov_b32 s15, {eps:#x}
v_lshlrev_b32 v80, 8, v80
v_add_u32 v80, s{S_B}, v80
v_lshlrev_b32 v80, 7, v80
v_lshl_add_u32 v80, v84, 4, v80
""")
    for i in range(0, 8, 2):
        a(f"v_pk_add_f32 v[{TOT+i}:{TOT+i+1}], v[{TOT+i}:{TOT+i+1}], s[14:15]")
    for i in range(8):
        a(f"v_rcp_f32 v{TOT+i}, v{TOT+i}")
    for i in range(4):
        a(f"v_lshlrev_b32 v{96+2*i}, 16, v{CA+i}")
        a(f"v_and_b32 v{97+2*i}, 0xffff0000, v{CA+i}")
    for i in range(0, 8, 2):
        a(f"v_pk_fma_f32 v[{112+i}:{113+i}], v[{TOT+8+i}:{TOT+9+i}], v[{TOT+i}:{TOT+i+1}], v[{112+i}:{113+i}]")
    for i in range(8):
        a(f"v_max_f32 v{112+i}, 0, v{112+i}")
    for i in range(0, 8, 2):
        a(f"v_pk_add_f32 v[{96+i}:{97+i}], v[{96+i}:{97+i}], v[{112+i}:{113+i}]")
    for i in range(4):
        a(f"v_cvt_pk_bf16_f32 v{96+i}, v{96+2*i}, v{97+2*i}")
    a(f"""
buffer_store_dwordx4 v[96:99], v80, s[36:39], 0 offen
@S13
@Wvmcnt(0)
@S14
@Vs{S_IT},22
@OUT
K2_END:
s_endpgm
K2_LONG_ENTRY:
s_mov_b32 s14, 32
K2_LONG:
v_add_u32 v6, s14, v2
s_mul_i32 s15, s14, 12
""")
    for k in range(8):
        a(f"""
s_mov_b64 exec, -1
v_cmp_gt_u32_sdwa vcc, v{VTT+k}, v6 src0_sel:WORD_1 src1_sel:DWORD
s_and_saveexec_b64 s[40:41], vcc
s_cbranch_execz K2_LONG_S{k}
buffer_load_dwordx3 v[80:82], v{VRA+k}, s[32:35], s15 offen
s_waitcnt vmcnt(0)
""")
        place_atomic(a, 80, 4, 72)
        a("s_waitcnt lgkmcnt(0)")
        place_write(a, 80, 4)
        a(f"K2_LONG_S{k}:")
    a(f"""
s_mov_b64 exec, -1
s_add_u32 s14, s14, 16
v_cmp_lt_u32 vcc, s14, v{VMAXL}
s_cbranch_vccnz K2_LONG
s_branch K2_PLACED
K2_SLOW_ENTRY:
v_mov_b32 v4, 0
ds_max_u32 v4, v{VMAXL} offset:{L_MAXL}
s_waitcnt lgkmcnt(0)
s_barrier
ds_read_b32 v5, v4 offset:{L_MAXL}
s_mov_b32 s{S_MODE}, 1
s_mov_b32 s{S_I}, 0
s_mov_b32 s{S_MO}, 0
s_waitcnt lgkmcnt(0)
v_readfirstlane_b32 s{S_ML}, v5
s_branch K2_SLOW_BATCH
K2_SLOW_NEXT:
s_add_u32 s{S_I}, s{S_I}, 1
s_cmp_lt_u32 s{S_I}, 64
s_cbranch_scc1 K2_SLOW_BATCH
s_mov_b32 s{S_I}, 0
s_add_u32 s{S_MO}, s{S_MO}, 16
s_cmp_ge_u32 s{S_MO}, s{S_ML}
s_cbranch_scc1 K2_FINAL
K2_SLOW_BATCH:
s_waitcnt vmcnt(0) lgkmcnt(0)
s_barrier
""")
    txt = Asm(0, 0)
    lds_init(txt)
    t = txt.text()
    for r in range(49, 39, -1):
        t = t.replace(f"v{r}", f"v{r+40}")
    t = t.replace("v[40:43]", "v[80:83]").replace("v[44:47]", "v[84:87]")
    a(t)
    a(f"""
v_mov_b32 v90, 4
s_waitcnt lgkmcnt(0)
s_barrier
s_cmp_lg_u32 s3, 0
s_cbranch_scc1 K2_SLOW_S
s_lshl_b32 s14, s{S_I}, 2
v_add_u32 v7, s14, v3
s_lshl_b32 s15, s{S_B}, 2
v_lshl_add_u32 v4, v7, 10, s15
buffer_load_dword v5, v4, s[32:35], 0 offen
s_mov_b32 s15, {RECB}
v_mul_lo_u32 v7, v7, s15
v_add_u32 v6, s{S_MO}, v2
v_mad_u32_u24 v7, v6, 12, v7
v_add_u32 v7, {REC_OFF - T_OFF}, v7
s_waitcnt vmcnt(0)
v_mad_u32_u16 v4, v5, 12, v7
v_cmp_gt_u32_sdwa vcc, v5, v6 src0_sel:WORD_1 src1_sel:DWORD
s_and_saveexec_b64 s[40:41], vcc
s_cbranch_execz K2_SLOW_S
buffer_load_dwordx3 v[80:82], v4, s[32:35], 0 offen
s_waitcnt vmcnt(0)
""")
    place_atomic(a, 80, 4, 90)
    a("s_waitcnt lgkmcnt(0)")
    place_write(a, 80, 4)
    a("""
K2_SLOW_S:
s_mov_b64 exec, -1
s_waitcnt lgkmcnt(0)
s_barrier
s_branch K2_RANK
""")
    return a.text()


def desc(name, vgpr, sgpr):
    return f""".amdhsa_kernel {name}
  .amdhsa_next_free_vgpr {vgpr}
  .amdhsa_next_free_sgpr {sgpr}
  .amdhsa_accum_offset {(vgpr + 3) // 4 * 4}
  .amdhsa_group_segment_fixed_size 0
  .amdhsa_kernarg_size 96
  .amdhsa_user_sgpr_count 2
  .amdhsa_user_sgpr_kernarg_segment_ptr 1
  .amdhsa_system_sgpr_workgroup_id_x 1
.end_amdhsa_kernel
"""


HEADER = open("standalone__edge_featured_mpnn_gatedgcn__graph.s.ref").read().split("; Override launch")[0]


def main():
    out = HEADER
    out += f"; @launch kernel=bin_kernel grid=(256,1,1) block=(512,1,1) lds={K1_LDS}\n"
    out += f"; @launch kernel=gate_kernel grid=(256,1,1) block=(512,1,1) lds={K2_LDS}\n"
    out += '.amdgcn_target "amdgcn-amd-amdhsa--gfx950"\n.text\n'
    out += ".globl bin_kernel\n.p2align 8\n.type bin_kernel,@function\n" + k1()
    out += ".globl gate_kernel\n.p2align 8\n.type gate_kernel,@function\n" + k2()
    out += '.section .rodata,"a"\n.p2align 6\n' + desc("bin_kernel", 128, 101 if STAMPS else 64)
    out += ".p2align 6\n" + desc("gate_kernel", K2_VGPR, 101 if STAMPS else 96)
    open(sys.argv[1], "w").write(out)


main()
```

```python
import sys
import struct

N = 12500
E = 800000
QCH = 782
QH = QCH // 2
CH = QCH * 4
NQ = E // 4
RECB = CH * 12
TAB_ROWS = N + 1
TAB_BYTES = TAB_ROWS * 256
T_OFF = 0x310000
REC_OFF = 0x350000
TR_BYTES = (REC_OFF - T_OFF) + 256 * RECB
BIG = 0x40000000
NLOG2E = 0xbfb8aa3b
CAP = 128
CS = 132
XSS = 144

OPT = dict(st_rec="nt", st_tab="nt", prefetch="2", prio="1", order="a", ld1="", ld2="", ldp="")
for a_ in sys.argv[2:]:
    k_, v_ = a_.split("=")
    OPT[k_] = v_
STAMPS = bool(OPT.get("stamps"))
DBG_OFF = 0x1000000


class Asm:
    def __init__(self, vs, kidx):
        self.L = []
        self.vs = vs
        self.kidx = kidx

    def __call__(self, s):
        for l in s.strip("\n").split("\n"):
            l = l.strip()
            if not l:
                continue
            if l.startswith("@"):
                if STAMPS:
                    self.special(l)
                continue
            if l.endswith(":"):
                self.L.append(l)
            else:
                self.L.append("    " + l)

    def special(self, l):
        vs = self.vs
        if l.startswith("@S") or l.startswith("@C"):
            self(f"{'s_memtime' if l[1] == 'C' else 's_memrealtime'} s[98:99]")
            self("s_waitcnt lgkmcnt(0)")
            self(f"v_writelane_b32 v{vs}, s98, {int(l[2:])}")
        elif l.startswith("@W"):
            self("s_waitcnt " + l[2:])
        elif l.startswith("@V"):
            r, i = l[2:].split(",")
            self(f"v_writelane_b32 v{vs}, {r}, {i}")
        elif l.startswith("@OUT"):
            self(f"""
s_mov_b64 exec, -1
s_lshl_b32 s100, s2, 4
s_add_u32 s100, s100, s3
s_lshl_b32 s100, s100, 8
s_add_u32 s100, s100, {DBG_OFF + self.kidx * 0x100000:#x}
v_and_b32 v{vs+1}, 63, v0
v_lshl_add_u32 v{vs+1}, v{vs+1}, 2, s100
global_store_dword v{vs+1}, v{vs}, s[16:17]
""")

    def text(self):
        return "\n".join(self.L) + "\n"


def srd(a, d, lo, hi, nbytes, stride=0):
    a(f"s_mov_b32 s{d}, s{lo}")
    a(f"s_and_b32 s{d+1}, s{hi}, 0xffff")
    if stride:
        a(f"s_or_b32 s{d+1}, s{d+1}, {stride << 16:#x}")
    a(f"s_mov_b32 s{d+2}, {nbytes}")
    a(f"s_mov_b32 s{d+3}, 0x20000")


def scan(a, v, steps16_only=False, op="add_u32"):
    for d in (1, 2, 4, 8):
        a("s_nop 1")
        a(f"v_{op}_dpp v{v}, v{v}, v{v} row_shr:{d} row_mask:0xf bank_mask:0xf")
    if not steps16_only:
        a("s_nop 1")
        a(f"v_{op}_dpp v{v}, v{v}, v{v} row_bcast:15 row_mask:0xa bank_mask:0xf")
        a("s_nop 1")
        a(f"v_{op}_dpp v{v}, v{v}, v{v} row_bcast:31 row_mask:0xc bank_mask:0xf")


SDWA_B0 = "dst_sel:DWORD dst_unused:UNUSED_PAD src0_sel:DWORD src1_sel:BYTE_0"


def tr_reads(a, vaddr, base, r0):
    for mat in range(2):
        for t in range(2):
            for s in range(2):
                r = r0 + 16 * mat + 8 * t + 4 * s
                o = base + mat * 8192 + s * 4096 + t * 32
                a(f"ds_read_b64_tr_b16 v[{r}:{r+1}], v{vaddr} offset:{o}")
                a(f"ds_read_b64_tr_b16 v[{r+2}:{r+3}], v{vaddr} offset:{o + 512}")


def tile_mfmas(a, r0, x0, d0):
    for s in range(2):
        for mat in range(2):
            for t in range(2):
                f = r0 + 16 * mat + 8 * t + 4 * s
                d = d0 + 8 * mat + 4 * t
                c = "0" if s == 0 else f"v[{d}:{d+3}]"
                a(f"v_mfma_f32_16x16x32_bf16 v[{d}:{d+3}], v[{f}:{f+3}], v[{x0+4*s}:{x0+4*s+3}], {c}")


K1_W = 0
K1_XS = 16384
K1_HIST = K1_XS + 64 * XSS
K1_START = K1_HIST + 1024
K1_STAGE = K1_START + 1024
K1_LDS = K1_STAGE + RECB + 32


def k1():
    a = Asm(120, 0)
    a(f"""
bin_kernel:
s_cmp_ge_u32 s2, 256
s_cbranch_scc1 K1_END
@S0
@C30
s_load_dwordx8 s[4:11], s[0:1], 0
s_load_dwordx2 s[12:13], s[0:1], 40
s_load_dwordx2 s[14:15], s[0:1], 64
s_load_dwordx2 s[16:17], s[0:1], 88
v_readfirstlane_b32 s3, v0
s_mul_i32 s45, s2, {QCH}
v_add_u32 v4, s45, v0
v_add_u32 v5, {QH}, v4
v_cmp_gt_u32 vcc, {QH}, v0
s_mov_b32 s46, {NQ}
v_cmp_gt_u32_e64 s[50:51], s46, v5
v_lshlrev_b32 v4, 4, v4
v_lshlrev_b32 v5, 4, v5
v_mov_b32 v6, {BIG:#x}
s_mov_b64 s[48:49], vcc
s_and_b64 s[50:51], s[50:51], vcc
s_lshr_b32 s3, s3, 6
v_cndmask_b32 v4, v6, v4, vcc
v_cndmask_b32_e64 v5, v6, v5, s[50:51]
v_and_b32 v7, 255, v0
v_lshlrev_b32 v52, 4, v7
s_mul_i32 s44, s2, {49*128}
v_lshl_add_u32 v53, v0, 4, s44
v_cmp_gt_u32 vcc, 392, v0
s_cmp_lt_u32 s3, 4
s_mov_b32 s35, 0x20000
s_mov_b32 s34, {E*4}
v_cndmask_b32 v53, v6, v53, vcc
s_waitcnt lgkmcnt(0)
s_cselect_b64 s[12:13], s[12:13], s[14:15]
s_mov_b32 s32, s10
s_and_b32 s33, s11, 0xffff
buffer_load_dwordx4 v[8:11], v4, s[32:35], 0 offen {OPT['ld1']}
buffer_load_dwordx4 v[12:15], v5, s[32:35], 0 offen {OPT['ld1']}
v_lshlrev_b32 v7, 2, v7
v_mov_b32 v6, 0
ds_write_b32 v7, v6 offset:{K1_HIST}
s_add_u32 s14, s12, 4096
s_addc_u32 s15, s13, 0
""")
    srd(a, 20, 4, 5, N * 128)
    srd(a, 28, 8, 9, E * 4)
    srd(a, 24, 6, 7, E * 8)
    a(f"""
s_waitcnt lgkmcnt(0)
@S1
s_barrier
global_load_dwordx4 v[40:43], v52, s[12:13]
global_load_dwordx4 v[44:47], v52, s[14:15]
buffer_load_dwordx4 v[48:51], v53, s[20:23], 0 offen
buffer_load_dwordx4 v[16:19], v4, s[28:31], 0 offen {OPT['ld1']}
buffer_load_dwordx4 v[20:23], v5, s[28:31], 0 offen {OPT['ld1']}
v_lshlrev_b32 v118, 1, v4
v_lshlrev_b32 v119, 1, v5
v_and_b32 v1, 63, v0
v_and_b32 v2, 15, v0
v_bfe_u32 v3, v0, 4, 2
""")
    srd(a, 36, 16, 17, TAB_BYTES)
    a(f"""
s_lshl_b32 s46, s2, 10
s_add_u32 s46, s46, {T_OFF:#x}
s_add_u32 s40, s16, s46
s_addc_u32 s41, s17, 0
s_and_b32 s41, s41, 0xffff
s_mov_b32 s42, 1024
s_mov_b32 s43, 0x20000
s_mul_i32 s46, s2, {RECB}
s_add_u32 s46, s46, {REC_OFF:#x}
s_add_u32 s52, s16, s46
s_addc_u32 s53, s17, 0
s_and_b32 s53, s53, 0xffff
s_mov_b32 s54, {RECB}
s_mov_b32 s55, 0x20000
s_lshr_b32 s18, s3, 1
s_lshl_b32 s18, s18, 4
s_and_b32 s19, s3, 1
s_lshr_b32 s46, s3, 2
s_lshl_b32 s46, s46, 13
v_add_u32 v4, s46, v52
v_lshrrev_b32 v5, 3, v0
v_mul_u32_u24 v5, {XSS}, v5
v_and_b32 v6, 7, v0
v_lshl_add_u32 v5, v6, 4, v5
v_mov_b32 v6, 1
@S2
s_waitcnt vmcnt(6)
@S3
""")
    for i in range(4):
        a(f"v_lshlrev_b32_sdwa v{52+i}, 2, v{8+i} {SDWA_B0}")
    a("s_mov_b64 exec, s[48:49]")
    for i in range(4):
        a(f"ds_add_rtn_u32 v{60+i}, v{52+i}, v6 offset:{K1_HIST}")
    a("s_mov_b64 exec, -1")
    a("s_waitcnt vmcnt(5)")
    for i in range(4, 8):
        a(f"v_lshlrev_b32_sdwa v{52+i}, 2, v{8+i} {SDWA_B0}")
    a("s_mov_b64 exec, s[50:51]")
    for i in range(4, 8):
        a(f"ds_add_rtn_u32 v{60+i}, v{52+i}, v6 offset:{K1_HIST}")
    a("s_mov_b64 exec, -1")
    a(f"""
buffer_load_dwordx4 v[24:27], v118, s[24:27], 0 offen {OPT['ld1']}
buffer_load_dwordx4 v[28:31], v118, s[24:27], 0 offen offset:16 {OPT['ld1']}
buffer_load_dwordx4 v[32:35], v119, s[24:27], 0 offen {OPT['ld1']}
buffer_load_dwordx4 v[36:39], v119, s[24:27], 0 offen offset:16 {OPT['ld1']}
""")
    for i in range(8):
        a(f"v_lshrrev_b32 v{8+i}, 6, v{8+i}")
    a(f"""
s_waitcnt vmcnt(6)
ds_write_b128 v4, v[40:43] offset:{K1_W}
ds_write_b128 v4, v[44:47] offset:{K1_W + 4096}
ds_write_b128 v5, v[48:51] offset:{K1_XS}
v_lshlrev_b32 v7, 4, v1
v_lshrrev_b32 v4, 2, v2
v_lshl_add_u32 v4, v3, 3, v4
v_lshlrev_b32 v4, 7, v4
v_and_b32 v5, 3, v2
v_lshl_add_u32 v4, v5, 3, v4
s_lshl_b32 s46, s19, 6
v_add_u32 v4, s46, v4
v_add_u32 v116, s18, v2
v_mul_u32_u24 v5, {XSS}, v116
v_lshl_add_u32 v5, v3, 4, v5
s_waitcnt lgkmcnt(0)
@S4
s_barrier
@S5
ds_read_b128 v[40:43], v7 offset:{K1_HIST}
""")
    tr_reads(a, 4, K1_W, 68)
    a(f"""
s_waitcnt lgkmcnt(15)
v_add_u32 v45, v40, v41
v_add_u32 v46, v45, v42
v_add_u32 v48, v46, v43
v_mov_b32 v49, v48
""")
    scan(a, 48)
    a(f"""
v_sub_u32 v44, v48, v49
v_add_u32 v47, v44, v46
v_add_u32 v46, v44, v45
v_add_u32 v45, v44, v40
ds_write_b128 v7, v[44:47] offset:{K1_START}
""")
    for i in range(8):
        a(f"ds_read_b32 v{52+i}, v{52+i} offset:{K1_START}")
    for i in range(4):
        a(f"v_lshl_or_b32 v{48+i}, v{40+i}, 16, v{44+i}")
    a(f"""
ds_read_b128 v[40:43], v5 offset:{K1_XS}
ds_read_b128 v[44:47], v5 offset:{K1_XS + 64}
s_waitcnt vmcnt(4)
""")
    for i in range(8):
        a(f"v_lshl_or_b32 v{16+i}, v{16+i}, 8, v{8+i}")
    a("s_movk_i32 s46, " + str(K1_STAGE))
    a("s_waitcnt lgkmcnt(2)")
    for i in range(8):
        a(f"v_add_u32 v{52+i}, v{52+i}, v{60+i}")
        a(f"v_mad_u32_u24 v{52+i}, v{52+i}, 12, s46")
    a("s_waitcnt lgkmcnt(0)")
    tile_mfmas(a, 68, 40, 100)
    a("s_mov_b64 exec, s[48:49]")
    for i in range(4):
        a(f"ds_write_b32 v{52+i}, v{16+i} offset:8")
    a("s_mov_b64 exec, s[50:51]")
    for i in range(4, 8):
        a(f"ds_write_b32 v{52+i}, v{16+i} offset:8")
    a(f"""
s_mov_b64 exec, -1
s_mul_i32 s44, s2, 49
v_add_u32 v117, s44, v116
v_lshlrev_b32 v4, 8, v117
v_lshl_add_u32 v4, v3, 4, v4
s_lshl_b32 s46, s19, 7
v_add_u32 v4, s46, v4
v_cmp_gt_u32 vcc, 49, v116
v_mov_b32 v5, {BIG:#x}
s_mov_b32 s56, 0xffff0000
s_mov_b32 s57, 0x7fffffff
v_cndmask_b32 v4, v5, v4, vcc
v_cmp_eq_u32 vcc, {N}, v117
v_mov_b32 v5, 0x7f000000
@S6
""")
    def near(o, hsrc, lo):
        return [f"v_and_b32 v{o}, s57, v{hsrc}",
                f"v_min_u32 v{o}, v5, v{o}",
                f"v_add_u32 v{o}, 0x8000, v{o}",
                f"v_sub_u32_e64 v{o}, v{o}, v{lo} clamp",
                f"v_and_or_b32 v{o}, v{o}, s56, v{lo}",
                f"v_bfi_b32 v{o}, s57, v{o}, v{hsrc}"]
    seqs = []
    for t in range(2):
        b, h, o, tm = 100 + 4 * t, 108 + 4 * t, 68 + 4 * t, 8 + 4 * t
        q = [f"v_cvt_pk_bf16_f32 v{tm}, v{h}, v{h}", f"v_and_b32 v{tm}, 0xffff, v{tm}"]
        q += near(o + 2, h + 2, tm)
        q += [f"v_lshrrev_b32 v{tm}, 16, v{o+2}"]
        q += near(tm + 1, h + 1, tm)
        q += [f"v_lshrrev_b32 v{tm}, 16, v{tm+1}"]
        q += near(o + 3, h + 3, tm)
        q += [f"v_mul_f32 v{b+i}, {NLOG2E:#x}, v{b+i}" for i in range(4)]
        q += [f"v_med3_f32 v{b+i}, v{b+i}, v5, -v5" for i in range(4)]
        q += [f"v_cvt_pk_bf16_f32 v{o}, v{b}, v{b+1}", f"v_cvt_pk_bf16_f32 v{o+1}, v{b+2}, v{b+3}"]
        q += [f"v_cndmask_b32 v{o}, v{o}, v6, vcc", f"v_cndmask_b32 v{o+1}, v{o+1}, v6, vcc"]
        seqs.append(q)
    a("v_mov_b32 v6, 0x7f007f00")
    for x, y in zip(*seqs):
        a(x)
        a(y)
    for t in range(2):
        o = 68 + 4 * t
        a(f"buffer_store_dwordx4 v[{o}:{o+3}], v4, s[36:39], 0 offen offset:{64*t} {OPT['st_tab']}")
    a("""
@S7
s_waitcnt vmcnt(4)
@S8
s_mov_b64 exec, s[48:49]
""")
    for i in range(4):
        a(f"ds_write2_b32 v{52+i}, v{24+2*i}, v{25+2*i} offset0:0 offset1:1")
    a("s_waitcnt vmcnt(2)")
    a("s_mov_b64 exec, s[50:51]")
    for i in range(4, 8):
        a(f"ds_write2_b32 v{52+i}, v{24+2*i}, v{25+2*i} offset0:0 offset1:1")
    a(f"""
s_mov_b64 exec, -1
s_cmp_lg_u32 s3, 0
s_cbranch_scc1 K1_NOT
buffer_store_dwordx4 v[48:51], v7, s[40:43], 0 offen {OPT['st_rec']}
K1_NOT:
v_cmp_gt_u32 vcc, {RECB//16 - 2048}, v0
v_lshlrev_b32 v4, 4, v0
s_movk_i32 s44, 0x2000
s_movk_i32 s45, 0x4000
s_movk_i32 s46, 0x6000
s_mov_b32 s47, 0x8000
s_waitcnt lgkmcnt(0)
@S9
s_barrier
@S10
""")
    for i in range(4):
        a(f"ds_read_b128 v[{8+4*i}:{11+4*i}], v4 offset:{K1_STAGE + 8192*i}")
    a(f"""
s_mov_b64 exec, vcc
ds_read_b128 v[24:27], v4 offset:{K1_STAGE + 32768}
s_mov_b64 exec, -1
""")
    for i in range(4):
        a(f"s_waitcnt lgkmcnt({4-i})")
        so = "0" if i == 0 else f"s{43+i}"
        a(f"buffer_store_dwordx4 v[{8+4*i}:{11+4*i}], v4, s[52:55], {so} offen {OPT['st_rec']}")
    a(f"""
s_mov_b64 exec, vcc
s_cbranch_execz K1_DONE
s_waitcnt lgkmcnt(0)
buffer_store_dwordx4 v[24:27], v4, s[52:55], s47 offen {OPT['st_rec']}
K1_DONE:
@S11
@Wvmcnt(0)
@S12
@S13
@C31
@OUT
K1_END:
s_endpgm
""")
    return a.text()


L_CNT = 0
L_MASK = 256
L_MAXL = 324
L_ZERO = 384
L_TS = 512
L_TC = 1536
L_RK = 1792
L_EA = 2048
EA_BYTES = 49 * CS * 8 + 32
L_KEYS = L_EA + EA_BYTES
KEY_BYTES = 49 * CS * 4 + 16
L_ACC = L_KEYS + KEY_BYTES
L_EXT = L_ACC + 52 * 512
L_W = L_EXT
US = 272
L_AP = L_EXT + 8 * 2048
L_U = L_AP + 49 * US
L_XS = L_U + 49 * US
L_WC = L_XS + 64 * XSS
K2_LDS = L_WC + 512
NB = 6
MINPS = 7
MAXIT = 62

GB = 8
Y = (80, 88)
HL = 96
MM, SA, UU = 100, 104, 108
DEN, NUM = 112, 116
AOP = (120, 124)
CA = 128
CN = 132
IDX = (136, 138)
NX = 140
VK, VE, VF, VFN = 142, 143, 144, 145
VTK, VTE, NXE, VINC = 146, 147, 148, 149
TOT = 150
VTT = 166
VRA = 174
VCA = 182
VMAXL, VPF = 198, 199
K2_VGPR = 204
S_IT, S_MODE, S_I, S_MO, S_ML, S_CNT = 4, 5, 6, 7, 8, 9
S_K = 10
S_B = 13
S_CM = 56
S_PR = 58
S_CS = 59
S_MASK = 60
S_AM = 62


def stepbuf(p, i):
    return GB + 12 * (p % NB) + 6 * i


def lds_init(a):
    a(f"""
v_mov_b32 v40, 0
v_mov_b32 v41, 0
v_mov_b32 v42, 0
v_mov_b32 v43, 0
v_mov_b32 v44, {N}
v_mov_b32 v45, {N}
v_mov_b32 v46, {N}
v_mov_b32 v47, {N}
v_lshlrev_b32 v48, 4, v0
v_add_u32 v49, {L_KEYS}, v48
""")
    nz = L_KEYS // 16
    for i in range(nz // 512):
        a(f"ds_write_b128 v48, v[40:43] offset:{8192*i}")
    nk = KEY_BYTES // 16
    for i in range(nk // 512):
        a(f"ds_write_b128 v49, v[44:47] offset:{8192*i}")
    r1, r2 = nz % 512, nk % 512
    for r, reg, data, cnt in sorted([(r1, 48, 40, nz), (r2, 49, 44, nk)], reverse=True):
        a(f"v_cmp_gt_u32 vcc, {r}, v0")
        a("s_mov_b64 exec, vcc")
        a(f"ds_write_b128 v{reg}, v[{data}:{data+3}] offset:{8192*(cnt//512)}")
    a("s_mov_b64 exec, -1")


def place_atomic(a, r, ca, four):
    a(f"v_and_b32 v{ca}, 0xfc, v{r+2}")
    a(f"ds_add_rtn_u32 v{r+3}, v{ca}, v{four} offset:{L_CNT}")


def place_write(a, r, ca):
    a(f"v_min_u32 v{r+3}, {CAP*4}, v{r+3}")
    a(f"v_mad_u32_u24 v{ca}, v{ca}, s{S_CS}, v{r+3}")
    a(f"v_lshrrev_b32 v{r+2}, 8, v{r+2}")
    a(f"v_add_u32 v{r+3}, v{ca}, v{ca}")
    a(f"ds_write_b32 v{ca}, v{r+2} offset:{L_KEYS}")
    a(f"ds_write_b64 v{r+3}, v[{r}:{r+1}] offset:{L_EA}")


def ev_k(a, sub):
    a(f"""
v_add_u32 v{VK}, {L_KEYS - sub}, v{NX}
v_add_u32 v4, v{NX+1}, v{IDX[0]+1}
v_add_u32 v{VTK}, 32, v{VTK}
v_add_u32 v{VTE}, 32, v{VTE}
ds_read_b128 v[{CN}:{CN+3}], v4
ds_read_b32 v{NXE}, v{VTE} offset:{L_TS}
ds_read_b64 v[{NX}:{NX+1}], v{VTK} offset:{L_TS + 32}
""")


def ev_e(a, sub):
    a(f"""
v_lshlrev_b32 v{VE}, 1, v{NXE}
v_add_u32 v{VE}, {L_EA - sub}, v{VE}
v_mov_b32 v4, {L_ZERO}
v_pk_mov_b32 v[{CA}:{CA+1}], v[{CN}:{CN+1}], v[{CN}:{CN+1}] op_sel:[0,1]
v_pk_mov_b32 v[{CA+2}:{CA+3}], v[{CN+2}:{CN+3}], v[{CN+2}:{CN+3}] op_sel:[0,1]
v_cndmask_b32_e64 v{VE}, v4, v{VE}, s[{S_AM}:{S_AM+1}]
""")


def gathers(p, i0, i1):
    g0, g1 = stepbuf(p, 0) + 2, stepbuf(p, 1) + 2
    return [f"buffer_load_dwordx4 v[{g0}:{g0+3}], v[{i0}:{i0+1}], s[24:27], 0 idxen offen",
            f"buffer_load_dwordx4 v[{g1}:{g1+3}], v[{i1}:{i1+1}], s[24:27], 0 idxen offen"]


def mfmas(p):
    y = Y[p & 1]
    return [f"v_mfma_f32_16x16x32_bf16 v[{y+4*i}:{y+4*i+3}], v[{AOP[i]}:{AOP[i]+3}], v[{stepbuf(p, i)}:{stepbuf(p, i)+3}], v[{CA}:{CA+3}]"
            for i in range(2)]


def ops(k):
    y = Y[k & 1]
    yn = Y[1 - (k & 1)]
    b0, b1 = stepbuf(k, 0) + 4, stepbuf(k, 1) + 4
    d = {}
    for i in range(8):
        d[f"E{i}"] = f"v_exp_f32 v{yn+i}, v{yn+i}"
    for i in range(4):
        d[f"C{i}"] = f"v_pk_fma_f32 v[{y+2*i}:{y+1+2*i}], v[{y+2*i}:{y+1+2*i}], s[{S_K}:{S_K+1}], s[{S_K}:{S_K+1}] clamp"
        d[f"R{i}"] = f"v_rcp_f32 v{MM+i}, v{MM+i}"
    for i in range(2):
        p0 = f"v[{y+2*i}:{y+1+2*i}]"
        p1 = f"v[{y+4+2*i}:{y+5+2*i}]"
        m = f"v[{MM+2*i}:{MM+1+2*i}]"
        s = f"v[{SA+2*i}:{SA+1+2*i}]"
        u = f"v[{UU+2*i}:{UU+1+2*i}]"
        h0 = f"v[{HL}:{HL+1}]" if i == 0 else f"v[{b0}:{b0+1}]"
        h1 = f"v[{HL+2}:{HL+3}]" if i == 0 else f"v[{b1}:{b1+1}]"
        d[f"m{i}"] = f"v_pk_mul_f32 {m}, {p0}, {p1}"
        d[f"a{i}"] = f"v_pk_add_f32 {s}, {p0}, {p1}"
        d[f"g{i}"] = f"v_pk_mul_f32 {u}, {p1}, {h0}"
        d[f"h{i}"] = f"v_pk_fma_f32 {u}, {p0}, {h1}, {u}"
        d[f"d{i}"] = f"v_pk_fma_f32 v[{DEN+2*i}:{DEN+1+2*i}], {s}, {m}, v[{DEN+2*i}:{DEN+1+2*i}]"
        d[f"n{i}"] = f"v_pk_fma_f32 v[{NUM+2*i}:{NUM+1+2*i}], {u}, {m}, v[{NUM+2*i}:{NUM+1+2*i}]"
    d["Q0"] = f"v_lshlrev_b64 v[{HL}:{HL+1}], 16, v[{b0}:{b0+1}]"
    d["Q1"] = f"v_lshlrev_b64 v[{HL+2}:{HL+3}], 16, v[{b1}:{b1+1}]"
    d["N0"], d["N1"] = mfmas(k + 2)
    d["L0"], d["L1"] = gathers(k, IDX[0], IDX[1])
    d["k0"] = f"ds_read_b32 v{IDX[0]}, v{VK} offset:{8*k}"
    d["k1"] = f"ds_read_b32 v{IDX[1]}, v{VK} offset:{8*k+4}"
    d["e0"] = f"ds_read_b64 v[{AOP[0]}:{AOP[0]+1}], v{VE} offset:{16*k}"
    d["e1"] = f"ds_read_b64 v[{AOP[1]}:{AOP[1]+1}], v{VE} offset:{16*k+8}"
    d["W"] = f"s_waitcnt vmcnt({2*(NB-3)}) lgkmcnt(0)"
    d["S"] = f"s_sub_u32 s{S_CNT}, s{S_CNT}, 1"
    d["A0"] = f"v_add_u32 v{VK}, {8*NB}, v{VK}" if k == NB - 1 else ""
    d["A1"] = f"v_add_u32 v{VE}, v{VINC}, v{VE}" if k == NB - 1 else ""
    return d


ORDERS = {
    "a": "C0 E0 k0 C2 E1 k1 C1 E2 e0 C3 E3 e1 m0 E4 m1 E5 S Q0 Q1 A0 A1 a0 a1 g0 g1 h0 h1 W N0 R0 L0 R1 N1 R2 L1 R3 E6 d0 E7 d1 n0 n1",
    "b": "k0 k1 e0 e1 C0 E0 C2 E1 C1 E2 C3 E3 m0 E4 m1 E5 S Q0 Q1 A0 A1 a0 a1 g0 g1 h0 h1 W N0 R0 R1 N1 R2 R3 L0 L1 E6 d0 E7 d1 n0 n1",
    "c": "C0 E0 k0 C2 E1 k1 C1 E2 e0 C3 E3 e1 m0 Q0 m1 Q1 a0 E4 S a1 E5 A0 A1 g0 g1 h0 h1 W N0 R0 L0 R1 N1 R2 L1 R3 E6 d0 E7 d1 n0 n1",
}


def prefetch(a, v, P):
    stride = 128 if P == 2 else 64
    a(f"""
s_lshr_b32 s40, s2, 3
s_mul_i32 s40, s40, {782*128}
v_mul_u32_u24 v{v}, {stride}, v0
v_add_u32 v{v}, s40, v{v}
""")
    for p in range(P):
        if p == P - 1:
            a(f"v_cmp_gt_u32 vcc, {782*128//stride - 512*p}, v0")
            a("s_mov_b64 exec, vcc")
        a(f"buffer_load_dword v{VPF}, v{v}, s[28:31], 0 offen {OPT['ldp']}")
        if p < P - 1:
            a(f"v_add_u32 v{v}, {512*stride}, v{v}")
    a("s_mov_b64 exec, -1")


def k2():
    a = Asm(200, 1)
    a(f"""
gate_kernel:
s_cmp_ge_u32 s2, 256
s_cbranch_scc1 K2_END
@S0
@C30
s_load_dwordx2 s[16:17], s[0:1], 88
s_load_dwordx2 s[4:5], s[0:1], 0
s_load_dwordx2 s[6:7], s[0:1], 32
s_load_dwordx4 s[8:11], s[0:1], 48
s_load_dwordx2 s[48:49], s[0:1], 72
v_readfirstlane_b32 s3, v0
v_bfe_u32 v3, v0, 4, 2
s_and_b32 s{S_B}, s2, 7
s_lshl_b32 s{S_B}, s{S_B}, 5
s_lshr_b32 s15, s2, 3
s_or_b32 s{S_B}, s{S_B}, s15
s_lshl_b32 s15, s{S_B}, 2
v_lshl_add_u32 v4, v3, 10, s15
s_lshr_b32 s3, s3, 6
s_lshl_b32 s40, s3, 15
""")
    for k in range(1, 8):
        a(f"s_add_u32 s{40+k}, s40, {4096*k}")
    a(f"""
s_mov_b32 s34, {TR_BYTES}
s_mov_b32 s35, 0x20000
v_and_b32 v50, 255, v0
v_lshlrev_b32 v50, 4, v50
v_lshrrev_b32 v51, 3, v0
v_lshlrev_b32 v87, 8, v51
v_add_u32 v87, s{S_B}, v87
v_lshlrev_b32 v87, 7, v87
v_and_b32 v52, 7, v0
v_lshl_add_u32 v87, v52, 4, v87
v_and_b32 v88, 127, v0
v_lshlrev_b32 v88, 2, v88
s_cmp_lt_u32 s3, 4
s_waitcnt lgkmcnt(0)
s_cselect_b64 s[6:7], s[6:7], s[10:11]
s_add_u32 s32, s16, {T_OFF:#x}
s_addc_u32 s33, s17, 0
s_and_b32 s33, s33, 0xffff
""")
    for k in range(8):
        a(f"buffer_load_dword v{VTT+k}, v4, s[32:35], s{40+k} offen")
    srd(a, 20, 4, 5, N * 128)
    a(f"""
s_add_u32 s14, s6, 4096
s_addc_u32 s15, s7, 0
global_load_dwordx4 v[72:75], v50, s[6:7]
global_load_dwordx4 v[76:79], v50, s[14:15]
buffer_load_dwordx4 v[80:83], v87, s[20:23], 0 offen
global_load_dword v84, v88, s[8:9]
""")
    lds_init(a)
    srd(a, 24, 16, 17, TAB_ROWS, stride=256)
    srd(a, 28, 16, 17, TAB_BYTES)
    srd(a, 36, 48, 49, N * 128)
    a(f"""
v_and_b32 v1, 63, v0
v_and_b32 v2, 15, v0
s_mov_b32 s{S_CS}, {CS}
s_lshl_b32 s40, s3, 5
v_add_u32 v5, s40, v3
s_mov_b32 s41, {RECB}
v_mul_lo_u32 v5, v5, s41
v_mad_u32_u24 v5, v2, 12, v5
v_add_u32 v5, {REC_OFF - T_OFF}, v5
v_add_u32 v6, 16, v2
s_lshr_b32 s40, s3, 2
s_lshl_b32 s40, s40, 13
s_add_u32 s40, s40, {L_W}
v_add_u32 v86, s40, v50
v_mul_u32_u24 v87, {XSS}, v51
v_lshl_add_u32 v87, v52, 4, v87
v_add_u32 v87, {L_XS}, v87
v_add_u32 v88, {L_WC}, v88
@S1
s_waitcnt vmcnt(0)
@S2
ds_write_b128 v86, v[72:75]
ds_write_b128 v86, v[76:79] offset:4096
ds_write_b128 v87, v[80:83]
ds_write_b32 v88, v84
""")
    for k in range(8):
        a(f"v_mad_u32_u16 v{VRA+k}, v{VTT+k}, 12, v5")
        a(f"v_cmp_gt_u32_sdwa s[{64+2*k}:{65+2*k}], v{VTT+k}, v2 src0_sel:WORD_1 src1_sel:DWORD")
        if k < 7:
            a(f"v_add_u32 v5, {4*RECB}, v5")
    a("""
s_waitcnt lgkmcnt(0)
@S3
s_barrier
@S4
""")
    for k in range(8):
        a(f"s_mov_b64 exec, s[{64+2*k}:{65+2*k}]")
        a(f"buffer_load_dwordx3 v[{8+4*k}:{10+4*k}], v{VRA+k}, s[32:35], 0 offen {OPT['ld2']}")
    a("s_mov_b64 exec, -1")
    for k in range(8):
        a(f"v_cmp_gt_u32_sdwa s[{80+2*k}:{81+2*k}], v{VTT+k}, v6 src0_sel:WORD_1 src1_sel:DWORD")
    for k in range(8):
        a(f"s_mov_b64 exec, s[{80+2*k}:{81+2*k}]")
        a(f"s_cbranch_execz K2_M1L{k}")
        a(f"buffer_load_dwordx3 v[{40+4*k}:{42+4*k}], v{VRA+k}, s[32:35], 0 offen offset:192 {OPT['ld2']}")
        a(f"K2_M1L{k}:")
    P = int(OPT["prefetch"])
    stride = 128 if P == 2 else 64
    a(f"""
s_mov_b64 exec, -1
@S16
s_mov_b32 s{S_MODE}, 0
s_lshr_b32 s18, s3, 1
s_lshl_b32 s18, s18, 4
s_and_b32 s19, s3, 1
v_lshrrev_b32 v72, 2, v2
v_lshl_add_u32 v4, v3, 3, v72
v_lshlrev_b32 v4, 7, v4
v_and_b32 v73, 3, v2
v_lshl_add_u32 v4, v73, 3, v4
s_lshl_b32 s40, s19, 6
s_add_u32 s40, s40, {L_W}
v_add_u32 v4, s40, v4
v_add_u32 v6, s18, v2
v_mul_u32_u24 v5, {XSS}, v6
v_lshl_add_u32 v5, v3, 4, v5
v_add_u32 v5, {L_XS}, v5
v_lshl_add_u32 v74, v2, 2, v3
v_lshlrev_b32 v74, 1, v74
v_add_u32 v74, {L_WC}, v74
""")
    tr_reads(a, 4, 0, 80)
    a(f"""
ds_read_b128 v[112:115], v5
ds_read_b128 v[116:119], v5 offset:64
ds_read_u16 v76, v74
ds_read_u16 v77, v74 offset:128
ds_read_u16 v78, v74 offset:256
ds_read_u16 v79, v74 offset:384
""")
    if OPT.get("pfat", "mid") == "mid":
        prefetch(a, 7, P)
    else:
        P = 0
    a(f"""
s_mov_b64 exec, -1
s_mov_b32 s{S_AM}, 0x22221111
s_mov_b32 s{S_AM+1}, 0x88884444
s_mov_b32 s{S_K}, 0x21800000
s_mov_b32 s{S_K+1}, 0x21800000
v_and_b32 v7, 1, v73
v_lshlrev_b32 v7, 4, v7
v_mov_b32 v75, 0x3f80
v_lshlrev_b32 v7, v7, v75
v_cmp_eq_u32 vcc, v3, v72
v_cmp_gt_u32_e64 s[40:41], 2, v73
v_cmp_le_u32_e64 s[42:43], 2, v73
v_lshlrev_b32 v{IDX[0]+1}, 4, v2
v_cndmask_b32 v7, 0, v7, vcc
v_lshlrev_b32 v{IDX[1]+1}, 4, v2
v_mov_b32 v75, {16*NB}
v_cndmask_b32_e64 v{AOP[0]+2}, 0, v7, s[40:41]
v_cndmask_b32_e64 v{AOP[1]+2}, 0, v7, s[40:41]
v_cndmask_b32_e64 v{AOP[0]+3}, 0, v7, s[42:43]
v_cndmask_b32_e64 v{AOP[1]+3}, 0, v7, s[42:43]
v_cndmask_b32_e64 v{VINC}, 0, v75, s[{S_AM}:{S_AM+1}]
s_movk_i32 s40, {US}
s_lshl_b32 s41, s19, 7
s_add_u32 s41, s41, {L_AP}
v_mad_u32_u24 v4, v6, s40, 0
v_lshl_add_u32 v4, v3, 4, v4
v_add_u32 v4, s41, v4
v_cmp_gt_u32 vcc, 49, v6
s_waitcnt lgkmcnt(4)
""")
    tile_mfmas(a, 80, 112, TOT)
    a("s_waitcnt lgkmcnt(0)")
    for k in range(4):
        a(f"v_lshlrev_b32 v{76+k}, 16, v{76+k}")
    for k in range(4):
        a(f"v_mul_f32 v{76+k}, {NLOG2E:#x}, v{76+k}")
    a(f"v_cvt_pk_bf16_f32 v{CN}, v76, v77")
    a(f"v_cvt_pk_bf16_f32 v{CN+1}, v78, v79")
    a("v_mov_b32 v72, 4")
    for i in range(8):
        a(f"v_mul_f32 v{TOT+i}, {NLOG2E:#x}, v{TOT+i}")
    a(f"""
s_mov_b64 exec, vcc
ds_write_b128 v4, v[{TOT+8}:{TOT+11}] offset:{L_U - L_AP}
ds_write_b128 v4, v[{TOT+12}:{TOT+15}] offset:{L_U - L_AP + 64}
ds_write_b128 v4, v[{TOT}:{TOT+3}]
ds_write_b128 v4, v[{TOT+4}:{TOT+7}] offset:64
@S5
""")
    def A_(j):
        a(f"s_waitcnt vmcnt({7 - j + P})")
        a(f"s_mov_b64 exec, s[{64+2*j}:{65+2*j}]")
        place_atomic(a, 8 + 4 * j, VCA + j, 72)

    def W_(j, n):
        a(f"s_mov_b64 exec, s[{64+2*j}:{65+2*j}]")
        if n is not None:
            a(f"s_waitcnt lgkmcnt({n})")
        place_write(a, 8 + 4 * j, VCA + j)
    A_(0); A_(1); A_(2)
    for j in range(5):
        W_(j, (2, 4, 6, 6, 6)[j])
        A_(j + 3)
    W_(5, 6)
    a(f"s_waitcnt vmcnt({P})")
    a("@S6")
    for j in range(8):
        a(f"s_mov_b64 exec, s[{80+2*j}:{81+2*j}]")
        a(f"s_cbranch_execz K2_M1A{j}")
        place_atomic(a, 40 + 4 * j, VCA + 8 + j, 72)
        a(f"K2_M1A{j}:")
    W_(6, 0)
    W_(7, None)
    for j in range(8):
        a(f"s_mov_b64 exec, s[{80+2*j}:{81+2*j}]")
        a(f"s_cbranch_execz K2_M1W{j}")
        place_write(a, 40 + 4 * j, VCA + 8 + j)
        a(f"K2_M1W{j}:")
    a(f"""
s_mov_b64 exec, -1
v_max3_u32 v4, v{VTT}, v{VTT+1}, v{VTT+2}
v_max3_u32 v5, v{VTT+3}, v{VTT+4}, v{VTT+5}
v_max3_u32 v4, v4, v{VTT+6}, v{VTT+7}
v_max_u32 v4, v4, v5
v_lshrrev_b32 v{VMAXL}, 16, v4
v_cmp_lt_u32 vcc, 32, v{VMAXL}
s_cbranch_vccnz K2_LONG_ENTRY
K2_PLACED:
""")
    for i in range(0, 16, 2):
        a(f"v_pk_mov_b32 v[{TOT+i}:{TOT+i+1}], 0, 0")
    for p in range(NB):
        for i in range(2):
            b = stepbuf(p, i)
            a(f"v_pk_mov_b32 v[{b}:{b+1}], v[{CN}:{CN+1}], v[{CN}:{CN+1}] op_sel:[0,1]")
    a(f"""
s_waitcnt lgkmcnt(0)
@S7
s_barrier
@S8
""")
    if OPT.get("pfat") == "late":
        prefetch(a, 7, int(OPT["prefetch"]))
    a(f"""
K2_RANK:
v_lshlrev_b32 v4, 2, v1
ds_read_b32 v80, v4 offset:{L_CNT}
""")
    for i in range(1, 6):
        a(f"s_add_u32 s{40+i}, s3, {8*i}")
    a(f"""
v_cmp_gt_u32_e64 s[52:53], 48, v1
v_lshl_add_u32 v82, v1, 3, s3
v_mul_u32_u24 v86, {CS*4}, v82
v_mul_u32_u24 v87, {US}, v82
v_add_u32 v87, {L_AP}, v87
v_lshlrev_b32 v82, 2, v82
s_waitcnt lgkmcnt(0)
v_cmp_lt_u32 vcc, {CAP*4}, v80
v_lshl_add_u32 v81, v80, 4, v1
v_add_u32 v81, 1, v81
s_cbranch_vccnz K2_SLOW_ENTRY
v_cndmask_b32_e64 v81, 0, v81, s[52:53]
v_readlane_b32 s50, v80, 48
""")
    for i in range(6):
        a(f"v_readlane_b32 s{64+i}, v81, s{3 if i == 0 else 40+i}")
    a("s_add_u32 s51, s50, 28")
    for i in range(6):
        a(f"v_cmp_lt_u32_e64 s[{72+2*i}:{73+2*i}], s{64+i}, v81")
    a("s_lshr_b32 s51, s51, 5")
    for i in range(6):
        a(f"v_writelane_b32 v83, s{64+i}, {i}")
        a(f"s_bcnt1_i32_b64 s{72+2*i}, s[{72+2*i}:{73+2*i}]")
    a(f"""
s_max_u32 s51, s51, {MINPS}
s_cmp_eq_u32 s50, 0
s_cselect_b32 s50, 0, s51
s_lshl_b32 s50, s50, 1
""")
    for i in range(6):
        a(f"v_writelane_b32 v84, s{72+2*i}, {i}")
    a(f"""
v_lshrrev_b32 v83, 6, v83
v_add_u32 v84, 4, v84
v_lshlrev_b32 v85, 3, v84
v_lshlrev_b32 v88, 2, v84
s_mov_b64 exec, 63
ds_write_b64 v85, v[86:87] offset:{L_TS}
ds_write_b32 v88, v83 offset:{L_TC}
ds_write_b32 v82, v84 offset:{L_RK}
s_mov_b64 exec, 15
v_mul_u32_u24 v90, s50, v4
v_add_u32 v90, {48*CS*4}, v90
v_mov_b32 v91, {L_AP + 48*US}
v_mov_b32 v89, s50
v_lshlrev_b32 v5, 3, v1
ds_write_b64 v5, v[90:91] offset:{L_TS}
ds_write_b32 v4, v89 offset:{L_TC}
ds_write_b32 v4, v1 offset:{L_RK + 192}
s_mov_b64 exec, -1
v_lshlrev_b32 v4, 4, v2
v_cmp_gt_u32_e64 s[52:53], 13, v2
s_add_u32 s15, s3, 1
s_waitcnt lgkmcnt(0)
s_barrier
@S9
ds_read_b32 v80, v4 offset:{L_TC}
v_mov_b32 v84, 1
v_mov_b32 v85, 0
s_waitcnt lgkmcnt(0)
v_cmp_ne_u32 vcc, 0, v80
v_add_u32 v80, 1, v80
v_lshrrev_b32 v80, 1, v80
s_and_b64 s[44:45], vcc, s[52:53]
v_max_u32 v80, {MINPS}, v80
v_cndmask_b32_e64 v80, 0, v80, s[44:45]
v_mov_b32 v81, v80
""")
    scan(a, 81, steps16_only=True)
    a(f"""
s_nop 0
v_readlane_b32 s14, v81, 15
v_sub_u32 v82, v81, v80
s_cmp_gt_u32 s14, {MAXIT*8}
s_cbranch_scc1 K2_SLOW_ENTRY
s_mul_i32 s40, s14, s3
s_mul_i32 s41, s14, s15
s_lshr_b32 s40, s40, 3
s_lshr_b32 s41, s41, 3
s_sub_u32 s{S_IT}, s41, s40
s_cmp_eq_u32 s{S_IT}, 0
s_cbranch_scc1 K2_LOOP_DONE
v_cmp_ge_u32_e64 s[42:43], s40, v81
v_subrev_u32 v83, s40, v82
s_and_b32 s42, s42, 0x1fff
s_bcnt1_i32_b32 s42, s42
s_lshl_b32 s46, s42, 5
v_lshl_add_u32 v{VTK}, v3, 3, s46
v_and_b32 v{VTE}, 12, v2
v_lshl_add_u32 v{VTE}, v{VTE}, 1, s46
v_readlane_b32 s43, v82, s42
ds_read_b64 v[86:87], v{VTK} offset:{L_TS}
ds_read_b32 v{NXE}, v{VTE} offset:{L_TS}
ds_read_b64 v[{NX}:{NX+1}], v{VTK} offset:{L_TS + 32}
v_add_u32 v88, -1, v83
v_cmp_gt_u32 vcc, 63, v88
v_lshlrev_b64 v[84:85], v83, v[84:85]
s_and_b64 vcc, vcc, s[44:45]
s_sub_u32 s43, s40, s43
v_cndmask_b32 v84, 0, v84, vcc
v_cndmask_b32 v85, 0, v85, vcc
s_lshl_b32 s45, s43, 3
s_add_u32 s45, s45, {L_KEYS}
""")
    for d in (1, 2, 4, 8):
        a(f"v_or_b32_dpp v84, v84, v84 row_shr:{d} row_mask:0xf bank_mask:0xf")
        a(f"v_or_b32_dpp v85, v85, v85 row_shr:{d} row_mask:0xf bank_mask:0xf")
        a("s_nop 0")
    a(f"""
s_lshl_b32 s47, s43, 4
s_add_u32 s47, s47, {L_EA}
v_readlane_b32 s{S_MASK}, v84, 15
v_readlane_b32 s{S_MASK+1}, v85, 15
s_bfm_b64 s[48:49], s{S_IT}, 0
s_waitcnt lgkmcnt(1)
v_add_u32 v{VK}, s45, v86
v_add_u32 v87, v87, v{IDX[0]+1}
s_and_b64 s[{S_MASK}:{S_MASK+1}], s[{S_MASK}:{S_MASK+1}], s[48:49]
ds_read_b32 v{IDX[0]}, v{VK}
ds_read_b32 v{IDX[1]}, v{VK} offset:4
ds_read_b128 v[{CA}:{CA+3}], v87
v_lshl_add_u32 v{VE}, v{NXE}, 1, s47
v_mov_b32 v4, {L_ZERO}
""")
    TI = {1: 80, 2: 96, 3: 100, 4: 104, 5: 108}
    for p in range(1, NB):
        a(f"v_mov_b32 v{TI[p]+1}, v{IDX[0]+1}")
        a(f"v_mov_b32 v{TI[p]+3}, v{IDX[0]+1}")
    a(f"v_cndmask_b32_e64 v{VE}, v4, v{VE}, s[{S_AM}:{S_AM+1}]")
    a("s_waitcnt lgkmcnt(3)")
    for p in range(1, NB):
        a(f"""
s_bitcmp1_b32 s{S_MASK}, {p}
s_cbranch_scc0 K2_PK{p}
""")
        ev_k(a, 8 * p)
        a(f"K2_PK{p}:")
        a(f"ds_read_b32 v{TI[p]}, v{VK} offset:{8*p}")
        a(f"ds_read_b32 v{TI[p]+2}, v{VK} offset:{8*p+4}")
    a(f"""
ds_read_b64 v[{AOP[0]}:{AOP[0]+1}], v{VE}
ds_read_b64 v[{AOP[1]}:{AOP[1]+1}], v{VE} offset:8
s_lshr_b64 s[{S_CM}:{S_CM+1}], s[{S_MASK}:{S_MASK+1}], 3
s_lshr_b64 s[48:49], s[{S_MASK}:{S_MASK+1}], {NB+1}
s_or_b64 s[{S_CM}:{S_CM+1}], s[{S_CM}:{S_CM+1}], s[48:49]
s_bitset1_b64 s[{S_MASK}:{S_MASK+1}], s{S_IT}
s_lshr_b64 s[48:49], s[{S_MASK}:{S_MASK+1}], 1
s_or_b64 s[{S_CM}:{S_CM+1}], s[{S_CM}:{S_CM+1}], s[48:49]
s_waitcnt lgkmcnt(2)
""")
    for l in gathers(0, IDX[0], IDX[1]):
        a(l)
    NG0 = int(OPT.get("ng0", 2))
    for p in range(1, NG0):
        for l in gathers(p, TI[p], TI[p] + 2):
            a(l)
    if OPT["prio"] == "1":
        t1, t2, t3 = [int(OPT.get(f"thr{i}", d)) for i, d in ((1, 24), (2, 12), (3, 4))]
        a(f"""
s_setprio 3
s_mov_b32 s{S_PR}, 3
s_mov_b64 s[48:49], {0}
s_bitset1_b64 s[48:49], {63 - t1}
s_bitset1_b64 s[48:49], {63 - t2}
s_bitset1_b64 s[48:49], {63 - t3}
s_sub_u32 s46, 63, s{S_IT}
s_lshr_b64 s[48:49], s[48:49], s46
s_or_b64 s[{S_CM}:{S_CM+1}], s[{S_CM}:{S_CM+1}], s[48:49]
s_mov_b64 s[54:55], s[48:49]
""")
    a(f"""
s_ff1_i32_b64 s{S_CNT}, s[{S_CM}:{S_CM+1}]
v_lshlrev_b32 v5, 9, v3
v_lshl_add_u32 v5, v2, 4, v5
s_lshl_b32 s45, s42, 11
s_add_u32 s45, s45, {L_ACC}
s_add_u32 s46, s45, 2048
v_add_u32 v{VFN}, s46, v5
s_cmp_eq_u32 s43, 0
s_cbranch_scc1 K2_P2
s_lshl_b32 s45, s3, 11
s_add_u32 s45, s45, {L_EXT}
s_lshl_b32 s46, 1, s3
s_lshl_b32 s47, s42, 2
v_mov_b32 v6, s46
v_mov_b32 v7, s47
s_mov_b64 exec, 1
ds_or_b32 v7, v6 offset:{L_MASK}
s_mov_b64 exec, -1
K2_P2:
v_add_u32 v{VF}, s45, v5
""")
    for i in range(0, 8, 2):
        a(f"v_pk_mov_b32 v[{DEN+i}:{DEN+i+1}], 0, 0")
    a(f"""
v_add_u32 v{VK}, {8*NB}, v{VK}
s_bitcmp1_b32 s{S_MASK}, {NB}
s_cbranch_scc0 K2_PK{NB}
""")
    ev_k(a, 0)
    a(f"""
K2_PK{NB}:
v_mov_b32 v5, 32
@S10
s_waitcnt vmcnt({2*NG0-2}) lgkmcnt(0)
@S15
""")
    for l in mfmas(0):
        a(l)
    for p in range(NG0, 4):
        for l in gathers(p, TI[p], TI[p] + 2):
            a(l)
    a(f"""
s_bitcmp1_b32 s{S_MASK}, 1
s_cbranch_scc0 K2_PE1
s_nop 2
""")
    ev_e(a, 16)
    a(f"""
K2_PE1:
ds_read_b64 v[{AOP[0]}:{AOP[0]+1}], v{VE} offset:16
ds_read_b64 v[{AOP[1]}:{AOP[1]+1}], v{VE} offset:24
v_cndmask_b32_e64 v5, 0, v5, s[{S_AM}:{S_AM+1}]
s_nop 3
""")
    for i in range(8):
        a(f"v_exp_f32 v{Y[0]+i}, v{Y[0]+i}")
    a(f"v_add_u32 v{VE}, v5, v{VE}")
    a(f"s_waitcnt vmcnt(4) lgkmcnt(0)")
    for l in mfmas(1):
        a(l)
    for p in range(4, NB):
        for l in gathers(p, TI[p], TI[p] + 2):
            a(l)
    a(f"""
s_bitcmp1_b32 s{S_MASK}, 2
s_cbranch_scc0 K2_PE2
s_nop 2
""")
    ev_e(a, 0)
    a(f"""
K2_PE2:
@C20
s_nop 4
K2_LOOP:
""")
    order = ORDERS[OPT["order"]].split()
    for k in range(NB):
        d = ops(k)
        for x in order:
            ex = OPT.get("exp")
            if ex == "nom" and x in ("N0", "N1"): continue
            if ex == "nold" and x in ("L0", "L1"): continue
            if ex == "notrans" and x[0] in "ER": continue
            a(d[x])
        if k == NB - 1:
            a("s_cbranch_scc0 K2_LOOP")
        else:
            a(f"s_cbranch_scc1 K2_EV{k}")
            a(f"K2_RET{k}:")
    for k in list(range(NB - 1, NB)) + list(range(NB - 1)):
        kn = (k + 1) % NB
        ret = f"K2_RET{k}" if k < NB - 1 else "K2_LOOP"
        a(f"""
K2_EV{k}:
s_ff1_i32_b64 s14, s[{S_CM}:{S_CM+1}]
s_bitset0_b64 s[{S_CM}:{S_CM+1}], s14
s_ff1_i32_b64 s{S_CNT}, s[{S_CM}:{S_CM+1}]
s_lshr_b64 s[40:41], s[{S_MASK}:{S_MASK+1}], s14
s_sub_u32 s{S_CNT}, s{S_CNT}, s14
s_sub_u32 s{S_CNT}, s{S_CNT}, 1
s_bitcmp1_b32 s40, 1
s_cbranch_scc0 K2_EV{k}A
ds_write_b128 v{VF}, v[{DEN}:{DEN+3}]
ds_write_b128 v{VF}, v[{NUM}:{NUM+3}] offset:256
s_lshr_b64 s[42:43], s[40:41], 2
s_cbranch_scc0 K2_LOOP_DONE
v_mov_b32 v{VF}, v{VFN}
v_add_u32 v{VFN}, 2048, v{VFN}
""")
        for i in range(0, 8, 2):
            a(f"v_pk_mov_b32 v[{DEN+i}:{DEN+i+1}], 0, 0")
        a(f"""
K2_EV{k}A:
s_bitcmp1_b32 s40, 3
s_cbranch_scc0 K2_EV{k}B
""")
        ev_e(a, 16 * kn)
        a(f"""
K2_EV{k}B:
s_bitcmp1_b32 s40, {NB+1}
s_cbranch_scc0 K2_EV{k}C
""")
        ev_k(a, 8 * kn)
        a(f"K2_EV{k}C:")
        if OPT["prio"] == "1":
            a(f"""
s_bitcmp1_b64 s[54:55], s14
s_cbranch_scc0 {ret}
s_sub_u32 s{S_PR}, s{S_PR}, 1
s_setprio 0
s_cmp_eq_u32 s{S_PR}, 0
s_cbranch_scc1 {ret}
s_setprio 1
s_cmp_eq_u32 s{S_PR}, 1
s_cbranch_scc1 {ret}
s_setprio 2
""")
        a(f"s_branch {ret}")
    a(f"""
K2_LOOP_DONE:
@C21
@S11
s_setprio 0
v_lshrrev_b32 v80, 3, v0
v_min_u32 v81, 48, v80
v_lshlrev_b32 v82, 2, v80
v_lshlrev_b32 v83, 2, v81
v_and_b32 v84, 7, v0
v_lshlrev_b32 v85, 5, v84
v_cmp_gt_u32_e64 s[40:41], 52, v80
s_movk_i32 s14, {US}
v_mad_u32_u24 v88, v81, s14, v85
v_add_u32 v88, {L_U}, v88
v_mul_u32_u24 v89, {XSS}, v81
v_lshl_add_u32 v89, v84, 4, v89
v_add_u32 v89, {L_XS}, v89
ds_read_b32 v86, v82 offset:{L_RK}
ds_read_b32 v87, v83 offset:{L_CNT}
ds_read_b128 v[112:115], v88
ds_read_b128 v[116:119], v88 offset:16
ds_read_b128 v[{CA}:{CA+3}], v89
s_waitcnt lgkmcnt(0)
v_cmp_ne_u32 vcc, 0, v87
v_and_b32 v90, -4, v86
v_lshl_add_u32 v91, v86, 9, v85
v_add_u32 v91, {L_ACC}, v91
v_and_b32 v92, 3, v86
v_lshl_add_u32 v92, v92, 9, v85
v_add_u32 v92, {L_EXT}, v92
s_barrier
@S12
s_and_b64 exec, vcc, s[40:41]
s_cbranch_execz K2_COMB_DONE
ds_read_b32 v90, v90 offset:{L_MASK}
K2_COMB_X:
ds_read_b128 v[96:99], v91
ds_read_b128 v[100:103], v91 offset:16
ds_read_b128 v[104:107], v91 offset:256
ds_read_b128 v[108:111], v91 offset:272
s_waitcnt lgkmcnt(4)
v_ffbl_b32 v91, v90
v_cmp_ne_u32 vcc, 0, v90
v_add_u32 v93, -1, v90
v_and_b32 v90, v90, v93
v_lshl_add_u32 v91, v91, 11, v92
s_waitcnt lgkmcnt(0)
""")
    for i in range(0, 16, 2):
        a(f"v_pk_add_f32 v[{TOT+i}:{TOT+i+1}], v[{TOT+i}:{TOT+i+1}], v[{96+i}:{97+i}]")
    a(f"""
s_and_b64 exec, exec, vcc
s_cbranch_execnz K2_COMB_X
K2_COMB_DONE:
s_mov_b64 exec, -1
s_cmp_lg_u32 s{S_MODE}, 0
s_cbranch_scc1 K2_SLOW_NEXT
K2_FINAL:
s_cmp_lg_u32 s3, 6
s_cbranch_scc1 K2_FIN2
""")
    for i in range(16):
        a(f"v_add_f32_dpp v{TOT+i}, v{TOT+i}, v{TOT+i} row_ror:8 row_mask:0xf bank_mask:0xf")
    for i in range(16):
        a(f"ds_swizzle_b32 v{96+i}, v{TOT+i} offset:0x401F")
    a("s_waitcnt lgkmcnt(0)")
    for i in range(0, 16, 2):
        a(f"v_pk_add_f32 v[{TOT+i}:{TOT+i+1}], v[{TOT+i}:{TOT+i+1}], v[{96+i}:{97+i}]")
    eps = struct.unpack("<I", struct.pack("<f", 1e-6 * 2.0**60))[0]
    a(f"""
K2_FIN2:
s_mov_b32 s14, {eps:#x}
s_mov_b32 s15, {eps:#x}
v_lshlrev_b32 v80, 8, v80
v_add_u32 v80, s{S_B}, v80
v_lshlrev_b32 v80, 7, v80
v_lshl_add_u32 v80, v84, 4, v80
""")
    for i in range(0, 8, 2):
        a(f"v_pk_add_f32 v[{TOT+i}:{TOT+i+1}], v[{TOT+i}:{TOT+i+1}], s[14:15]")
    for i in range(8):
        a(f"v_rcp_f32 v{TOT+i}, v{TOT+i}")
    for i in range(4):
        a(f"v_lshlrev_b32 v{96+2*i}, 16, v{CA+i}")
        a(f"v_and_b32 v{97+2*i}, 0xffff0000, v{CA+i}")
    for i in range(0, 8, 2):
        a(f"v_pk_fma_f32 v[{112+i}:{113+i}], v[{TOT+8+i}:{TOT+9+i}], v[{TOT+i}:{TOT+i+1}], v[{112+i}:{113+i}]")
    for i in range(8):
        a(f"v_max_f32 v{112+i}, 0, v{112+i}")
    for i in range(0, 8, 2):
        a(f"v_pk_add_f32 v[{96+i}:{97+i}], v[{96+i}:{97+i}], v[{112+i}:{113+i}]")
    for i in range(4):
        a(f"v_cvt_pk_bf16_f32 v{96+i}, v{96+2*i}, v{97+2*i}")
    a(f"""
buffer_store_dwordx4 v[96:99], v80, s[36:39], 0 offen
@S13
@Wvmcnt(0)
@S14
@Vs{S_IT},22
@OUT
K2_END:
s_endpgm
K2_LONG_ENTRY:
s_mov_b32 s14, 32
K2_LONG:
v_add_u32 v6, s14, v2
s_mul_i32 s15, s14, 12
""")
    for k in range(8):
        a(f"""
s_mov_b64 exec, -1
v_cmp_gt_u32_sdwa vcc, v{VTT+k}, v6 src0_sel:WORD_1 src1_sel:DWORD
s_and_saveexec_b64 s[40:41], vcc
s_cbranch_execz K2_LONG_S{k}
buffer_load_dwordx3 v[80:82], v{VRA+k}, s[32:35], s15 offen
s_waitcnt vmcnt(0)
""")
        place_atomic(a, 80, 4, 72)
        a("s_waitcnt lgkmcnt(0)")
        place_write(a, 80, 4)
        a(f"K2_LONG_S{k}:")
    a(f"""
s_mov_b64 exec, -1
s_add_u32 s14, s14, 16
v_cmp_lt_u32 vcc, s14, v{VMAXL}
s_cbranch_vccnz K2_LONG
s_branch K2_PLACED
K2_SLOW_ENTRY:
v_mov_b32 v4, 0
ds_max_u32 v4, v{VMAXL} offset:{L_MAXL}
s_waitcnt lgkmcnt(0)
s_barrier
ds_read_b32 v5, v4 offset:{L_MAXL}
s_mov_b32 s{S_MODE}, 1
s_mov_b32 s{S_I}, 0
s_mov_b32 s{S_MO}, 0
s_waitcnt lgkmcnt(0)
v_readfirstlane_b32 s{S_ML}, v5
s_branch K2_SLOW_BATCH
K2_SLOW_NEXT:
s_add_u32 s{S_I}, s{S_I}, 1
s_cmp_lt_u32 s{S_I}, 64
s_cbranch_scc1 K2_SLOW_BATCH
s_mov_b32 s{S_I}, 0
s_add_u32 s{S_MO}, s{S_MO}, 16
s_cmp_ge_u32 s{S_MO}, s{S_ML}
s_cbranch_scc1 K2_FINAL
K2_SLOW_BATCH:
s_waitcnt vmcnt(0) lgkmcnt(0)
s_barrier
""")
    txt = Asm(0, 0)
    lds_init(txt)
    t = txt.text()
    for r in range(49, 39, -1):
        t = t.replace(f"v{r}", f"v{r+40}")
    t = t.replace("v[40:43]", "v[80:83]").replace("v[44:47]", "v[84:87]")
    a(t)
    a(f"""
v_mov_b32 v90, 4
s_waitcnt lgkmcnt(0)
s_barrier
s_cmp_lg_u32 s3, 0
s_cbranch_scc1 K2_SLOW_S
s_lshl_b32 s14, s{S_I}, 2
v_add_u32 v7, s14, v3
s_lshl_b32 s15, s{S_B}, 2
v_lshl_add_u32 v4, v7, 10, s15
buffer_load_dword v5, v4, s[32:35], 0 offen
s_mov_b32 s15, {RECB}
v_mul_lo_u32 v7, v7, s15
v_add_u32 v6, s{S_MO}, v2
v_mad_u32_u24 v7, v6, 12, v7
v_add_u32 v7, {REC_OFF - T_OFF}, v7
s_waitcnt vmcnt(0)
v_mad_u32_u16 v4, v5, 12, v7
v_cmp_gt_u32_sdwa vcc, v5, v6 src0_sel:WORD_1 src1_sel:DWORD
s_and_saveexec_b64 s[40:41], vcc
s_cbranch_execz K2_SLOW_S
buffer_load_dwordx3 v[80:82], v4, s[32:35], 0 offen
s_waitcnt vmcnt(0)
""")
    place_atomic(a, 80, 4, 90)
    a("s_waitcnt lgkmcnt(0)")
    place_write(a, 80, 4)
    a("""
K2_SLOW_S:
s_mov_b64 exec, -1
s_waitcnt lgkmcnt(0)
s_barrier
s_branch K2_RANK
""")
    return a.text()


def desc(name, vgpr, sgpr):
    return f""".amdhsa_kernel {name}
  .amdhsa_next_free_vgpr {vgpr}
  .amdhsa_next_free_sgpr {sgpr}
  .amdhsa_accum_offset {(vgpr + 3) // 4 * 4}
  .amdhsa_group_segment_fixed_size 0
  .amdhsa_kernarg_size 96
  .amdhsa_user_sgpr_count 2
  .amdhsa_user_sgpr_kernarg_segment_ptr 1
  .amdhsa_system_sgpr_workgroup_id_x 1
.end_amdhsa_kernel
"""


HEADER = open("standalone__edge_featured_mpnn_gatedgcn__graph.s.ref").read().split("; Override launch")[0]


def main():
    out = HEADER
    out += f"; @launch kernel=bin_kernel grid=(256,1,1) block=(512,1,1) lds={K1_LDS}\n"
    out += f"; @launch kernel=gate_kernel grid=(256,1,1) block=(512,1,1) lds={K2_LDS}\n"
    out += '.amdgcn_target "amdgcn-amd-amdhsa--gfx950"\n.text\n'
    out += ".globl bin_kernel\n.p2align 8\n.type bin_kernel,@function\n" + k1()
    out += ".globl gate_kernel\n.p2align 8\n.type gate_kernel,@function\n" + k2()
    out += '.section .rodata,"a"\n.p2align 6\n' + desc("bin_kernel", 128, 101 if STAMPS else 64)
    out += ".p2align 6\n" + desc("gate_kernel", K2_VGPR, 101 if STAMPS else 96)
    open(sys.argv[1], "w").write(out)


main()
```

```python
import sys
import struct

N = 12500
E = 800000
QCH = 782
QH = QCH // 2
CH = QCH * 4
NQ = E // 4
RECB = CH * 12
TAB_ROWS = N + 1
TAB_BYTES = TAB_ROWS * 256
T_OFF = 0x310000
REC_OFF = 0x350000
TR_BYTES = (REC_OFF - T_OFF) + 256 * RECB
BIG = 0x40000000
NLOG2E = 0xbfb8aa3b
CAP = 128
CS = 132
XSS = 144

OPT = dict(st_rec="sc1", st_tab="sc1", prefetch="0", prio="1", order="a", ld1="nt", ld2="", ldp="", st_out="")
for a_ in sys.argv[2:]:
    k_, v_ = a_.split("=")
    OPT[k_] = v_
STAMPS = bool(OPT.get("stamps"))
DBG_OFF = 0x1000000


class Asm:
    def __init__(self, vs, kidx):
        self.L = []
        self.vs = vs
        self.kidx = kidx

    def __call__(self, s):
        for l in s.strip("\n").split("\n"):
            l = l.strip()
            if not l:
                continue
            if l.startswith("@"):
                if STAMPS:
                    self.special(l)
                continue
            if l.endswith(":"):
                self.L.append(l)
            else:
                self.L.append("    " + l)

    def special(self, l):
        vs = self.vs
        if l.startswith("@S") or l.startswith("@C"):
            self(f"{'s_memtime' if l[1] == 'C' else 's_memrealtime'} s[98:99]")
            self("s_waitcnt lgkmcnt(0)")
            self(f"v_writelane_b32 v{vs}, s98, {int(l[2:])}")
        elif l.startswith("@W"):
            self("s_waitcnt " + l[2:])
        elif l.startswith("@V"):
            r, i = l[2:].split(",")
            self(f"v_writelane_b32 v{vs}, {r}, {i}")
        elif l.startswith("@OUT"):
            self(f"""
s_mov_b64 exec, -1
s_lshl_b32 s100, s2, 4
s_add_u32 s100, s100, s3
s_lshl_b32 s100, s100, 8
s_add_u32 s100, s100, {DBG_OFF + self.kidx * 0x100000:#x}
v_and_b32 v{vs+1}, 63, v0
v_lshl_add_u32 v{vs+1}, v{vs+1}, 2, s100
global_store_dword v{vs+1}, v{vs}, s[16:17]
""")

    def text(self):
        return "\n".join(self.L) + "\n"


def srd(a, d, lo, hi, nbytes, stride=0):
    a(f"s_mov_b32 s{d}, s{lo}")
    a(f"s_and_b32 s{d+1}, s{hi}, 0xffff")
    if stride:
        a(f"s_or_b32 s{d+1}, s{d+1}, {stride << 16:#x}")
    a(f"s_mov_b32 s{d+2}, {nbytes}")
    a(f"s_mov_b32 s{d+3}, 0x20000")


def scan(a, v, steps16_only=False, op="add_u32"):
    for d in (1, 2, 4, 8):
        a("s_nop 1")
        a(f"v_{op}_dpp v{v}, v{v}, v{v} row_shr:{d} row_mask:0xf bank_mask:0xf")
    if not steps16_only:
        a("s_nop 1")
        a(f"v_{op}_dpp v{v}, v{v}, v{v} row_bcast:15 row_mask:0xa bank_mask:0xf")
        a("s_nop 1")
        a(f"v_{op}_dpp v{v}, v{v}, v{v} row_bcast:31 row_mask:0xc bank_mask:0xf")


SDWA_B0 = "dst_sel:DWORD dst_unused:UNUSED_PAD src0_sel:DWORD src1_sel:BYTE_0"


def tr_reads(a, vaddr, base, r0):
    for mat in range(2):
        for t in range(2):
            for s in range(2):
                r = r0 + 16 * mat + 8 * t + 4 * s
                o = base + mat * 8192 + s * 4096 + t * 32
                a(f"ds_read_b64_tr_b16 v[{r}:{r+1}], v{vaddr} offset:{o}")
                a(f"ds_read_b64_tr_b16 v[{r+2}:{r+3}], v{vaddr} offset:{o + 512}")


def tile_mfmas(a, r0, x0, d0):
    for s in range(2):
        for mat in range(2):
            for t in range(2):
                f = r0 + 16 * mat + 8 * t + 4 * s
                d = d0 + 8 * mat + 4 * t
                c = "0" if s == 0 else f"v[{d}:{d+3}]"
                a(f"v_mfma_f32_16x16x32_bf16 v[{d}:{d+3}], v[{f}:{f+3}], v[{x0+4*s}:{x0+4*s+3}], {c}")


K1_W = 0
K1_XS = 16384
K1_HIST = 0
K1_START = 1024
K1_STAGE = 2048
K1_LDS = K1_STAGE + RECB + 32


def k1():
    a = Asm(120, 0)
    a(f"""
bin_kernel:
s_cmp_ge_u32 s2, 256
s_cbranch_scc1 K1_TABLE
@S0
@C30
s_load_dwordx4 s[8:11], s[0:1], 16
s_load_dwordx2 s[6:7], s[0:1], 8
s_load_dwordx2 s[16:17], s[0:1], 88
v_readfirstlane_b32 s3, v0
s_mul_i32 s45, s2, {QCH}
v_add_u32 v4, s45, v0
v_add_u32 v5, {QH}, v4
v_cmp_gt_u32 vcc, {QH}, v0
s_mov_b32 s46, {NQ}
v_cmp_gt_u32_e64 s[50:51], s46, v5
v_lshlrev_b32 v4, 4, v4
v_lshlrev_b32 v5, 4, v5
v_mov_b32 v6, {BIG:#x}
s_mov_b64 s[48:49], vcc
s_and_b64 s[50:51], s[50:51], vcc
s_lshr_b32 s3, s3, 6
v_cndmask_b32 v4, v6, v4, vcc
v_cndmask_b32_e64 v5, v6, v5, s[50:51]
v_and_b32 v7, 255, v0
v_lshlrev_b32 v7, 2, v7
v_mov_b32 v6, 0
ds_write_b32 v7, v6 offset:{K1_HIST}
s_mov_b32 s35, 0x20000
s_mov_b32 s34, {E*4}
s_waitcnt lgkmcnt(0)
s_mov_b32 s32, s10
s_and_b32 s33, s11, 0xffff
buffer_load_dwordx4 v[8:11], v4, s[32:35], 0 offen {OPT['ld1']}
buffer_load_dwordx4 v[12:15], v5, s[32:35], 0 offen {OPT['ld1']}
""")
    srd(a, 28, 8, 9, E * 4)
    srd(a, 24, 6, 7, E * 8)
    a(f"""
v_lshlrev_b32 v40, 1, v4
v_lshlrev_b32 v41, 1, v5
@S1
s_barrier
buffer_load_dwordx4 v[16:19], v4, s[28:31], 0 offen {OPT['ld1']}
buffer_load_dwordx4 v[20:23], v5, s[28:31], 0 offen {OPT['ld1']}
buffer_load_dwordx4 v[24:27], v40, s[24:27], 0 offen {OPT['ld1']}
buffer_load_dwordx4 v[28:31], v40, s[24:27], 0 offen offset:16 {OPT['ld1']}
v_and_b32 v1, 63, v0
v_lshlrev_b32 v7, 4, v1
s_lshl_b32 s46, s2, 10
s_add_u32 s46, s46, {T_OFF:#x}
s_add_u32 s40, s16, s46
s_addc_u32 s41, s17, 0
s_and_b32 s41, s41, 0xffff
s_mov_b32 s42, 1024
s_mov_b32 s43, 0x20000
s_mul_i32 s46, s2, {RECB}
s_add_u32 s46, s46, {REC_OFF:#x}
s_add_u32 s52, s16, s46
s_addc_u32 s53, s17, 0
s_and_b32 s53, s53, 0xffff
s_mov_b32 s54, {RECB}
s_mov_b32 s55, 0x20000
v_mov_b32 v6, 1
@S2
s_waitcnt vmcnt(5)
@S3
""")
    for i in range(4):
        a(f"v_lshlrev_b32_sdwa v{52+i}, 2, v{8+i} {SDWA_B0}")
    a("s_mov_b64 exec, s[48:49]")
    for i in range(4):
        a(f"ds_add_rtn_u32 v{60+i}, v{52+i}, v6 offset:{K1_HIST}")
    a("s_mov_b64 exec, -1")
    a("s_waitcnt vmcnt(4)")
    for i in range(4, 8):
        a(f"v_lshlrev_b32_sdwa v{52+i}, 2, v{8+i} {SDWA_B0}")
    a("s_mov_b64 exec, s[50:51]")
    for i in range(4, 8):
        a(f"ds_add_rtn_u32 v{60+i}, v{52+i}, v6 offset:{K1_HIST}")
    a(f"""
s_mov_b64 exec, -1
buffer_load_dwordx4 v[32:35], v41, s[24:27], 0 offen {OPT['ld1']}
buffer_load_dwordx4 v[36:39], v41, s[24:27], 0 offen offset:16 {OPT['ld1']}
""")
    for i in range(8):
        a(f"v_lshrrev_b32 v{8+i}, 6, v{8+i}")
    a(f"""
s_waitcnt lgkmcnt(0)
@S4
s_barrier
@S5
ds_read_b128 v[40:43], v7 offset:{K1_HIST}
s_movk_i32 s46, {K1_STAGE}
s_waitcnt lgkmcnt(0)
v_add_u32 v45, v40, v41
v_add_u32 v46, v45, v42
v_add_u32 v48, v46, v43
v_mov_b32 v49, v48
""")
    scan(a, 48)
    a(f"""
v_sub_u32 v44, v48, v49
v_add_u32 v47, v44, v46
v_add_u32 v46, v44, v45
v_add_u32 v45, v44, v40
ds_write_b128 v7, v[44:47] offset:{K1_START}
""")
    for i in range(8):
        a(f"ds_read_b32 v{52+i}, v{52+i} offset:{K1_START}")
    for i in range(4):
        a(f"v_lshl_or_b32 v{48+i}, v{40+i}, 16, v{44+i}")
    a("s_waitcnt vmcnt(4)")
    for i in range(8):
        a(f"v_lshl_or_b32 v{16+i}, v{16+i}, 8, v{8+i}")
    for i in range(8):
        a(f"s_waitcnt lgkmcnt({7-i})")
        a(f"v_add_u32 v{52+i}, v{52+i}, v{60+i}")
        a(f"v_mad_u32_u24 v{52+i}, v{52+i}, 12, s46")
    a("s_mov_b64 exec, s[48:49]")
    for i in range(4):
        a(f"ds_write_b32 v{52+i}, v{16+i} offset:8")
    a("s_mov_b64 exec, s[50:51]")
    for i in range(4, 8):
        a(f"ds_write_b32 v{52+i}, v{16+i} offset:8")
    a("""
@S7
s_waitcnt vmcnt(2)
@S8
s_mov_b64 exec, s[48:49]
""")
    for i in range(4):
        a(f"ds_write2_b32 v{52+i}, v{24+2*i}, v{25+2*i} offset0:0 offset1:1")
    a("s_waitcnt vmcnt(0)")
    a("s_mov_b64 exec, s[50:51]")
    for i in range(4, 8):
        a(f"ds_write2_b32 v{52+i}, v{24+2*i}, v{25+2*i} offset0:0 offset1:1")
    a(f"""
s_mov_b64 exec, -1
s_cmp_lg_u32 s3, 0
s_cbranch_scc1 K1_NOT
buffer_store_dwordx4 v[48:51], v7, s[40:43], 0 offen {OPT['st_rec']}
K1_NOT:
v_cmp_gt_u32 vcc, {RECB//16 - 2048}, v0
v_lshlrev_b32 v4, 4, v0
s_movk_i32 s44, 0x2000
s_movk_i32 s45, 0x4000
s_movk_i32 s46, 0x6000
s_mov_b32 s47, 0x8000
s_waitcnt lgkmcnt(0)
@S9
s_barrier
@S10
""")
    for i in range(4):
        a(f"ds_read_b128 v[{8+4*i}:{11+4*i}], v4 offset:{K1_STAGE + 8192*i}")
    a(f"""
s_mov_b64 exec, vcc
ds_read_b128 v[24:27], v4 offset:{K1_STAGE + 32768}
s_mov_b64 exec, -1
""")
    for i in range(4):
        a(f"s_waitcnt lgkmcnt({4-i})")
        so = "0" if i == 0 else f"s{43+i}"
        a(f"buffer_store_dwordx4 v[{8+4*i}:{11+4*i}], v4, s[52:55], {so} offen {OPT['st_rec']}")
    a(f"""
s_mov_b64 exec, vcc
s_cbranch_execz K1_DONE
s_waitcnt lgkmcnt(0)
buffer_store_dwordx4 v[24:27], v4, s[52:55], s47 offen {OPT['st_rec']}
K1_DONE:
@S11
@Wvmcnt(0)
@S12
@S13
@C31
@OUT
s_endpgm
K1_TABLE:
s_cmp_ge_u32 s2, 512
s_cbranch_scc1 K1_END
s_load_dwordx2 s[4:5], s[0:1], 0
s_load_dwordx2 s[12:13], s[0:1], 40
s_load_dwordx2 s[14:15], s[0:1], 64
s_load_dwordx2 s[16:17], s[0:1], 88
v_readfirstlane_b32 s3, v0
s_sub_u32 s2, s2, 256
v_and_b32 v7, 255, v0
v_lshlrev_b32 v52, 4, v7
s_mul_i32 s44, s2, {49*128}
v_lshl_add_u32 v53, v0, 4, s44
v_cmp_gt_u32 vcc, 392, v0
v_mov_b32 v6, {BIG:#x}
s_lshr_b32 s3, s3, 6
s_cmp_lt_u32 s3, 4
v_cndmask_b32 v53, v6, v53, vcc
s_waitcnt lgkmcnt(0)
s_cselect_b64 s[12:13], s[12:13], s[14:15]
s_add_u32 s14, s12, 4096
s_addc_u32 s15, s13, 0
""")
    srd(a, 20, 4, 5, N * 128)
    a(f"""
global_load_dwordx4 v[40:43], v52, s[12:13]
global_load_dwordx4 v[44:47], v52, s[14:15]
buffer_load_dwordx4 v[48:51], v53, s[20:23], 0 offen
v_and_b32 v2, 15, v0
v_bfe_u32 v3, v0, 4, 2
""")
    srd(a, 36, 16, 17, TAB_BYTES)
    a(f"""
s_lshr_b32 s18, s3, 1
s_lshl_b32 s18, s18, 4
s_and_b32 s19, s3, 1
s_lshr_b32 s46, s3, 2
s_lshl_b32 s46, s46, 13
v_add_u32 v8, s46, v52
v_lshrrev_b32 v9, 3, v0
v_mul_u32_u24 v9, {XSS}, v9
v_and_b32 v6, 7, v0
v_lshl_add_u32 v9, v6, 4, v9
v_lshrrev_b32 v10, 2, v2
v_lshl_add_u32 v10, v3, 3, v10
v_lshlrev_b32 v10, 7, v10
v_and_b32 v5, 3, v2
v_lshl_add_u32 v10, v5, 3, v10
s_lshl_b32 s46, s19, 6
v_add_u32 v10, s46, v10
v_add_u32 v116, s18, v2
v_mul_u32_u24 v11, {XSS}, v116
v_lshl_add_u32 v11, v3, 4, v11
s_mul_i32 s44, s2, 49
v_add_u32 v117, s44, v116
v_lshlrev_b32 v4, 8, v117
v_lshl_add_u32 v4, v3, 4, v4
s_lshl_b32 s46, s19, 7
v_add_u32 v4, s46, v4
v_cmp_gt_u32 vcc, 49, v116
v_mov_b32 v5, {BIG:#x}
s_mov_b32 s56, 0xffff0000
s_mov_b32 s57, 0x7fffffff
v_cndmask_b32 v4, v5, v4, vcc
v_cmp_eq_u32 vcc, {N}, v117
v_mov_b32 v5, 0x7f000000
v_mov_b32 v6, 0x7f007f00
s_waitcnt vmcnt(0)
ds_write_b128 v8, v[40:43] offset:{K1_W}
ds_write_b128 v8, v[44:47] offset:{K1_W + 4096}
ds_write_b128 v9, v[48:51] offset:{K1_XS}
s_waitcnt lgkmcnt(0)
s_barrier
ds_read_b128 v[40:43], v11 offset:{K1_XS}
ds_read_b128 v[44:47], v11 offset:{K1_XS + 64}
""")
    tr_reads(a, 10, K1_W, 68)
    a("s_waitcnt lgkmcnt(0)")
    tile_mfmas(a, 68, 40, 100)
    a("s_nop 7")

    def near(o, hsrc, lo):
        return [f"v_and_b32 v{o}, s57, v{hsrc}",
                f"v_min_u32 v{o}, v5, v{o}",
                f"v_add_u32 v{o}, 0x8000, v{o}",
                f"v_sub_u32_e64 v{o}, v{o}, v{lo} clamp",
                f"v_and_or_b32 v{o}, v{o}, s56, v{lo}",
                f"v_bfi_b32 v{o}, s57, v{o}, v{hsrc}"]
    seqs = []
    for t in range(2):
        b, h, o, tm = 100 + 4 * t, 108 + 4 * t, 68 + 4 * t, 8 + 4 * t
        q = [f"v_mul_f32 v{b+i}, {NLOG2E:#x}, v{b+i}" for i in range(4)]
        q += [f"v_med3_f32 v{b+i}, v{b+i}, v5, -v5" for i in range(4)]
        q += [f"v_cvt_pk_bf16_f32 v{o}, v{b}, v{b+1}", f"v_cvt_pk_bf16_f32 v{o+1}, v{b+2}, v{b+3}"]
        q += [f"v_cndmask_b32 v{o}, v{o}, v6, vcc", f"v_cndmask_b32 v{o+1}, v{o+1}, v6, vcc"]
        q += [f"v_cvt_pk_bf16_f32 v{tm}, v{h}, v{h}", f"v_and_b32 v{tm}, 0xffff, v{tm}"]
        q += near(o + 2, h + 2, tm)
        q += [f"v_lshrrev_b32 v{tm}, 16, v{o+2}"]
        q += near(tm + 1, h + 1, tm)
        q += [f"v_lshrrev_b32 v{tm}, 16, v{tm+1}"]
        q += near(o + 3, h + 3, tm)
        seqs.append(q)
    for x, y in zip(*seqs):
        a(x)
        a(y)
    for t in range(2):
        o = 68 + 4 * t
        a(f"buffer_store_dwordx4 v[{o}:{o+3}], v4, s[36:39], 0 offen offset:{64*t} {OPT['st_tab']}")
    a("""
K1_END:
s_endpgm
""")
    return a.text()


L_CNT = 0
L_MASK = 256
L_MAXL = 324
L_ZERO = 384
L_TS = 512
L_TC = 1536
L_RK = 1792
L_EA = 2048
EA_BYTES = 49 * CS * 8 + 32
L_KEYS = L_EA + EA_BYTES
KEY_BYTES = 49 * CS * 4 + 16
L_ACC = L_KEYS + KEY_BYTES
L_EXT = L_ACC + 52 * 512
L_W = L_EXT
US = 272
L_AP = L_EXT + 8 * 2048
L_U = L_AP + 49 * US
L_XS = L_U + 49 * US
L_WC = L_XS + 64 * XSS
K2_LDS = L_WC + 512
NB = 6
MINPS = 7
MAXIT = 62

GB = 8
Y = (80, 88)
HL = 96
MM, SA, UU = 100, 104, 108
DEN, NUM = 112, 116
AOP = (120, 124)
CA = 128
CN = 132
IDX = (136, 138)
NX = 140
VK, VE, VF, VFN = 142, 143, 144, 145
VTK, VTE, NXE, VINC = 146, 147, 148, 149
TOT = 150
VTT = 166
VRA = 174
VCA = 182
VMAXL, VPF = 198, 199
K2_VGPR = 204
S_IT, S_MODE, S_I, S_MO, S_ML, S_CNT = 4, 5, 6, 7, 8, 9
S_K = 10
S_B = 13
S_CM = 56
S_PR = 58
S_CS = 59
S_MASK = 60
S_AM = 62


def stepbuf(p, i):
    return GB + 12 * (p % NB) + 6 * i


def lds_init(a):
    a(f"""
v_mov_b32 v40, 0
v_mov_b32 v41, 0
v_mov_b32 v42, 0
v_mov_b32 v43, 0
v_mov_b32 v44, {N}
v_mov_b32 v45, {N}
v_mov_b32 v46, {N}
v_mov_b32 v47, {N}
v_lshlrev_b32 v48, 4, v0
v_add_u32 v49, {L_KEYS}, v48
""")
    nz = L_KEYS // 16
    for i in range(nz // 512):
        a(f"ds_write_b128 v48, v[40:43] offset:{8192*i}")
    nk = KEY_BYTES // 16
    for i in range(nk // 512):
        a(f"ds_write_b128 v49, v[44:47] offset:{8192*i}")
    r1, r2 = nz % 512, nk % 512
    for r, reg, data, cnt in sorted([(r1, 48, 40, nz), (r2, 49, 44, nk)], reverse=True):
        a(f"v_cmp_gt_u32 vcc, {r}, v0")
        a("s_mov_b64 exec, vcc")
        a(f"ds_write_b128 v{reg}, v[{data}:{data+3}] offset:{8192*(cnt//512)}")
    a("s_mov_b64 exec, -1")


def place_atomic(a, r, ca, four):
    a(f"v_and_b32 v{ca}, 0xfc, v{r+2}")
    a(f"ds_add_rtn_u32 v{r+3}, v{ca}, v{four} offset:{L_CNT}")


def place_write(a, r, ca):
    a(f"v_min_u32 v{r+3}, {CAP*4}, v{r+3}")
    a(f"v_mad_u32_u24 v{ca}, v{ca}, s{S_CS}, v{r+3}")
    a(f"v_lshrrev_b32 v{r+2}, 8, v{r+2}")
    a(f"v_add_u32 v{r+3}, v{ca}, v{ca}")
    a(f"ds_write_b32 v{ca}, v{r+2} offset:{L_KEYS}")
    a(f"ds_write_b64 v{r+3}, v[{r}:{r+1}] offset:{L_EA}")


def ev_k(a, sub):
    a(f"""
v_add_u32 v{VK}, {L_KEYS - sub}, v{NX}
v_add_u32 v4, v{NX+1}, v{IDX[0]+1}
v_add_u32 v{VTK}, 32, v{VTK}
v_add_u32 v{VTE}, 32, v{VTE}
ds_read_b128 v[{CN}:{CN+3}], v4
ds_read_b32 v{NXE}, v{VTE} offset:{L_TS}
ds_read_b64 v[{NX}:{NX+1}], v{VTK} offset:{L_TS + 32}
""")


def ev_e(a, sub):
    a(f"""
v_lshlrev_b32 v{VE}, 1, v{NXE}
v_add_u32 v{VE}, {L_EA - sub}, v{VE}
v_mov_b32 v4, {L_ZERO}
v_pk_mov_b32 v[{CA}:{CA+1}], v[{CN}:{CN+1}], v[{CN}:{CN+1}] op_sel:[0,1]
v_pk_mov_b32 v[{CA+2}:{CA+3}], v[{CN+2}:{CN+3}], v[{CN+2}:{CN+3}] op_sel:[0,1]
v_cndmask_b32_e64 v{VE}, v4, v{VE}, s[{S_AM}:{S_AM+1}]
""")


def gathers(p, i0, i1):
    g0, g1 = stepbuf(p, 0) + 2, stepbuf(p, 1) + 2
    return [f"buffer_load_dwordx4 v[{g0}:{g0+3}], v[{i0}:{i0+1}], s[24:27], 0 idxen offen",
            f"buffer_load_dwordx4 v[{g1}:{g1+3}], v[{i1}:{i1+1}], s[24:27], 0 idxen offen"]


def mfmas(p):
    y = Y[p & 1]
    return [f"v_mfma_f32_16x16x32_bf16 v[{y+4*i}:{y+4*i+3}], v[{AOP[i]}:{AOP[i]+3}], v[{stepbuf(p, i)}:{stepbuf(p, i)+3}], v[{CA}:{CA+3}]"
            for i in range(2)]


def ops(k):
    y = Y[k & 1]
    yn = Y[1 - (k & 1)]
    b0, b1 = stepbuf(k, 0) + 4, stepbuf(k, 1) + 4
    d = {}
    for i in range(8):
        d[f"E{i}"] = f"v_exp_f32 v{yn+i}, v{yn+i}"
    for i in range(4):
        d[f"C{i}"] = f"v_pk_fma_f32 v[{y+2*i}:{y+1+2*i}], v[{y+2*i}:{y+1+2*i}], s[{S_K}:{S_K+1}], s[{S_K}:{S_K+1}] clamp"
        d[f"R{i}"] = f"v_rcp_f32 v{MM+i}, v{MM+i}"
    for i in range(2):
        p0 = f"v[{y+2*i}:{y+1+2*i}]"
        p1 = f"v[{y+4+2*i}:{y+5+2*i}]"
        m = f"v[{MM+2*i}:{MM+1+2*i}]"
        s = f"v[{SA+2*i}:{SA+1+2*i}]"
        u = f"v[{UU+2*i}:{UU+1+2*i}]"
        h0 = f"v[{HL}:{HL+1}]" if i == 0 else f"v[{b0}:{b0+1}]"
        h1 = f"v[{HL+2}:{HL+3}]" if i == 0 else f"v[{b1}:{b1+1}]"
        d[f"m{i}"] = f"v_pk_mul_f32 {m}, {p0}, {p1}"
        d[f"a{i}"] = f"v_pk_add_f32 {s}, {p0}, {p1}"
        d[f"g{i}"] = f"v_pk_mul_f32 {u}, {p1}, {h0}"
        d[f"h{i}"] = f"v_pk_fma_f32 {u}, {p0}, {h1}, {u}"
        d[f"d{i}"] = f"v_pk_fma_f32 v[{DEN+2*i}:{DEN+1+2*i}], {s}, {m}, v[{DEN+2*i}:{DEN+1+2*i}]"
        d[f"n{i}"] = f"v_pk_fma_f32 v[{NUM+2*i}:{NUM+1+2*i}], {u}, {m}, v[{NUM+2*i}:{NUM+1+2*i}]"
    d["Q0"] = f"v_lshlrev_b64 v[{HL}:{HL+1}], 16, v[{b0}:{b0+1}]"
    d["Q1"] = f"v_lshlrev_b64 v[{HL+2}:{HL+3}], 16, v[{b1}:{b1+1}]"
    d["N0"], d["N1"] = mfmas(k + 2)
    d["L0"], d["L1"] = gathers(k, IDX[0], IDX[1])
    d["k0"] = f"ds_read_b32 v{IDX[0]}, v{VK} offset:{8*k}"
    d["k1"] = f"ds_read_b32 v{IDX[1]}, v{VK} offset:{8*k+4}"
    d["e0"] = f"ds_read_b64 v[{AOP[0]}:{AOP[0]+1}], v{VE} offset:{16*k}"
    d["e1"] = f"ds_read_b64 v[{AOP[1]}:{AOP[1]+1}], v{VE} offset:{16*k+8}"
    d["W"] = f"s_waitcnt vmcnt({2*(NB-3)}) lgkmcnt(0)"
    d["S"] = f"s_sub_u32 s{S_CNT}, s{S_CNT}, 1"
    d["A0"] = f"v_add_u32 v{VK}, {8*NB}, v{VK}" if k == NB - 1 else ""
    d["A1"] = f"v_add_u32 v{VE}, v{VINC}, v{VE}" if k == NB - 1 else ""
    return d


ORDERS = {
    "a": "C0 E0 k0 C2 E1 k1 C1 E2 e0 C3 E3 e1 m0 E4 m1 E5 S Q0 Q1 A0 A1 a0 a1 g0 g1 h0 h1 W N0 R0 L0 R1 N1 R2 L1 R3 E6 d0 E7 d1 n0 n1",
    "b": "k0 k1 e0 e1 C0 E0 C2 E1 C1 E2 C3 E3 m0 E4 m1 E5 S Q0 Q1 A0 A1 a0 a1 g0 g1 h0 h1 W N0 R0 R1 N1 R2 R3 L0 L1 E6 d0 E7 d1 n0 n1",
    "c": "C0 E0 k0 C2 E1 k1 C1 E2 e0 C3 E3 e1 m0 Q0 m1 Q1 a0 E4 S a1 E5 A0 A1 g0 g1 h0 h1 W N0 R0 L0 R1 N1 R2 L1 R3 E6 d0 E7 d1 n0 n1",
}


def prefetch(a, v, P):
    stride = 128 if P == 2 else 64
    a(f"""
s_lshr_b32 s40, s2, 3
s_mul_i32 s40, s40, {782*128}
v_mul_u32_u24 v{v}, {stride}, v0
v_add_u32 v{v}, s40, v{v}
""")
    for p in range(P):
        if p == P - 1:
            a(f"v_cmp_gt_u32 vcc, {782*128//stride - 512*p}, v0")
            a("s_mov_b64 exec, vcc")
        a(f"buffer_load_dword v{VPF}, v{v}, s[28:31], 0 offen {OPT['ldp']}")
        if p < P - 1:
            a(f"v_add_u32 v{v}, {512*stride}, v{v}")
    a("s_mov_b64 exec, -1")


def k2():
    a = Asm(200, 1)
    a(f"""
gate_kernel:
s_cmp_ge_u32 s2, 256
s_cbranch_scc1 K2_END
@S0
@C30
s_load_dwordx2 s[16:17], s[0:1], 88
s_load_dwordx2 s[4:5], s[0:1], 0
s_load_dwordx2 s[6:7], s[0:1], 32
s_load_dwordx4 s[8:11], s[0:1], 48
s_load_dwordx2 s[48:49], s[0:1], 72
v_readfirstlane_b32 s3, v0
v_bfe_u32 v3, v0, 4, 2
s_and_b32 s{S_B}, s2, 7
s_lshl_b32 s{S_B}, s{S_B}, 5
s_lshr_b32 s15, s2, 3
s_or_b32 s{S_B}, s{S_B}, s15
s_lshl_b32 s15, s{S_B}, 2
v_lshl_add_u32 v4, v3, 10, s15
s_lshr_b32 s3, s3, 6
s_lshl_b32 s40, s3, 15
""")
    for k in range(1, 8):
        a(f"s_add_u32 s{40+k}, s40, {4096*k}")
    a(f"""
s_mov_b32 s34, {TR_BYTES}
s_mov_b32 s35, 0x20000
v_and_b32 v50, 255, v0
v_lshlrev_b32 v50, 4, v50
v_lshrrev_b32 v51, 3, v0
v_lshlrev_b32 v87, 8, v51
v_add_u32 v87, s{S_B}, v87
v_lshlrev_b32 v87, 7, v87
v_and_b32 v52, 7, v0
v_lshl_add_u32 v87, v52, 4, v87
v_and_b32 v88, 127, v0
v_lshlrev_b32 v88, 2, v88
s_cmp_lt_u32 s3, 4
s_waitcnt lgkmcnt(0)
s_cselect_b64 s[6:7], s[6:7], s[10:11]
s_add_u32 s32, s16, {T_OFF:#x}
s_addc_u32 s33, s17, 0
s_and_b32 s33, s33, 0xffff
""")
    for k in range(8):
        a(f"buffer_load_dword v{VTT+k}, v4, s[32:35], s{40+k} offen")
    srd(a, 20, 4, 5, N * 128)
    a(f"""
s_add_u32 s14, s6, 4096
s_addc_u32 s15, s7, 0
global_load_dwordx4 v[72:75], v50, s[6:7]
global_load_dwordx4 v[76:79], v50, s[14:15]
buffer_load_dwordx4 v[80:83], v87, s[20:23], 0 offen
global_load_dword v84, v88, s[8:9]
""")
    lds_init(a)
    srd(a, 24, 16, 17, TAB_ROWS, stride=256)
    srd(a, 28, 16, 17, TAB_BYTES)
    srd(a, 36, 48, 49, N * 128)
    a(f"""
v_and_b32 v1, 63, v0
v_and_b32 v2, 15, v0
s_mov_b32 s{S_CS}, {CS}
s_lshl_b32 s40, s3, 5
v_add_u32 v5, s40, v3
s_mov_b32 s41, {RECB}
v_mul_lo_u32 v5, v5, s41
v_mad_u32_u24 v5, v2, 12, v5
v_add_u32 v5, {REC_OFF - T_OFF}, v5
v_add_u32 v6, 16, v2
s_lshr_b32 s40, s3, 2
s_lshl_b32 s40, s40, 13
s_add_u32 s40, s40, {L_W}
v_add_u32 v86, s40, v50
v_mul_u32_u24 v87, {XSS}, v51
v_lshl_add_u32 v87, v52, 4, v87
v_add_u32 v87, {L_XS}, v87
v_add_u32 v88, {L_WC}, v88
s_mov_b32 s{S_MODE}, 0
s_lshr_b32 s18, s3, 1
s_lshl_b32 s18, s18, 4
s_and_b32 s19, s3, 1
v_lshrrev_b32 v146, 2, v2
v_lshl_add_u32 v142, v3, 3, v146
v_lshlrev_b32 v142, 7, v142
v_and_b32 v147, 3, v2
v_lshl_add_u32 v142, v147, 3, v142
s_lshl_b32 s40, s19, 6
s_add_u32 s40, s40, {L_W}
v_add_u32 v142, s40, v142
v_add_u32 v148, s18, v2
v_mul_u32_u24 v143, {XSS}, v148
v_lshl_add_u32 v143, v3, 4, v143
v_add_u32 v143, {L_XS}, v143
v_lshl_add_u32 v144, v2, 2, v3
v_lshlrev_b32 v144, 1, v144
v_add_u32 v144, {L_WC}, v144
s_mov_b32 s{S_AM}, 0x22221111
s_mov_b32 s{S_AM+1}, 0x88884444
s_mov_b32 s{S_K}, 0x21800000
s_mov_b32 s{S_K+1}, 0x21800000
s_mov_b32 s54, {NLOG2E:#x}
s_mov_b32 s55, {NLOG2E:#x}
v_and_b32 v7, 1, v147
v_lshlrev_b32 v7, 4, v7
v_mov_b32 v140, 0x3f80
v_lshlrev_b32 v7, v7, v140
v_cmp_eq_u32 vcc, v3, v146
v_cmp_gt_u32_e64 s[40:41], 2, v147
v_cmp_le_u32_e64 s[42:43], 2, v147
v_lshlrev_b32 v{IDX[0]+1}, 4, v2
v_cndmask_b32 v7, 0, v7, vcc
v_lshlrev_b32 v{IDX[1]+1}, 4, v2
v_mov_b32 v140, {16*NB}
v_cndmask_b32_e64 v{AOP[0]+2}, 0, v7, s[40:41]
v_cndmask_b32_e64 v{AOP[1]+2}, 0, v7, s[40:41]
v_cndmask_b32_e64 v{AOP[0]+3}, 0, v7, s[42:43]
v_cndmask_b32_e64 v{AOP[1]+3}, 0, v7, s[42:43]
v_cndmask_b32_e64 v{VINC}, 0, v140, s[{S_AM}:{S_AM+1}]
s_movk_i32 s40, {US}
s_lshl_b32 s41, s19, 7
s_add_u32 s41, s41, {L_AP}
v_mad_u32_u24 v145, v148, s40, 0
v_lshl_add_u32 v145, v3, 4, v145
v_add_u32 v145, s41, v145
v_cmp_gt_u32_e64 s[52:53], 49, v148
@S1
s_waitcnt vmcnt(0)
@S2
ds_write_b128 v86, v[72:75]
ds_write_b128 v86, v[76:79] offset:4096
ds_write_b128 v87, v[80:83]
ds_write_b32 v88, v84
""")
    for k in range(8):
        a(f"v_mad_u32_u16 v{VRA+k}, v{VTT+k}, 12, v5")
        a(f"v_cmp_gt_u32_sdwa s[{64+2*k}:{65+2*k}], v{VTT+k}, v2 src0_sel:WORD_1 src1_sel:DWORD")
        if k < 7:
            a(f"v_add_u32 v5, {4*RECB}, v5")
    a("""
s_waitcnt lgkmcnt(0)
@S3
s_barrier
@S4
""")
    def rec_issue(tag):
        for k in range(8):
            a(f"s_mov_b64 exec, s[{64+2*k}:{65+2*k}]")
            a(f"buffer_load_dwordx3 v[{8+4*k}:{10+4*k}], v{VRA+k}, s[32:35], 0 offen {OPT['ld2']}")
        a("s_mov_b64 exec, -1")
        for k in range(8):
            a(f"v_cmp_gt_u32_sdwa s[{80+2*k}:{81+2*k}], v{VTT+k}, v6 src0_sel:WORD_1 src1_sel:DWORD")
        for k in range(8):
            a(f"s_mov_b64 exec, s[{80+2*k}:{81+2*k}]")
            a(f"s_cbranch_execz K2_M1L{tag}{k}")
            a(f"buffer_load_dwordx3 v[{40+4*k}:{42+4*k}], v{VRA+k}, s[32:35], 0 offen offset:192 {OPT['ld2']}")
            a(f"K2_M1L{tag}{k}:")
        a("s_mov_b64 exec, -1")
        a("@S16")
    def tile_phase():
        tr_reads(a, 142, 0, 80)
        a(f"""
ds_read_b128 v[112:115], v143
ds_read_b128 v[116:119], v143 offset:64
ds_read_u16 v76, v144
ds_read_u16 v77, v144 offset:128
ds_read_u16 v78, v144 offset:256
ds_read_u16 v79, v144 offset:384
s_waitcnt lgkmcnt(4)
""")
        tile_mfmas(a, 80, 112, TOT)
        a("s_waitcnt lgkmcnt(0)")
        for k in range(4):
            a(f"v_lshlrev_b32 v{76+k}, 16, v{76+k}")
        for k in range(4):
            a(f"v_mul_f32 v{76+k}, {NLOG2E:#x}, v{76+k}")
        a(f"v_cvt_pk_bf16_f32 v{CN}, v76, v77")
        a(f"v_cvt_pk_bf16_f32 v{CN+1}, v78, v79")
        a("v_mov_b32 v72, 4")
        a("s_mov_b64 exec, s[52:53]")
        a(f"ds_write_b128 v145, v[{TOT+8}:{TOT+11}] offset:{L_U - L_AP}")
        a(f"ds_write_b128 v145, v[{TOT+12}:{TOT+15}] offset:{L_U - L_AP + 64}")
        for i in range(0, 8, 2):
            a(f"v_pk_mul_f32 v[{TOT+i}:{TOT+i+1}], v[{TOT+i}:{TOT+i+1}], s[54:55]")
        a(f"""
ds_write_b128 v145, v[{TOT}:{TOT+3}]
ds_write_b128 v145, v[{TOT+4}:{TOT+7}] offset:64
s_mov_b64 exec, -1
""")
    P = 0
    if OPT.get("split", "1") == "1":
        a("s_cmp_ge_u32 s3, 4")
        a("s_cbranch_scc1 K2_LATE")
        rec_issue("a")
        tile_phase()
        a("s_branch K2_JOIN")
        a("K2_LATE:")
        tile_phase()
        rec_issue("b")
        a("K2_JOIN:")
    else:
        rec_issue("a")
        tile_phase()
    a("@S5")
    def A_(j):
        a(f"s_waitcnt vmcnt({7 - j + P})")
        a(f"s_mov_b64 exec, s[{64+2*j}:{65+2*j}]")
        place_atomic(a, 8 + 4 * j, VCA + j, 72)

    def W_(j, n):
        a(f"s_mov_b64 exec, s[{64+2*j}:{65+2*j}]")
        if n is not None:
            a(f"s_waitcnt lgkmcnt({n})")
        place_write(a, 8 + 4 * j, VCA + j)
    A_(0); A_(1); A_(2)
    for j in range(5):
        W_(j, (2, 4, 6, 6, 6)[j])
        A_(j + 3)
    W_(5, 6)
    a(f"s_waitcnt vmcnt({P})")
    a("@S6")
    if OPT.get("pfat") == "arr":
        a("s_mov_b64 exec, -1")
        npf = int(OPT.get("npf", 512))
        a(f"""
s_lshr_b32 s40, s2, 3
s_mul_i32 s40, s40, {782*128}
v_lshl_add_u32 v7, v0, 7, s40
""")
        if npf < 512:
            a(f"v_cmp_gt_u32 vcc, {npf}, v0")
            a("s_mov_b64 exec, vcc")
        a(f"buffer_load_dword v{VPF}, v7, s[28:31], 0 offen {OPT['ldp']}")
        if npf > 512:
            a(f"v_add_u32 v7, 0x10000, v7")
            a(f"v_cmp_gt_u32 vcc, {npf - 512}, v0")
            a("s_mov_b64 exec, vcc")
            a(f"buffer_load_dword v{VPF}, v7, s[28:31], 0 offen {OPT['ldp']}")
    for j in range(8):
        a(f"s_mov_b64 exec, s[{80+2*j}:{81+2*j}]")
        a(f"s_cbranch_execz K2_M1A{j}")
        place_atomic(a, 40 + 4 * j, VCA + 8 + j, 72)
        a(f"K2_M1A{j}:")
    W_(6, 0)
    W_(7, None)
    for j in range(8):
        a(f"s_mov_b64 exec, s[{80+2*j}:{81+2*j}]")
        a(f"s_cbranch_execz K2_M1W{j}")
        place_write(a, 40 + 4 * j, VCA + 8 + j)
        a(f"K2_M1W{j}:")
    a(f"""
s_mov_b64 exec, -1
v_max3_u32 v4, v{VTT}, v{VTT+1}, v{VTT+2}
v_max3_u32 v5, v{VTT+3}, v{VTT+4}, v{VTT+5}
v_max3_u32 v4, v4, v{VTT+6}, v{VTT+7}
v_max_u32 v4, v4, v5
v_lshrrev_b32 v{VMAXL}, 16, v4
v_cmp_lt_u32 vcc, 32, v{VMAXL}
s_cbranch_vccnz K2_LONG_ENTRY
K2_PLACED:
""")
    for i in range(0, 16, 2):
        a(f"v_pk_mov_b32 v[{TOT+i}:{TOT+i+1}], 0, 0")
    for p in range(NB):
        for i in range(2):
            b = stepbuf(p, i)
            a(f"v_pk_mov_b32 v[{b}:{b+1}], v[{CN}:{CN+1}], v[{CN}:{CN+1}] op_sel:[0,1]")
    a(f"""
s_waitcnt lgkmcnt(0)
@S7
s_barrier
@S8
""")
    if OPT.get("pfat") == "late":
        prefetch(a, 7, int(OPT["prefetch"]))
    a(f"""
K2_RANK:
v_lshlrev_b32 v4, 2, v1
ds_read_b32 v80, v4 offset:{L_CNT}
""")
    for i in range(1, 6):
        a(f"s_add_u32 s{40+i}, s3, {8*i}")
    a(f"""
v_cmp_gt_u32_e64 s[52:53], 48, v1
v_lshl_add_u32 v82, v1, 3, s3
v_mul_u32_u24 v86, {CS*4}, v82
v_mul_u32_u24 v87, {US}, v82
v_add_u32 v87, {L_AP}, v87
v_lshlrev_b32 v82, 2, v82
s_waitcnt lgkmcnt(0)
v_cmp_lt_u32 vcc, {CAP*4}, v80
v_lshl_add_u32 v81, v80, 4, v1
v_add_u32 v81, 1, v81
s_cbranch_vccnz K2_SLOW_ENTRY
v_cndmask_b32_e64 v81, 0, v81, s[52:53]
v_readlane_b32 s50, v80, 48
""")
    for i in range(6):
        a(f"v_readlane_b32 s{64+i}, v81, s{3 if i == 0 else 40+i}")
    a("s_add_u32 s51, s50, 28")
    for i in range(6):
        a(f"v_cmp_lt_u32_e64 s[{72+2*i}:{73+2*i}], s{64+i}, v81")
    a("s_lshr_b32 s51, s51, 5")
    for i in range(6):
        a(f"v_writelane_b32 v83, s{64+i}, {i}")
        a(f"s_bcnt1_i32_b64 s{72+2*i}, s[{72+2*i}:{73+2*i}]")
    a(f"""
s_max_u32 s51, s51, {MINPS}
s_cmp_eq_u32 s50, 0
s_cselect_b32 s50, 0, s51
s_lshl_b32 s50, s50, 1
""")
    for i in range(6):
        a(f"v_writelane_b32 v84, s{72+2*i}, {i}")
    a(f"""
v_lshrrev_b32 v83, 6, v83
v_add_u32 v84, 4, v84
v_lshlrev_b32 v85, 3, v84
v_lshlrev_b32 v88, 2, v84
s_mov_b64 exec, 63
ds_write_b64 v85, v[86:87] offset:{L_TS}
ds_write_b32 v88, v83 offset:{L_TC}
ds_write_b32 v82, v84 offset:{L_RK}
s_mov_b64 exec, 15
v_mul_u32_u24 v90, s50, v4
v_add_u32 v90, {48*CS*4}, v90
v_mov_b32 v91, {L_AP + 48*US}
v_mov_b32 v89, s50
v_lshlrev_b32 v5, 3, v1
ds_write_b64 v5, v[90:91] offset:{L_TS}
ds_write_b32 v4, v89 offset:{L_TC}
ds_write_b32 v4, v1 offset:{L_RK + 192}
s_mov_b64 exec, -1
v_lshlrev_b32 v4, 4, v2
v_cmp_gt_u32_e64 s[52:53], 13, v2
s_add_u32 s15, s3, 1
s_waitcnt lgkmcnt(0)
s_barrier
@S9
; ---- split the pair-step stream evenly over the 8 waves ---------------------------------------
ds_read_b32 v80, v4 offset:{L_TC}
v_mov_b32 v84, 1
v_mov_b32 v85, 0
s_waitcnt lgkmcnt(0)
v_cmp_ne_u32 vcc, 0, v80
v_add_u32 v80, 1, v80
v_lshrrev_b32 v80, 1, v80
s_and_b64 s[44:45], vcc, s[52:53]
v_max_u32 v80, {MINPS}, v80
v_cndmask_b32_e64 v80, 0, v80, s[44:45]
v_mov_b32 v81, v80
""")
    scan(a, 81, steps16_only=True)
    a(f"""
s_nop 0
v_readlane_b32 s14, v81, 15
v_sub_u32 v82, v81, v80
s_cmp_gt_u32 s14, {MAXIT*8}
s_cbranch_scc1 K2_SLOW_ENTRY
s_mul_i32 s40, s14, s3
s_mul_i32 s41, s14, s15
s_lshr_b32 s40, s40, 3
s_lshr_b32 s41, s41, 3
s_sub_u32 s{S_IT}, s41, s40
s_cmp_eq_u32 s{S_IT}, 0
s_cbranch_scc1 K2_LOOP_DONE
v_cmp_ge_u32_e64 s[42:43], s40, v81
v_subrev_u32 v83, s40, v82
s_and_b32 s42, s42, 0x1fff
s_bcnt1_i32_b32 s42, s42
s_lshl_b32 s46, s42, 5
v_lshl_add_u32 v{VTK}, v3, 3, s46
v_and_b32 v{VTE}, 12, v2
v_lshl_add_u32 v{VTE}, v{VTE}, 1, s46
v_readlane_b32 s43, v82, s42
ds_read_b64 v[86:87], v{VTK} offset:{L_TS}
ds_read_b32 v{NXE}, v{VTE} offset:{L_TS}
ds_read_b64 v[{NX}:{NX+1}], v{VTK} offset:{L_TS + 32}
v_add_u32 v88, -1, v83
v_cmp_gt_u32 vcc, 63, v88
v_lshlrev_b64 v[84:85], v83, v[84:85]
s_and_b64 vcc, vcc, s[44:45]
s_sub_u32 s43, s40, s43
v_cndmask_b32 v84, 0, v84, vcc
v_cndmask_b32 v85, 0, v85, vcc
s_lshl_b32 s45, s43, 3
s_add_u32 s45, s45, {L_KEYS}
""")
    for d in (1, 2, 4, 8):
        a(f"v_or_b32_dpp v84, v84, v84 row_shr:{d} row_mask:0xf bank_mask:0xf")
        a(f"v_or_b32_dpp v85, v85, v85 row_shr:{d} row_mask:0xf bank_mask:0xf")
        a("s_nop 0")
    a(f"""
s_lshl_b32 s47, s43, 4
s_add_u32 s47, s47, {L_EA}
v_readlane_b32 s{S_MASK}, v84, 15
v_readlane_b32 s{S_MASK+1}, v85, 15
s_bfm_b64 s[48:49], s{S_IT}, 0
s_waitcnt lgkmcnt(1)
v_add_u32 v{VK}, s45, v86
v_add_u32 v87, v87, v{IDX[0]+1}
s_and_b64 s[{S_MASK}:{S_MASK+1}], s[{S_MASK}:{S_MASK+1}], s[48:49]
ds_read_b32 v{IDX[0]}, v{VK}
ds_read_b32 v{IDX[1]}, v{VK} offset:4
ds_read_b128 v[{CA}:{CA+3}], v87
v_lshl_add_u32 v{VE}, v{NXE}, 1, s47
v_mov_b32 v4, {L_ZERO}
""")
    TI = {1: 80, 2: 96, 3: 100, 4: 104, 5: 108}
    for p in range(1, NB):
        a(f"v_mov_b32 v{TI[p]+1}, v{IDX[0]+1}")
        a(f"v_mov_b32 v{TI[p]+3}, v{IDX[0]+1}")
    a(f"v_cndmask_b32_e64 v{VE}, v4, v{VE}, s[{S_AM}:{S_AM+1}]")
    a("s_waitcnt lgkmcnt(3)")
    for p in range(1, NB):
        a(f"""
s_bitcmp1_b32 s{S_MASK}, {p}
s_cbranch_scc0 K2_PK{p}
""")
        ev_k(a, 8 * p)
        a(f"K2_PK{p}:")
        a(f"ds_read_b32 v{TI[p]}, v{VK} offset:{8*p}")
        a(f"ds_read_b32 v{TI[p]+2}, v{VK} offset:{8*p+4}")
    a(f"""
ds_read_b64 v[{AOP[0]}:{AOP[0]+1}], v{VE}
ds_read_b64 v[{AOP[1]}:{AOP[1]+1}], v{VE} offset:8
s_lshr_b64 s[{S_CM}:{S_CM+1}], s[{S_MASK}:{S_MASK+1}], 3
s_lshr_b64 s[48:49], s[{S_MASK}:{S_MASK+1}], {NB+1}
s_or_b64 s[{S_CM}:{S_CM+1}], s[{S_CM}:{S_CM+1}], s[48:49]
s_bitset1_b64 s[{S_MASK}:{S_MASK+1}], s{S_IT}
s_lshr_b64 s[48:49], s[{S_MASK}:{S_MASK+1}], 1
s_or_b64 s[{S_CM}:{S_CM+1}], s[{S_CM}:{S_CM+1}], s[48:49]
s_waitcnt lgkmcnt(2)
""")
    for l in gathers(0, IDX[0], IDX[1]):
        a(l)
    NG0 = int(OPT.get("ng0", 2))
    for p in range(1, NG0):
        for l in gathers(p, TI[p], TI[p] + 2):
            a(l)
    if OPT["prio"] == "1":
        t1, t2, t3 = [int(OPT.get(f"thr{i}", d)) for i, d in ((1, 24), (2, 12), (3, 4))]
        a(f"""
s_setprio 3
s_mov_b32 s{S_PR}, 3
s_mov_b64 s[48:49], {0}
s_bitset1_b64 s[48:49], {63 - t1}
s_bitset1_b64 s[48:49], {63 - t2}
s_bitset1_b64 s[48:49], {63 - t3}
s_sub_u32 s46, 63, s{S_IT}
s_lshr_b64 s[48:49], s[48:49], s46
s_or_b64 s[{S_CM}:{S_CM+1}], s[{S_CM}:{S_CM+1}], s[48:49]
s_mov_b64 s[54:55], s[48:49]
""")
    a(f"""
s_ff1_i32_b64 s{S_CNT}, s[{S_CM}:{S_CM+1}]
v_lshlrev_b32 v5, 9, v3
v_lshl_add_u32 v5, v2, 4, v5
s_lshl_b32 s45, s42, 11
s_add_u32 s45, s45, {L_ACC}
s_add_u32 s46, s45, 2048
v_add_u32 v{VFN}, s46, v5
s_cmp_eq_u32 s43, 0
s_cbranch_scc1 K2_P2
s_lshl_b32 s45, s3, 11
s_add_u32 s45, s45, {L_EXT}
s_lshl_b32 s46, 1, s3
s_lshl_b32 s47, s42, 2
v_mov_b32 v6, s46
v_mov_b32 v7, s47
s_mov_b64 exec, 1
ds_or_b32 v7, v6 offset:{L_MASK}
s_mov_b64 exec, -1
K2_P2:
v_add_u32 v{VF}, s45, v5
""")
    for i in range(0, 8, 2):
        a(f"v_pk_mov_b32 v[{DEN+i}:{DEN+i+1}], 0, 0")
    a(f"""
v_add_u32 v{VK}, {8*NB}, v{VK}
s_bitcmp1_b32 s{S_MASK}, {NB}
s_cbranch_scc0 K2_PK{NB}
""")
    ev_k(a, 0)
    a(f"""
K2_PK{NB}:
v_mov_b32 v5, 32
@S10
s_waitcnt vmcnt({2*NG0-2}) lgkmcnt(0)
@S15
""")
    for l in mfmas(0):
        a(l)
    for p in range(NG0, 4):
        for l in gathers(p, TI[p], TI[p] + 2):
            a(l)
    a(f"""
s_bitcmp1_b32 s{S_MASK}, 1
s_cbranch_scc0 K2_PE1
s_nop 2
""")
    ev_e(a, 16)
    a(f"""
K2_PE1:
ds_read_b64 v[{AOP[0]}:{AOP[0]+1}], v{VE} offset:16
ds_read_b64 v[{AOP[1]}:{AOP[1]+1}], v{VE} offset:24
v_cndmask_b32_e64 v5, 0, v5, s[{S_AM}:{S_AM+1}]
s_nop 3
""")
    for i in range(8):
        a(f"v_exp_f32 v{Y[0]+i}, v{Y[0]+i}")
    a(f"v_add_u32 v{VE}, v5, v{VE}")
    a(f"s_waitcnt vmcnt(4) lgkmcnt(0)")
    for l in mfmas(1):
        a(l)
    for p in range(4, NB):
        for l in gathers(p, TI[p], TI[p] + 2):
            a(l)
    a(f"""
s_bitcmp1_b32 s{S_MASK}, 2
s_cbranch_scc0 K2_PE2
s_nop 2
""")
    ev_e(a, 0)
    a(f"""
K2_PE2:
@C20
s_nop 4
K2_LOOP:
""")
    order = ORDERS[OPT["order"]].split()
    for k in range(NB):
        d = ops(k)
        for x in order:
            ex = OPT.get("exp")
            if ex == "nom" and x in ("N0", "N1"): continue
            if ex == "nold" and x in ("L0", "L1"): continue
            if ex == "notrans" and x[0] in "ER": continue
            a(d[x])
        if k == NB - 1:
            a("s_cbranch_scc0 K2_LOOP")
        else:
            a(f"s_cbranch_scc1 K2_EV{k}")
            a(f"K2_RET{k}:")
    for k in list(range(NB - 1, NB)) + list(range(NB - 1)):
        kn = (k + 1) % NB
        ret = f"K2_RET{k}" if k < NB - 1 else "K2_LOOP"
        a(f"""
K2_EV{k}:
s_ff1_i32_b64 s14, s[{S_CM}:{S_CM+1}]
s_bitset0_b64 s[{S_CM}:{S_CM+1}], s14
s_ff1_i32_b64 s{S_CNT}, s[{S_CM}:{S_CM+1}]
s_lshr_b64 s[40:41], s[{S_MASK}:{S_MASK+1}], s14
s_sub_u32 s{S_CNT}, s{S_CNT}, s14
s_sub_u32 s{S_CNT}, s{S_CNT}, 1
s_bitcmp1_b32 s40, 1
s_cbranch_scc0 K2_EV{k}A
ds_write_b128 v{VF}, v[{DEN}:{DEN+3}]
ds_write_b128 v{VF}, v[{NUM}:{NUM+3}] offset:256
s_lshr_b64 s[42:43], s[40:41], 2
s_cbranch_scc0 K2_LOOP_DONE
v_mov_b32 v{VF}, v{VFN}
v_add_u32 v{VFN}, 2048, v{VFN}
""")
        for i in range(0, 8, 2):
            a(f"v_pk_mov_b32 v[{DEN+i}:{DEN+i+1}], 0, 0")
        a(f"""
K2_EV{k}A:
s_bitcmp1_b32 s40, 3
s_cbranch_scc0 K2_EV{k}B
""")
        ev_e(a, 16 * kn)
        a(f"""
K2_EV{k}B:
s_bitcmp1_b32 s40, {NB+1}
s_cbranch_scc0 K2_EV{k}C
""")
        ev_k(a, 8 * kn)
        a(f"K2_EV{k}C:")
        if OPT["prio"] == "1":
            a(f"""
s_bitcmp1_b64 s[54:55], s14
s_cbranch_scc0 {ret}
s_sub_u32 s{S_PR}, s{S_PR}, 1
s_setprio 0
s_cmp_eq_u32 s{S_PR}, 0
s_cbranch_scc1 {ret}
s_setprio 1
s_cmp_eq_u32 s{S_PR}, 1
s_cbranch_scc1 {ret}
s_setprio 2
""")
        a(f"s_branch {ret}")
    a(f"""
K2_LOOP_DONE:
@C21
@S11
s_setprio 0
v_lshrrev_b32 v80, 3, v0
v_min_u32 v81, 48, v80
v_lshlrev_b32 v82, 2, v80
v_lshlrev_b32 v83, 2, v81
v_and_b32 v84, 7, v0
v_lshlrev_b32 v85, 5, v84
v_cmp_gt_u32_e64 s[40:41], 52, v80
s_movk_i32 s14, {US}
v_mad_u32_u24 v88, v81, s14, v85
v_add_u32 v88, {L_U}, v88
v_mul_u32_u24 v89, {XSS}, v81
v_lshl_add_u32 v89, v84, 4, v89
v_add_u32 v89, {L_XS}, v89
ds_read_b32 v86, v82 offset:{L_RK}
ds_read_b32 v87, v83 offset:{L_CNT}
ds_read_b128 v[112:115], v88
ds_read_b128 v[116:119], v88 offset:16
ds_read_b128 v[{CA}:{CA+3}], v89
s_waitcnt lgkmcnt(0)
v_cmp_ne_u32 vcc, 0, v87
v_and_b32 v90, -4, v86
v_lshl_add_u32 v91, v86, 9, v85
v_add_u32 v91, {L_ACC}, v91
v_and_b32 v92, 3, v86
v_lshl_add_u32 v92, v92, 9, v85
v_add_u32 v92, {L_EXT}, v92
s_barrier
@S12
s_and_b64 exec, vcc, s[40:41]
s_cbranch_execz K2_COMB_DONE
ds_read_b32 v90, v90 offset:{L_MASK}
K2_COMB_X:
ds_read_b128 v[96:99], v91
ds_read_b128 v[100:103], v91 offset:16
ds_read_b128 v[104:107], v91 offset:256
ds_read_b128 v[108:111], v91 offset:272
s_waitcnt lgkmcnt(4)
v_ffbl_b32 v91, v90
v_cmp_ne_u32 vcc, 0, v90
v_add_u32 v93, -1, v90
v_and_b32 v90, v90, v93
v_lshl_add_u32 v91, v91, 11, v92
s_waitcnt lgkmcnt(0)
""")
    for i in range(0, 16, 2):
        a(f"v_pk_add_f32 v[{TOT+i}:{TOT+i+1}], v[{TOT+i}:{TOT+i+1}], v[{96+i}:{97+i}]")
    a(f"""
s_and_b64 exec, exec, vcc
s_cbranch_execnz K2_COMB_X
K2_COMB_DONE:
s_mov_b64 exec, -1
s_cmp_lg_u32 s{S_MODE}, 0
s_cbranch_scc1 K2_SLOW_NEXT
K2_FINAL:
s_cmp_lg_u32 s3, 6
s_cbranch_scc1 K2_FIN2
""")
    for i in range(16):
        a(f"v_add_f32_dpp v{TOT+i}, v{TOT+i}, v{TOT+i} row_ror:8 row_mask:0xf bank_mask:0xf")
    for i in range(16):
        a(f"ds_swizzle_b32 v{96+i}, v{TOT+i} offset:0x401F")
    a("s_waitcnt lgkmcnt(0)")
    for i in range(0, 16, 2):
        a(f"v_pk_add_f32 v[{TOT+i}:{TOT+i+1}], v[{TOT+i}:{TOT+i+1}], v[{96+i}:{97+i}]")
    eps = struct.unpack("<I", struct.pack("<f", 1e-6 * 2.0**60))[0]
    a(f"""
K2_FIN2:
s_mov_b32 s14, {eps:#x}
s_mov_b32 s15, {eps:#x}
v_lshlrev_b32 v80, 8, v80
v_add_u32 v80, s{S_B}, v80
v_lshlrev_b32 v80, 7, v80
v_lshl_add_u32 v80, v84, 4, v80
""")
    for i in range(0, 8, 2):
        a(f"v_pk_add_f32 v[{TOT+i}:{TOT+i+1}], v[{TOT+i}:{TOT+i+1}], s[14:15]")
    for i in range(8):
        a(f"v_rcp_f32 v{TOT+i}, v{TOT+i}")
    for i in range(4):
        a(f"v_lshlrev_b32 v{96+2*i}, 16, v{CA+i}")
        a(f"v_and_b32 v{97+2*i}, 0xffff0000, v{CA+i}")
    for i in range(0, 8, 2):
        a(f"v_pk_fma_f32 v[{112+i}:{113+i}], v[{TOT+8+i}:{TOT+9+i}], v[{TOT+i}:{TOT+i+1}], v[{112+i}:{113+i}]")
    for i in range(8):
        a(f"v_max_f32 v{112+i}, 0, v{112+i}")
    for i in range(0, 8, 2):
        a(f"v_pk_add_f32 v[{96+i}:{97+i}], v[{96+i}:{97+i}], v[{112+i}:{113+i}]")
    for i in range(4):
        a(f"v_cvt_pk_bf16_f32 v{96+i}, v{96+2*i}, v{97+2*i}")
    a(f"""
buffer_store_dwordx4 v[96:99], v80, s[36:39], 0 offen {OPT['st_out']}
@S13
@Wvmcnt(0)
@S14
@Vs{S_IT},22
@OUT
K2_END:
s_endpgm
K2_LONG_ENTRY:
s_mov_b32 s14, 32
K2_LONG:
v_add_u32 v6, s14, v2
s_mul_i32 s15, s14, 12
""")
    for k in range(8):
        a(f"""
s_mov_b64 exec, -1
v_cmp_gt_u32_sdwa vcc, v{VTT+k}, v6 src0_sel:WORD_1 src1_sel:DWORD
s_and_saveexec_b64 s[40:41], vcc
s_cbranch_execz K2_LONG_S{k}
buffer_load_dwordx3 v[80:82], v{VRA+k}, s[32:35], s15 offen
s_waitcnt vmcnt(0)
""")
        place_atomic(a, 80, 4, 72)
        a("s_waitcnt lgkmcnt(0)")
        place_write(a, 80, 4)
        a(f"K2_LONG_S{k}:")
    a(f"""
s_mov_b64 exec, -1
s_add_u32 s14, s14, 16
v_cmp_lt_u32 vcc, s14, v{VMAXL}
s_cbranch_vccnz K2_LONG
s_branch K2_PLACED
K2_SLOW_ENTRY:
v_mov_b32 v4, 0
ds_max_u32 v4, v{VMAXL} offset:{L_MAXL}
s_waitcnt lgkmcnt(0)
s_barrier
ds_read_b32 v5, v4 offset:{L_MAXL}
s_mov_b32 s{S_MODE}, 1
s_mov_b32 s{S_I}, 0
s_mov_b32 s{S_MO}, 0
s_waitcnt lgkmcnt(0)
v_readfirstlane_b32 s{S_ML}, v5
s_branch K2_SLOW_BATCH
K2_SLOW_NEXT:
s_add_u32 s{S_I}, s{S_I}, 1
s_cmp_lt_u32 s{S_I}, 64
s_cbranch_scc1 K2_SLOW_BATCH
s_mov_b32 s{S_I}, 0
s_add_u32 s{S_MO}, s{S_MO}, 16
s_cmp_ge_u32 s{S_MO}, s{S_ML}
s_cbranch_scc1 K2_FINAL
K2_SLOW_BATCH:
s_waitcnt vmcnt(0) lgkmcnt(0)
s_barrier
""")
    txt = Asm(0, 0)
    lds_init(txt)
    t = txt.text()
    for r in range(49, 39, -1):
        t = t.replace(f"v{r}", f"v{r+40}")
    t = t.replace("v[40:43]", "v[80:83]").replace("v[44:47]", "v[84:87]")
    a(t)
    a(f"""
v_mov_b32 v90, 4
s_waitcnt lgkmcnt(0)
s_barrier
s_cmp_lg_u32 s3, 0
s_cbranch_scc1 K2_SLOW_S
s_lshl_b32 s14, s{S_I}, 2
v_add_u32 v7, s14, v3
s_lshl_b32 s15, s{S_B}, 2
v_lshl_add_u32 v4, v7, 10, s15
buffer_load_dword v5, v4, s[32:35], 0 offen
s_mov_b32 s15, {RECB}
v_mul_lo_u32 v7, v7, s15
v_add_u32 v6, s{S_MO}, v2
v_mad_u32_u24 v7, v6, 12, v7
v_add_u32 v7, {REC_OFF - T_OFF}, v7
s_waitcnt vmcnt(0)
v_mad_u32_u16 v4, v5, 12, v7
v_cmp_gt_u32_sdwa vcc, v5, v6 src0_sel:WORD_1 src1_sel:DWORD
s_and_saveexec_b64 s[40:41], vcc
s_cbranch_execz K2_SLOW_S
buffer_load_dwordx3 v[80:82], v4, s[32:35], 0 offen
s_waitcnt vmcnt(0)
""")
    place_atomic(a, 80, 4, 90)
    a("s_waitcnt lgkmcnt(0)")
    place_write(a, 80, 4)
    a("""
K2_SLOW_S:
s_mov_b64 exec, -1
s_waitcnt lgkmcnt(0)
s_barrier
s_branch K2_RANK
""")
    return a.text()


def desc(name, vgpr, sgpr):
    return f""".amdhsa_kernel {name}
  .amdhsa_next_free_vgpr {vgpr}
  .amdhsa_next_free_sgpr {sgpr}
  .amdhsa_accum_offset {(vgpr + 3) // 4 * 4}
  .amdhsa_group_segment_fixed_size 0
  .amdhsa_kernarg_size 96
  .amdhsa_user_sgpr_count 2
  .amdhsa_user_sgpr_kernarg_segment_ptr 1
  .amdhsa_system_sgpr_workgroup_id_x 1
.end_amdhsa_kernel
"""


HEADER = open("standalone__edge_featured_mpnn_gatedgcn__graph.s.ref").read().split("; Override launch")[0]


def main():
    out = HEADER
    out += f"; @launch kernel=bin_kernel grid=(512,1,1) block=(512,1,1) lds={K1_LDS}\n"
    out += f"; @launch kernel=gate_kernel grid=(256,1,1) block=(512,1,1) lds={K2_LDS}\n"
    out += '.amdgcn_target "amdgcn-amd-amdhsa--gfx950"\n.text\n'
    out += ".globl bin_kernel\n.p2align 8\n.type bin_kernel,@function\n" + k1()
    out += ".globl gate_kernel\n.p2align 8\n.type gate_kernel,@function\n" + k2()
    out += '.section .rodata,"a"\n.p2align 6\n' + desc("bin_kernel", 128, 101 if STAMPS else 64)
    out += ".p2align 6\n" + desc("gate_kernel", K2_VGPR, 101 if STAMPS else 96)
    open(sys.argv[1], "w").write(out)


main()
```

```python
import sys
import struct

N = 12500
E = 800000
QCH = 782
QH = QCH // 2
CH = QCH * 4
NQ = E // 4
RECB = CH * 12
TAB_ROWS = N + 1
TAB_BYTES = TAB_ROWS * 256
T_OFF = 0x310000
REC_OFF = 0x350000
TR_BYTES = (REC_OFF - T_OFF) + 256 * RECB
BIG = 0x40000000
NLOG2E = 0xbfb8aa3b
CAP = 128
CS = 132
XSS = 144

OPT = dict(st_rec="sc1", st_tab="sc1", prefetch="0", prio="1", order="b3", ld1="nt", ld2="", ldp="", st_out="nt", pfat="arr")
for a_ in sys.argv[2:]:
    k_, v_ = a_.split("=")
    OPT[k_] = v_
STAMPS = bool(OPT.get("stamps"))
DBG_OFF = 0x1000000


class Asm:
    def __init__(self, vs, kidx):
        self.L = []
        self.vs = vs
        self.kidx = kidx

    def __call__(self, s):
        for l in s.strip("\n").split("\n"):
            l = l.strip()
            if not l:
                continue
            if l.startswith("@"):
                if STAMPS:
                    self.special(l)
                continue
            if l.endswith(":"):
                self.L.append(l)
            else:
                self.L.append("    " + l)

    def special(self, l):
        vs = self.vs
        if l.startswith("@S") or l.startswith("@C"):
            self(f"{'s_memtime' if l[1] == 'C' else 's_memrealtime'} s[98:99]")
            self("s_waitcnt lgkmcnt(0)")
            self(f"v_writelane_b32 v{vs}, s98, {int(l[2:])}")
        elif l.startswith("@W"):
            self("s_waitcnt " + l[2:])
        elif l.startswith("@V"):
            r, i = l[2:].split(",")
            self(f"v_writelane_b32 v{vs}, {r}, {i}")
        elif l.startswith("@OUT"):
            self(f"""
s_mov_b64 exec, -1
s_lshl_b32 s100, s2, 4
s_add_u32 s100, s100, s3
s_lshl_b32 s100, s100, 8
s_add_u32 s100, s100, {DBG_OFF + self.kidx * 0x100000:#x}
v_and_b32 v{vs+1}, 63, v0
v_lshl_add_u32 v{vs+1}, v{vs+1}, 2, s100
global_store_dword v{vs+1}, v{vs}, s[16:17]
""")

    def text(self):
        return "\n".join(self.L) + "\n"


def srd(a, d, lo, hi, nbytes, stride=0):
    a(f"s_mov_b32 s{d}, s{lo}")
    a(f"s_and_b32 s{d+1}, s{hi}, 0xffff")
    if stride:
        a(f"s_or_b32 s{d+1}, s{d+1}, {stride << 16:#x}")
    a(f"s_mov_b32 s{d+2}, {nbytes}")
    a(f"s_mov_b32 s{d+3}, 0x20000")


def scan(a, v, steps16_only=False, op="add_u32"):
    for d in (1, 2, 4, 8):
        a("s_nop 1")
        a(f"v_{op}_dpp v{v}, v{v}, v{v} row_shr:{d} row_mask:0xf bank_mask:0xf")
    if not steps16_only:
        a("s_nop 1")
        a(f"v_{op}_dpp v{v}, v{v}, v{v} row_bcast:15 row_mask:0xa bank_mask:0xf")
        a("s_nop 1")
        a(f"v_{op}_dpp v{v}, v{v}, v{v} row_bcast:31 row_mask:0xc bank_mask:0xf")


SDWA_B0 = "dst_sel:DWORD dst_unused:UNUSED_PAD src0_sel:DWORD src1_sel:BYTE_0"


def tr_reads(a, vaddr, base, r0):
    for mat in range(2):
        for t in range(2):
            for s in range(2):
                r = r0 + 16 * mat + 8 * t + 4 * s
                o = base + mat * 8192 + s * 4096 + t * 32
                a(f"ds_read_b64_tr_b16 v[{r}:{r+1}], v{vaddr} offset:{o}")
                a(f"ds_read_b64_tr_b16 v[{r+2}:{r+3}], v{vaddr} offset:{o + 512}")


def tile_mfmas(a, r0, x0, d0):
    for s in range(2):
        for mat in range(2):
            for t in range(2):
                f = r0 + 16 * mat + 8 * t + 4 * s
                d = d0 + 8 * mat + 4 * t
                c = "0" if s == 0 else f"v[{d}:{d+3}]"
                a(f"v_mfma_f32_16x16x32_bf16 v[{d}:{d+3}], v[{f}:{f+3}], v[{x0+4*s}:{x0+4*s+3}], {c}")


K1_W = 0
K1_XS = 16384
K1_HIST = 0
K1_START = 1024
K1_STAGE = 2048
K1_LDS = K1_STAGE + RECB + 32


def k1():
    a = Asm(120, 0)
    a(f"""
bin_kernel:
s_cmp_ge_u32 s2, 256
s_cbranch_scc1 K1_TABLE
@S0
@C30
s_load_dwordx4 s[8:11], s[0:1], 16
s_load_dwordx2 s[6:7], s[0:1], 8
s_load_dwordx2 s[16:17], s[0:1], 88
v_readfirstlane_b32 s3, v0
s_mul_i32 s45, s2, {QCH}
v_add_u32 v4, s45, v0
v_add_u32 v5, {QH}, v4
v_cmp_gt_u32 vcc, {QH}, v0
s_mov_b32 s46, {NQ}
v_cmp_gt_u32_e64 s[50:51], s46, v5
v_lshlrev_b32 v4, 4, v4
v_lshlrev_b32 v5, 4, v5
v_mov_b32 v6, {BIG:#x}
s_mov_b64 s[48:49], vcc
s_and_b64 s[50:51], s[50:51], vcc
s_lshr_b32 s3, s3, 6
v_cndmask_b32 v4, v6, v4, vcc
v_cndmask_b32_e64 v5, v6, v5, s[50:51]
v_and_b32 v7, 255, v0
v_lshlrev_b32 v7, 2, v7
v_mov_b32 v6, 0
ds_write_b32 v7, v6 offset:{K1_HIST}
s_mov_b32 s35, 0x20000
s_mov_b32 s34, {E*4}
s_waitcnt lgkmcnt(0)
s_mov_b32 s32, s10
s_and_b32 s33, s11, 0xffff
buffer_load_dwordx4 v[8:11], v4, s[32:35], 0 offen {OPT['ld1']}
buffer_load_dwordx4 v[12:15], v5, s[32:35], 0 offen {OPT['ld1']}
""")
    srd(a, 28, 8, 9, E * 4)
    srd(a, 24, 6, 7, E * 8)
    a(f"""
v_lshlrev_b32 v40, 1, v4
v_lshlrev_b32 v41, 1, v5
@S1
s_barrier
buffer_load_dwordx4 v[16:19], v4, s[28:31], 0 offen {OPT['ld1']}
buffer_load_dwordx4 v[20:23], v5, s[28:31], 0 offen {OPT['ld1']}
buffer_load_dwordx4 v[24:27], v40, s[24:27], 0 offen {OPT['ld1']}
buffer_load_dwordx4 v[28:31], v40, s[24:27], 0 offen offset:16 {OPT['ld1']}
v_and_b32 v1, 63, v0
v_lshlrev_b32 v7, 4, v1
s_lshl_b32 s46, s2, 10
s_add_u32 s46, s46, {T_OFF:#x}
s_add_u32 s40, s16, s46
s_addc_u32 s41, s17, 0
s_and_b32 s41, s41, 0xffff
s_mov_b32 s42, 1024
s_mov_b32 s43, 0x20000
s_mul_i32 s46, s2, {RECB}
s_add_u32 s46, s46, {REC_OFF:#x}
s_add_u32 s52, s16, s46
s_addc_u32 s53, s17, 0
s_and_b32 s53, s53, 0xffff
s_mov_b32 s54, {RECB}
s_mov_b32 s55, 0x20000
v_mov_b32 v6, 1
@S2
s_waitcnt vmcnt(5)
@S3
""")
    for i in range(4):
        a(f"v_lshlrev_b32_sdwa v{52+i}, 2, v{8+i} {SDWA_B0}")
    a("s_mov_b64 exec, s[48:49]")
    for i in range(4):
        a(f"ds_add_rtn_u32 v{60+i}, v{52+i}, v6 offset:{K1_HIST}")
    a("s_mov_b64 exec, -1")
    a("s_waitcnt vmcnt(4)")
    for i in range(4, 8):
        a(f"v_lshlrev_b32_sdwa v{52+i}, 2, v{8+i} {SDWA_B0}")
    a("s_mov_b64 exec, s[50:51]")
    for i in range(4, 8):
        a(f"ds_add_rtn_u32 v{60+i}, v{52+i}, v6 offset:{K1_HIST}")
    a(f"""
s_mov_b64 exec, -1
buffer_load_dwordx4 v[32:35], v41, s[24:27], 0 offen {OPT['ld1']}
buffer_load_dwordx4 v[36:39], v41, s[24:27], 0 offen offset:16 {OPT['ld1']}
""")
    for i in range(8):
        a(f"v_lshrrev_b32 v{8+i}, 6, v{8+i}")
    a(f"""
s_waitcnt lgkmcnt(0)
@S4
s_barrier
@S5
ds_read_b128 v[40:43], v7 offset:{K1_HIST}
s_movk_i32 s46, {K1_STAGE}
s_waitcnt lgkmcnt(0)
v_add_u32 v45, v40, v41
v_add_u32 v46, v45, v42
v_add_u32 v48, v46, v43
v_mov_b32 v49, v48
""")
    scan(a, 48)
    a(f"""
v_sub_u32 v44, v48, v49
v_add_u32 v47, v44, v46
v_add_u32 v46, v44, v45
v_add_u32 v45, v44, v40
ds_write_b128 v7, v[44:47] offset:{K1_START}
""")
    for i in range(8):
        a(f"ds_read_b32 v{52+i}, v{52+i} offset:{K1_START}")
    for i in range(4):
        a(f"v_lshl_or_b32 v{48+i}, v{40+i}, 16, v{44+i}")
    a("s_waitcnt vmcnt(4)")
    for i in range(8):
        a(f"v_lshl_or_b32 v{16+i}, v{16+i}, 8, v{8+i}")
    for i in range(8):
        a(f"s_waitcnt lgkmcnt({7-i})")
        a(f"v_add_u32 v{52+i}, v{52+i}, v{60+i}")
        a(f"v_mad_u32_u24 v{52+i}, v{52+i}, 12, s46")
    a("s_mov_b64 exec, s[48:49]")
    for i in range(4):
        a(f"ds_write_b32 v{52+i}, v{16+i} offset:8")
    a("s_mov_b64 exec, s[50:51]")
    for i in range(4, 8):
        a(f"ds_write_b32 v{52+i}, v{16+i} offset:8")
    a("""
@S7
s_waitcnt vmcnt(2)
@S8
s_mov_b64 exec, s[48:49]
""")
    for i in range(4):
        a(f"ds_write2_b32 v{52+i}, v{24+2*i}, v{25+2*i} offset0:0 offset1:1")
    a("s_waitcnt vmcnt(0)")
    a("s_mov_b64 exec, s[50:51]")
    for i in range(4, 8):
        a(f"ds_write2_b32 v{52+i}, v{24+2*i}, v{25+2*i} offset0:0 offset1:1")
    a(f"""
s_mov_b64 exec, -1
s_cmp_lg_u32 s3, 0
s_cbranch_scc1 K1_NOT
buffer_store_dwordx4 v[48:51], v7, s[40:43], 0 offen {OPT['st_rec']}
K1_NOT:
v_cmp_gt_u32 vcc, {RECB//16 - 2048}, v0
v_lshlrev_b32 v4, 4, v0
s_movk_i32 s44, 0x2000
s_movk_i32 s45, 0x4000
s_movk_i32 s46, 0x6000
s_mov_b32 s47, 0x8000
s_waitcnt lgkmcnt(0)
@S9
s_barrier
@S10
""")
    for i in range(4):
        a(f"ds_read_b128 v[{8+4*i}:{11+4*i}], v4 offset:{K1_STAGE + 8192*i}")
    a(f"""
s_mov_b64 exec, vcc
ds_read_b128 v[24:27], v4 offset:{K1_STAGE + 32768}
s_mov_b64 exec, -1
""")
    for i in range(4):
        a(f"s_waitcnt lgkmcnt({4-i})")
        so = "0" if i == 0 else f"s{43+i}"
        a(f"buffer_store_dwordx4 v[{8+4*i}:{11+4*i}], v4, s[52:55], {so} offen {OPT['st_rec']}")
    a(f"""
s_mov_b64 exec, vcc
s_cbranch_execz K1_DONE
s_waitcnt lgkmcnt(0)
buffer_store_dwordx4 v[24:27], v4, s[52:55], s47 offen {OPT['st_rec']}
K1_DONE:
@S11
@Wvmcnt(0)
@S12
@S13
@C31
@OUT
s_endpgm
K1_TABLE:
s_cmp_ge_u32 s2, 512
s_cbranch_scc1 K1_END
s_load_dwordx2 s[4:5], s[0:1], 0
s_load_dwordx2 s[12:13], s[0:1], 40
s_load_dwordx2 s[14:15], s[0:1], 64
s_load_dwordx2 s[16:17], s[0:1], 88
v_readfirstlane_b32 s3, v0
s_sub_u32 s2, s2, 256
v_and_b32 v7, 255, v0
v_lshlrev_b32 v52, 4, v7
s_mul_i32 s44, s2, {49*128}
v_lshl_add_u32 v53, v0, 4, s44
v_cmp_gt_u32 vcc, 392, v0
v_mov_b32 v6, {BIG:#x}
s_lshr_b32 s3, s3, 6
s_cmp_lt_u32 s3, 4
v_cndmask_b32 v53, v6, v53, vcc
s_waitcnt lgkmcnt(0)
s_cselect_b64 s[12:13], s[12:13], s[14:15]
s_add_u32 s14, s12, 4096
s_addc_u32 s15, s13, 0
""")
    srd(a, 20, 4, 5, N * 128)
    a(f"""
global_load_dwordx4 v[40:43], v52, s[12:13]
global_load_dwordx4 v[44:47], v52, s[14:15]
buffer_load_dwordx4 v[48:51], v53, s[20:23], 0 offen
v_and_b32 v2, 15, v0
v_bfe_u32 v3, v0, 4, 2
""")
    srd(a, 36, 16, 17, TAB_BYTES)
    a(f"""
s_lshr_b32 s18, s3, 1
s_lshl_b32 s18, s18, 4
s_and_b32 s19, s3, 1
s_lshr_b32 s46, s3, 2
s_lshl_b32 s46, s46, 13
v_add_u32 v8, s46, v52
v_lshrrev_b32 v9, 3, v0
v_mul_u32_u24 v9, {XSS}, v9
v_and_b32 v6, 7, v0
v_lshl_add_u32 v9, v6, 4, v9
v_lshrrev_b32 v10, 2, v2
v_lshl_add_u32 v10, v3, 3, v10
v_lshlrev_b32 v10, 7, v10
v_and_b32 v5, 3, v2
v_lshl_add_u32 v10, v5, 3, v10
s_lshl_b32 s46, s19, 6
v_add_u32 v10, s46, v10
v_add_u32 v116, s18, v2
v_mul_u32_u24 v11, {XSS}, v116
v_lshl_add_u32 v11, v3, 4, v11
s_mul_i32 s44, s2, 49
v_add_u32 v117, s44, v116
v_lshlrev_b32 v4, 8, v117
v_lshl_add_u32 v4, v3, 4, v4
s_lshl_b32 s46, s19, 7
v_add_u32 v4, s46, v4
v_cmp_gt_u32 vcc, 49, v116
v_mov_b32 v5, {BIG:#x}
s_mov_b32 s56, 0xffff0000
s_mov_b32 s57, 0x7fffffff
v_cndmask_b32 v4, v5, v4, vcc
v_cmp_eq_u32 vcc, {N}, v117
v_mov_b32 v5, 0x7f000000
v_mov_b32 v6, 0x7f007f00
s_waitcnt vmcnt(0)
ds_write_b128 v8, v[40:43] offset:{K1_W}
ds_write_b128 v8, v[44:47] offset:{K1_W + 4096}
ds_write_b128 v9, v[48:51] offset:{K1_XS}
s_waitcnt lgkmcnt(0)
s_barrier
ds_read_b128 v[40:43], v11 offset:{K1_XS}
ds_read_b128 v[44:47], v11 offset:{K1_XS + 64}
""")
    tr_reads(a, 10, K1_W, 68)
    a("s_waitcnt lgkmcnt(0)")
    tile_mfmas(a, 68, 40, 100)
    a("s_nop 7")

    def near(o, hsrc, lo):
        return [f"v_and_b32 v{o}, s57, v{hsrc}",
                f"v_min_u32 v{o}, v5, v{o}",
                f"v_add_u32 v{o}, 0x8000, v{o}",
                f"v_sub_u32_e64 v{o}, v{o}, v{lo} clamp",
                f"v_and_or_b32 v{o}, v{o}, s56, v{lo}",
                f"v_bfi_b32 v{o}, s57, v{o}, v{hsrc}"]
    seqs = []
    for t in range(2):
        b, h, o, tm = 100 + 4 * t, 108 + 4 * t, 68 + 4 * t, 8 + 4 * t
        q = [f"v_mul_f32 v{b+i}, {NLOG2E:#x}, v{b+i}" for i in range(4)]
        q += [f"v_med3_f32 v{b+i}, v{b+i}, v5, -v5" for i in range(4)]
        q += [f"v_cvt_pk_bf16_f32 v{o}, v{b}, v{b+1}", f"v_cvt_pk_bf16_f32 v{o+1}, v{b+2}, v{b+3}"]
        q += [f"v_cndmask_b32 v{o}, v{o}, v6, vcc", f"v_cndmask_b32 v{o+1}, v{o+1}, v6, vcc"]
        q += [f"v_cvt_pk_bf16_f32 v{tm}, v{h}, v{h}", f"v_and_b32 v{tm}, 0xffff, v{tm}"]
        q += near(o + 2, h + 2, tm)
        q += [f"v_lshrrev_b32 v{tm}, 16, v{o+2}"]
        q += near(tm + 1, h + 1, tm)
        q += [f"v_lshrrev_b32 v{tm}, 16, v{tm+1}"]
        q += near(o + 3, h + 3, tm)
        seqs.append(q)
    for x, y in zip(*seqs):
        a(x)
        a(y)
    for t in range(2):
        o = 68 + 4 * t
        a(f"buffer_store_dwordx4 v[{o}:{o+3}], v4, s[36:39], 0 offen offset:{64*t} {OPT['st_tab']}")
    a("""
K1_END:
s_endpgm
""")
    return a.text()


L_CNT = 0
L_MASK = 256
L_MAXL = 324
L_ZERO = 384
L_TS = 512
L_TC = 1536
L_RK = 1792
L_EA = 2048
EA_BYTES = 49 * CS * 8 + 32
L_KEYS = L_EA + EA_BYTES
KEY_BYTES = 49 * CS * 4 + 16
L_ACC = L_KEYS + KEY_BYTES
L_EXT = L_ACC + 52 * 512
L_W = L_EXT
US = 272
L_AP = L_EXT + 8 * 2048
L_U = L_AP + 49 * US
L_XS = L_U + 49 * US
L_WC = L_XS + 64 * XSS
K2_LDS = L_WC + 512
NB = 6
MINPS = 7
MAXIT = 62

GB = 8
Y = (80, 88)
HL = 96
MM, SA, UU = 100, 104, 108
DEN, NUM = 112, 116
AOP = (120, 124)
CA = 128
CN = 132
IDX = (136, 138)
NX = 140
VK, VE, VF, VFN = 142, 143, 144, 145
VTK, VTE, NXE, VINC = 146, 147, 148, 149
TOT = 150
VTT = 166
VRA = 174
VCA = 182
VMAXL, VPF = 198, 199
K2_VGPR = 204
S_IT, S_MODE, S_I, S_MO, S_ML, S_CNT = 4, 5, 6, 7, 8, 9
S_K = 10
S_B = 13
S_CM = 56
S_PR = 58
S_CS = 59
S_MASK = 60
S_AM = 62


def stepbuf(p, i):
    return GB + 12 * (p % NB) + 6 * i


def lds_init(a):
    a(f"""
v_mov_b32 v40, 0
v_mov_b32 v41, 0
v_mov_b32 v42, 0
v_mov_b32 v43, 0
v_mov_b32 v44, {N}
v_mov_b32 v45, {N}
v_mov_b32 v46, {N}
v_mov_b32 v47, {N}
v_lshlrev_b32 v48, 4, v0
v_add_u32 v49, {L_KEYS}, v48
""")
    nz = L_KEYS // 16
    for i in range(nz // 512):
        a(f"ds_write_b128 v48, v[40:43] offset:{8192*i}")
    nk = KEY_BYTES // 16
    for i in range(nk // 512):
        a(f"ds_write_b128 v49, v[44:47] offset:{8192*i}")
    r1, r2 = nz % 512, nk % 512
    for r, reg, data, cnt in sorted([(r1, 48, 40, nz), (r2, 49, 44, nk)], reverse=True):
        a(f"v_cmp_gt_u32 vcc, {r}, v0")
        a("s_mov_b64 exec, vcc")
        a(f"ds_write_b128 v{reg}, v[{data}:{data+3}] offset:{8192*(cnt//512)}")
    a("s_mov_b64 exec, -1")


def place_atomic(a, r, ca, four):
    a(f"v_and_b32 v{ca}, 0xfc, v{r+2}")
    a(f"ds_add_rtn_u32 v{r+3}, v{ca}, v{four} offset:{L_CNT}")


def place_write(a, r, ca):
    a(f"v_min_u32 v{r+3}, {CAP*4}, v{r+3}")
    a(f"v_mad_u32_u24 v{ca}, v{ca}, s{S_CS}, v{r+3}")
    a(f"v_lshrrev_b32 v{r+2}, 8, v{r+2}")
    a(f"v_add_u32 v{r+3}, v{ca}, v{ca}")
    a(f"ds_write_b32 v{ca}, v{r+2} offset:{L_KEYS}")
    a(f"ds_write_b64 v{r+3}, v[{r}:{r+1}] offset:{L_EA}")


def ev_k(a, sub):
    a(f"""
v_add_u32 v{VK}, {L_KEYS - sub}, v{NX}
v_add_u32 v4, v{NX+1}, v{IDX[0]+1}
v_add_u32 v{VTK}, 32, v{VTK}
v_add_u32 v{VTE}, 32, v{VTE}
ds_read_b128 v[{CN}:{CN+3}], v4
ds_read_b32 v{NXE}, v{VTE} offset:{L_TS}
ds_read_b64 v[{NX}:{NX+1}], v{VTK} offset:{L_TS + 32}
""")


def ev_e(a, sub):
    a(f"""
v_lshlrev_b32 v{VE}, 1, v{NXE}
v_add_u32 v{VE}, {L_EA - sub}, v{VE}
v_mov_b32 v4, {L_ZERO}
v_pk_mov_b32 v[{CA}:{CA+1}], v[{CN}:{CN+1}], v[{CN}:{CN+1}] op_sel:[0,1]
v_pk_mov_b32 v[{CA+2}:{CA+3}], v[{CN+2}:{CN+3}], v[{CN+2}:{CN+3}] op_sel:[0,1]
v_cndmask_b32_e64 v{VE}, v4, v{VE}, s[{S_AM}:{S_AM+1}]
""")


def gathers(p, i0, i1):
    g0, g1 = stepbuf(p, 0) + 2, stepbuf(p, 1) + 2
    return [f"buffer_load_dwordx4 v[{g0}:{g0+3}], v[{i0}:{i0+1}], s[24:27], 0 idxen offen {OPT.get('ldg', '')}",
            f"buffer_load_dwordx4 v[{g1}:{g1+3}], v[{i1}:{i1+1}], s[24:27], 0 idxen offen {OPT.get('ldg', '')}"]


def mfmas(p):
    y = Y[p & 1]
    return [f"v_mfma_f32_16x16x32_bf16 v[{y+4*i}:{y+4*i+3}], v[{AOP[i]}:{AOP[i]+3}], v[{stepbuf(p, i)}:{stepbuf(p, i)+3}], v[{CA}:{CA+3}]"
            for i in range(2)]


def ops(k):
    y = Y[k & 1]
    yn = Y[1 - (k & 1)]
    b0, b1 = stepbuf(k, 0) + 4, stepbuf(k, 1) + 4
    d = {}
    for i in range(8):
        d[f"E{i}"] = f"v_exp_f32 v{yn+i}, v{yn+i}"
    for i in range(4):
        d[f"C{i}"] = f"v_pk_fma_f32 v[{y+2*i}:{y+1+2*i}], v[{y+2*i}:{y+1+2*i}], s[{S_K}:{S_K+1}], s[{S_K}:{S_K+1}] clamp"
        d[f"R{i}"] = f"v_rcp_f32 v{MM+i}, v{MM+i}"
    for i in range(2):
        p0 = f"v[{y+2*i}:{y+1+2*i}]"
        p1 = f"v[{y+4+2*i}:{y+5+2*i}]"
        m = f"v[{MM+2*i}:{MM+1+2*i}]"
        s = f"v[{SA+2*i}:{SA+1+2*i}]"
        u = f"v[{UU+2*i}:{UU+1+2*i}]"
        h0 = f"v[{HL}:{HL+1}]" if i == 0 else f"v[{b0}:{b0+1}]"
        h1 = f"v[{HL+2}:{HL+3}]" if i == 0 else f"v[{b1}:{b1+1}]"
        d[f"m{i}"] = f"v_pk_mul_f32 {m}, {p0}, {p1}"
        d[f"a{i}"] = f"v_pk_add_f32 {s}, {p0}, {p1}"
        d[f"g{i}"] = f"v_pk_mul_f32 {u}, {p1}, {h0}"
        d[f"h{i}"] = f"v_pk_fma_f32 {u}, {p0}, {h1}, {u}"
        d[f"d{i}"] = f"v_pk_fma_f32 v[{DEN+2*i}:{DEN+1+2*i}], {s}, {m}, v[{DEN+2*i}:{DEN+1+2*i}]"
        d[f"n{i}"] = f"v_pk_fma_f32 v[{NUM+2*i}:{NUM+1+2*i}], {u}, {m}, v[{NUM+2*i}:{NUM+1+2*i}]"
    d["Q0"] = f"v_lshlrev_b64 v[{HL}:{HL+1}], 16, v[{b0}:{b0+1}]"
    d["Q1"] = f"v_lshlrev_b64 v[{HL+2}:{HL+3}], 16, v[{b1}:{b1+1}]"
    d["N0"], d["N1"] = mfmas(k + 2)
    d["L0"], d["L1"] = gathers(k, IDX[0], IDX[1])
    d["k0"] = f"ds_read_b32 v{IDX[0]}, v{VK} offset:{8*k}"
    d["k1"] = f"ds_read_b32 v{IDX[1]}, v{VK} offset:{8*k+4}"
    d["e0"] = f"ds_read_b64 v[{AOP[0]}:{AOP[0]+1}], v{VE} offset:{16*k}"
    d["e1"] = f"ds_read_b64 v[{AOP[1]}:{AOP[1]+1}], v{VE} offset:{16*k+8}"
    d["W"] = f"s_waitcnt vmcnt({2*(NB-3)}) lgkmcnt(0)"
    d["S"] = f"s_sub_u32 s{S_CNT}, s{S_CNT}, 1"
    d["A0"] = f"v_add_u32 v{VK}, {8*NB}, v{VK}" if k == NB - 1 else ""
    d["A1"] = f"v_add_u32 v{VE}, v{VINC}, v{VE}" if k == NB - 1 else ""
    return d


ORDERS = {
    "b1": "k0 k1 e0 e1 S C0 E0 C2 E1 C1 E2 C3 E3 m0 E4 m1 E5 Q0 Q1 A0 A1 a0 a1 g0 g1 h0 h1 W N0 R0 R1 N1 R2 R3 L0 L1 E6 d0 E7 d1 n0 n1",
    "b2": "k0 k1 e0 e1 C0 E0 C2 E1 C1 E2 C3 E3 m0 E4 m1 E5 Q0 Q1 A0 A1 a0 a1 g0 g1 h0 h1 W N0 R0 R1 N1 R2 R3 E6 d0 E7 d1 n0 n1 L0 L1 S",
    "b3": "k0 k1 e0 e1 C0 E0 C2 E1 C1 E2 C3 E3 m0 E4 m1 E5 Q0 Q1 A0 A1 a0 a1 g0 g1 h0 h1 W L0 L1 S N0 R0 R1 N1 R2 R3 E6 d0 E7 d1 n0 n1",
    "b4": "k0 k1 e0 e1 C0 C2 E0 m0 E1 C1 C3 E2 m1 E3 Q0 E4 Q1 E5 A0 A1 a0 a1 g0 g1 h0 h1 W N0 R0 R1 N1 R2 R3 L0 L1 S E6 d0 E7 d1 n0 n1",
    "b5": "k0 k1 e0 e1 C0 E0 C2 E1 C1 E2 C3 E3 m0 m1 Q0 Q1 A0 A1 a0 a1 g0 g1 h0 h1 W N0 R0 R1 N1 R2 R3 L0 L1 S E4 d0 E5 d1 E6 n0 E7 n1",
    "b6": "k0 k1 e0 e1 C0 E0 C2 E1 C1 E2 C3 E3 m0 E4 m1 E5 Q0 Q1 A0 A1 a0 a1 g0 g1 h0 h1 W N0 N1 L0 L1 S R0 R1 R2 R3 E6 d0 E7 d1 n0 n1",
    "b7": "k0 k1 e0 e1 C0 E0 C2 E1 C1 E2 C3 E3 m0 E4 m1 E5 Q0 Q1 A0 A1 a0 a1 g0 g1 h0 h1 W N0 R0 R1 N1 L0 L1 S R2 R3 E6 d0 E7 d1 n0 n1",
    "b8": "k0 k1 e0 e1 C0 C2 C1 C3 m0 m1 Q0 Q1 A0 A1 a0 a1 g0 g1 h0 h1 E0 E1 E2 E3 W N0 R0 R1 N1 R2 R3 L0 L1 S E4 E5 E6 E7 d0 d1 n0 n1",
    "d": "C0 E0 k0 C2 E1 k1 C1 E2 e0 C3 E3 e1 m0 E4 m1 E5 S Q0 Q1 A0 A1 a0 a1 g0 g1 h0 h1 W N0 R0 R1 N1 R2 R3 L0 E6 d0 L1 E7 d1 n0 n1",
    "e": "C0 E0 k0 C2 E1 k1 C1 E2 e0 C3 E3 e1 m0 m1 Q0 Q1 A0 A1 a0 a1 g0 g1 h0 h1 W N0 R0 L0 R1 E4 N1 R2 L1 R3 E5 S d0 E6 d1 E7 n0 n1",
    "f": "k0 C0 E0 k1 C2 E1 e0 C1 E2 e1 C3 E3 S m0 E4 m1 E5 Q0 Q1 A0 A1 a0 a1 g0 g1 h0 h1 W N0 L0 R0 R1 N1 L1 R2 R3 E6 d0 E7 d1 n0 n1",
    "a": "C0 E0 k0 C2 E1 k1 C1 E2 e0 C3 E3 e1 m0 E4 m1 E5 S Q0 Q1 A0 A1 a0 a1 g0 g1 h0 h1 W N0 R0 L0 R1 N1 R2 L1 R3 E6 d0 E7 d1 n0 n1",
    "b": "k0 k1 e0 e1 C0 E0 C2 E1 C1 E2 C3 E3 m0 E4 m1 E5 S Q0 Q1 A0 A1 a0 a1 g0 g1 h0 h1 W N0 R0 R1 N1 R2 R3 L0 L1 E6 d0 E7 d1 n0 n1",
    "c": "C0 E0 k0 C2 E1 k1 C1 E2 e0 C3 E3 e1 m0 Q0 m1 Q1 a0 E4 S a1 E5 A0 A1 g0 g1 h0 h1 W N0 R0 L0 R1 N1 R2 L1 R3 E6 d0 E7 d1 n0 n1",
}


def prefetch(a, v, P):
    stride = 128 if P == 2 else 64
    a(f"""
s_lshr_b32 s40, s2, 3
s_mul_i32 s40, s40, {782*128}
v_mul_u32_u24 v{v}, {stride}, v0
v_add_u32 v{v}, s40, v{v}
""")
    for p in range(P):
        if p == P - 1:
            a(f"v_cmp_gt_u32 vcc, {782*128//stride - 512*p}, v0")
            a("s_mov_b64 exec, vcc")
        a(f"buffer_load_dword v{VPF}, v{v}, s[28:31], 0 offen {OPT['ldp']}")
        if p < P - 1:
            a(f"v_add_u32 v{v}, {512*stride}, v{v}")
    a("s_mov_b64 exec, -1")


def k2():
    a = Asm(200, 1)
    a(f"""
gate_kernel:
s_cmp_ge_u32 s2, 256
s_cbranch_scc1 K2_END
@S0
@C30
s_load_dwordx2 s[16:17], s[0:1], 88
s_load_dwordx2 s[4:5], s[0:1], 0
s_load_dwordx2 s[6:7], s[0:1], 32
s_load_dwordx4 s[8:11], s[0:1], 48
s_load_dwordx2 s[48:49], s[0:1], 72
v_readfirstlane_b32 s3, v0
v_bfe_u32 v3, v0, 4, 2
s_and_b32 s{S_B}, s2, 7
s_lshl_b32 s{S_B}, s{S_B}, 5
s_lshr_b32 s15, s2, 3
s_or_b32 s{S_B}, s{S_B}, s15
s_lshl_b32 s15, s{S_B}, 2
v_lshl_add_u32 v4, v3, 10, s15
s_lshr_b32 s3, s3, 6
s_lshl_b32 s40, s3, 15
""")
    for k in range(1, 8):
        a(f"s_add_u32 s{40+k}, s40, {4096*k}")
    a(f"""
s_mov_b32 s34, {TR_BYTES}
s_mov_b32 s35, 0x20000
v_and_b32 v50, 255, v0
v_lshlrev_b32 v50, 4, v50
v_lshrrev_b32 v51, 3, v0
v_lshlrev_b32 v87, 8, v51
v_add_u32 v87, s{S_B}, v87
v_lshlrev_b32 v87, 7, v87
v_and_b32 v52, 7, v0
v_lshl_add_u32 v87, v52, 4, v87
v_and_b32 v88, 127, v0
v_lshlrev_b32 v88, 2, v88
s_cmp_lt_u32 s3, 4
s_waitcnt lgkmcnt(0)
s_cselect_b64 s[6:7], s[6:7], s[10:11]
s_add_u32 s32, s16, {T_OFF:#x}
s_addc_u32 s33, s17, 0
s_and_b32 s33, s33, 0xffff
""")
    for k in range(8):
        a(f"buffer_load_dword v{VTT+k}, v4, s[32:35], s{40+k} offen")
    srd(a, 20, 4, 5, N * 128)
    a(f"""
s_add_u32 s14, s6, 4096
s_addc_u32 s15, s7, 0
global_load_dwordx4 v[72:75], v50, s[6:7]
global_load_dwordx4 v[76:79], v50, s[14:15]
buffer_load_dwordx4 v[80:83], v87, s[20:23], 0 offen
global_load_dword v84, v88, s[8:9]
""")
    lds_init(a)
    srd(a, 24, 16, 17, TAB_ROWS, stride=256)
    srd(a, 28, 16, 17, TAB_BYTES)
    srd(a, 36, 48, 49, N * 128)
    a(f"""
v_and_b32 v1, 63, v0
v_and_b32 v2, 15, v0
s_mov_b32 s{S_CS}, {CS}
s_lshl_b32 s40, s3, 5
v_add_u32 v5, s40, v3
s_mov_b32 s41, {RECB}
v_mul_lo_u32 v5, v5, s41
v_mad_u32_u24 v5, v2, 12, v5
v_add_u32 v5, {REC_OFF - T_OFF}, v5
v_add_u32 v6, 16, v2
s_lshr_b32 s40, s3, 2
s_lshl_b32 s40, s40, 13
s_add_u32 s40, s40, {L_W}
v_add_u32 v86, s40, v50
v_mul_u32_u24 v87, {XSS}, v51
v_lshl_add_u32 v87, v52, 4, v87
v_add_u32 v87, {L_XS}, v87
v_add_u32 v88, {L_WC}, v88
s_mov_b32 s{S_MODE}, 0
s_lshr_b32 s18, s3, 1
s_lshl_b32 s18, s18, 4
s_and_b32 s19, s3, 1
v_lshrrev_b32 v146, 2, v2
v_lshl_add_u32 v142, v3, 3, v146
v_lshlrev_b32 v142, 7, v142
v_and_b32 v147, 3, v2
v_lshl_add_u32 v142, v147, 3, v142
s_lshl_b32 s40, s19, 6
s_add_u32 s40, s40, {L_W}
v_add_u32 v142, s40, v142
v_add_u32 v148, s18, v2
v_mul_u32_u24 v143, {XSS}, v148
v_lshl_add_u32 v143, v3, 4, v143
v_add_u32 v143, {L_XS}, v143
v_lshl_add_u32 v144, v2, 2, v3
v_lshlrev_b32 v144, 1, v144
v_add_u32 v144, {L_WC}, v144
s_mov_b32 s{S_AM}, 0x22221111
s_mov_b32 s{S_AM+1}, 0x88884444
s_mov_b32 s{S_K}, 0x21800000
s_mov_b32 s{S_K+1}, 0x21800000
s_mov_b32 s54, {NLOG2E:#x}
s_mov_b32 s55, {NLOG2E:#x}
v_and_b32 v7, 1, v147
v_lshlrev_b32 v7, 4, v7
v_mov_b32 v140, 0x3f80
v_lshlrev_b32 v7, v7, v140
v_cmp_eq_u32 vcc, v3, v146
v_cmp_gt_u32_e64 s[40:41], 2, v147
v_cmp_le_u32_e64 s[42:43], 2, v147
v_lshlrev_b32 v{IDX[0]+1}, 4, v2
v_cndmask_b32 v7, 0, v7, vcc
v_lshlrev_b32 v{IDX[1]+1}, 4, v2
v_mov_b32 v140, {16*NB}
v_cndmask_b32_e64 v{AOP[0]+2}, 0, v7, s[40:41]
v_cndmask_b32_e64 v{AOP[1]+2}, 0, v7, s[40:41]
v_cndmask_b32_e64 v{AOP[0]+3}, 0, v7, s[42:43]
v_cndmask_b32_e64 v{AOP[1]+3}, 0, v7, s[42:43]
v_cndmask_b32_e64 v{VINC}, 0, v140, s[{S_AM}:{S_AM+1}]
s_movk_i32 s40, {US}
s_lshl_b32 s41, s19, 7
s_add_u32 s41, s41, {L_AP}
v_mad_u32_u24 v145, v148, s40, 0
v_lshl_add_u32 v145, v3, 4, v145
v_add_u32 v145, s41, v145
v_cmp_gt_u32_e64 s[52:53], 49, v148
@S1
s_waitcnt vmcnt(0)
@S2
ds_write_b128 v86, v[72:75]
ds_write_b128 v86, v[76:79] offset:4096
ds_write_b128 v87, v[80:83]
ds_write_b32 v88, v84
""")
    for k in range(8):
        a(f"v_mad_u32_u16 v{VRA+k}, v{VTT+k}, 12, v5")
        a(f"v_cmp_gt_u32_sdwa s[{64+2*k}:{65+2*k}], v{VTT+k}, v2 src0_sel:WORD_1 src1_sel:DWORD")
        if k < 7:
            a(f"v_add_u32 v5, {4*RECB}, v5")
    a("""
s_waitcnt lgkmcnt(0)
@S3
s_barrier
@S4
""")
    def rec_issue(tag):
        for k in range(8):
            a(f"s_mov_b64 exec, s[{64+2*k}:{65+2*k}]")
            a(f"buffer_load_dwordx3 v[{8+4*k}:{10+4*k}], v{VRA+k}, s[32:35], 0 offen {OPT['ld2']}")
        a("s_mov_b64 exec, -1")
        for k in range(8):
            a(f"v_cmp_gt_u32_sdwa s[{80+2*k}:{81+2*k}], v{VTT+k}, v6 src0_sel:WORD_1 src1_sel:DWORD")
        for k in range(8):
            a(f"s_mov_b64 exec, s[{80+2*k}:{81+2*k}]")
            a(f"s_cbranch_execz K2_M1L{tag}{k}")
            a(f"buffer_load_dwordx3 v[{40+4*k}:{42+4*k}], v{VRA+k}, s[32:35], 0 offen offset:192 {OPT['ld2']}")
            a(f"K2_M1L{tag}{k}:")
        a("s_mov_b64 exec, -1")
        a("@S16")
    def tile_phase():
        tr_reads(a, 142, 0, 80)
        a(f"""
ds_read_b128 v[112:115], v143
ds_read_b128 v[116:119], v143 offset:64
ds_read_u16 v76, v144
ds_read_u16 v77, v144 offset:128
ds_read_u16 v78, v144 offset:256
ds_read_u16 v79, v144 offset:384
s_waitcnt lgkmcnt(4)
""")
        tile_mfmas(a, 80, 112, TOT)
        a("s_waitcnt lgkmcnt(0)")
        for k in range(4):
            a(f"v_lshlrev_b32 v{76+k}, 16, v{76+k}")
        for k in range(4):
            a(f"v_mul_f32 v{76+k}, {NLOG2E:#x}, v{76+k}")
        a(f"v_cvt_pk_bf16_f32 v{CN}, v76, v77")
        a(f"v_cvt_pk_bf16_f32 v{CN+1}, v78, v79")
        a("v_mov_b32 v72, 4")
        a("s_mov_b64 exec, s[52:53]")
        a(f"ds_write_b128 v145, v[{TOT+8}:{TOT+11}] offset:{L_U - L_AP}")
        a(f"ds_write_b128 v145, v[{TOT+12}:{TOT+15}] offset:{L_U - L_AP + 64}")
        for i in range(0, 8, 2):
            a(f"v_pk_mul_f32 v[{TOT+i}:{TOT+i+1}], v[{TOT+i}:{TOT+i+1}], s[54:55]")
        a(f"""
ds_write_b128 v145, v[{TOT}:{TOT+3}]
ds_write_b128 v145, v[{TOT+4}:{TOT+7}] offset:64
s_mov_b64 exec, -1
""")
    P = 0
    if OPT.get("split", "1") == "1":
        a("s_cmp_ge_u32 s3, 4")
        a("s_cbranch_scc1 K2_LATE")
        rec_issue("a")
        tile_phase()
        a("s_branch K2_JOIN")
        a("K2_LATE:")
        tile_phase()
        rec_issue("b")
        a("K2_JOIN:")
    else:
        rec_issue("a")
        tile_phase()
    a("@S5")
    def A_(j):
        a(f"s_waitcnt vmcnt({7 - j + P})")
        a(f"s_mov_b64 exec, s[{64+2*j}:{65+2*j}]")
        place_atomic(a, 8 + 4 * j, VCA + j, 72)

    def W_(j, n):
        a(f"s_mov_b64 exec, s[{64+2*j}:{65+2*j}]")
        if n is not None:
            a(f"s_waitcnt lgkmcnt({n})")
        place_write(a, 8 + 4 * j, VCA + j)
    A_(0); A_(1); A_(2)
    for j in range(5):
        W_(j, (2, 4, 6, 6, 6)[j])
        A_(j + 3)
    W_(5, 6)
    a(f"s_waitcnt vmcnt({P})")
    a("@S6")
    if OPT.get("pfat") == "arr":
        a("s_mov_b64 exec, -1")
        npf = int(OPT.get("npf", 512))
        a(f"""
s_lshr_b32 s40, s2, 3
s_mul_i32 s40, s40, {782*128}
v_lshl_add_u32 v7, v0, 7, s40
""")
        if npf < 512:
            a(f"v_cmp_gt_u32 vcc, {npf}, v0")
            a("s_mov_b64 exec, vcc")
        a(f"buffer_load_dword v{VPF}, v7, s[28:31], 0 offen {OPT['ldp']}")
        if npf > 512:
            a(f"v_add_u32 v7, 0x10000, v7")
            a(f"v_cmp_gt_u32 vcc, {npf - 512}, v0")
            a("s_mov_b64 exec, vcc")
            a(f"buffer_load_dword v{VPF}, v7, s[28:31], 0 offen {OPT['ldp']}")
    for j in range(8):
        a(f"s_mov_b64 exec, s[{80+2*j}:{81+2*j}]")
        a(f"s_cbranch_execz K2_M1A{j}")
        place_atomic(a, 40 + 4 * j, VCA + 8 + j, 72)
        a(f"K2_M1A{j}:")
    W_(6, 0)
    W_(7, None)
    for j in range(8):
        a(f"s_mov_b64 exec, s[{80+2*j}:{81+2*j}]")
        a(f"s_cbranch_execz K2_M1W{j}")
        place_write(a, 40 + 4 * j, VCA + 8 + j)
        a(f"K2_M1W{j}:")
    a(f"""
s_mov_b64 exec, -1
v_max3_u32 v4, v{VTT}, v{VTT+1}, v{VTT+2}
v_max3_u32 v5, v{VTT+3}, v{VTT+4}, v{VTT+5}
v_max3_u32 v4, v4, v{VTT+6}, v{VTT+7}
v_max_u32 v4, v4, v5
v_lshrrev_b32 v{VMAXL}, 16, v4
v_cmp_lt_u32 vcc, 32, v{VMAXL}
s_cbranch_vccnz K2_LONG_ENTRY
K2_PLACED:
""")
    for i in range(0, 16, 2):
        a(f"v_pk_mov_b32 v[{TOT+i}:{TOT+i+1}], 0, 0")
    for p in range(NB):
        for i in range(2):
            b = stepbuf(p, i)
            a(f"v_pk_mov_b32 v[{b}:{b+1}], v[{CN}:{CN+1}], v[{CN}:{CN+1}] op_sel:[0,1]")
    a(f"""
s_waitcnt lgkmcnt(0)
@S7
s_barrier
@S8
""")
    if OPT.get("pfat") == "late":
        prefetch(a, 7, int(OPT["prefetch"]))
    a(f"""
K2_RANK:
v_lshlrev_b32 v4, 2, v1
ds_read_b32 v80, v4 offset:{L_CNT}
""")
    for i in range(1, 6):
        a(f"s_add_u32 s{40+i}, s3, {8*i}")
    a(f"""
v_cmp_gt_u32_e64 s[52:53], 48, v1
v_lshl_add_u32 v82, v1, 3, s3
v_mul_u32_u24 v86, {CS*4}, v82
v_mul_u32_u24 v87, {US}, v82
v_add_u32 v87, {L_AP}, v87
v_lshlrev_b32 v82, 2, v82
s_waitcnt lgkmcnt(0)
v_cmp_lt_u32 vcc, {CAP*4}, v80
v_lshl_add_u32 v81, v80, 4, v1
v_add_u32 v81, 1, v81
s_cbranch_vccnz K2_SLOW_ENTRY
v_cndmask_b32_e64 v81, 0, v81, s[52:53]
v_readlane_b32 s50, v80, 48
""")
    for i in range(6):
        a(f"v_readlane_b32 s{64+i}, v81, s{3 if i == 0 else 40+i}")
    a("s_add_u32 s51, s50, 28")
    for i in range(6):
        a(f"v_cmp_lt_u32_e64 s[{72+2*i}:{73+2*i}], s{64+i}, v81")
    a("s_lshr_b32 s51, s51, 5")
    for i in range(6):
        a(f"v_writelane_b32 v83, s{64+i}, {i}")
        a(f"s_bcnt1_i32_b64 s{72+2*i}, s[{72+2*i}:{73+2*i}]")
    a(f"""
s_max_u32 s51, s51, {MINPS}
s_cmp_eq_u32 s50, 0
s_cselect_b32 s50, 0, s51
s_lshl_b32 s50, s50, 1
""")
    for i in range(6):
        a(f"v_writelane_b32 v84, s{72+2*i}, {i}")
    a(f"""
v_lshrrev_b32 v83, 6, v83
v_add_u32 v84, 4, v84
v_lshlrev_b32 v85, 3, v84
v_lshlrev_b32 v88, 2, v84
s_mov_b64 exec, 63
ds_write_b64 v85, v[86:87] offset:{L_TS}
ds_write_b32 v88, v83 offset:{L_TC}
ds_write_b32 v82, v84 offset:{L_RK}
s_mov_b64 exec, 15
v_mul_u32_u24 v90, s50, v4
v_add_u32 v90, {48*CS*4}, v90
v_mov_b32 v91, {L_AP + 48*US}
v_mov_b32 v89, s50
v_lshlrev_b32 v5, 3, v1
ds_write_b64 v5, v[90:91] offset:{L_TS}
ds_write_b32 v4, v89 offset:{L_TC}
ds_write_b32 v4, v1 offset:{L_RK + 192}
s_mov_b64 exec, -1
v_lshlrev_b32 v4, 4, v2
v_cmp_gt_u32_e64 s[52:53], 13, v2
s_add_u32 s15, s3, 1
s_waitcnt lgkmcnt(0)
s_barrier
@S9
; ---- split the pair-step stream evenly over the 8 waves ---------------------------------------
ds_read_b32 v80, v4 offset:{L_TC}
v_mov_b32 v84, 1
v_mov_b32 v85, 0
s_waitcnt lgkmcnt(0)
v_cmp_ne_u32 vcc, 0, v80
v_add_u32 v80, 1, v80
v_lshrrev_b32 v80, 1, v80
s_and_b64 s[44:45], vcc, s[52:53]
v_max_u32 v80, {MINPS}, v80
v_cndmask_b32_e64 v80, 0, v80, s[44:45]
v_mov_b32 v81, v80
""")
    scan(a, 81, steps16_only=True)
    a(f"""
s_nop 0
v_readlane_b32 s14, v81, 15
v_sub_u32 v82, v81, v80
s_cmp_gt_u32 s14, {MAXIT*8}
s_cbranch_scc1 K2_SLOW_ENTRY
s_mul_i32 s40, s14, s3
s_mul_i32 s41, s14, s15
s_lshr_b32 s40, s40, 3
s_lshr_b32 s41, s41, 3
s_sub_u32 s{S_IT}, s41, s40
s_cmp_eq_u32 s{S_IT}, 0
s_cbranch_scc1 K2_LOOP_DONE
v_cmp_ge_u32_e64 s[42:43], s40, v81
v_subrev_u32 v83, s40, v82
s_and_b32 s42, s42, 0x1fff
s_bcnt1_i32_b32 s42, s42
s_lshl_b32 s46, s42, 5
v_lshl_add_u32 v{VTK}, v3, 3, s46
v_and_b32 v{VTE}, 12, v2
v_lshl_add_u32 v{VTE}, v{VTE}, 1, s46
v_readlane_b32 s43, v82, s42
ds_read_b64 v[86:87], v{VTK} offset:{L_TS}
ds_read_b32 v{NXE}, v{VTE} offset:{L_TS}
ds_read_b64 v[{NX}:{NX+1}], v{VTK} offset:{L_TS + 32}
v_add_u32 v88, -1, v83
v_cmp_gt_u32 vcc, 63, v88
v_lshlrev_b64 v[84:85], v83, v[84:85]
s_and_b64 vcc, vcc, s[44:45]
s_sub_u32 s43, s40, s43
v_cndmask_b32 v84, 0, v84, vcc
v_cndmask_b32 v85, 0, v85, vcc
s_lshl_b32 s45, s43, 3
s_add_u32 s45, s45, {L_KEYS}
""")
    for d in (1, 2, 4, 8):
        a(f"v_or_b32_dpp v84, v84, v84 row_shr:{d} row_mask:0xf bank_mask:0xf")
        a(f"v_or_b32_dpp v85, v85, v85 row_shr:{d} row_mask:0xf bank_mask:0xf")
        a("s_nop 0")
    a(f"""
s_lshl_b32 s47, s43, 4
s_add_u32 s47, s47, {L_EA}
v_readlane_b32 s{S_MASK}, v84, 15
v_readlane_b32 s{S_MASK+1}, v85, 15
s_bfm_b64 s[48:49], s{S_IT}, 0
s_waitcnt lgkmcnt(1)
v_add_u32 v{VK}, s45, v86
v_add_u32 v87, v87, v{IDX[0]+1}
s_and_b64 s[{S_MASK}:{S_MASK+1}], s[{S_MASK}:{S_MASK+1}], s[48:49]
ds_read_b32 v{IDX[0]}, v{VK}
ds_read_b32 v{IDX[1]}, v{VK} offset:4
ds_read_b128 v[{CA}:{CA+3}], v87
v_lshl_add_u32 v{VE}, v{NXE}, 1, s47
v_mov_b32 v4, {L_ZERO}
""")
    TI = {1: 80, 2: 96, 3: 100, 4: 104, 5: 108}
    for p in range(1, NB):
        a(f"v_mov_b32 v{TI[p]+1}, v{IDX[0]+1}")
        a(f"v_mov_b32 v{TI[p]+3}, v{IDX[0]+1}")
    a(f"v_cndmask_b32_e64 v{VE}, v4, v{VE}, s[{S_AM}:{S_AM+1}]")
    a("s_waitcnt lgkmcnt(3)")
    for p in range(1, NB):
        a(f"""
s_bitcmp1_b32 s{S_MASK}, {p}
s_cbranch_scc0 K2_PK{p}
""")
        ev_k(a, 8 * p)
        a(f"K2_PK{p}:")
        a(f"ds_read_b32 v{TI[p]}, v{VK} offset:{8*p}")
        a(f"ds_read_b32 v{TI[p]+2}, v{VK} offset:{8*p+4}")
    a(f"""
ds_read_b64 v[{AOP[0]}:{AOP[0]+1}], v{VE}
ds_read_b64 v[{AOP[1]}:{AOP[1]+1}], v{VE} offset:8
s_lshr_b64 s[{S_CM}:{S_CM+1}], s[{S_MASK}:{S_MASK+1}], 3
s_lshr_b64 s[48:49], s[{S_MASK}:{S_MASK+1}], {NB+1}
s_or_b64 s[{S_CM}:{S_CM+1}], s[{S_CM}:{S_CM+1}], s[48:49]
s_bitset1_b64 s[{S_MASK}:{S_MASK+1}], s{S_IT}
s_lshr_b64 s[48:49], s[{S_MASK}:{S_MASK+1}], 1
s_or_b64 s[{S_CM}:{S_CM+1}], s[{S_CM}:{S_CM+1}], s[48:49]
s_waitcnt lgkmcnt(2)
""")
    for l in gathers(0, IDX[0], IDX[1]):
        a(l)
    NG0 = int(OPT.get("ng0", 2))
    for p in range(1, NG0):
        for l in gathers(p, TI[p], TI[p] + 2):
            a(l)
    if OPT["prio"] == "1":
        t1, t2, t3 = [int(OPT.get(f"thr{i}", d)) for i, d in ((1, 24), (2, 12), (3, 4))]
        a(f"""
s_setprio 3
s_mov_b32 s{S_PR}, 3
s_mov_b64 s[48:49], {0}
s_bitset1_b64 s[48:49], {63 - t1}
s_bitset1_b64 s[48:49], {63 - t2}
s_bitset1_b64 s[48:49], {63 - t3}
s_sub_u32 s46, 63, s{S_IT}
s_lshr_b64 s[48:49], s[48:49], s46
s_or_b64 s[{S_CM}:{S_CM+1}], s[{S_CM}:{S_CM+1}], s[48:49]
s_mov_b64 s[54:55], s[48:49]
""")
    a(f"""
s_ff1_i32_b64 s{S_CNT}, s[{S_CM}:{S_CM+1}]
v_lshlrev_b32 v5, 9, v3
v_lshl_add_u32 v5, v2, 4, v5
s_lshl_b32 s45, s42, 11
s_add_u32 s45, s45, {L_ACC}
s_add_u32 s46, s45, 2048
v_add_u32 v{VFN}, s46, v5
s_cmp_eq_u32 s43, 0
s_cbranch_scc1 K2_P2
s_lshl_b32 s45, s3, 11
s_add_u32 s45, s45, {L_EXT}
s_lshl_b32 s46, 1, s3
s_lshl_b32 s47, s42, 2
v_mov_b32 v6, s46
v_mov_b32 v7, s47
s_mov_b64 exec, 1
ds_or_b32 v7, v6 offset:{L_MASK}
s_mov_b64 exec, -1
K2_P2:
v_add_u32 v{VF}, s45, v5
""")
    for i in range(0, 8, 2):
        a(f"v_pk_mov_b32 v[{DEN+i}:{DEN+i+1}], 0, 0")
    a(f"""
v_add_u32 v{VK}, {8*NB}, v{VK}
s_bitcmp1_b32 s{S_MASK}, {NB}
s_cbranch_scc0 K2_PK{NB}
""")
    ev_k(a, 0)
    a(f"""
K2_PK{NB}:
v_mov_b32 v5, 32
@S10
s_waitcnt vmcnt({2*NG0-2}) lgkmcnt(0)
@S15
""")
    for l in mfmas(0):
        a(l)
    for p in range(NG0, 4):
        for l in gathers(p, TI[p], TI[p] + 2):
            a(l)
    a(f"""
s_bitcmp1_b32 s{S_MASK}, 1
s_cbranch_scc0 K2_PE1
s_nop 2
""")
    ev_e(a, 16)
    a(f"""
K2_PE1:
ds_read_b64 v[{AOP[0]}:{AOP[0]+1}], v{VE} offset:16
ds_read_b64 v[{AOP[1]}:{AOP[1]+1}], v{VE} offset:24
v_cndmask_b32_e64 v5, 0, v5, s[{S_AM}:{S_AM+1}]
s_nop 3
""")
    for i in range(8):
        a(f"v_exp_f32 v{Y[0]+i}, v{Y[0]+i}")
    a(f"v_add_u32 v{VE}, v5, v{VE}")
    a(f"s_waitcnt vmcnt(4) lgkmcnt(0)")
    for l in mfmas(1):
        a(l)
    for p in range(4, NB):
        for l in gathers(p, TI[p], TI[p] + 2):
            a(l)
    a(f"""
s_bitcmp1_b32 s{S_MASK}, 2
s_cbranch_scc0 K2_PE2
s_nop 2
""")
    ev_e(a, 0)
    a(f"""
K2_PE2:
@C20
s_nop 4
K2_LOOP:
""")
    order = ORDERS[OPT["order"]].split()
    for k in range(NB):
        d = ops(k)
        for x in order:
            ex = OPT.get("exp")
            if ex == "nom" and x in ("N0", "N1"): continue
            if ex == "nold" and x in ("L0", "L1"): continue
            if ex == "notrans" and x[0] in "ER": continue
            a(d[x])
        if k == NB - 1:
            a("s_cbranch_scc0 K2_LOOP")
        else:
            a(f"s_cbranch_scc1 K2_EV{k}")
            a(f"K2_RET{k}:")
    for k in list(range(NB - 1, NB)) + list(range(NB - 1)):
        kn = (k + 1) % NB
        ret = f"K2_RET{k}" if k < NB - 1 else "K2_LOOP"
        a(f"""
K2_EV{k}:
s_ff1_i32_b64 s14, s[{S_CM}:{S_CM+1}]
s_bitset0_b64 s[{S_CM}:{S_CM+1}], s14
s_ff1_i32_b64 s{S_CNT}, s[{S_CM}:{S_CM+1}]
s_lshr_b64 s[40:41], s[{S_MASK}:{S_MASK+1}], s14
s_sub_u32 s{S_CNT}, s{S_CNT}, s14
s_sub_u32 s{S_CNT}, s{S_CNT}, 1
s_bitcmp1_b32 s40, 1
s_cbranch_scc0 K2_EV{k}A
ds_write_b128 v{VF}, v[{DEN}:{DEN+3}]
ds_write_b128 v{VF}, v[{NUM}:{NUM+3}] offset:256
s_lshr_b64 s[42:43], s[40:41], 2
s_cbranch_scc0 K2_LOOP_DONE
v_mov_b32 v{VF}, v{VFN}
v_add_u32 v{VFN}, 2048, v{VFN}
""")
        for i in range(0, 8, 2):
            a(f"v_pk_mov_b32 v[{DEN+i}:{DEN+i+1}], 0, 0")
        a(f"""
K2_EV{k}A:
s_bitcmp1_b32 s40, 3
s_cbranch_scc0 K2_EV{k}B
""")
        ev_e(a, 16 * kn)
        a(f"""
K2_EV{k}B:
s_bitcmp1_b32 s40, {NB+1}
s_cbranch_scc0 K2_EV{k}C
""")
        ev_k(a, 8 * kn)
        a(f"K2_EV{k}C:")
        if OPT["prio"] == "1":
            a(f"""
s_bitcmp1_b64 s[54:55], s14
s_cbranch_scc0 {ret}
s_sub_u32 s{S_PR}, s{S_PR}, 1
s_setprio 0
s_cmp_eq_u32 s{S_PR}, 0
s_cbranch_scc1 {ret}
s_setprio 1
s_cmp_eq_u32 s{S_PR}, 1
s_cbranch_scc1 {ret}
s_setprio 2
""")
        a(f"s_branch {ret}")
    a(f"""
K2_LOOP_DONE:
@C21
@S11
s_setprio 0
v_lshrrev_b32 v80, 3, v0
v_min_u32 v81, 48, v80
v_lshlrev_b32 v82, 2, v80
v_lshlrev_b32 v83, 2, v81
v_and_b32 v84, 7, v0
v_lshlrev_b32 v85, 5, v84
v_cmp_gt_u32_e64 s[40:41], 52, v80
s_movk_i32 s14, {US}
v_mad_u32_u24 v88, v81, s14, v85
v_add_u32 v88, {L_U}, v88
v_mul_u32_u24 v89, {XSS}, v81
v_lshl_add_u32 v89, v84, 4, v89
v_add_u32 v89, {L_XS}, v89
ds_read_b32 v86, v82 offset:{L_RK}
ds_read_b32 v87, v83 offset:{L_CNT}
ds_read_b128 v[112:115], v88
ds_read_b128 v[116:119], v88 offset:16
ds_read_b128 v[{CA}:{CA+3}], v89
s_waitcnt lgkmcnt(0)
v_cmp_ne_u32 vcc, 0, v87
v_and_b32 v90, -4, v86
v_lshl_add_u32 v91, v86, 9, v85
v_add_u32 v91, {L_ACC}, v91
v_and_b32 v92, 3, v86
v_lshl_add_u32 v92, v92, 9, v85
v_add_u32 v92, {L_EXT}, v92
s_barrier
@S12
s_and_b64 exec, vcc, s[40:41]
s_cbranch_execz K2_COMB_DONE
ds_read_b32 v90, v90 offset:{L_MASK}
K2_COMB_X:
ds_read_b128 v[96:99], v91
ds_read_b128 v[100:103], v91 offset:16
ds_read_b128 v[104:107], v91 offset:256
ds_read_b128 v[108:111], v91 offset:272
s_waitcnt lgkmcnt(4)
v_ffbl_b32 v91, v90
v_cmp_ne_u32 vcc, 0, v90
v_add_u32 v93, -1, v90
v_and_b32 v90, v90, v93
v_lshl_add_u32 v91, v91, 11, v92
s_waitcnt lgkmcnt(0)
""")
    for i in range(0, 16, 2):
        a(f"v_pk_add_f32 v[{TOT+i}:{TOT+i+1}], v[{TOT+i}:{TOT+i+1}], v[{96+i}:{97+i}]")
    a(f"""
s_and_b64 exec, exec, vcc
s_cbranch_execnz K2_COMB_X
K2_COMB_DONE:
s_mov_b64 exec, -1
s_cmp_lg_u32 s{S_MODE}, 0
s_cbranch_scc1 K2_SLOW_NEXT
K2_FINAL:
s_cmp_lg_u32 s3, 6
s_cbranch_scc1 K2_FIN2
""")
    for i in range(16):
        a(f"v_add_f32_dpp v{TOT+i}, v{TOT+i}, v{TOT+i} row_ror:8 row_mask:0xf bank_mask:0xf")
    for i in range(16):
        a(f"ds_swizzle_b32 v{96+i}, v{TOT+i} offset:0x401F")
    a("s_waitcnt lgkmcnt(0)")
    for i in range(0, 16, 2):
        a(f"v_pk_add_f32 v[{TOT+i}:{TOT+i+1}], v[{TOT+i}:{TOT+i+1}], v[{96+i}:{97+i}]")
    eps = struct.unpack("<I", struct.pack("<f", 1e-6 * 2.0**60))[0]
    a(f"""
K2_FIN2:
s_mov_b32 s14, {eps:#x}
s_mov_b32 s15, {eps:#x}
v_lshlrev_b32 v80, 8, v80
v_add_u32 v80, s{S_B}, v80
v_lshlrev_b32 v80, 7, v80
v_lshl_add_u32 v80, v84, 4, v80
""")
    for i in range(0, 8, 2):
        a(f"v_pk_add_f32 v[{TOT+i}:{TOT+i+1}], v[{TOT+i}:{TOT+i+1}], s[14:15]")
    for i in range(8):
        a(f"v_rcp_f32 v{TOT+i}, v{TOT+i}")
    for i in range(4):
        a(f"v_lshlrev_b32 v{96+2*i}, 16, v{CA+i}")
        a(f"v_and_b32 v{97+2*i}, 0xffff0000, v{CA+i}")
    for i in range(0, 8, 2):
        a(f"v_pk_fma_f32 v[{112+i}:{113+i}], v[{TOT+8+i}:{TOT+9+i}], v[{TOT+i}:{TOT+i+1}], v[{112+i}:{113+i}]")
    for i in range(8):
        a(f"v_max_f32 v{112+i}, 0, v{112+i}")
    for i in range(0, 8, 2):
        a(f"v_pk_add_f32 v[{96+i}:{97+i}], v[{96+i}:{97+i}], v[{112+i}:{113+i}]")
    for i in range(4):
        a(f"v_cvt_pk_bf16_f32 v{96+i}, v{96+2*i}, v{97+2*i}")
    a(f"""
buffer_store_dwordx4 v[96:99], v80, s[36:39], 0 offen {OPT['st_out']}
@S13
@Wvmcnt(0)
@S14
@Vs{S_IT},22
@OUT
K2_END:
s_endpgm
K2_LONG_ENTRY:
s_mov_b32 s14, 32
K2_LONG:
v_add_u32 v6, s14, v2
s_mul_i32 s15, s14, 12
""")
    for k in range(8):
        a(f"""
s_mov_b64 exec, -1
v_cmp_gt_u32_sdwa vcc, v{VTT+k}, v6 src0_sel:WORD_1 src1_sel:DWORD
s_and_saveexec_b64 s[40:41], vcc
s_cbranch_execz K2_LONG_S{k}
buffer_load_dwordx3 v[80:82], v{VRA+k}, s[32:35], s15 offen
s_waitcnt vmcnt(0)
""")
        place_atomic(a, 80, 4, 72)
        a("s_waitcnt lgkmcnt(0)")
        place_write(a, 80, 4)
        a(f"K2_LONG_S{k}:")
    a(f"""
s_mov_b64 exec, -1
s_add_u32 s14, s14, 16
v_cmp_lt_u32 vcc, s14, v{VMAXL}
s_cbranch_vccnz K2_LONG
s_branch K2_PLACED
K2_SLOW_ENTRY:
v_mov_b32 v4, 0
ds_max_u32 v4, v{VMAXL} offset:{L_MAXL}
s_waitcnt lgkmcnt(0)
s_barrier
ds_read_b32 v5, v4 offset:{L_MAXL}
s_mov_b32 s{S_MODE}, 1
s_mov_b32 s{S_I}, 0
s_mov_b32 s{S_MO}, 0
s_waitcnt lgkmcnt(0)
v_readfirstlane_b32 s{S_ML}, v5
s_branch K2_SLOW_BATCH
K2_SLOW_NEXT:
s_add_u32 s{S_I}, s{S_I}, 1
s_cmp_lt_u32 s{S_I}, 64
s_cbranch_scc1 K2_SLOW_BATCH
s_mov_b32 s{S_I}, 0
s_add_u32 s{S_MO}, s{S_MO}, 16
s_cmp_ge_u32 s{S_MO}, s{S_ML}
s_cbranch_scc1 K2_FINAL
K2_SLOW_BATCH:
s_waitcnt vmcnt(0) lgkmcnt(0)
s_barrier
""")
    txt = Asm(0, 0)
    lds_init(txt)
    t = txt.text()
    for r in range(49, 39, -1):
        t = t.replace(f"v{r}", f"v{r+40}")
    t = t.replace("v[40:43]", "v[80:83]").replace("v[44:47]", "v[84:87]")
    a(t)
    a(f"""
v_mov_b32 v90, 4
s_waitcnt lgkmcnt(0)
s_barrier
s_cmp_lg_u32 s3, 0
s_cbranch_scc1 K2_SLOW_S
s_lshl_b32 s14, s{S_I}, 2
v_add_u32 v7, s14, v3
s_lshl_b32 s15, s{S_B}, 2
v_lshl_add_u32 v4, v7, 10, s15
buffer_load_dword v5, v4, s[32:35], 0 offen
s_mov_b32 s15, {RECB}
v_mul_lo_u32 v7, v7, s15
v_add_u32 v6, s{S_MO}, v2
v_mad_u32_u24 v7, v6, 12, v7
v_add_u32 v7, {REC_OFF - T_OFF}, v7
s_waitcnt vmcnt(0)
v_mad_u32_u16 v4, v5, 12, v7
v_cmp_gt_u32_sdwa vcc, v5, v6 src0_sel:WORD_1 src1_sel:DWORD
s_and_saveexec_b64 s[40:41], vcc
s_cbranch_execz K2_SLOW_S
buffer_load_dwordx3 v[80:82], v4, s[32:35], 0 offen
s_waitcnt vmcnt(0)
""")
    place_atomic(a, 80, 4, 90)
    a("s_waitcnt lgkmcnt(0)")
    place_write(a, 80, 4)
    a("""
K2_SLOW_S:
s_mov_b64 exec, -1
s_waitcnt lgkmcnt(0)
s_barrier
s_branch K2_RANK
""")
    return a.text()


def desc(name, vgpr, sgpr):
    return f""".amdhsa_kernel {name}
  .amdhsa_next_free_vgpr {vgpr}
  .amdhsa_next_free_sgpr {sgpr}
  .amdhsa_accum_offset {(vgpr + 3) // 4 * 4}
  .amdhsa_group_segment_fixed_size 0
  .amdhsa_kernarg_size 96
  .amdhsa_user_sgpr_count 2
  .amdhsa_user_sgpr_kernarg_segment_ptr 1
  .amdhsa_system_sgpr_workgroup_id_x 1
.end_amdhsa_kernel
"""


HEADER = open("standalone__edge_featured_mpnn_gatedgcn__graph.s.ref").read().split("; Override launch")[0]


def main():
    out = HEADER
    out += f"; @launch kernel=bin_kernel grid=(512,1,1) block=(512,1,1) lds={K1_LDS}\n"
    out += f"; @launch kernel=gate_kernel grid=(256,1,1) block=(512,1,1) lds={K2_LDS}\n"
    out += '.amdgcn_target "amdgcn-amd-amdhsa--gfx950"\n.text\n'
    out += ".globl bin_kernel\n.p2align 8\n.type bin_kernel,@function\n" + k1()
    out += ".globl gate_kernel\n.p2align 8\n.type gate_kernel,@function\n" + k2()
    out += '.section .rodata,"a"\n.p2align 6\n' + desc("bin_kernel", 128, 101 if STAMPS else 64)
    out += ".p2align 6\n" + desc("gate_kernel", K2_VGPR, 101 if STAMPS else 96)
    open(sys.argv[1], "w").write(out)


main()
```

```python
import sys
import struct

N = 12500
E = 800000
QCH = 782
QH = QCH // 2
CH = QCH * 4
NQ = E // 4
RECB = CH * 12
TAB_ROWS = N + 1
TAB_BYTES = TAB_ROWS * 256
T_OFF = 0x310000
REC_OFF = 0x390000
RECS = 37632
TR_BYTES = (REC_OFF - T_OFF) + 256 * RECS
BIG = 0x40000000
NLOG2E = 0xbfb8aa3b
CAP = 128
CS = 132
XSS = 144

OPT = dict(poll="sc1", ldg="sc1", sleep="2", st_rec="sc1", st_tab="sc1", prefetch="0", prio="1", order="b3", ld1="", ld2="sc1", ldp="sc1", st_out="nt", pfat="arr")
for a_ in sys.argv[2:]:
    k_, v_ = a_.split("=")
    OPT[k_] = v_
STAMPS = bool(OPT.get("stamps"))
DBG_OFF = 0x1000000


class Asm:
    def __init__(self, vs, kidx):
        self.L = []
        self.vs = vs
        self.kidx = kidx

    def __call__(self, s):
        for l in s.strip("\n").split("\n"):
            l = l.strip()
            if not l:
                continue
            if l.startswith("@"):
                if STAMPS:
                    self.special(l)
                continue
            if l.endswith(":"):
                self.L.append(l)
            else:
                self.L.append("    " + l)

    def special(self, l):
        vs = self.vs
        if l.startswith("@S") or l.startswith("@C"):
            self(f"{'s_memtime' if l[1] == 'C' else 's_memrealtime'} s[98:99]")
            self("s_waitcnt lgkmcnt(0)")
            self(f"v_writelane_b32 v{vs}, s98, {int(l[2:])}")
        elif l.startswith("@W"):
            self("s_waitcnt " + l[2:])
        elif l.startswith("@V"):
            r, i = l[2:].split(",")
            self(f"v_writelane_b32 v{vs}, {r}, {i}")
        elif l.startswith("@OUT"):
            self(f"""
s_mov_b64 exec, -1
s_lshl_b32 s100, s2, 4
s_add_u32 s100, s100, s3
s_lshl_b32 s100, s100, 8
s_add_u32 s100, s100, {DBG_OFF + self.kidx * 0x100000:#x}
v_and_b32 v{vs+1}, 63, v0
v_lshl_add_u32 v{vs+1}, v{vs+1}, 2, s100
global_store_dword v{vs+1}, v{vs}, s[16:17]
""")

    def text(self):
        return "\n".join(self.L) + "\n"


def srd(a, d, lo, hi, nbytes, stride=0):
    a(f"s_mov_b32 s{d}, s{lo}")
    a(f"s_and_b32 s{d+1}, s{hi}, 0xffff")
    if stride:
        a(f"s_or_b32 s{d+1}, s{d+1}, {stride << 16:#x}")
    a(f"s_mov_b32 s{d+2}, {nbytes}")
    a(f"s_mov_b32 s{d+3}, 0x20000")


def scan(a, v, steps16_only=False, op="add_u32"):
    for d in (1, 2, 4, 8):
        a("s_nop 1")
        a(f"v_{op}_dpp v{v}, v{v}, v{v} row_shr:{d} row_mask:0xf bank_mask:0xf")
    if not steps16_only:
        a("s_nop 1")
        a(f"v_{op}_dpp v{v}, v{v}, v{v} row_bcast:15 row_mask:0xa bank_mask:0xf")
        a("s_nop 1")
        a(f"v_{op}_dpp v{v}, v{v}, v{v} row_bcast:31 row_mask:0xc bank_mask:0xf")


SDWA_B0 = "dst_sel:DWORD dst_unused:UNUSED_PAD src0_sel:DWORD src1_sel:BYTE_0"


def tr_reads(a, vaddr, base, r0):
    for mat in range(2):
        for t in range(2):
            for s in range(2):
                r = r0 + 16 * mat + 8 * t + 4 * s
                o = base + mat * 8192 + s * 4096 + t * 32
                a(f"ds_read_b64_tr_b16 v[{r}:{r+1}], v{vaddr} offset:{o}")
                a(f"ds_read_b64_tr_b16 v[{r+2}:{r+3}], v{vaddr} offset:{o + 512}")


def tile_mfmas(a, r0, x0, d0):
    for s in range(2):
        for mat in range(2):
            for t in range(2):
                f = r0 + 16 * mat + 8 * t + 4 * s
                d = d0 + 8 * mat + 4 * t
                c = "0" if s == 0 else f"v[{d}:{d+3}]"
                a(f"v_mfma_f32_16x16x32_bf16 v[{d}:{d+3}], v[{f}:{f+3}], v[{x0+4*s}:{x0+4*s+3}], {c}")


L_CNT = 0
L_MASK = 256
L_MAXL = 324
L_MATCH = 328
L_ZERO = 384
L_TS = 512
L_TC = 1536
L_RK = 1792
L_EA = 2048
EA_BYTES = 49 * CS * 8 + 32
L_KEYS = L_EA + EA_BYTES
KEY_BYTES = 49 * CS * 4 + 16
L_ACC = L_KEYS + KEY_BYTES
L_EXT = L_ACC + 52 * 512
L_W = 2048
L_HIST, L_START = 0, 1024
L_STAGE = L_ACC
US = 272
L_AP = L_EXT + 8 * 2048
L_U = L_AP + 49 * US
L_XS = L_U + 49 * US
L_WC = L_XS + 64 * XSS
K2_LDS = L_WC + 512
NB = 6
MINPS = 7
MAXIT = 62

GB = 8
Y = (80, 88)
HL = 96
MM, SA, UU = 100, 104, 108
DEN, NUM = 112, 116
AOP = (120, 124)
CA = 128
CN = 132
IDX = (136, 138)
NX = 140
VK, VE, VF, VFN = 142, 143, 144, 145
VTK, VTE, NXE, VINC = 146, 147, 148, 149
TOT = 150
VTT = 166
VRA = 174
VCA = 182
VMAXL, VPF = 198, 199
K2_VGPR = 204
S_IT, S_MODE, S_I, S_MO, S_ML, S_CNT = 4, 5, 6, 7, 8, 9
S_K = 10
S_B = 13
S_CM = 56
S_PR = 58
S_CS = 59
S_MASK = 60
S_AM = 62


def stepbuf(p, i):
    return GB + 12 * (p % NB) + 6 * i


def lds_init(a):
    a(f"""
v_mov_b32 v40, 0
v_mov_b32 v41, 0
v_mov_b32 v42, 0
v_mov_b32 v43, 0
v_mov_b32 v44, {N}
v_mov_b32 v45, {N}
v_mov_b32 v46, {N}
v_mov_b32 v47, {N}
v_lshlrev_b32 v48, 4, v0
v_add_u32 v49, {L_KEYS}, v48
""")
    nz = L_KEYS // 16
    for i in range(nz // 512):
        a(f"ds_write_b128 v48, v[40:43] offset:{8192*i}")
    nk = KEY_BYTES // 16
    for i in range(nk // 512):
        a(f"ds_write_b128 v49, v[44:47] offset:{8192*i}")
    r1, r2 = nz % 512, nk % 512
    for r, reg, data, cnt in sorted([(r1, 48, 40, nz), (r2, 49, 44, nk)], reverse=True):
        a(f"v_cmp_gt_u32 vcc, {r}, v0")
        a("s_mov_b64 exec, vcc")
        a(f"ds_write_b128 v{reg}, v[{data}:{data+3}] offset:{8192*(cnt//512)}")
    a("s_mov_b64 exec, -1")


def place_atomic(a, r, ca, four):
    a(f"v_and_b32 v{ca}, 0xfc, v{r+2}")
    a(f"ds_add_rtn_u32 v{r+3}, v{ca}, v{four} offset:{L_CNT}")


def place_write(a, r, ca):
    a(f"v_min_u32 v{r+3}, {CAP*4}, v{r+3}")
    a(f"v_mad_u32_u24 v{ca}, v{ca}, s{S_CS}, v{r+3}")
    a(f"v_lshrrev_b32 v{r+2}, 8, v{r+2}")
    a(f"v_add_u32 v{r+3}, v{ca}, v{ca}")
    a(f"ds_write_b32 v{ca}, v{r+2} offset:{L_KEYS}")
    a(f"ds_write_b64 v{r+3}, v[{r}:{r+1}] offset:{L_EA}")


def ev_k(a, sub):
    a(f"""
v_add_u32 v{VK}, {L_KEYS - sub}, v{NX}
v_add_u32 v4, v{NX+1}, v{IDX[0]+1}
v_add_u32 v{VTK}, 32, v{VTK}
v_add_u32 v{VTE}, 32, v{VTE}
ds_read_b128 v[{CN}:{CN+3}], v4
ds_read_b32 v{NXE}, v{VTE} offset:{L_TS}
ds_read_b64 v[{NX}:{NX+1}], v{VTK} offset:{L_TS + 32}
""")


def ev_e(a, sub):
    a(f"""
v_lshlrev_b32 v{VE}, 1, v{NXE}
v_add_u32 v{VE}, {L_EA - sub}, v{VE}
v_mov_b32 v4, {L_ZERO}
v_pk_mov_b32 v[{CA}:{CA+1}], v[{CN}:{CN+1}], v[{CN}:{CN+1}] op_sel:[0,1]
v_pk_mov_b32 v[{CA+2}:{CA+3}], v[{CN+2}:{CN+3}], v[{CN+2}:{CN+3}] op_sel:[0,1]
v_cndmask_b32_e64 v{VE}, v4, v{VE}, s[{S_AM}:{S_AM+1}]
""")


def gathers(p, i0, i1):
    g0, g1 = stepbuf(p, 0) + 2, stepbuf(p, 1) + 2
    return [f"buffer_load_dwordx4 v[{g0}:{g0+3}], v[{i0}:{i0+1}], s[24:27], 0 idxen offen {OPT.get('ldg', '')}",
            f"buffer_load_dwordx4 v[{g1}:{g1+3}], v[{i1}:{i1+1}], s[24:27], 0 idxen offen {OPT.get('ldg', '')}"]


def mfmas(p):
    y = Y[p & 1]
    return [f"v_mfma_f32_16x16x32_bf16 v[{y+4*i}:{y+4*i+3}], v[{AOP[i]}:{AOP[i]+3}], v[{stepbuf(p, i)}:{stepbuf(p, i)+3}], v[{CA}:{CA+3}]"
            for i in range(2)]


def ops(k):
    y = Y[k & 1]
    yn = Y[1 - (k & 1)]
    b0, b1 = stepbuf(k, 0) + 4, stepbuf(k, 1) + 4
    d = {}
    for i in range(8):
        d[f"E{i}"] = f"v_exp_f32 v{yn+i}, v{yn+i}"
    for i in range(4):
        d[f"C{i}"] = f"v_pk_fma_f32 v[{y+2*i}:{y+1+2*i}], v[{y+2*i}:{y+1+2*i}], s[{S_K}:{S_K+1}], s[{S_K}:{S_K+1}] clamp"
        d[f"R{i}"] = f"v_rcp_f32 v{MM+i}, v{MM+i}"
    for i in range(2):
        p0 = f"v[{y+2*i}:{y+1+2*i}]"
        p1 = f"v[{y+4+2*i}:{y+5+2*i}]"
        m = f"v[{MM+2*i}:{MM+1+2*i}]"
        s = f"v[{SA+2*i}:{SA+1+2*i}]"
        u = f"v[{UU+2*i}:{UU+1+2*i}]"
        h0 = f"v[{HL}:{HL+1}]" if i == 0 else f"v[{b0}:{b0+1}]"
        h1 = f"v[{HL+2}:{HL+3}]" if i == 0 else f"v[{b1}:{b1+1}]"
        d[f"m{i}"] = f"v_pk_mul_f32 {m}, {p0}, {p1}"
        d[f"a{i}"] = f"v_pk_add_f32 {s}, {p0}, {p1}"
        d[f"g{i}"] = f"v_pk_mul_f32 {u}, {p1}, {h0}"
        d[f"h{i}"] = f"v_pk_fma_f32 {u}, {p0}, {h1}, {u}"
        d[f"d{i}"] = f"v_pk_fma_f32 v[{DEN+2*i}:{DEN+1+2*i}], {s}, {m}, v[{DEN+2*i}:{DEN+1+2*i}]"
        d[f"n{i}"] = f"v_pk_fma_f32 v[{NUM+2*i}:{NUM+1+2*i}], {u}, {m}, v[{NUM+2*i}:{NUM+1+2*i}]"
    d["Q0"] = f"v_lshlrev_b64 v[{HL}:{HL+1}], 16, v[{b0}:{b0+1}]"
    d["Q1"] = f"v_lshlrev_b64 v[{HL+2}:{HL+3}], 16, v[{b1}:{b1+1}]"
    d["N0"], d["N1"] = mfmas(k + 2)
    d["L0"], d["L1"] = gathers(k, IDX[0], IDX[1])
    d["k0"] = f"ds_read_b32 v{IDX[0]}, v{VK} offset:{8*k}"
    d["k1"] = f"ds_read_b32 v{IDX[1]}, v{VK} offset:{8*k+4}"
    d["e0"] = f"ds_read_b64 v[{AOP[0]}:{AOP[0]+1}], v{VE} offset:{16*k}"
    d["e1"] = f"ds_read_b64 v[{AOP[1]}:{AOP[1]+1}], v{VE} offset:{16*k+8}"
    d["W"] = f"s_waitcnt vmcnt({2*(NB-3)}) lgkmcnt(0)"
    d["S"] = f"s_sub_u32 s{S_CNT}, s{S_CNT}, 1"
    d["A0"] = f"v_add_u32 v{VK}, {8*NB}, v{VK}" if k == NB - 1 else ""
    d["A1"] = f"v_add_u32 v{VE}, v{VINC}, v{VE}" if k == NB - 1 else ""
    return d


ORDERS = {
    "b1": "k0 k1 e0 e1 S C0 E0 C2 E1 C1 E2 C3 E3 m0 E4 m1 E5 Q0 Q1 A0 A1 a0 a1 g0 g1 h0 h1 W N0 R0 R1 N1 R2 R3 L0 L1 E6 d0 E7 d1 n0 n1",
    "b2": "k0 k1 e0 e1 C0 E0 C2 E1 C1 E2 C3 E3 m0 E4 m1 E5 Q0 Q1 A0 A1 a0 a1 g0 g1 h0 h1 W N0 R0 R1 N1 R2 R3 E6 d0 E7 d1 n0 n1 L0 L1 S",
    "b3": "k0 k1 e0 e1 C0 E0 C2 E1 C1 E2 C3 E3 m0 E4 m1 E5 Q0 Q1 A0 A1 a0 a1 g0 g1 h0 h1 W L0 L1 S N0 R0 R1 N1 R2 R3 E6 d0 E7 d1 n0 n1",
    "b4": "k0 k1 e0 e1 C0 C2 E0 m0 E1 C1 C3 E2 m1 E3 Q0 E4 Q1 E5 A0 A1 a0 a1 g0 g1 h0 h1 W N0 R0 R1 N1 R2 R3 L0 L1 S E6 d0 E7 d1 n0 n1",
    "b5": "k0 k1 e0 e1 C0 E0 C2 E1 C1 E2 C3 E3 m0 m1 Q0 Q1 A0 A1 a0 a1 g0 g1 h0 h1 W N0 R0 R1 N1 R2 R3 L0 L1 S E4 d0 E5 d1 E6 n0 E7 n1",
    "b6": "k0 k1 e0 e1 C0 E0 C2 E1 C1 E2 C3 E3 m0 E4 m1 E5 Q0 Q1 A0 A1 a0 a1 g0 g1 h0 h1 W N0 N1 L0 L1 S R0 R1 R2 R3 E6 d0 E7 d1 n0 n1",
    "b7": "k0 k1 e0 e1 C0 E0 C2 E1 C1 E2 C3 E3 m0 E4 m1 E5 Q0 Q1 A0 A1 a0 a1 g0 g1 h0 h1 W N0 R0 R1 N1 L0 L1 S R2 R3 E6 d0 E7 d1 n0 n1",
    "b8": "k0 k1 e0 e1 C0 C2 C1 C3 m0 m1 Q0 Q1 A0 A1 a0 a1 g0 g1 h0 h1 E0 E1 E2 E3 W N0 R0 R1 N1 R2 R3 L0 L1 S E4 E5 E6 E7 d0 d1 n0 n1",
    "d": "C0 E0 k0 C2 E1 k1 C1 E2 e0 C3 E3 e1 m0 E4 m1 E5 S Q0 Q1 A0 A1 a0 a1 g0 g1 h0 h1 W N0 R0 R1 N1 R2 R3 L0 E6 d0 L1 E7 d1 n0 n1",
    "e": "C0 E0 k0 C2 E1 k1 C1 E2 e0 C3 E3 e1 m0 m1 Q0 Q1 A0 A1 a0 a1 g0 g1 h0 h1 W N0 R0 L0 R1 E4 N1 R2 L1 R3 E5 S d0 E6 d1 E7 n0 n1",
    "f": "k0 C0 E0 k1 C2 E1 e0 C1 E2 e1 C3 E3 S m0 E4 m1 E5 Q0 Q1 A0 A1 a0 a1 g0 g1 h0 h1 W N0 L0 R0 R1 N1 L1 R2 R3 E6 d0 E7 d1 n0 n1",
    "a": "C0 E0 k0 C2 E1 k1 C1 E2 e0 C3 E3 e1 m0 E4 m1 E5 S Q0 Q1 A0 A1 a0 a1 g0 g1 h0 h1 W N0 R0 L0 R1 N1 R2 L1 R3 E6 d0 E7 d1 n0 n1",
    "b": "k0 k1 e0 e1 C0 E0 C2 E1 C1 E2 C3 E3 m0 E4 m1 E5 S Q0 Q1 A0 A1 a0 a1 g0 g1 h0 h1 W N0 R0 R1 N1 R2 R3 L0 L1 E6 d0 E7 d1 n0 n1",
    "c": "C0 E0 k0 C2 E1 k1 C1 E2 e0 C3 E3 e1 m0 Q0 m1 Q1 a0 E4 S a1 E5 A0 A1 g0 g1 h0 h1 W N0 R0 L0 R1 N1 R2 L1 R3 E6 d0 E7 d1 n0 n1",
}


def prefetch(a, v, P):
    stride = 128 if P == 2 else 64
    a(f"""
s_lshr_b32 s40, s2, 3
s_mul_i32 s40, s40, {782*128}
v_mul_u32_u24 v{v}, {stride}, v0
v_add_u32 v{v}, s40, v{v}
""")
    for p in range(P):
        if p == P - 1:
            a(f"v_cmp_gt_u32 vcc, {782*128//stride - 512*p}, v0")
            a("s_mov_b64 exec, vcc")
        a(f"buffer_load_dword v{VPF}, v{v}, s[28:31], 0 offen {OPT['ldp']}")
        if p < P - 1:
            a(f"v_add_u32 v{v}, {512*stride}, v{v}")
    a("s_mov_b64 exec, -1")


def tr_reads2(a, vaddr, base, r0):
    tr_reads(a, vaddr, base, r0)


KNAME = "standalone__edge_featured_mpnn_gatedgcn__graph_kernel"
PT = VCA


def k2():
    a = Asm(200, 1)
    a(f"""
{KNAME}:
s_cmp_ge_u32 s2, 256
s_cbranch_scc1 K2_END
@S0
@C30
s_load_dwordx16 s[64:79], s[0:1], 0
s_load_dwordx8 s[80:87], s[0:1], 64
v_readfirstlane_b32 s3, v0
s_mul_i32 s40, s2, {QCH}
v_add_u32 v4, s40, v0
v_add_u32 v5, {QH}, v4
v_cmp_gt_u32 vcc, {QH}, v0
s_mov_b32 s41, {NQ}
v_cmp_gt_u32_e64 s[94:95], s41, v5
v_lshlrev_b32 v4, 4, v4
v_lshlrev_b32 v5, 4, v5
v_mov_b32 v6, {BIG:#x}
s_mov_b64 s[92:93], vcc
s_and_b64 s[94:95], s[94:95], vcc
s_lshr_b32 s3, s3, 6
v_cndmask_b32 v4, v6, v4, vcc
v_cndmask_b32_e64 v5, v6, v5, s[94:95]
v_and_b32 v7, 255, v0
v_lshlrev_b32 v7, 2, v7
v_mov_b32 v6, 0
ds_write_b32 v7, v6 offset:{L_HIST}
s_mov_b32 s47, 0x20000
s_mov_b32 s46, {E*4}
s_or_b32 s40, s2, s3
s_cmp_lg_u32 s40, 0
s_waitcnt lgkmcnt(0)
s_mov_b32 s44, s70
s_cbranch_scc1 K2_NONONCE
s_memrealtime s[40:41]
s_waitcnt lgkmcnt(0)
s_or_b32 s40, s40, 1
v_mov_b32 v7, s40
s_mov_b64 exec, 1
global_store_dword v6, v7, s[84:85] sc1
s_mov_b64 exec, -1
K2_NONONCE:
s_and_b32 s45, s71, 0xffff
buffer_load_dwordx4 v[8:11], v4, s[44:47], 0 offen {OPT['ld1']}
buffer_load_dwordx4 v[12:15], v5, s[44:47], 0 offen {OPT['ld1']}
s_and_b32 s{S_B}, s2, 7
s_lshl_b32 s{S_B}, s{S_B}, 5
s_lshr_b32 s40, s2, 3
s_or_b32 s{S_B}, s{S_B}, s40
v_lshlrev_b32 v61, 4, v0
v_lshrrev_b32 v62, 3, v0
v_lshlrev_b32 v140, 8, v62
v_add_u32 v140, s{S_B}, v140
v_lshlrev_b32 v140, 7, v140
v_and_b32 v63, 7, v0
v_lshl_add_u32 v140, v63, 4, v140
v_and_b32 v141, 127, v0
v_lshlrev_b32 v141, 2, v141
""")
    srd(a, 20, 64, 65, N * 128)
    srd(a, 48, 68, 69, E * 4)
    srd(a, 52, 66, 67, E * 8)
    a(f"""
v_lshlrev_b32 v6, 1, v4
v_lshlrev_b32 v7, 1, v5
@S1
s_barrier
global_load_dwordx4 v[40:43], v61, s[74:75]
global_load_dwordx4 v[44:47], v61, s[80:81]
buffer_load_dwordx4 v[56:59], v140, s[20:23], 0 offen
buffer_load_dwordx4 v[16:19], v4, s[48:51], 0 offen {OPT['ld1']}
buffer_load_dwordx4 v[20:23], v5, s[48:51], 0 offen {OPT['ld1']}
buffer_load_dwordx4 v[24:27], v6, s[52:55], 0 offen {OPT['ld1']}
buffer_load_dwordx4 v[28:31], v6, s[52:55], 0 offen offset:16 {OPT['ld1']}
v_and_b32 v1, 63, v0
v_and_b32 v2, 15, v0
v_bfe_u32 v3, v0, 4, 2
s_mov_b64 s[16:17], s[86:87]
s_mov_b64 s[96:97], s[84:85]
""")
    srd(a, 24, 16, 17, TAB_ROWS, stride=256)
    srd(a, 28, 16, 17, TAB_BYTES)
    srd(a, 36, 82, 83, N * 128)
    a(f"""
s_add_u32 s32, s16, {T_OFF:#x}
s_addc_u32 s33, s17, 0
s_and_b32 s33, s33, 0xffff
s_mov_b32 s34, {TR_BYTES}
s_mov_b32 s35, 0x20000
s_mul_i32 s40, s2, {RECS}
s_add_u32 s40, s40, {REC_OFF:#x}
s_add_u32 s88, s16, s40
s_addc_u32 s89, s17, 0
s_and_b32 s89, s89, 0xffff
s_mov_b32 s90, {RECB}
s_mov_b32 s91, 0x20000
v_mov_b32 v6, 1
v_mul_u32_u24 v62, {XSS}, v62
v_lshl_add_u32 v62, v63, 4, v62
v_add_u32 v62, {L_XS}, v62
@S2
s_waitcnt vmcnt(8)
@S3
""")
    for i in range(4):
        a(f"v_lshlrev_b32_sdwa v{64+i}, 2, v{8+i} {SDWA_B0}")
    a("s_mov_b64 exec, s[92:93]")
    for i in range(4):
        a(f"ds_add_rtn_u32 v{72+i}, v{64+i}, v6 offset:{L_HIST}")
    a("s_mov_b64 exec, -1")
    a("s_waitcnt vmcnt(7)")
    for i in range(4, 8):
        a(f"v_lshlrev_b32_sdwa v{64+i}, 2, v{8+i} {SDWA_B0}")
    a("s_mov_b64 exec, s[94:95]")
    for i in range(4, 8):
        a(f"ds_add_rtn_u32 v{72+i}, v{64+i}, v6 offset:{L_HIST}")
    a(f"""
s_mov_b64 exec, -1
buffer_load_dwordx4 v[32:35], v7, s[52:55], 0 offen {OPT['ld1']}
buffer_load_dwordx4 v[36:39], v7, s[52:55], 0 offen offset:16 {OPT['ld1']}
global_load_dwordx4 v[48:51], v61, s[72:73]
global_load_dwordx4 v[52:55], v61, s[78:79]
global_load_dword v60, v141, s[76:77]
""")
    for i in range(8):
        a(f"v_lshrrev_b32 v{8+i}, 6, v{8+i}")
    a(f"""
s_lshr_b32 s18, s3, 1
s_lshl_b32 s18, s18, 4
s_and_b32 s19, s3, 1
v_lshrrev_b32 v146, 2, v2
v_lshl_add_u32 v142, v3, 3, v146
v_lshlrev_b32 v142, 7, v142
v_and_b32 v147, 3, v2
v_lshl_add_u32 v142, v147, 3, v142
s_lshl_b32 s40, s19, 6
v_add_u32 v142, s40, v142
v_add_u32 v148, s18, v2
v_mul_u32_u24 v143, {XSS}, v148
v_lshl_add_u32 v143, v3, 4, v143
v_add_u32 v143, {L_XS}, v143
v_lshlrev_b32 v7, 4, v1
s_waitcnt vmcnt(9)
ds_write_b128 v61, v[40:43] offset:{L_W}
ds_write_b128 v61, v[44:47] offset:{L_W + 8192}
ds_write_b128 v62, v[56:59]
s_waitcnt lgkmcnt(0)
@S4
s_barrier
@S5
ds_read_b128 v[40:43], v7 offset:{L_HIST}
ds_read_b128 v[112:115], v143
ds_read_b128 v[116:119], v143 offset:64
""")
    tr_reads(a, 142, L_W, 80)
    a(f"""
s_waitcnt lgkmcnt(15)
v_add_u32 v45, v40, v41
v_add_u32 v46, v45, v42
v_add_u32 v56, v46, v43
v_mov_b32 v57, v56
""")
    scan(a, 56)
    a(f"""
v_sub_u32 v44, v56, v57
v_add_u32 v47, v44, v46
v_add_u32 v46, v44, v45
v_add_u32 v45, v44, v40
ds_write_b128 v7, v[44:47] offset:{L_START}
""")
    for i in range(8):
        a(f"ds_read_b32 v{64+i}, v{64+i} offset:{L_START}")
    for i in range(4):
        a(f"v_lshl_or_b32 v{56+i}, v{40+i}, 16, v{44+i}")
    a("s_waitcnt lgkmcnt(9)")
    tile_mfmas(a, 80, 112, TOT)
    a(f"s_mov_b32 s40, {L_STAGE}")
    a("s_waitcnt vmcnt(7)")
    for i in range(8):
        a(f"v_lshl_or_b32 v{16+i}, v{16+i}, 8, v{8+i}")
    for i in range(8):
        a(f"s_waitcnt lgkmcnt({7-i})")
        a(f"v_add_u32 v{64+i}, v{64+i}, v{72+i}")
        a(f"v_mad_u32_u24 v{64+i}, v{64+i}, 12, s40")
    a("s_mov_b64 exec, s[92:93]")
    for i in range(4):
        a(f"ds_write_b32 v{64+i}, v{16+i} offset:8")
    a("s_mov_b64 exec, s[94:95]")
    for i in range(4, 8):
        a(f"ds_write_b32 v{64+i}, v{16+i} offset:8")
    a(f"""
s_waitcnt vmcnt(5)
s_mov_b64 exec, s[92:93]
""")
    for i in range(4):
        a(f"ds_write2_b32 v{64+i}, v{24+2*i}, v{25+2*i} offset0:0 offset1:1")
    a("s_waitcnt vmcnt(3)")
    a("s_mov_b64 exec, s[94:95]")
    for i in range(4, 8):
        a(f"ds_write2_b32 v{64+i}, v{24+2*i}, v{25+2*i} offset0:0 offset1:1")
    a(f"""
s_mov_b64 exec, -1
@S6
v_lshlrev_b32 v140, 8, v148
v_add_u32 v140, s{S_B}, v140
v_lshlrev_b32 v4, 8, v140
v_lshl_add_u32 v4, v3, 4, v4
s_lshl_b32 s40, s19, 7
v_add_u32 v4, s40, v4
s_mov_b32 s56, 0xffff0000
s_mov_b32 s57, 0x7fffffff
v_cmp_eq_u32 vcc, {N}, v140
v_mov_b32 v5, 0x7f000000
v_mov_b32 v6, 0x7f007f00
""")

    def near(o, hsrc, lo):
        return [f"v_and_b32 v{o}, s57, v{hsrc}",
                f"v_min_u32 v{o}, v5, v{o}",
                f"v_add_u32 v{o}, 0x8000, v{o}",
                f"v_sub_u32_e64 v{o}, v{o}, v{lo} clamp",
                f"v_and_or_b32 v{o}, v{o}, s56, v{lo}",
                f"v_bfi_b32 v{o}, s57, v{o}, v{hsrc}"]
    seqs = []
    for t in range(2):
        b, h, o, tm = TOT + 4 * t, TOT + 8 + 4 * t, 80 + 4 * t, 88 + 4 * t
        q = [f"v_mul_f32 v{b+i}, {NLOG2E:#x}, v{b+i}" for i in range(4)]
        q += [f"v_med3_f32 v{b+i}, v{b+i}, v5, -v5" for i in range(4)]
        q += [f"v_cvt_pk_bf16_f32 v{o}, v{b}, v{b+1}", f"v_cvt_pk_bf16_f32 v{o+1}, v{b+2}, v{b+3}"]
        q += [f"v_cndmask_b32 v{o}, v{o}, v6, vcc", f"v_cndmask_b32 v{o+1}, v{o+1}, v6, vcc"]
        q += [f"v_cvt_pk_bf16_f32 v{tm}, v{h}, v{h}", f"v_and_b32 v{tm}, 0xffff, v{tm}"]
        q += near(o + 2, h + 2, tm)
        q += [f"v_lshrrev_b32 v{tm}, 16, v{o+2}"]
        q += near(tm + 1, h + 1, tm)
        q += [f"v_lshrrev_b32 v{tm}, 16, v{tm+1}"]
        q += near(o + 3, h + 3, tm)
        seqs.append(q)
    pack = [z for xy in zip(*seqs) for z in xy]
    stores = [f"buffer_store_dwordx4 v[{80+4*t}:{83+4*t}], v4, s[28:31], 0 offen offset:{64*t} sc1" for t in range(2)]
    early = OPT.get("tabpos", "late") == "early"
    if early:
        for l in pack + stores:
            a(l)
    a(f"""
v_add_u32 v141, {L_WC}, v141
s_waitcnt vmcnt({2 if early else 0})
ds_write_b128 v61, v[48:51] offset:{L_W + 16384}
ds_write_b128 v61, v[52:55] offset:{L_W + 24576}
ds_write_b32 v141, v60
s_movk_i32 s14, {RECB//16 - 2048}
v_cmp_gt_u32_e64 s[14:15], s14, v0
v_add_u32 v62, {L_STAGE}, v61
s_movk_i32 s44, 0x2000
s_movk_i32 s45, 0x4000
s_movk_i32 s46, 0x6000
s_mov_b32 s47, 0x8000
s_waitcnt lgkmcnt(0)
@S7
s_barrier
@S8
""")
    for i in range(4):
        a(f"ds_read_b128 v[{8+4*i}:{11+4*i}], v62 offset:{8192*i}")
    a(f"""
s_mov_b64 exec, s[14:15]
ds_read_b128 v[24:27], v62 offset:32768
s_mov_b64 exec, -1
""")
    for i in range(4):
        a(f"s_waitcnt lgkmcnt({4-i})")
        so = "0" if i == 0 else f"s{43+i}"
        a(f"buffer_store_dwordx4 v[{8+4*i}:{11+4*i}], v61, s[88:91], {so} offen sc1")
    a(f"""
s_mov_b64 exec, s[14:15]
s_waitcnt lgkmcnt(0)
buffer_store_dwordx4 v[24:27], v61, s[88:91], s47 offen sc1
s_mov_b64 exec, -1
""")
    if not early:
        for l in pack + stores:
            a(l)
    a(f"""
v_mov_b32 v62, 0
global_load_dword v63, v62, s[96:97] sc1
@S9
v_lshl_add_u32 v144, v2, 2, v3
v_lshlrev_b32 v144, 1, v144
v_add_u32 v144, {L_WC}, v144
""")
    tr_reads(a, 142, L_W + 16384, 8)
    a(f"""
ds_read_u16 v76, v144
ds_read_u16 v77, v144 offset:128
ds_read_u16 v78, v144 offset:256
ds_read_u16 v79, v144 offset:384
s_mov_b32 s{S_MODE}, 0
s_mov_b32 s{S_CS}, {CS}
s_mov_b32 s{S_AM}, 0x22221111
s_mov_b32 s{S_AM+1}, 0x88884444
s_mov_b32 s{S_K}, 0x21800000
s_mov_b32 s{S_K+1}, 0x21800000
s_mov_b32 s6, {NLOG2E:#x}
s_mov_b32 s7, {NLOG2E:#x}
v_and_b32 v4, 1, v147
v_lshlrev_b32 v4, 4, v4
v_mov_b32 v140, 0x3f80
v_lshlrev_b32 v4, v4, v140
v_cmp_eq_u32 vcc, v3, v146
v_cmp_gt_u32_e64 s[40:41], 2, v147
v_cmp_le_u32_e64 s[42:43], 2, v147
v_lshlrev_b32 v{IDX[0]+1}, 4, v2
v_cndmask_b32 v4, 0, v4, vcc
v_lshlrev_b32 v{IDX[1]+1}, 4, v2
v_mov_b32 v140, {16*NB}
v_cndmask_b32_e64 v{AOP[0]+2}, 0, v4, s[40:41]
v_cndmask_b32_e64 v{AOP[1]+2}, 0, v4, s[40:41]
v_cndmask_b32_e64 v{AOP[0]+3}, 0, v4, s[42:43]
v_cndmask_b32_e64 v{AOP[1]+3}, 0, v4, s[42:43]
v_cndmask_b32_e64 v{VINC}, 0, v140, s[{S_AM}:{S_AM+1}]
s_movk_i32 s40, {US}
s_lshl_b32 s41, s19, 7
s_add_u32 s41, s41, {L_AP}
v_mad_u32_u24 v145, v148, s40, 0
v_lshl_add_u32 v145, v3, 4, v145
v_add_u32 v145, s41, v145
v_cmp_gt_u32_e64 s[14:15], 49, v148
s_waitcnt lgkmcnt(4)
""")
    tile_mfmas(a, 8, 112, TOT)
    a("s_waitcnt lgkmcnt(0)")
    for k in range(4):
        a(f"v_lshlrev_b32 v{76+k}, 16, v{76+k}")
    for k in range(4):
        a(f"v_mul_f32 v{76+k}, {NLOG2E:#x}, v{76+k}")
    a(f"v_cvt_pk_bf16_f32 v{CN}, v76, v77")
    a(f"v_cvt_pk_bf16_f32 v{CN+1}, v78, v79")
    a("v_mov_b32 v72, 4")
    a("s_mov_b64 exec, s[14:15]")
    a(f"ds_write_b128 v145, v[{TOT+8}:{TOT+11}] offset:{L_U - L_AP}")
    a(f"ds_write_b128 v145, v[{TOT+12}:{TOT+15}] offset:{L_U - L_AP + 64}")
    for i in range(0, 8, 2):
        a(f"v_pk_mul_f32 v[{TOT+i}:{TOT+i+1}], v[{TOT+i}:{TOT+i+1}], s[6:7]")
    a(f"""
ds_write_b128 v145, v[{TOT}:{TOT+3}]
ds_write_b128 v145, v[{TOT+4}:{TOT+7}] offset:64
s_mov_b64 exec, -1
s_lshl_b32 s15, s{S_B}, 3
v_lshl_add_u32 v4, v3, 11, s15
s_lshl_b32 s40, s3, 16
""")
    for k in range(1, 8):
        a(f"s_add_u32 s{40+k}, s40, {8192*k}")
    a(f"""
s_lshl_b32 s48, s3, 5
v_add_u32 v5, s48, v3
s_mov_b32 s49, {RECS}
v_mul_lo_u32 v5, v5, s49
v_mad_u32_u24 v5, v2, 12, v5
v_add_u32 v5, {REC_OFF - T_OFF}, v5
v_add_u32 v6, 16, v2
s_memrealtime s[50:51]
@S18
; every store of this wave has been acknowledged; the launch tag has arrived
s_waitcnt vmcnt(0)
K2_TAGW:
v_readfirstlane_b32 s12, v63
s_cmp_lg_u32 s12, 0
s_cbranch_scc0 K2_TAG_RETRY
K2_TAGOK:
s_mul_i32 s48, s12, 0x9e3779b1
s_and_b32 s48, s48, 0xf000f000
s_waitcnt lgkmcnt(0)
@S19
s_barrier
s_cmp_lg_u32 s3, 0
s_cbranch_scc1 K2_NOPUB
v_or_b32 v8, s48, v56
v_mov_b32 v9, s12
v_or_b32 v10, s48, v57
v_mov_b32 v11, s12
v_or_b32 v12, s48, v58
v_mov_b32 v13, s12
v_or_b32 v14, s48, v59
v_mov_b32 v15, s12
v_lshlrev_b32 v16, 5, v1
s_lshl_b32 s49, s2, 11
buffer_store_dwordx4 v[8:11], v16, s[32:35], s49 offen sc1
buffer_store_dwordx4 v[12:15], v16, s[32:35], s49 offen offset:16 sc1
K2_NOPUB:
""")
    lds_init(a)
    a(f"""
v_mov_b32 v50, s12
v_mov_b32 v51, s48
s_mov_b32 s49, 0xf000f000
s_waitcnt lgkmcnt(0)
s_barrier
@S23
K2_POLL:
""")
    for k in range(8):
        a(f"buffer_load_dwordx2 v[{PT+2*k}:{PT+2*k+1}], v4, s[32:35], s{40+k} offen {OPT['poll']}")
    a("v_mov_b32 v52, 0")
    for k in range(8):
        a(f"s_waitcnt vmcnt({7-k})")
        a(f"v_xor_b32 v53, v{PT+2*k}, v51")
        a(f"v_xor_b32 v54, v{PT+2*k+1}, v50")
        a(f"v_and_or_b32 v52, v53, s49, v52")
        a(f"v_and_b32 v{VTT+k}, 0x0fff0fff, v{PT+2*k}")
        a(f"v_or_b32 v52, v54, v52")
    a(f"""
v_cmp_ne_u32 vcc, 0, v52
s_cbranch_vccnz K2_POLL_RETRY
K2_POLLOK:
@S24
s_mov_b64 exec, 1
v_mov_b32 v53, 1
v_mov_b32 v54, 0
ds_add_u32 v54, v53 offset:{L_MATCH}
s_mov_b64 exec, -1
""")
    for k in range(8):
        a(f"v_mad_u32_u16 v{VRA+k}, v{VTT+k}, 12, v5")
        a(f"v_cmp_gt_u32_sdwa s[{64+2*k}:{65+2*k}], v{VTT+k}, v2 src0_sel:WORD_1 src1_sel:DWORD")
        if k < 7:
            a(f"v_add_u32 v5, {4*RECS}, v5")
        a(f"s_mov_b64 exec, s[{64+2*k}:{65+2*k}]")
        a(f"buffer_load_dwordx3 v[{8+4*k}:{10+4*k}], v{VRA+k}, s[32:35], 0 offen {OPT['ld2']}")
        a("s_mov_b64 exec, -1")
    for k in range(8):
        a(f"v_cmp_gt_u32_sdwa s[{80+2*k}:{81+2*k}], v{VTT+k}, v6 src0_sel:WORD_1 src1_sel:DWORD")
    for k in range(8):
        a(f"s_mov_b64 exec, s[{80+2*k}:{81+2*k}]")
        a(f"s_cbranch_execz K2_M1L{k}")
        a(f"buffer_load_dwordx3 v[{40+4*k}:{42+4*k}], v{VRA+k}, s[32:35], 0 offen offset:192 {OPT['ld2']}")
        a(f"K2_M1L{k}:")
    a("s_mov_b64 exec, -1")
    a("@S25")
    P = 0
    def A_(j):
        a(f"s_waitcnt vmcnt({7 - j + P})")
        a(f"s_mov_b64 exec, s[{64+2*j}:{65+2*j}]")
        place_atomic(a, 8 + 4 * j, VCA + j, 72)

    def W_(j, n):
        a(f"s_mov_b64 exec, s[{64+2*j}:{65+2*j}]")
        if n is not None:
            a(f"s_waitcnt lgkmcnt({n})")
        place_write(a, 8 + 4 * j, VCA + j)
    A_(0); A_(1); A_(2)
    for j in range(5):
        W_(j, (2, 4, 6, 6, 6)[j])
        A_(j + 3)
    W_(5, 6)
    a(f"s_waitcnt vmcnt({P})")
    a("@S26")
    if OPT.get("pfat") == "arr":
        a("s_mov_b64 exec, -1")
        a("v_mov_b32 v7, 0")
        a(f"ds_read_b32 v7, v7 offset:{L_MATCH}")
        a("s_waitcnt lgkmcnt(0)")
        a("v_readfirstlane_b32 s40, v7")
        a("s_cmp_lg_u32 s40, 8")
        a("s_cbranch_scc1 K2_NOPF")
        npf = int(OPT.get("npf", 512))
        a(f"""
s_lshr_b32 s40, s2, 3
s_mul_i32 s40, s40, {782*128}
v_lshl_add_u32 v7, v0, 7, s40
""")
        if npf < 512:
            a(f"v_cmp_gt_u32 vcc, {npf}, v0")
            a("s_mov_b64 exec, vcc")
        a(f"buffer_load_dword v{VPF}, v7, s[28:31], 0 offen {OPT['ldp']}")
        if npf > 512:
            a(f"v_add_u32 v7, 0x10000, v7")
            a(f"v_cmp_gt_u32 vcc, {npf - 512}, v0")
            a("s_mov_b64 exec, vcc")
            a(f"buffer_load_dword v{VPF}, v7, s[28:31], 0 offen {OPT['ldp']}")
    if OPT.get("pfat") == "arr":
        a("K2_NOPF:")
    for j in range(8):
        a(f"s_mov_b64 exec, s[{80+2*j}:{81+2*j}]")
        a(f"s_cbranch_execz K2_M1A{j}")
        place_atomic(a, 40 + 4 * j, VCA + 8 + j, 72)
        a(f"K2_M1A{j}:")
    W_(6, 0)
    W_(7, None)
    for j in range(8):
        a(f"s_mov_b64 exec, s[{80+2*j}:{81+2*j}]")
        a(f"s_cbranch_execz K2_M1W{j}")
        place_write(a, 40 + 4 * j, VCA + 8 + j)
        a(f"K2_M1W{j}:")
    a(f"""
s_mov_b64 exec, -1
v_max3_u32 v4, v{VTT}, v{VTT+1}, v{VTT+2}
v_max3_u32 v5, v{VTT+3}, v{VTT+4}, v{VTT+5}
v_max3_u32 v4, v4, v{VTT+6}, v{VTT+7}
v_max_u32 v4, v4, v5
v_lshrrev_b32 v{VMAXL}, 16, v4
v_cmp_lt_u32 vcc, 32, v{VMAXL}
s_cbranch_vccnz K2_LONG_ENTRY
K2_PLACED:
""")
    for i in range(0, 16, 2):
        a(f"v_pk_mov_b32 v[{TOT+i}:{TOT+i+1}], 0, 0")
    for p in range(NB):
        for i in range(2):
            b = stepbuf(p, i)
            a(f"v_pk_mov_b32 v[{b}:{b+1}], v[{CN}:{CN+1}], v[{CN}:{CN+1}] op_sel:[0,1]")
    a(f"""
s_waitcnt lgkmcnt(0)
@S27
s_barrier
@S28
""")
    if OPT.get("pfat") == "late":
        prefetch(a, 7, int(OPT["prefetch"]))
    a(f"""
K2_RANK:
v_lshlrev_b32 v4, 2, v1
ds_read_b32 v80, v4 offset:{L_CNT}
""")
    for i in range(1, 6):
        a(f"s_add_u32 s{40+i}, s3, {8*i}")
    a(f"""
v_cmp_gt_u32_e64 s[52:53], 48, v1
v_lshl_add_u32 v82, v1, 3, s3
v_mul_u32_u24 v86, {CS*4}, v82
v_mul_u32_u24 v87, {US}, v82
v_add_u32 v87, {L_AP}, v87
v_lshlrev_b32 v82, 2, v82
s_waitcnt lgkmcnt(0)
v_cmp_lt_u32 vcc, {CAP*4}, v80
v_lshl_add_u32 v81, v80, 4, v1
v_add_u32 v81, 1, v81
s_cbranch_vccnz K2_SLOW_ENTRY
v_cndmask_b32_e64 v81, 0, v81, s[52:53]
v_readlane_b32 s50, v80, 48
""")
    for i in range(6):
        a(f"v_readlane_b32 s{64+i}, v81, s{3 if i == 0 else 40+i}")
    a("s_add_u32 s51, s50, 28")
    for i in range(6):
        a(f"v_cmp_lt_u32_e64 s[{72+2*i}:{73+2*i}], s{64+i}, v81")
    a("s_lshr_b32 s51, s51, 5")
    for i in range(6):
        a(f"v_writelane_b32 v83, s{64+i}, {i}")
        a(f"s_bcnt1_i32_b64 s{72+2*i}, s[{72+2*i}:{73+2*i}]")
    a(f"""
s_max_u32 s51, s51, {MINPS}
s_cmp_eq_u32 s50, 0
s_cselect_b32 s50, 0, s51
s_lshl_b32 s50, s50, 1
""")
    for i in range(6):
        a(f"v_writelane_b32 v84, s{72+2*i}, {i}")
    a(f"""
v_lshrrev_b32 v83, 6, v83
v_add_u32 v84, 4, v84
v_lshlrev_b32 v85, 3, v84
v_lshlrev_b32 v88, 2, v84
s_mov_b64 exec, 63
ds_write_b64 v85, v[86:87] offset:{L_TS}
ds_write_b32 v88, v83 offset:{L_TC}
ds_write_b32 v82, v84 offset:{L_RK}
s_mov_b64 exec, 15
v_mul_u32_u24 v90, s50, v4
v_add_u32 v90, {48*CS*4}, v90
v_mov_b32 v91, {L_AP + 48*US}
v_mov_b32 v89, s50
v_lshlrev_b32 v5, 3, v1
ds_write_b64 v5, v[90:91] offset:{L_TS}
ds_write_b32 v4, v89 offset:{L_TC}
ds_write_b32 v4, v1 offset:{L_RK + 192}
s_mov_b64 exec, -1
v_lshlrev_b32 v4, 4, v2
v_cmp_gt_u32_e64 s[52:53], 13, v2
s_add_u32 s15, s3, 1
s_waitcnt lgkmcnt(0)
s_barrier
@S29
ds_read_b32 v80, v4 offset:{L_TC}
v_mov_b32 v84, 1
v_mov_b32 v85, 0
s_waitcnt lgkmcnt(0)
v_cmp_ne_u32 vcc, 0, v80
v_add_u32 v80, 1, v80
v_lshrrev_b32 v80, 1, v80
s_and_b64 s[44:45], vcc, s[52:53]
v_max_u32 v80, {MINPS}, v80
v_cndmask_b32_e64 v80, 0, v80, s[44:45]
v_mov_b32 v81, v80
""")
    scan(a, 81, steps16_only=True)
    a(f"""
s_nop 0
v_readlane_b32 s14, v81, 15
v_sub_u32 v82, v81, v80
s_cmp_gt_u32 s14, {MAXIT*8}
s_cbranch_scc1 K2_SLOW_ENTRY
s_mul_i32 s40, s14, s3
s_mul_i32 s41, s14, s15
s_lshr_b32 s40, s40, 3
s_lshr_b32 s41, s41, 3
s_sub_u32 s{S_IT}, s41, s40
s_cmp_eq_u32 s{S_IT}, 0
s_cbranch_scc1 K2_LOOP_DONE
v_cmp_ge_u32_e64 s[42:43], s40, v81
v_subrev_u32 v83, s40, v82
s_and_b32 s42, s42, 0x1fff
s_bcnt1_i32_b32 s42, s42
s_lshl_b32 s46, s42, 5
v_lshl_add_u32 v{VTK}, v3, 3, s46
v_and_b32 v{VTE}, 12, v2
v_lshl_add_u32 v{VTE}, v{VTE}, 1, s46
v_readlane_b32 s43, v82, s42
ds_read_b64 v[86:87], v{VTK} offset:{L_TS}
ds_read_b32 v{NXE}, v{VTE} offset:{L_TS}
ds_read_b64 v[{NX}:{NX+1}], v{VTK} offset:{L_TS + 32}
v_add_u32 v88, -1, v83
v_cmp_gt_u32 vcc, 63, v88
v_lshlrev_b64 v[84:85], v83, v[84:85]
s_and_b64 vcc, vcc, s[44:45]
s_sub_u32 s43, s40, s43
v_cndmask_b32 v84, 0, v84, vcc
v_cndmask_b32 v85, 0, v85, vcc
s_lshl_b32 s45, s43, 3
s_add_u32 s45, s45, {L_KEYS}
""")
    for d in (1, 2, 4, 8):
        a(f"v_or_b32_dpp v84, v84, v84 row_shr:{d} row_mask:0xf bank_mask:0xf")
        a(f"v_or_b32_dpp v85, v85, v85 row_shr:{d} row_mask:0xf bank_mask:0xf")
        a("s_nop 0")
    a(f"""
s_lshl_b32 s47, s43, 4
s_add_u32 s47, s47, {L_EA}
v_readlane_b32 s{S_MASK}, v84, 15
v_readlane_b32 s{S_MASK+1}, v85, 15
s_bfm_b64 s[48:49], s{S_IT}, 0
s_waitcnt lgkmcnt(1)
v_add_u32 v{VK}, s45, v86
v_add_u32 v87, v87, v{IDX[0]+1}
s_and_b64 s[{S_MASK}:{S_MASK+1}], s[{S_MASK}:{S_MASK+1}], s[48:49]
ds_read_b32 v{IDX[0]}, v{VK}
ds_read_b32 v{IDX[1]}, v{VK} offset:4
ds_read_b128 v[{CA}:{CA+3}], v87
v_lshl_add_u32 v{VE}, v{NXE}, 1, s47
v_mov_b32 v4, {L_ZERO}
""")
    TI = {1: 80, 2: 96, 3: 100, 4: 104, 5: 108}
    for p in range(1, NB):
        a(f"v_mov_b32 v{TI[p]+1}, v{IDX[0]+1}")
        a(f"v_mov_b32 v{TI[p]+3}, v{IDX[0]+1}")
    a(f"v_cndmask_b32_e64 v{VE}, v4, v{VE}, s[{S_AM}:{S_AM+1}]")
    a("s_waitcnt lgkmcnt(3)")
    for p in range(1, NB):
        a(f"""
s_bitcmp1_b32 s{S_MASK}, {p}
s_cbranch_scc0 K2_PK{p}
""")
        ev_k(a, 8 * p)
        a(f"K2_PK{p}:")
        a(f"ds_read_b32 v{TI[p]}, v{VK} offset:{8*p}")
        a(f"ds_read_b32 v{TI[p]+2}, v{VK} offset:{8*p+4}")
    a(f"""
ds_read_b64 v[{AOP[0]}:{AOP[0]+1}], v{VE}
ds_read_b64 v[{AOP[1]}:{AOP[1]+1}], v{VE} offset:8
s_lshr_b64 s[{S_CM}:{S_CM+1}], s[{S_MASK}:{S_MASK+1}], 3
s_lshr_b64 s[48:49], s[{S_MASK}:{S_MASK+1}], {NB+1}
s_or_b64 s[{S_CM}:{S_CM+1}], s[{S_CM}:{S_CM+1}], s[48:49]
s_mov_b32 s12, s{S_MASK}
s_bitset1_b64 s[{S_MASK}:{S_MASK+1}], s{S_IT}
s_lshr_b64 s[48:49], s[{S_MASK}:{S_MASK+1}], 1
s_or_b64 s[{S_CM}:{S_CM+1}], s[{S_CM}:{S_CM+1}], s[48:49]
s_waitcnt lgkmcnt(2)
""")
    for l in gathers(0, IDX[0], IDX[1]):
        a(l)
    NG0 = int(OPT.get("ng0", 2))
    for p in range(1, NG0):
        for l in gathers(p, TI[p], TI[p] + 2):
            a(l)
    if OPT["prio"] == "1":
        t1, t2, t3 = [int(OPT.get(f"thr{i}", d)) for i, d in ((1, 24), (2, 12), (3, 4))]
        a(f"""
s_setprio 3
s_mov_b32 s{S_PR}, 3
s_mov_b64 s[48:49], {0}
s_bitset1_b64 s[48:49], {63 - t1}
s_bitset1_b64 s[48:49], {63 - t2}
s_bitset1_b64 s[48:49], {63 - t3}
s_sub_u32 s46, 63, s{S_IT}
s_lshr_b64 s[48:49], s[48:49], s46
s_or_b64 s[{S_CM}:{S_CM+1}], s[{S_CM}:{S_CM+1}], s[48:49]
s_mov_b64 s[54:55], s[48:49]
""")
    a(f"""
s_ff1_i32_b64 s{S_CNT}, s[{S_CM}:{S_CM+1}]
v_lshlrev_b32 v5, 9, v3
v_lshl_add_u32 v5, v2, 4, v5
s_lshl_b32 s45, s42, 11
s_add_u32 s45, s45, {L_ACC}
s_add_u32 s46, s45, 2048
v_add_u32 v{VFN}, s46, v5
s_cmp_eq_u32 s43, 0
s_cbranch_scc1 K2_P2
s_lshl_b32 s45, s3, 11
s_add_u32 s45, s45, {L_EXT}
s_lshl_b32 s46, 1, s3
s_lshl_b32 s47, s42, 2
v_mov_b32 v6, s46
v_mov_b32 v7, s47
s_mov_b64 exec, 1
ds_or_b32 v7, v6 offset:{L_MASK}
s_mov_b64 exec, -1
K2_P2:
v_add_u32 v{VF}, s45, v5
""")
    for i in range(0, 8, 2):
        a(f"v_pk_mov_b32 v[{DEN+i}:{DEN+i+1}], 0, 0")
    a(f"""
v_add_u32 v{VK}, {8*NB}, v{VK}
s_bitcmp1_b32 s12, {NB}
s_cbranch_scc0 K2_PK{NB}
""")
    ev_k(a, 0)
    a(f"""
K2_PK{NB}:
v_mov_b32 v5, 32
@S10
s_waitcnt vmcnt({2*NG0-2}) lgkmcnt(0)
@S15
""")
    for l in mfmas(0):
        a(l)
    for p in range(NG0, 4):
        for l in gathers(p, TI[p], TI[p] + 2):
            a(l)
    a(f"""
s_bitcmp1_b32 s12, 1
s_cbranch_scc0 K2_PE1
s_nop 2
""")
    ev_e(a, 16)
    a(f"""
K2_PE1:
ds_read_b64 v[{AOP[0]}:{AOP[0]+1}], v{VE} offset:16
ds_read_b64 v[{AOP[1]}:{AOP[1]+1}], v{VE} offset:24
v_cndmask_b32_e64 v5, 0, v5, s[{S_AM}:{S_AM+1}]
s_nop 3
""")
    for i in range(8):
        a(f"v_exp_f32 v{Y[0]+i}, v{Y[0]+i}")
    a(f"v_add_u32 v{VE}, v5, v{VE}")
    a(f"s_waitcnt vmcnt(4) lgkmcnt(0)")
    for l in mfmas(1):
        a(l)
    for p in range(4, NB):
        for l in gathers(p, TI[p], TI[p] + 2):
            a(l)
    a(f"""
s_bitcmp1_b32 s12, 2
s_cbranch_scc0 K2_PE2
s_nop 2
""")
    ev_e(a, 0)
    a(f"""
K2_PE2:
@C20
s_nop 4
K2_LOOP:
""")
    order = ORDERS[OPT["order"]].split()
    for k in range(NB):
        d = ops(k)
        for x in order:
            ex = OPT.get("exp")
            if ex == "nom" and x in ("N0", "N1"): continue
            if ex == "nold" and x in ("L0", "L1"): continue
            if ex == "notrans" and x[0] in "ER": continue
            a(d[x])
        if k == NB - 1:
            a("s_cbranch_scc0 K2_LOOP")
        else:
            a(f"s_cbranch_scc1 K2_EV{k}")
            a(f"K2_RET{k}:")
    for k in list(range(NB - 1, NB)) + list(range(NB - 1)):
        kn = (k + 1) % NB
        ret = f"K2_RET{k}" if k < NB - 1 else "K2_LOOP"
        a(f"""
K2_EV{k}:
s_ff1_i32_b64 s14, s[{S_CM}:{S_CM+1}]
s_bitset0_b64 s[{S_CM}:{S_CM+1}], s14
s_ff1_i32_b64 s{S_CNT}, s[{S_CM}:{S_CM+1}]
s_lshr_b64 s[40:41], s[{S_MASK}:{S_MASK+1}], s14
s_sub_u32 s{S_CNT}, s{S_CNT}, s14
s_sub_u32 s{S_CNT}, s{S_CNT}, 1
s_bitcmp1_b32 s40, 1
s_cbranch_scc0 K2_EV{k}A
ds_write_b128 v{VF}, v[{DEN}:{DEN+3}]
ds_write_b128 v{VF}, v[{NUM}:{NUM+3}] offset:256
s_lshr_b64 s[42:43], s[40:41], 2
s_cbranch_scc0 K2_LOOP_DONE
v_mov_b32 v{VF}, v{VFN}
v_add_u32 v{VFN}, 2048, v{VFN}
""")
        for i in range(0, 8, 2):
            a(f"v_pk_mov_b32 v[{DEN+i}:{DEN+i+1}], 0, 0")
        a(f"""
K2_EV{k}A:
s_bitcmp1_b32 s40, 3
s_cbranch_scc0 K2_EV{k}B
""")
        ev_e(a, 16 * kn)
        a(f"""
K2_EV{k}B:
s_bitcmp1_b32 s40, {NB+1}
s_cbranch_scc0 K2_EV{k}C
""")
        ev_k(a, 8 * kn)
        a(f"K2_EV{k}C:")
        if OPT["prio"] == "1":
            a(f"""
s_bitcmp1_b64 s[54:55], s14
s_cbranch_scc0 {ret}
s_sub_u32 s{S_PR}, s{S_PR}, 1
s_setprio 0
s_cmp_eq_u32 s{S_PR}, 0
s_cbranch_scc1 {ret}
s_setprio 1
s_cmp_eq_u32 s{S_PR}, 1
s_cbranch_scc1 {ret}
s_setprio 2
""")
        a(f"s_branch {ret}")
    a(f"""
K2_LOOP_DONE:
@C21
@S11
s_setprio 0
v_lshrrev_b32 v80, 3, v0
v_min_u32 v81, 48, v80
v_lshlrev_b32 v82, 2, v80
v_lshlrev_b32 v83, 2, v81
v_and_b32 v84, 7, v0
v_lshlrev_b32 v85, 5, v84
v_cmp_gt_u32_e64 s[40:41], 52, v80
s_movk_i32 s14, {US}
v_mad_u32_u24 v88, v81, s14, v85
v_add_u32 v88, {L_U}, v88
v_mul_u32_u24 v89, {XSS}, v81
v_lshl_add_u32 v89, v84, 4, v89
v_add_u32 v89, {L_XS}, v89
ds_read_b32 v86, v82 offset:{L_RK}
ds_read_b32 v87, v83 offset:{L_CNT}
ds_read_b128 v[112:115], v88
ds_read_b128 v[116:119], v88 offset:16
ds_read_b128 v[{CA}:{CA+3}], v89
s_waitcnt lgkmcnt(0)
v_cmp_ne_u32 vcc, 0, v87
v_and_b32 v90, -4, v86
v_lshl_add_u32 v91, v86, 9, v85
v_add_u32 v91, {L_ACC}, v91
v_and_b32 v92, 3, v86
v_lshl_add_u32 v92, v92, 9, v85
v_add_u32 v92, {L_EXT}, v92
s_barrier
@S12
s_and_b64 exec, vcc, s[40:41]
s_cbranch_execz K2_COMB_DONE
ds_read_b32 v90, v90 offset:{L_MASK}
K2_COMB_X:
ds_read_b128 v[96:99], v91
ds_read_b128 v[100:103], v91 offset:16
ds_read_b128 v[104:107], v91 offset:256
ds_read_b128 v[108:111], v91 offset:272
s_waitcnt lgkmcnt(4)
v_ffbl_b32 v91, v90
v_cmp_ne_u32 vcc, 0, v90
v_add_u32 v93, -1, v90
v_and_b32 v90, v90, v93
v_lshl_add_u32 v91, v91, 11, v92
s_waitcnt lgkmcnt(0)
""")
    for i in range(0, 16, 2):
        a(f"v_pk_add_f32 v[{TOT+i}:{TOT+i+1}], v[{TOT+i}:{TOT+i+1}], v[{96+i}:{97+i}]")
    a(f"""
s_and_b64 exec, exec, vcc
s_cbranch_execnz K2_COMB_X
K2_COMB_DONE:
s_mov_b64 exec, -1
s_cmp_lg_u32 s{S_MODE}, 0
s_cbranch_scc1 K2_SLOW_NEXT
K2_FINAL:
s_cmp_lg_u32 s3, 6
s_cbranch_scc1 K2_FIN2
""")
    for i in range(16):
        a(f"v_add_f32_dpp v{TOT+i}, v{TOT+i}, v{TOT+i} row_ror:8 row_mask:0xf bank_mask:0xf")
    for i in range(16):
        a(f"ds_swizzle_b32 v{96+i}, v{TOT+i} offset:0x401F")
    a("s_waitcnt lgkmcnt(0)")
    for i in range(0, 16, 2):
        a(f"v_pk_add_f32 v[{TOT+i}:{TOT+i+1}], v[{TOT+i}:{TOT+i+1}], v[{96+i}:{97+i}]")
    eps = struct.unpack("<I", struct.pack("<f", 1e-6 * 2.0**60))[0]
    a(f"""
K2_FIN2:
s_mov_b32 s14, {eps:#x}
s_mov_b32 s15, {eps:#x}
v_lshlrev_b32 v80, 8, v80
v_add_u32 v80, s{S_B}, v80
v_lshlrev_b32 v80, 7, v80
v_lshl_add_u32 v80, v84, 4, v80
""")
    for i in range(0, 8, 2):
        a(f"v_pk_add_f32 v[{TOT+i}:{TOT+i+1}], v[{TOT+i}:{TOT+i+1}], s[14:15]")
    for i in range(8):
        a(f"v_rcp_f32 v{TOT+i}, v{TOT+i}")
    for i in range(4):
        a(f"v_lshlrev_b32 v{96+2*i}, 16, v{CA+i}")
        a(f"v_and_b32 v{97+2*i}, 0xffff0000, v{CA+i}")
    for i in range(0, 8, 2):
        a(f"v_pk_fma_f32 v[{112+i}:{113+i}], v[{TOT+8+i}:{TOT+9+i}], v[{TOT+i}:{TOT+i+1}], v[{112+i}:{113+i}]")
    for i in range(8):
        a(f"v_max_f32 v{112+i}, 0, v{112+i}")
    for i in range(0, 8, 2):
        a(f"v_pk_add_f32 v[{96+i}:{97+i}], v[{96+i}:{97+i}], v[{112+i}:{113+i}]")
    for i in range(4):
        a(f"v_cvt_pk_bf16_f32 v{96+i}, v{96+2*i}, v{97+2*i}")
    a(f"""
buffer_store_dwordx4 v[96:99], v80, s[36:39], 0 offen {OPT['st_out']}
@S13
@Wvmcnt(0)
@S14
@Vs{S_IT},22
@OUT
K2_END:
s_endpgm
K2_TAG_RETRY:
s_waitcnt lgkmcnt(0)
s_memrealtime s[52:53]
s_sleep 4
global_load_dword v63, v62, s[96:97] sc1
s_waitcnt vmcnt(0) lgkmcnt(0)
s_sub_u32 s52, s52, s50
s_cmp_lt_u32 s52, 0x400000
s_cbranch_scc1 K2_TAGW
s_branch K2_TAGOK
K2_POLL_RETRY:
s_memrealtime s[52:53]
s_sleep {OPT['sleep']}
s_waitcnt lgkmcnt(0)
s_sub_u32 s52, s52, s50
s_cmp_lt_u32 s52, 0x400000
s_cbranch_scc1 K2_POLL
""")
    for k in range(8):
        a(f"v_cndmask_b32 v{VTT+k}, v{VTT+k}, v62, vcc")
    a(f"""
s_branch K2_POLLOK
K2_LONG_ENTRY:
s_mov_b32 s14, 32
K2_LONG:
v_add_u32 v6, s14, v2
s_mul_i32 s15, s14, 12
""")
    for k in range(8):
        a(f"""
s_mov_b64 exec, -1
v_cmp_gt_u32_sdwa vcc, v{VTT+k}, v6 src0_sel:WORD_1 src1_sel:DWORD
s_and_saveexec_b64 s[40:41], vcc
s_cbranch_execz K2_LONG_S{k}
buffer_load_dwordx3 v[80:82], v{VRA+k}, s[32:35], s15 offen {OPT['ld2']}
s_waitcnt vmcnt(0)
""")
        place_atomic(a, 80, 4, 72)
        a("s_waitcnt lgkmcnt(0)")
        place_write(a, 80, 4)
        a(f"K2_LONG_S{k}:")
    a(f"""
s_mov_b64 exec, -1
s_add_u32 s14, s14, 16
v_cmp_lt_u32 vcc, s14, v{VMAXL}
s_cbranch_vccnz K2_LONG
s_branch K2_PLACED
K2_SLOW_ENTRY:
v_mov_b32 v4, 0
ds_max_u32 v4, v{VMAXL} offset:{L_MAXL}
s_waitcnt lgkmcnt(0)
s_barrier
ds_read_b32 v5, v4 offset:{L_MAXL}
s_mov_b32 s{S_MODE}, 1
s_mov_b32 s{S_I}, 0
s_mov_b32 s{S_MO}, 0
s_waitcnt lgkmcnt(0)
v_readfirstlane_b32 s{S_ML}, v5
s_branch K2_SLOW_BATCH
K2_SLOW_NEXT:
s_add_u32 s{S_I}, s{S_I}, 1
s_cmp_lt_u32 s{S_I}, 64
s_cbranch_scc1 K2_SLOW_BATCH
s_mov_b32 s{S_I}, 0
s_add_u32 s{S_MO}, s{S_MO}, 16
s_cmp_ge_u32 s{S_MO}, s{S_ML}
s_cbranch_scc1 K2_FINAL
K2_SLOW_BATCH:
s_waitcnt vmcnt(0) lgkmcnt(0)
s_barrier
""")
    txt = Asm(0, 0)
    lds_init(txt)
    t = txt.text()
    for r in range(49, 39, -1):
        t = t.replace(f"v{r}", f"v{r+40}")
    t = t.replace("v[40:43]", "v[80:83]").replace("v[44:47]", "v[84:87]")
    a(t)
    a(f"""
v_mov_b32 v90, 4
s_waitcnt lgkmcnt(0)
s_barrier
s_cmp_lg_u32 s3, 0
s_cbranch_scc1 K2_SLOW_S
s_lshl_b32 s14, s{S_I}, 2
v_add_u32 v7, s14, v3
s_lshl_b32 s15, s{S_B}, 3
v_lshl_add_u32 v4, v7, 11, s15
buffer_load_dword v5, v4, s[32:35], 0 offen {OPT['poll']}
s_mov_b32 s15, {RECS}
v_mul_lo_u32 v7, v7, s15
v_add_u32 v6, s{S_MO}, v2
v_mad_u32_u24 v7, v6, 12, v7
v_add_u32 v7, {REC_OFF - T_OFF}, v7
s_waitcnt vmcnt(0)
v_and_b32 v5, 0x0fff0fff, v5
v_mad_u32_u16 v4, v5, 12, v7
v_cmp_gt_u32_sdwa vcc, v5, v6 src0_sel:WORD_1 src1_sel:DWORD
s_and_saveexec_b64 s[40:41], vcc
s_cbranch_execz K2_SLOW_S
buffer_load_dwordx3 v[80:82], v4, s[32:35], 0 offen {OPT['ld2']}
s_waitcnt vmcnt(0)
""")
    place_atomic(a, 80, 4, 90)
    a("s_waitcnt lgkmcnt(0)")
    place_write(a, 80, 4)
    a("""
K2_SLOW_S:
s_mov_b64 exec, -1
s_waitcnt lgkmcnt(0)
s_barrier
s_branch K2_RANK
""")
    return a.text()


def desc(name, vgpr, sgpr):
    return f""".amdhsa_kernel {name}
  .amdhsa_next_free_vgpr {vgpr}
  .amdhsa_next_free_sgpr {sgpr}
  .amdhsa_accum_offset {(vgpr + 3) // 4 * 4}
  .amdhsa_group_segment_fixed_size 0
  .amdhsa_kernarg_size 96
  .amdhsa_user_sgpr_count 2
  .amdhsa_user_sgpr_kernarg_segment_ptr 1
  .amdhsa_system_sgpr_workgroup_id_x 1
.end_amdhsa_kernel
"""


HEADER = open("standalone__edge_featured_mpnn_gatedgcn__graph.s.ref").read().split("; Override launch")[0]


def main():
    out = HEADER
    out += f"; @launch grid=(256,1,1) block=(512,1,1) lds={K2_LDS}\n"
    out += '.amdgcn_target "amdgcn-amd-amdhsa--gfx950"\n.text\n'
    out += f".globl {KNAME}\n.p2align 8\n.type {KNAME},@function\n" + k2()
    out += '.section .rodata,"a"\n.p2align 6\n' + desc(KNAME, K2_VGPR, 101 if STAMPS else 98)
    open(sys.argv[1], "w").write(out)


main()
```

```python
import sys
import struct
from math import gcd

N = 12500
E = 800000
QCH = 782
QH = QCH // 2
CH = QCH * 4
NQ = E // 4
RECB = CH * 12
RECS = 37632
TAB_ROWS = N + 1
TAB_BYTES = TAB_ROWS * 256
T_OFF = 0x310000
T2_REL = 0x80000
REC_REL = 0x81000
TR_BYTES = REC_REL + 256 * RECS
BIG = 0x40000000
NLOG2E = 0xbfb8aa3b
CAP = 128
CS = 132
XSS = 144
US = 272

OPT = dict(packpos="b", gs="2", nb="", prio="1", order="", npf="352", pfs="128", sleep="2", ng0="2", st_out="nt", cadd="1")
for a_ in sys.argv[2:]:
    k_, v_ = a_.split("=")
    OPT[k_] = v_
STAMPS = bool(OPT.get("stamps"))
GS = int(OPT["gs"])
NB = int(OPT["nb"] or (6 if GS == 2 else 4))
UNR = NB * 2 // gcd(NB, 2)
MINPS = NB + 1
MAXIT = 62
KEXP = 60 if GS == 2 else 40
KBITS = (127 - KEXP) << 23
DBG_OFF = 0x1000000
KNAME = "standalone__edge_featured_mpnn_gatedgcn__graph_kernel"

L_CNT = 0
L_MASK = 256
L_MAXL = 324
L_ACKS = 328
L_ZERO = 384
L_TS = 640
L_TC = 1536
L_RK = 1792
L_HIST, L_START = 0, 1024
L_EA = 2048
EA_BYTES = 49 * CS * 8 + 32
L_KEYS = L_EA + EA_BYTES
KEY_BYTES = 49 * CS * 4 + 16
L_ACC = L_KEYS + KEY_BYTES
L_EXT = L_ACC + 52 * 512
L_STAGE = L_ACC
L_AP = L_EXT + 8 * 2048
L_U = L_AP + 49 * US
L_XS = L_U + 49 * US
L_WC = L_XS + 64 * XSS
LDS = L_WC + 512
assert 8 * GS * UNR + 8 <= L_TS - L_ZERO

_nv = [8]


def valloc(n, align=2):
    _nv[0] = (_nv[0] + align - 1) // align * align
    r = _nv[0]
    _nv[0] += n
    return r


GB = valloc(6 * GS * NB)
Y = (valloc(4 * GS), valloc(4 * GS))
HL = valloc(2 * GS)
P2, MM, SA, UU = valloc(4), valloc(4), valloc(4), valloc(4)
DEN = valloc(8)
NUM = DEN + 4
_nv[0] = max(_nv[0], 128)
AOP = [valloc(4) for _ in range(GS)]
CA, CN = valloc(4), valloc(4)
IDX = [valloc(2) for _ in range(GS)]
NX = valloc(2)
VK, VE, VF, VFN, VTK, VTE, NXE, VINC = [valloc(1, 1) for _ in range(8)]
TOT = valloc(16)
VTT = valloc(8)
VRA = valloc(8)
VCA = valloc(16)
PT = VCA
T2R = valloc(8)
VMAXL, VPF, VFOUR, VZ = [valloc(1, 1) for _ in range(4)]
VST = valloc(2)
NVGPR = _nv[0]
assert NVGPR <= 256, NVGPR
X0 = Y[0]
assert NUM + 4 - X0 >= 40

S_IT, S_MODE, S_I, S_MO, S_ML, S_CNT = 4, 5, 6, 7, 8, 9
S_K = 10
S_RAW = 12
S_B = 13
S_CM = 56
S_PR = 58
S_CS = 59
S_MASK = 60
S_AM = 62
S_TAG, S_TAG2, S_T2OK = 96, 97, 19


def stepbuf(p, i):
    return GB + 6 * (GS * (p % NB) + i)


def recset(j):
    return GB + 6 * j + 2 if j < GS * NB else X0 + 4 * (j - GS * NB)


class Asm:
    def __init__(self):
        self.L = []

    def __call__(self, s):
        for l in s.strip("\n").split("\n"):
            l = l.strip()
            if not l:
                continue
            if l.startswith("@"):
                if STAMPS:
                    self.special(l)
                continue
            self.L.append(l if l.endswith(":") else "    " + l)

    def special(self, l):
        if l.startswith("@S") or l.startswith("@C"):
            self(f"{'s_memtime' if l[1] == 'C' else 's_memrealtime'} s[98:99]")
            self("s_waitcnt lgkmcnt(0)")
            self(f"v_writelane_b32 v{VST}, s98, {int(l[2:])}")
        elif l.startswith("@W"):
            self("s_waitcnt " + l[2:])
        elif l.startswith("@V"):
            r, i = l[2:].split(",")
            self(f"v_writelane_b32 v{VST}, {r}, {i}")
        elif l.startswith("@OUT"):
            self(f"""
s_mov_b64 exec, -1
s_lshl_b32 s100, s2, 4
s_add_u32 s100, s100, s3
s_lshl_b32 s100, s100, 8
s_add_u32 s100, s100, {DBG_OFF + 0x100000:#x}
v_and_b32 v{VST+1}, 63, v0
v_lshl_add_u32 v{VST+1}, v{VST+1}, 2, s100
global_store_dword v{VST+1}, v{VST}, s[16:17]
""")

    def text(self):
        return "\n".join(self.L) + "\n"


def pr(r):
    return f"v[{r}:{r+1}]"


def q4(r):
    return f"v[{r}:{r+3}]"


def srd(a, d, lo, hi, nbytes, stride=0):
    a(f"s_mov_b32 s{d}, s{lo}")
    a(f"s_and_b32 s{d+1}, s{hi}, 0xffff")
    if stride:
        a(f"s_or_b32 s{d+1}, s{d+1}, {stride << 16:#x}")
    a(f"s_mov_b32 s{d+2}, {nbytes}")
    a(f"s_mov_b32 s{d+3}, 0x20000")


def scan(a, v, row_only=False, fill=()):
    fill = list(fill)
    steps = [f"row_shr:{d} row_mask:0xf" for d in (1, 2, 4, 8)]
    if not row_only:
        steps += ["row_bcast:15 row_mask:0xa", "row_bcast:31 row_mask:0xc"]
    for st in steps:
        if fill:
            a(fill.pop(0))
            a("s_nop 0")
        else:
            a("s_nop 1")
        a(f"v_add_u32_dpp v{v}, v{v}, v{v} {st} bank_mask:0xf")


SDWA_B0 = "dst_sel:DWORD dst_unused:UNUSED_PAD src0_sel:DWORD src1_sel:BYTE_0"


def tr_reads(a, vaddr, base, r0):
    for mat in range(2):
        for t in range(2):
            for s in range(2):
                r = r0 + 16 * mat + 8 * t + 4 * s
                o = base + mat * 8192 + s * 4096
                a(f"ds_read_b64_tr_b16 {pr(r)}, v{vaddr[t]} offset:{o}")
                a(f"ds_read_b64_tr_b16 {pr(r+2)}, v{vaddr[t]} offset:{o + 512}")


def tile_mfmas(a, r0, x0, d0):
    for s in range(2):
        for mat in range(2):
            for t in range(2):
                f = r0 + 16 * mat + 8 * t + 4 * s
                d = d0 + 8 * mat + 4 * t
                c = "0" if s == 0 else q4(d)
                a(f"v_mfma_f32_16x16x32_bf16 {q4(d)}, {q4(f)}, {q4(x0+4*s)}, {c}")


def slots_init(a, r, small):
    for i in range(4):
        a(f"v_mov_b32 v{r+i}, 0")
    for i in range(4):
        a(f"v_mov_b32 v{r+4+i}, {N}")
    z0 = 0 if small else L_EA
    a(f"v_lshlrev_b32 v{r+8}, 4, v0")
    a(f"v_add_u32 v{r+9}, {L_KEYS}, v{r+8}")
    nz, nk = (L_KEYS - z0) // 16, KEY_BYTES // 16
    for i in range(nz // 512):
        a(f"ds_write_b128 v{r+8}, {q4(r)} offset:{z0 + 8192*i}")
    for i in range(nk // 512):
        a(f"ds_write_b128 v{r+9}, {q4(r+4)} offset:{8192*i}")
    for rem, reg, data, off in sorted([(nz % 512, r + 8, r, z0 + 8192 * (nz // 512)), (nk % 512, r + 9, r + 4, 8192 * (nk // 512))], reverse=True):
        a(f"v_cmp_gt_u32 vcc, {rem}, v0")
        a("s_mov_b64 exec, vcc")
        a(f"ds_write_b128 v{reg}, {q4(data)} offset:{off}")
    a("s_mov_b64 exec, -1")


def place_atomic(a, r, ca):
    a(f"v_and_b32 v{ca}, 0xfc, v{r+2}")
    a(f"ds_add_rtn_u32 v{r+3}, v{ca}, v{VFOUR} offset:{L_CNT}")


def place_write(a, r, ca):
    a(f"v_min_u32 v{r+3}, {CAP*4}, v{r+3}")
    a(f"v_mad_u32_u24 v{ca}, v{ca}, s{S_CS}, v{r+3}")
    a(f"v_lshrrev_b32 v{r+2}, 8, v{r+2}")
    a(f"v_add_u32 v{r+3}, v{ca}, v{ca}")
    a(f"ds_write_b32 v{ca}, v{r+2} offset:{L_KEYS}")
    a(f"ds_write_b64 v{r+3}, {pr(r)} offset:{L_EA}")


def ev_k(a, sub):
    a(f"""
v_add_u32 v{VK}, {L_KEYS - sub}, v{NX}
v_add_u32 v4, v{NX+1}, v{IDX[0]+1}
v_add_u32 v{VTK}, 32, v{VTK}
v_add_u32 v{VTE}, 32, v{VTE}
ds_read_b128 {q4(CN)}, v4
ds_read_b32 v{NXE}, v{VTE} offset:{L_TS}
ds_read_b64 {pr(NX)}, v{VTK} offset:{L_TS + 32}
""")


def ev_e(a, sub):
    a(f"""
v_lshlrev_b32 v{VE}, 1, v{NXE}
v_add_u32 v{VE}, {L_EA - sub}, v{VE}
v_mov_b32 v4, {L_ZERO}
v_pk_mov_b32 {pr(CA)}, {pr(CN)}, {pr(CN)} op_sel:[0,1]
v_pk_mov_b32 {pr(CA+2)}, {pr(CN+2)}, {pr(CN+2)} op_sel:[0,1]
v_cndmask_b32_e64 v{VE}, v4, v{VE}, s[{S_AM}:{S_AM+1}]
""")


def gathers(p, idx):
    return [f"buffer_load_dwordx4 {q4(stepbuf(p, i) + 2)}, {pr(idx[i])}, s[24:27], 0 idxen offen sc1" for i in range(GS)]


def mfmas(p):
    y = Y[p & 1]
    return [f"v_mfma_f32_16x16x32_bf16 {q4(y+4*i)}, {q4(AOP[i])}, {q4(stepbuf(p, i))}, {q4(CA)}" for i in range(GS)]


def ops(k):
    y, yn = Y[k & 1], Y[1 - (k & 1)]
    b = [stepbuf(k, i) + 4 for i in range(GS)]
    sk = f"s[{S_K}:{S_K+1}]"
    d = {}
    for i in range(4 * GS):
        d[f"E{i}"] = f"v_exp_f32 v{yn+i}, v{yn+i}"
    for i in range(2 * GS):
        if OPT["cadd"] == "1":
            d[f"C{i}"] = f"v_pk_add_f32 {pr(y+2*i)}, {pr(y+2*i)}, {sk} clamp"
        else:
            d[f"C{i}"] = f"v_pk_fma_f32 {pr(y+2*i)}, {pr(y+2*i)}, {sk}, {sk} clamp"
    for i in range(4):
        d[f"R{i}"] = f"v_rcp_f32 v{MM+i}, v{MM+i}"
    for i in range(2):
        p = [pr(y + 4 * j + 2 * i) for j in range(GS)]
        h = [pr(HL + 2 * j) if i == 0 else pr(b[j]) for j in range(GS)]
        m, s, u, p2 = pr(MM + 2 * i), pr(SA + 2 * i), pr(UU + 2 * i), pr(P2 + 2 * i)
        d[f"m{i}"] = f"v_pk_mul_f32 {m if GS == 2 else p2}, {p[0]}, {p[1]}"
        d[f"a{i}"] = f"v_pk_add_f32 {s}, {p[0]}, {p[1]}"
        d[f"g{i}"] = f"v_pk_mul_f32 {u}, {p[1]}, {h[0]}"
        d[f"h{i}"] = f"v_pk_fma_f32 {u}, {p[0]}, {h[1]}, {u}"
        if GS == 3:
            d[f"M{i}"] = f"v_pk_mul_f32 {m}, {p2}, {p[2]}"
            d[f"s{i}"] = f"v_pk_fma_f32 {s}, {s}, {p[2]}, {p2}"
            d[f"i{i}"] = f"v_pk_mul_f32 {u}, {u}, {p[2]}"
            d[f"j{i}"] = f"v_pk_fma_f32 {u}, {p2}, {h[2]}, {u}"
        d[f"d{i}"] = f"v_pk_fma_f32 {pr(DEN+2*i)}, {s}, {m}, {pr(DEN+2*i)}"
        d[f"n{i}"] = f"v_pk_fma_f32 {pr(NUM+2*i)}, {u}, {m}, {pr(NUM+2*i)}"
    for i in range(GS):
        d[f"Q{i}"] = f"v_lshlrev_b64 {pr(HL+2*i)}, 16, {pr(b[i])}"
        d[f"N{i}"] = mfmas(k + 2)[i]
        d[f"L{i}"] = gathers(k, IDX)[i]
        d[f"k{i}"] = f"ds_read_b32 v{IDX[i]}, v{VK} offset:{4*(GS*k+i)}"
        d[f"e{i}"] = f"ds_read_b64 {pr(AOP[i])}, v{VE} offset:{8*(GS*k+i)}"
    d["W"] = f"s_waitcnt vmcnt({GS*(NB-3)}) lgkmcnt(0)"
    d["S"] = f"s_sub_u32 s{S_CNT}, s{S_CNT}, 1"
    d["A0"] = f"v_add_u32 v{VK}, {4*GS*UNR}, v{VK}" if k == UNR - 1 else ""
    d["A1"] = f"v_add_u32 v{VE}, v{VINC}, v{VE}" if k == UNR - 1 else ""
    return d


ORDERS = {
    2: {
        "": "k0 k1 e0 e1 C0 E0 C2 E1 C1 E2 C3 E3 m0 E4 m1 E5 Q0 Q1 A0 A1 a0 a1 g0 g1 h0 h1 W L0 L1 S N0 R0 R1 N1 R2 R3 E6 d0 E7 d1 n0 n1",
    },
    3: {
        "": "k0 k1 k2 e0 e1 e2 C0 E0 C2 E1 C4 E2 C1 E3 C3 E4 C5 E5 m0 E6 m1 E7 M0 M1 Q0 Q1 Q2 A0 A1 a0 a1 g0 g1 s0 s1 h0 h1 i0 i1 j0 j1 W L0 L1 L2 S N0 R0 R1 N1 R2 R3 N2 E8 E9 d0 E10 d1 E11 n0 n1",
        "b": "k0 k1 k2 e0 e1 e2 C0 E0 C2 E1 C4 E2 C1 E3 C3 E4 C5 E5 m0 m1 M0 M1 Q0 Q1 Q2 A0 A1 a0 a1 g0 g1 s0 s1 h0 h1 i0 i1 j0 j1 W N0 R0 R1 N1 R2 R3 N2 E6 E7 L0 L1 L2 S E8 d0 E9 d1 E10 n0 E11 n1",
        "c": "k0 k1 k2 e0 e1 e2 C0 E0 C2 E1 m0 E2 C4 E3 M0 E4 C1 E5 C3 E6 m1 E7 C5 M1 Q0 Q1 Q2 A0 A1 a0 a1 g0 g1 s0 s1 h0 h1 i0 i1 j0 j1 W L0 L1 L2 S N0 R0 R1 N1 R2 R3 N2 E8 E9 d0 E10 d1 E11 n0 n1",
    },
}


def t2_check(a):
    a(f"v_xor_b32 v4, s{S_TAG}, v{T2R}")
    for i in (2, 4, 6):
        a(f"v_xor_b32 v5, s{S_TAG}, v{T2R+i}")
        a("v_or_b32 v4, v4, v5")
    for i in (1, 3, 5, 7):
        a(f"v_xor_b32 v5, s{S_TAG2}, v{T2R+i}")
        a("v_or_b32 v4, v4, v5")
    a("v_cmp_ne_u32 vcc, 0, v4")


def t2_loads(a):
    a(f"""
v_lshlrev_b32 v4, 4, v1
s_mov_b32 s40, {T2_REL:#x}
buffer_load_dwordx4 {q4(T2R)}, v4, s[32:35], s40 offen sc1
buffer_load_dwordx4 {q4(T2R+4)}, v4, s[32:35], s40 offen offset:1024 sc1
""")


def kernel():
    a = Asm()
    VTR, VXA, VWC, VAU, VLOC = VK, VE, VF, VFN, NXE
    VE2, VT2 = VTK, VTE
    VTR1, VWG, XF = VMAXL, VPF, T2R
    a(f"""
{KNAME}:
s_cmp_ge_u32 s2, 256
s_cbranch_scc1 K_END
@S0
@C30
s_load_dwordx16 s[64:79], s[0:1], 0
s_load_dwordx8 s[80:87], s[0:1], 64
v_readfirstlane_b32 s3, v0
s_mul_i32 s40, s2, {QCH}
v_add_u32 v4, s40, v0
v_add_u32 v5, {QH}, v4
v_cmp_gt_u32 vcc, {QH}, v0
s_mov_b32 s41, {NQ}
v_cmp_gt_u32_e64 s[94:95], s41, v5
v_lshlrev_b32 v4, 4, v4
v_lshlrev_b32 v5, 4, v5
v_mov_b32 v6, {BIG:#x}
s_mov_b64 s[92:93], vcc
s_and_b64 s[94:95], s[94:95], vcc
s_lshr_b32 s3, s3, 6
v_cndmask_b32 v4, v6, v4, vcc
v_cndmask_b32_e64 v5, v6, v5, s[94:95]
v_and_b32 v7, 255, v0
v_lshlrev_b32 v7, 2, v7
v_mov_b32 v{VZ}, 0
ds_write_b32 v7, v{VZ} offset:{L_HIST}
s_and_b32 s{S_B}, s2, 7
s_lshl_b32 s{S_B}, s{S_B}, 5
s_lshr_b32 s40, s2, 3
s_or_b32 s{S_B}, s{S_B}, s40
v_lshlrev_b32 v61, 4, v0
v_lshrrev_b32 v62, 3, v0
v_lshlrev_b32 v90, 8, v62
v_add_u32 v90, s{S_B}, v90
v_lshlrev_b32 v90, 7, v90
v_and_b32 v63, 7, v0
v_lshl_add_u32 v90, v63, 4, v90
v_and_b32 v96, 16, v0
v_lshlrev_b32 v96, 1, v96
v_and_b32 v97, 64, v0
v_or_b32 v96, v96, v97
v_xor_b32 v96, v96, v61
v_mov_b32 v{VWG}, v96
s_mov_b32 s47, 0x20000
s_mov_b32 s46, {E*4}
s_or_b32 s40, s2, s3
s_cmp_lg_u32 s40, 0
s_waitcnt lgkmcnt(0)
s_mov_b32 s44, s70
s_cbranch_scc1 K_NONONCE
s_memrealtime s[40:41]
s_waitcnt lgkmcnt(0)
s_or_b32 s40, s40, 1
v_mov_b32 v7, s40
s_mov_b64 exec, 1
global_store_dword v{VZ}, v7, s[84:85] sc1
s_mov_b64 exec, -1
K_NONONCE:
""")
    srd(a, 20, 64, 65, N * 128)
    a(f"""
s_and_b32 s45, s71, 0xffff
global_load_dwordx4 v[40:43], v96, s[74:75]
global_load_dwordx4 v[44:47], v96, s[80:81]
buffer_load_dwordx4 v[56:59], v90, s[20:23], 0 offen
buffer_load_dwordx4 v[8:11], v4, s[44:47], 0 offen
buffer_load_dwordx4 v[12:15], v5, s[44:47], 0 offen
""")
    srd(a, 48, 68, 69, E * 4)
    srd(a, 52, 66, 67, E * 8)
    a(f"""
v_lshlrev_b32 v6, 1, v4
v_lshlrev_b32 v7, 1, v5
v_mov_b32 v74, v4
v_mov_b32 v75, v5
@S1
""")
    NE = int(OPT.get("ne", 2))
    later = ["buffer_load_dwordx4 v[24:27], v6, s[52:55], 0 offen",
             "buffer_load_dwordx4 v[28:31], v6, s[52:55], 0 offen offset:16",
             "buffer_load_dwordx4 v[16:19], v74, s[48:51], 0 offen",
             "buffer_load_dwordx4 v[20:23], v75, s[48:51], 0 offen"]
    if NE:
        a("s_barrier")
    for l in later[:NE]:
        a(l)
    slots_init(a, 64, False)
    a(f"""
v_and_b32 v1, 63, v0
v_and_b32 v2, 15, v0
v_bfe_u32 v3, v0, 4, 2
v_and_b32 v91, 127, v0
v_lshlrev_b32 v91, 2, v91
v_mul_u32_u24 v62, {XSS}, v62
v_lshl_add_u32 v62, v63, 4, v62
v_add_u32 v62, {L_XS}, v62
v_add_u32 v63, {L_AP}, v61
s_mov_b64 s[16:17], s[86:87]
s_lshr_b32 s18, s3, 1
s_lshl_b32 s18, s18, 4
s_and_b32 s19, s3, 1
v_lshrrev_b32 v{VE2}, 2, v2
v_lshl_add_u32 v{VTR}, v3, 3, v{VE2}
v_lshlrev_b32 v{VTR}, 7, v{VTR}
v_and_b32 v{VT2}, 3, v2
v_lshl_add_u32 v{VTR}, v{VT2}, 3, v{VTR}
s_lshl_b32 s40, s19, 6
v_add_u32 v{VTR}, s40, v{VTR}
v_and_b32 v4, 8, v2
v_lshlrev_b32 v4, 2, v4
v_and_b32 v5, 1, v3
v_lshl_or_b32 v4, v5, 6, v4
v_xor_b32 v{VTR}, v4, v{VTR}
v_xor_b32 v{VTR1}, 32, v{VTR}
v_add_u32 v{VTR}, {L_AP}, v{VTR}
v_add_u32 v{VTR1}, {L_AP}, v{VTR1}
v_add_u32 v{VLOC}, s18, v2
v_mul_u32_u24 v{VXA}, {XSS}, v{VLOC}
v_lshl_add_u32 v{VXA}, v3, 4, v{VXA}
v_add_u32 v{VXA}, {L_XS}, v{VXA}
""")
    srd(a, 28, 16, 17, TAB_BYTES)
    a(f"""
v_lshlrev_b32 v4, 8, v{VLOC}
v_add_u32 v4, s{S_B}, v4
v_lshlrev_b32 v60, 8, v4
v_lshl_add_u32 v60, v3, 4, v60
s_lshl_b32 s40, s19, 7
v_add_u32 v60, s40, v60
v_cmp_eq_u32 vcc, {N}, v4
v_mov_b32 v4, 0x7f000000
v_mov_b32 v5, 0x7f007f00
s_mov_b32 s56, 0x07060100
s_mov_b32 s57, 0x07060302
@S2
s_waitcnt vmcnt({2 + NE})
ds_write_b128 v63, v[40:43]
ds_write_b128 v63, v[44:47] offset:8192
ds_write_b128 v62, v[56:59]
v_mov_b32 v63, 1
s_waitcnt lgkmcnt(0)
@S3
s_barrier
ds_read_b128 {q4(XF)}, v{VXA}
ds_read_b128 {q4(XF+4)}, v{VXA} offset:64
""")
    tr_reads(a, (VTR, VTR1), 0, 96)
    for l in later[NE:]:
        a(l)
    a("s_waitcnt vmcnt(5)")
    for i in range(4):
        a(f"v_lshlrev_b32_sdwa v{64+i}, 2, v{8+i} {SDWA_B0}")
    a("s_waitcnt vmcnt(4)")
    for i in range(4, 8):
        a(f"v_lshlrev_b32_sdwa v{64+i}, 2, v{8+i} {SDWA_B0}")
    a("s_mov_b64 exec, s[92:93]")
    for i in range(4):
        a(f"ds_add_rtn_u32 v{72+i}, v{64+i}, v63 offset:{L_HIST}")
    a("s_mov_b64 exec, s[94:95]")
    for i in range(4, 8):
        a(f"ds_add_rtn_u32 v{72+i}, v{64+i}, v63 offset:{L_HIST}")
    a("""
s_mov_b64 exec, -1
s_waitcnt lgkmcnt(8)
""")
    tile_mfmas(a, 96, XF, TOT)
    a(f"""
buffer_load_dwordx4 v[32:35], v7, s[52:55], 0 offen
buffer_load_dwordx4 v[36:39], v7, s[52:55], 0 offen offset:16
""")
    for i in range(8):
        a(f"v_lshrrev_b32 v{8+i}, 6, v{8+i}")
    a("v_lshlrev_b32 v7, 4, v1")
    seqs = []
    for t in range(2):
        b, h, o, tm = TOT + 4 * t, TOT + 8 + 4 * t, 40 + 4 * t, 88 + t
        q = [f"v_mul_f32 v{b+i}, {NLOG2E:#x}, v{b+i}" for i in range(4)]
        q += [f"v_med3_f32 v{b+i}, v{b+i}, v4, -v4" for i in range(4)]
        q += [f"v_cvt_pk_bf16_f32 v{tm}, v{h}, v{h}"]
        q += [f"v_cvt_pk_bf16_f32 v{o}, v{b}, v{b+1}", f"v_cvt_pk_bf16_f32 v{o+1}, v{b+2}, v{b+3}"]
        q += [f"v_perm_b32 v{o+2}, v{h+2}, v{tm}, s56", f"v_perm_b32 v{o+3}, v{h+3}, v{h+1}, s57"]
        q += [f"v_cndmask_b32 v{o}, v{o}, v5, vcc", f"v_cndmask_b32 v{o+1}, v{o+1}, v5, vcc"]
        seqs.append(q)
    pack = [z for xy in zip(*seqs) for z in xy]
    stores = [f"buffer_store_dwordx4 {q4(40+4*t)}, v60, s[28:31], 0 offen offset:{64*t} sc1" for t in range(2)]
    late = OPT.get("packpos", "a") == "b"
    if not late:
        for l in pack + stores:
            a(l)
    a(f"""
s_waitcnt lgkmcnt(0)
@S4
s_barrier
@S5
ds_read_b128 v[80:83], v7 offset:{L_HIST}
""")
    srd(a, 24, 16, 17, TAB_ROWS, stride=256)
    srd(a, 36, 82, 83, N * 128)
    a(f"""
s_mov_b32 s40, {L_STAGE}
s_waitcnt lgkmcnt(0)
v_add_u32 v85, v80, v81
v_add_u32 v86, v85, v82
v_add_u32 v90, v86, v83
v_mov_b32 v62, v90
""")
    wl = ["global_load_dwordx4 v[48:51], v96x, s[72:73]", "global_load_dwordx4 v[52:55], v96x, s[78:79]", "global_load_dword v56, v91, s[76:77]"]
    wl = [l.replace("v96x", f"v{VWG}") for l in wl]
    if late:
        steps = [f"row_shr:{d} row_mask:0xf" for d in (1, 2, 4, 8)] + ["row_bcast:15 row_mask:0xa", "row_bcast:31 row_mask:0xc"]
        for st in steps:
            a(pack.pop(0)); a(pack.pop(0))
            a(f"v_add_u32_dpp v90, v90, v90 {st} bank_mask:0xf")
    else:
        scan(a, 90, fill=wl)
    a(f"""
v_sub_u32 v84, v90, v62
v_add_u32 v87, v84, v86
v_add_u32 v86, v84, v85
v_add_u32 v85, v84, v80
ds_write_b128 v7, v[84:87] offset:{L_START}
""")
    for i in range(8):
        a(f"ds_read_b32 v{64+i}, v{64+i} offset:{L_START}")
    for i in range(4):
        a(f"v_lshl_or_b32 v{92+i}, v{80+i}, 16, v{84+i}")
    if late:
        for l in pack + stores + wl:
            a(l)
    a(f"""
s_add_u32 s32, s16, {T_OFF:#x}
s_addc_u32 s33, s17, 0
s_and_b32 s33, s33, 0xffff
s_mov_b32 s34, {TR_BYTES}
s_mov_b32 s35, 0x20000
s_mul_i32 s41, s2, {RECS}
s_add_u32 s41, s41, {T_OFF + REC_REL:#x}
s_add_u32 s88, s16, s41
s_addc_u32 s89, s17, 0
s_and_b32 s89, s89, 0xffff
s_mov_b32 s90, {RECB}
s_mov_b32 s91, 0x20000
s_waitcnt vmcnt(7)
""")
    for i in range(8):
        a(f"v_lshl_or_b32 v{16+i}, v{16+i}, 8, v{8+i}")
    for i in range(8):
        a(f"s_waitcnt lgkmcnt({7-i})")
        a(f"v_add_u32 v{64+i}, v{64+i}, v{72+i}")
        a(f"v_mad_u32_u24 v{64+i}, v{64+i}, 12, s40")
    a("s_mov_b64 exec, s[92:93]")
    for i in range(4):
        a(f"ds_write_b32 v{64+i}, v{16+i} offset:8")
        a(f"ds_write2_b32 v{64+i}, v{24+2*i}, v{25+2*i} offset0:0 offset1:1")
    a("s_mov_b64 exec, s[94:95]")
    for i in range(4, 8):
        a(f"ds_write_b32 v{64+i}, v{16+i} offset:8")
    a("s_waitcnt vmcnt(5)")
    for i in range(4, 8):
        a(f"ds_write2_b32 v{64+i}, v{24+2*i}, v{25+2*i} offset0:0 offset1:1")
    a(f"""
s_mov_b64 exec, -1
@S6
s_movk_i32 s14, {RECB//16 - 2048}
v_cmp_gt_u32_e64 s[14:15], s14, v0
v_add_u32 v63, {L_STAGE}, v61
v_add_u32 v91, {L_WC}, v91
s_movk_i32 s44, 0x2000
s_movk_i32 s45, 0x4000
s_movk_i32 s46, 0x6000
s_mov_b32 s47, 0x8000
v_cmp_gt_u32 vcc, 128, v0
s_waitcnt lgkmcnt(0)
@S7
s_barrier
@S8
""")
    for i in range(4):
        a(f"ds_read_b128 {q4(8+4*i)}, v63 offset:{8192*i}")
    a(f"""
s_mov_b64 exec, s[14:15]
ds_read_b128 v[24:27], v63 offset:32768
s_mov_b64 exec, -1
v_mov_b32 v28, 0
v_mov_b32 v29, 0
v_mov_b32 v30, 0
v_mov_b32 v31, 0
""")
    for i in range(4):
        a(f"s_waitcnt lgkmcnt({4-i})")
        so = "0" if i == 0 else f"s{43+i}"
        a(f"buffer_store_dwordx4 {q4(8+4*i)}, v61, s[88:91], {so} offen sc1")
    koff = struct.unpack("<I", struct.pack("<f", -float(KEXP) if OPT["cadd"] == "1" else 0.0))[0]
    a(f"""
s_mov_b64 exec, s[14:15]
s_waitcnt lgkmcnt(0)
buffer_store_dwordx4 v[24:27], v61, s[88:91], s47 offen sc1
s_mov_b64 exec, vcc
ds_write_b128 v61, v[28:31]
s_mov_b64 exec, -1
global_load_dword v64, v{VZ}, s[84:85] sc1
@S9
s_waitcnt vmcnt(6)
ds_write_b128 v63, v[48:51]
ds_write_b128 v63, v[52:55] offset:8192
ds_write_b32 v91, v56
v_add_u32 v{VTR}, {L_STAGE - L_AP}, v{VTR}
v_add_u32 v{VTR1}, {L_STAGE - L_AP}, v{VTR1}
v_lshl_add_u32 v{VWC}, v2, 2, v3
v_lshlrev_b32 v{VWC}, 1, v{VWC}
v_add_u32 v{VWC}, {L_WC}, v{VWC}
s_movk_i32 s40, {US}
s_lshl_b32 s41, s19, 7
s_add_u32 s41, s41, {L_AP}
v_mad_u32_u24 v{VAU}, v{VLOC}, s40, 0
v_lshl_add_u32 v{VAU}, v3, 4, v{VAU}
v_add_u32 v{VAU}, s41, v{VAU}
v_cmp_gt_u32_e64 s[14:15], 49, v{VLOC}
s_mov_b32 s{S_MODE}, 0
s_mov_b32 s{S_CS}, {CS}
s_mov_b32 s{S_AM}, 0x22221111
s_mov_b32 s{S_AM+1}, 0x88884444
s_mov_b32 s{S_K}, {KBITS:#x}
s_mov_b32 s{S_K+1}, {KBITS:#x}
s_mov_b32 s6, {NLOG2E:#x}
s_mov_b32 s7, {NLOG2E:#x}
v_mov_b32 v{NX}, {koff:#x}
v_mov_b32 v{NX+1}, {koff:#x}
v_and_b32 v5, 1, v{VT2}
v_lshlrev_b32 v5, 4, v5
v_mov_b32 v6, 0x3f80
v_lshlrev_b32 v5, v5, v6
v_cmp_eq_u32 vcc, v3, v{VE2}
v_cmp_gt_u32_e64 s[52:53], 2, v{VT2}
v_cmp_le_u32_e64 s[54:55], 2, v{VT2}
v_mov_b32 v6, {8*GS*UNR}
v_cndmask_b32 v5, 0, v5, vcc
v_cndmask_b32_e64 v{VINC}, 0, v6, s[{S_AM}:{S_AM+1}]
v_mov_b32 v{VFOUR}, 4
""")
    for i in range(GS):
        a(f"v_cndmask_b32_e64 v{AOP[i]+2}, 0, v5, s[52:53]")
        a(f"v_cndmask_b32_e64 v{AOP[i]+3}, 0, v5, s[54:55]")
        a(f"v_lshlrev_b32 v{IDX[i]+1}, 4, v2")
    a(f"""
s_lshl_b32 s41, s{S_B}, 3
v_lshl_add_u32 v4, v3, 11, s41
s_lshl_b32 s40, s3, 16
""")
    for k in range(1, 8):
        a(f"s_add_u32 s{40+k}, s40, {8192*k}")
    V0, V1, V2, V3, V4 = X0 + 16, X0 + 17, X0 + 18, X0 + 19, X0 + 20
    a(f"""
s_lshl_b32 s48, s3, 5
v_add_u32 v5, s48, v3
s_mov_b32 s49, {RECS}
v_mul_lo_u32 v5, v5, s49
v_mad_u32_u24 v5, v2, 12, v5
v_add_u32 v5, {REC_REL}, v5
v_add_u32 v6, 16, v2
s_memrealtime s[50:51]
@S18
s_waitcnt vmcnt(0)
K_TAGW:
v_readfirstlane_b32 s{S_TAG}, v64
s_cmp_lg_u32 s{S_TAG}, 0
s_cbranch_scc0 K_TAG_RETRY
K_TAGOK:
s_mul_i32 s48, s{S_TAG}, 0x9e3779b1
s_and_b32 s48, s48, 0xf000f000
s_waitcnt lgkmcnt(0)
@S19
s_barrier
s_cmp_lg_u32 s3, 0
s_cbranch_scc1 K_NOPUB
v_or_b32 v8, s48, v92
v_mov_b32 v9, s{S_TAG}
v_or_b32 v10, s48, v93
v_mov_b32 v11, s{S_TAG}
v_or_b32 v12, s48, v94
v_mov_b32 v13, s{S_TAG}
v_or_b32 v14, s48, v95
v_mov_b32 v15, s{S_TAG}
v_lshlrev_b32 v16, 5, v1
s_lshl_b32 s49, s2, 11
buffer_store_dwordx4 v[8:11], v16, s[32:35], s49 offen sc1
buffer_store_dwordx4 v[12:15], v16, s[32:35], s49 offen offset:16 sc1
K_NOPUB:
""")
    tr_reads(a, (VTR, VTR1), 0, 96)
    a(f"""
ds_read_u16 v{CA}, v{VWC}
ds_read_u16 v{CA+1}, v{VWC} offset:128
ds_read_u16 v{CA+2}, v{VWC} offset:256
ds_read_u16 v{CA+3}, v{VWC} offset:384
s_mov_b32 s49, 0xf000f000
s_waitcnt lgkmcnt(4)
""")
    tile_mfmas(a, 96, XF, TOT)
    a("s_waitcnt lgkmcnt(0)")
    for k in range(4):
        a(f"v_lshlrev_b32 v{CA+k}, 16, v{CA+k}")
    for k in range(4):
        a(f"v_mul_f32 v{CA+k}, {NLOG2E:#x}, v{CA+k}")
    a(f"v_cvt_pk_bf16_f32 v{CN}, v{CA}, v{CA+1}")
    a(f"v_cvt_pk_bf16_f32 v{CN+1}, v{CA+2}, v{CA+3}")
    a(f"v_mov_b32 v{V0}, s{S_TAG}")
    a(f"v_mov_b32 v{V1}, s48")
    a("s_mov_b64 exec, s[14:15]")
    a(f"ds_write_b128 v{VAU}, {q4(TOT+8)} offset:{L_U - L_AP}")
    a(f"ds_write_b128 v{VAU}, {q4(TOT+12)} offset:{L_U - L_AP + 64}")
    for i in range(0, 8, 2):
        a(f"v_pk_fma_f32 {pr(TOT+i)}, {pr(TOT+i)}, s[6:7], {pr(NX)}")
    a(f"""
ds_write_b128 v{VAU}, {q4(TOT)}
ds_write_b128 v{VAU}, {q4(TOT+4)} offset:64
s_mov_b64 exec, -1
""")
    for p in range(NB):
        for i in range(GS):
            a(f"v_pk_mov_b32 {pr(stepbuf(p, i))}, {pr(CN)}, {pr(CN)} op_sel:[0,1]")
    for i in range(0, 16, 2):
        a(f"v_pk_mov_b32 {pr(TOT+i)}, 0, 0")
    if int(OPT.get("presleep", 0)):
        a(f"s_sleep {OPT['presleep']}")
    a("""
@S23
K_POLL:
""")
    for k in range(8):
        a(f"buffer_load_dwordx2 {pr(PT+2*k)}, v4, s[32:35], s{40+k} offen sc1")
    a(f"v_mov_b32 v{V2}, 0")
    for k in range(8):
        a(f"s_waitcnt vmcnt({7-k})")
        a(f"v_xor_b32 v{V3}, v{PT+2*k}, v{V1}")
        a(f"v_xor_b32 v{V4}, v{PT+2*k+1}, v{V0}")
        a(f"v_and_or_b32 v{V2}, v{V3}, s49, v{V2}")
        a(f"v_and_b32 v{VTT+k}, 0x0fff0fff, v{PT+2*k}")
        a(f"v_or_b32 v{V2}, v{V4}, v{V2}")
    a(f"""
v_cmp_ne_u32 vcc, 0, v{V2}
s_cbranch_vccnz K_POLL_RETRY
K_POLLOK:
@S24
s_mov_b64 exec, 1
ds_add_u32 v{VZ}, v{VFOUR} offset:{L_ACKS}
s_mov_b64 exec, -1
""")
    for k in range(8):
        a(f"v_mad_u32_u16 v{VRA+k}, v{VTT+k}, 12, v5")
        a(f"v_cmp_gt_u32_sdwa s[{80+2*k}:{81+2*k}], v{VTT+k}, v6 src0_sel:WORD_1 src1_sel:DWORD")
        if k < 7:
            a(f"v_add_u32 v5, {4*RECS}, v5")
        r = recset(8 + k)
        a(f"s_mov_b64 exec, s[{80+2*k}:{81+2*k}]")
        a(f"s_cbranch_execz K_M1L{k}")
        a(f"buffer_load_dwordx3 v[{r}:{r+2}], v{VRA+k}, s[32:35], 0 offen offset:192 sc1")
        a(f"K_M1L{k}:")
        a("s_mov_b64 exec, -1")
        a(f"v_cmp_gt_u32_sdwa s[{64+2*k}:{65+2*k}], v{VTT+k}, v2 src0_sel:WORD_1 src1_sel:DWORD")
    for k in range(8):
        r = recset(k)
        a(f"s_mov_b64 exec, s[{64+2*k}:{65+2*k}]")
        a(f"buffer_load_dwordx3 v[{r}:{r+2}], v{VRA+k}, s[32:35], 0 offen sc1")
    a(f"""
s_mov_b64 exec, -1
@S25
v_max3_u32 v4, v{VTT}, v{VTT+1}, v{VTT+2}
v_max3_u32 v5, v{VTT+3}, v{VTT+4}, v{VTT+5}
v_max3_u32 v4, v4, v{VTT+6}, v{VTT+7}
v_max_u32 v4, v4, v5
v_lshrrev_b32 v{VMAXL}, 16, v4
s_waitcnt vmcnt(8)
""")

    def A_(j):
        a(f"s_waitcnt vmcnt({7 - j})")
        a(f"s_mov_b64 exec, s[{64+2*j}:{65+2*j}]")
        place_atomic(a, recset(j), VCA + j)

    def W_(j, n):
        a(f"s_mov_b64 exec, s[{64+2*j}:{65+2*j}]")
        if n is not None:
            a(f"s_waitcnt lgkmcnt({n})")
        place_write(a, recset(j), VCA + j)
    for j in range(8):
        a(f"s_mov_b64 exec, s[{80+2*j}:{81+2*j}]")
        a(f"s_cbranch_execz K_M1A{j}")
        place_atomic(a, recset(8 + j), VCA + 8 + j)
        a(f"K_M1A{j}:")
    A_(0); A_(1)
    a("s_waitcnt lgkmcnt(2)")
    for j in range(8):
        a(f"s_mov_b64 exec, s[{80+2*j}:{81+2*j}]")
        a(f"s_cbranch_execz K_M1W{j}")
        place_write(a, recset(8 + j), VCA + 8 + j)
        a(f"K_M1W{j}:")
    A_(2)
    W_(0, 1)
    W_(1, None)
    A_(3)
    W_(2, 5)
    A_(4)
    W_(3, 3)
    A_(5)
    W_(4, 3)
    A_(6)
    a("s_mov_b64 exec, -1")
    a(f"ds_read_b32 v7, v{VZ} offset:{L_ACKS}")
    W_(5, 4)
    A_(7)
    a("@S26")
    W_(6, 4)
    npf, pfs = int(OPT["npf"]), int(OPT["pfs"])
    a(f"""
s_mov_b64 exec, -1
s_waitcnt lgkmcnt(2)
v_readfirstlane_b32 s40, v7
s_cmp_lg_u32 s40, 32
s_cbranch_scc1 K_NOPF
""")
    if npf:
        a(f"""
s_lshr_b32 s40, s2, 3
s_mul_i32 s40, s40, {782*128}
v_mul_u32_u24 v7, {pfs}, v0
v_add_u32 v7, s40, v7
""")
        for p in range(-(-npf // 512)):
            if p:
                a(f"v_add_u32 v7, {512*pfs}, v7")
            if npf - 512 * p < 512:
                a(f"v_cmp_gt_u32 vcc, {npf - 512*p}, v0")
                a("s_mov_b64 exec, vcc")
            a(f"buffer_load_dword v{VPF}, v7, s[28:31], 0 offen sc1")
    a("K_NOPF:")
    W_(7, None)
    R = X0
    a(f"""
s_mov_b64 exec, -1
v_cmp_lt_u32 vcc, 32, v{VMAXL}
s_cbranch_vccnz K_LONG_ENTRY
K_PLACED:
s_waitcnt lgkmcnt(0)
@S27
s_barrier
@S28
K_RANK:
v_lshlrev_b32 v4, 2, v1
ds_read_b32 v{R}, v4 offset:{L_CNT}
""")
    for i in range(1, 6):
        a(f"s_add_u32 s{40+i}, s3, {8*i}")
    a(f"""
v_cmp_gt_u32_e64 s[52:53], 48, v1
v_lshl_add_u32 v{R+2}, v1, 3, s3
v_mul_u32_u24 v{R+6}, {CS*4}, v{R+2}
v_mul_u32_u24 v{R+7}, {US}, v{R+2}
v_add_u32 v{R+7}, {L_AP}, v{R+7}
v_lshlrev_b32 v{R+2}, 2, v{R+2}
s_waitcnt lgkmcnt(0)
v_cmp_lt_u32 vcc, {CAP*4}, v{R}
v_lshl_add_u32 v{R+1}, v{R}, 4, v1
v_add_u32 v{R+1}, 1, v{R+1}
s_cbranch_vccnz K_SLOW_ENTRY
v_cndmask_b32_e64 v{R+1}, 0, v{R+1}, s[52:53]
v_readlane_b32 s50, v{R}, 48
""")
    for i in range(6):
        a(f"v_readlane_b32 s{64+i}, v{R+1}, s{3 if i == 0 else 40+i}")
    a(f"s_add_u32 s51, s50, {4*(4*GS-1)}")
    for i in range(6):
        a(f"v_cmp_lt_u32_e64 s[{72+2*i}:{73+2*i}], s{64+i}, v{R+1}")
    if GS == 2:
        a("s_lshr_b32 s51, s51, 5")
    else:
        a("s_lshr_b32 s51, s51, 4")
        a("s_mul_i32 s51, s51, 0x5556")
        a("s_lshr_b32 s51, s51, 16")
    for i in range(6):
        a(f"v_writelane_b32 v{R+3}, s{64+i}, {i}")
        a(f"s_bcnt1_i32_b64 s{72+2*i}, s[{72+2*i}:{73+2*i}]")
    a(f"""
s_max_u32 s51, s51, {MINPS}
s_cmp_eq_u32 s50, 0
s_cselect_b32 s50, 0, s51
s_mul_i32 s50, s50, {GS}
""")
    for i in range(6):
        a(f"v_writelane_b32 v{R+4}, s{72+2*i}, {i}")
    a(f"""
v_lshrrev_b32 v{R+3}, 6, v{R+3}
v_add_u32 v{R+4}, 4, v{R+4}
v_lshlrev_b32 v{R+5}, 3, v{R+4}
v_lshlrev_b32 v{R+8}, 2, v{R+4}
s_mov_b64 exec, 63
ds_write_b64 v{R+5}, {pr(R+6)} offset:{L_TS}
ds_write_b32 v{R+8}, v{R+3} offset:{L_TC}
ds_write_b32 v{R+2}, v{R+4} offset:{L_RK}
s_mov_b64 exec, 15
v_mul_u32_u24 v{R+10}, s50, v4
v_add_u32 v{R+10}, {48*CS*4}, v{R+10}
v_mov_b32 v{R+11}, {L_AP + 48*US}
v_mov_b32 v{R+9}, s50
v_lshlrev_b32 v5, 3, v1
ds_write_b64 v5, {pr(R+10)} offset:{L_TS}
ds_write_b32 v4, v{R+9} offset:{L_TC}
ds_write_b32 v4, v1 offset:{L_RK + 192}
s_mov_b64 exec, -1
v_lshlrev_b32 v4, 4, v2
v_cmp_gt_u32_e64 s[52:53], 13, v2
s_add_u32 s15, s3, 1
s_waitcnt lgkmcnt(0)
s_barrier
@S29
ds_read_b32 v{R}, v4 offset:{L_TC}
v_mov_b32 v{R+4}, 1
v_mov_b32 v{R+5}, 0
s_waitcnt lgkmcnt(0)
v_cmp_ne_u32 vcc, 0, v{R}
v_add_u32 v{R}, {GS-1}, v{R}
""")
    if GS == 2:
        a(f"v_lshrrev_b32 v{R}, 1, v{R}")
    else:
        a(f"v_mul_u32_u24 v{R}, 0x5556, v{R}")
        a(f"v_lshrrev_b32 v{R}, 16, v{R}")
    a(f"""
s_and_b64 s[44:45], vcc, s[52:53]
v_max_u32 v{R}, {MINPS}, v{R}
v_cndmask_b32_e64 v{R}, 0, v{R}, s[44:45]
v_mov_b32 v{R+1}, v{R}
""")
    scan(a, R + 1, row_only=True)
    a(f"""
s_nop 0
v_readlane_b32 s14, v{R+1}, 15
v_sub_u32 v{R+2}, v{R+1}, v{R}
s_cmp_gt_u32 s14, {MAXIT*8}
s_cbranch_scc1 K_SLOW_ENTRY
s_mul_i32 s40, s14, s3
s_mul_i32 s41, s14, s15
s_lshr_b32 s40, s40, 3
s_lshr_b32 s41, s41, 3
s_sub_u32 s{S_IT}, s41, s40
s_cmp_eq_u32 s{S_IT}, 0
s_cbranch_scc1 K_LOOP_DONE
v_cmp_ge_u32_e64 s[42:43], s40, v{R+1}
v_subrev_u32 v{R+3}, s40, v{R+2}
s_and_b32 s42, s42, 0x1fff
s_bcnt1_i32_b32 s42, s42
s_lshl_b32 s46, s42, 5
v_lshl_add_u32 v{VTK}, v3, 3, s46
v_and_b32 v{VTE}, 12, v2
v_lshl_add_u32 v{VTE}, v{VTE}, 1, s46
v_readlane_b32 s43, v{R+2}, s42
ds_read_b64 {pr(R+6)}, v{VTK} offset:{L_TS}
ds_read_b32 v{NXE}, v{VTE} offset:{L_TS}
ds_read_b64 {pr(NX)}, v{VTK} offset:{L_TS + 32}
v_add_u32 v{R+8}, -1, v{R+3}
v_cmp_gt_u32 vcc, 63, v{R+8}
v_lshlrev_b64 {pr(R+4)}, v{R+3}, {pr(R+4)}
s_and_b64 vcc, vcc, s[44:45]
s_sub_u32 s43, s40, s43
v_cndmask_b32 v{R+4}, 0, v{R+4}, vcc
v_cndmask_b32 v{R+5}, 0, v{R+5}, vcc
s_mul_i32 s45, s43, {4*GS}
s_lshl_b32 s47, s45, 1
""")
    for d in (1, 2, 4, 8):
        a(f"v_or_b32_dpp v{R+4}, v{R+4}, v{R+4} row_shr:{d} row_mask:0xf bank_mask:0xf")
        a(f"v_or_b32_dpp v{R+5}, v{R+5}, v{R+5} row_shr:{d} row_mask:0xf bank_mask:0xf")
        a("s_nop 0")
    TI = {1: [Y[0] + 2 * i for i in range(GS)]}
    nxt = HL
    for p in range(2, NB):
        TI[p] = [nxt + 2 * i for i in range(GS)]
        nxt += 2 * GS
    assert nxt <= DEN, (nxt, DEN)
    a(f"""
s_add_u32 s45, s45, {L_KEYS}
s_add_u32 s47, s47, {L_EA}
v_readlane_b32 s{S_MASK}, v{R+4}, 15
v_readlane_b32 s{S_MASK+1}, v{R+5}, 15
s_bfm_b64 s[48:49], s{S_IT}, 0
s_waitcnt lgkmcnt(1)
v_add_u32 v{VK}, s45, v{R+6}
v_add_u32 v{R+7}, v{R+7}, v{IDX[0]+1}
s_and_b64 s[{S_MASK}:{S_MASK+1}], s[{S_MASK}:{S_MASK+1}], s[48:49]
""")
    for i in range(GS):
        a(f"ds_read_b32 v{IDX[i]}, v{VK} offset:{4*i}")
    a(f"""
ds_read_b128 {q4(CA)}, v{R+7}
v_lshl_add_u32 v{VE}, v{NXE}, 1, s47
v_mov_b32 v4, {L_ZERO}
""")
    for p in range(1, NB):
        for i in range(GS):
            a(f"v_mov_b32 v{TI[p][i]+1}, v{IDX[0]+1}")
    a(f"v_cndmask_b32_e64 v{VE}, v4, v{VE}, s[{S_AM}:{S_AM+1}]")
    a(f"s_waitcnt lgkmcnt({GS+1})")
    for p in range(1, NB):
        a(f"s_bitcmp1_b32 s{S_MASK}, {p}")
        a(f"s_cbranch_scc0 K_PK{p}")
        ev_k(a, 4 * GS * p)
        a(f"K_PK{p}:")
        for i in range(GS):
            a(f"ds_read_b32 v{TI[p][i]}, v{VK} offset:{4*(GS*p+i)}")
    for i in range(GS):
        a(f"ds_read_b64 {pr(AOP[i])}, v{VE} offset:{8*i}")
    a(f"""
s_lshr_b64 s[{S_CM}:{S_CM+1}], s[{S_MASK}:{S_MASK+1}], 3
s_lshr_b64 s[48:49], s[{S_MASK}:{S_MASK+1}], {NB+1}
s_or_b64 s[{S_CM}:{S_CM+1}], s[{S_CM}:{S_CM+1}], s[48:49]
s_mov_b32 s{S_RAW}, s{S_MASK}
s_bitset1_b64 s[{S_MASK}:{S_MASK+1}], s{S_IT}
s_lshr_b64 s[48:49], s[{S_MASK}:{S_MASK+1}], 1
s_or_b64 s[{S_CM}:{S_CM+1}], s[{S_CM}:{S_CM+1}], s[48:49]
s_waitcnt lgkmcnt({GS})
""")
    NG0 = int(OPT["ng0"])
    NG1 = max(NG0, min(NB, 4 if GS == 2 else 3))
    for l in gathers(0, IDX):
        a(l)
    for p in range(1, NG0):
        for l in gathers(p, TI[p]):
            a(l)
    if OPT["prio"] == "1":
        dflt = (24, 12, 4) if GS == 2 else (16, 8, 3)
        t1, t2, t3 = [int(OPT.get(f"thr{i+1}", dflt[i])) for i in range(3)]
        a(f"""
s_setprio 3
s_mov_b32 s{S_PR}, 3
s_mov_b64 s[54:55], 0
s_bitset1_b64 s[54:55], {63 - t1}
s_bitset1_b64 s[54:55], {63 - t2}
s_bitset1_b64 s[54:55], {63 - t3}
s_sub_u32 s46, 63, s{S_IT}
s_lshr_b64 s[54:55], s[54:55], s46
s_or_b64 s[{S_CM}:{S_CM+1}], s[{S_CM}:{S_CM+1}], s[54:55]
""")
    a(f"""
s_ff1_i32_b64 s{S_CNT}, s[{S_CM}:{S_CM+1}]
v_lshlrev_b32 v5, 9, v3
v_lshl_add_u32 v5, v2, 4, v5
s_lshl_b32 s45, s42, 11
s_add_u32 s45, s45, {L_ACC}
s_add_u32 s46, s45, 2048
v_add_u32 v{VFN}, s46, v5
s_cmp_eq_u32 s43, 0
s_cbranch_scc1 K_P2
s_lshl_b32 s45, s3, 11
s_add_u32 s45, s45, {L_EXT}
s_lshl_b32 s46, 1, s3
s_lshl_b32 s47, s42, 2
v_mov_b32 v6, s46
v_mov_b32 v7, s47
s_mov_b64 exec, 1
ds_or_b32 v7, v6 offset:{L_MASK}
s_mov_b64 exec, -1
K_P2:
v_add_u32 v{VF}, s45, v5
""")
    for i in range(0, 8, 2):
        a(f"v_pk_mov_b32 {pr(DEN+i)}, 0, 0")
    a(f"""
v_add_u32 v{VK}, {4*GS*NB}, v{VK}
s_bitcmp1_b32 s{S_RAW}, {NB}
s_cbranch_scc0 K_PK{NB}
""")
    ev_k(a, 0)
    a(f"""
K_PK{NB}:
v_mov_b32 v5, {16*GS}
@S10
s_waitcnt vmcnt({GS*(NG0-1)}) lgkmcnt(0)
@S15
""")
    for l in mfmas(0):
        a(l)
    for p in range(NG0, NG1):
        for l in gathers(p, TI[p]):
            a(l)
    a(f"""
s_bitcmp1_b32 s{S_RAW}, 1
s_cbranch_scc0 K_PE1
s_nop 2
""")
    ev_e(a, 8 * GS)
    a("K_PE1:")
    for i in range(GS):
        a(f"ds_read_b64 {pr(AOP[i])}, v{VE} offset:{8*(GS+i)}")
    a(f"""
v_cndmask_b32_e64 v5, 0, v5, s[{S_AM}:{S_AM+1}]
s_nop 3
""")
    for i in range(4 * GS):
        a(f"v_exp_f32 v{Y[0]+i}, v{Y[0]+i}")
    a(f"v_add_u32 v{VE}, v5, v{VE}")
    a(f"s_waitcnt vmcnt({GS*(NG1-2)}) lgkmcnt(0)")
    for l in mfmas(1):
        a(l)
    for p in range(NG1, NB):
        for l in gathers(p, TI[p]):
            a(l)
    a(f"""
s_bitcmp1_b32 s{S_RAW}, 2
s_cbranch_scc0 K_PE2
s_nop 2
""")
    ev_e(a, 0)
    a(f"""
K_PE2:
@C20
s_nop 4
K_LOOP:
""")
    order = ORDERS[GS][OPT["order"]].split()
    for k in range(UNR):
        d = ops(k)
        for x in order:
            a(d[x])
        if k == UNR - 1:
            a("s_cbranch_scc0 K_LOOP")
        else:
            a(f"s_cbranch_scc1 K_EV{k}")
            a(f"K_RET{k}:")
    for k in [UNR - 1] + list(range(UNR - 1)):
        kn = (k + 1) % UNR
        ret = f"K_RET{k}" if k < UNR - 1 else "K_LOOP"
        a(f"""
K_EV{k}:
s_ff1_i32_b64 s14, s[{S_CM}:{S_CM+1}]
s_bitset0_b64 s[{S_CM}:{S_CM+1}], s14
s_ff1_i32_b64 s{S_CNT}, s[{S_CM}:{S_CM+1}]
s_lshr_b64 s[40:41], s[{S_MASK}:{S_MASK+1}], s14
s_sub_u32 s{S_CNT}, s{S_CNT}, s14
s_sub_u32 s{S_CNT}, s{S_CNT}, 1
s_bitcmp1_b32 s40, 1
s_cbranch_scc0 K_EV{k}A
ds_write_b128 v{VF}, {q4(DEN)}
ds_write_b128 v{VF}, {q4(NUM)} offset:256
s_lshr_b64 s[42:43], s[40:41], 2
s_cbranch_scc0 K_LOOP_DONE
v_mov_b32 v{VF}, v{VFN}
v_add_u32 v{VFN}, 2048, v{VFN}
""")
        for i in range(0, 8, 2):
            a(f"v_pk_mov_b32 {pr(DEN+i)}, 0, 0")
        a(f"""
K_EV{k}A:
s_bitcmp1_b32 s40, 3
s_cbranch_scc0 K_EV{k}B
""")
        ev_e(a, 8 * GS * kn)
        a(f"""
K_EV{k}B:
s_lshr_b64 s[42:43], s[40:41], {NB+2}
s_cbranch_scc0 K_EV{k}C
s_bitcmp1_b32 s40, {NB+1}
s_cbranch_scc0 K_EV{k}C
""")
        ev_k(a, 4 * GS * kn)
        a(f"K_EV{k}C:")
        if OPT["prio"] == "1":
            a(f"""
s_bitcmp1_b64 s[54:55], s14
s_cbranch_scc0 {ret}
s_sub_u32 s{S_PR}, s{S_PR}, 1
s_setprio 0
s_cmp_eq_u32 s{S_PR}, 0
s_cbranch_scc1 {ret}
s_setprio 1
s_cmp_eq_u32 s{S_PR}, 1
s_cbranch_scc1 {ret}
s_setprio 2
""")
        a(f"s_branch {ret}")
    D0, U0 = R + 16, R + 32
    a(f"""
K_LOOP_DONE:
@C21
@S11
s_setprio 0
v_lshrrev_b32 v{R}, 3, v0
v_min_u32 v{R+1}, 48, v{R}
v_lshlrev_b32 v{R+2}, 2, v{R}
v_lshlrev_b32 v{R+3}, 2, v{R+1}
v_and_b32 v{R+4}, 7, v0
v_lshlrev_b32 v{R+5}, 5, v{R+4}
v_cmp_gt_u32_e64 s[40:41], 52, v{R}
s_movk_i32 s14, {US}
v_mad_u32_u24 v{R+8}, v{R+1}, s14, v{R+5}
v_add_u32 v{R+8}, {L_U}, v{R+8}
v_mul_u32_u24 v{R+9}, {XSS}, v{R+1}
v_lshl_add_u32 v{R+9}, v{R+4}, 4, v{R+9}
v_add_u32 v{R+9}, {L_XS}, v{R+9}
ds_read_b32 v{R+6}, v{R+2} offset:{L_RK}
ds_read_b32 v{R+7}, v{R+3} offset:{L_CNT}
ds_read_b128 {q4(U0)}, v{R+8}
ds_read_b128 {q4(U0+4)}, v{R+8} offset:16
ds_read_b128 {q4(CA)}, v{R+9}
s_waitcnt lgkmcnt(0)
v_cmp_ne_u32 vcc, 0, v{R+7}
v_and_b32 v{R+10}, -4, v{R+6}
v_lshl_add_u32 v{R+11}, v{R+6}, 9, v{R+5}
v_add_u32 v{R+11}, {L_ACC}, v{R+11}
v_and_b32 v{R+12}, 3, v{R+6}
v_lshl_add_u32 v{R+12}, v{R+12}, 9, v{R+5}
v_add_u32 v{R+12}, {L_EXT}, v{R+12}
s_barrier
@S12
s_and_b64 exec, vcc, s[40:41]
s_cbranch_execz K_COMB_DONE
ds_read_b32 v{R+10}, v{R+10} offset:{L_MASK}
K_COMB_X:
ds_read_b128 {q4(D0)}, v{R+11}
ds_read_b128 {q4(D0+4)}, v{R+11} offset:16
ds_read_b128 {q4(D0+8)}, v{R+11} offset:256
ds_read_b128 {q4(D0+12)}, v{R+11} offset:272
s_waitcnt lgkmcnt(4)
v_ffbl_b32 v{R+11}, v{R+10}
v_cmp_ne_u32 vcc, 0, v{R+10}
v_add_u32 v{R+13}, -1, v{R+10}
v_and_b32 v{R+10}, v{R+10}, v{R+13}
v_lshl_add_u32 v{R+11}, v{R+11}, 11, v{R+12}
s_waitcnt lgkmcnt(0)
""")
    for i in range(0, 16, 2):
        a(f"v_pk_add_f32 {pr(TOT+i)}, {pr(TOT+i)}, {pr(D0+i)}")
    a(f"""
s_and_b64 exec, exec, vcc
s_cbranch_execnz K_COMB_X
K_COMB_DONE:
s_mov_b64 exec, -1
s_cmp_lg_u32 s{S_MODE}, 0
s_cbranch_scc1 K_SLOW_NEXT
K_FINAL:
s_cmp_lg_u32 s3, 6
s_cbranch_scc1 K_FIN2
""")
    for i in range(16):
        a(f"v_add_f32_dpp v{TOT+i}, v{TOT+i}, v{TOT+i} row_ror:8 row_mask:0xf bank_mask:0xf")
    for i in range(16):
        a(f"ds_swizzle_b32 v{D0+i}, v{TOT+i} offset:0x401F")
    a("s_waitcnt lgkmcnt(0)")
    for i in range(0, 16, 2):
        a(f"v_pk_add_f32 {pr(TOT+i)}, {pr(TOT+i)}, {pr(D0+i)}")
    eps = struct.unpack("<I", struct.pack("<f", 1e-6 * 2.0**KEXP))[0]
    a(f"""
K_FIN2:
s_mov_b32 s14, {eps:#x}
s_mov_b32 s15, {eps:#x}
v_lshlrev_b32 v{R}, 8, v{R}
v_add_u32 v{R}, s{S_B}, v{R}
v_lshlrev_b32 v{R}, 7, v{R}
v_lshl_add_u32 v{R}, v{R+4}, 4, v{R}
""")
    for i in range(0, 8, 2):
        a(f"v_pk_add_f32 {pr(TOT+i)}, {pr(TOT+i)}, s[14:15]")
    for i in range(8):
        a(f"v_rcp_f32 v{TOT+i}, v{TOT+i}")
    for i in range(4):
        a(f"v_lshlrev_b32 v{D0+2*i}, 16, v{CA+i}")
        a(f"v_and_b32 v{D0+2*i+1}, 0xffff0000, v{CA+i}")
    for i in range(0, 8, 2):
        a(f"v_pk_fma_f32 {pr(U0+i)}, {pr(TOT+8+i)}, {pr(TOT+i)}, {pr(U0+i)}")
    for i in range(8):
        a(f"v_max_f32 v{U0+i}, 0, v{U0+i}")
    for i in range(0, 8, 2):
        a(f"v_pk_add_f32 {pr(D0+i)}, {pr(D0+i)}, {pr(U0+i)}")
    for i in range(4):
        a(f"v_cvt_pk_bf16_f32 v{D0+i}, v{D0+2*i}, v{D0+2*i+1}")
    a(f"""
buffer_store_dwordx4 {q4(D0)}, v{R}, s[36:39], 0 offen {OPT['st_out']}
@S13
@Wvmcnt(0)
@S14
@Vs{S_IT},22
@OUT
K_END:
s_endpgm
K_TAG_RETRY:
s_waitcnt lgkmcnt(0)
s_memrealtime s[52:53]
s_sleep 4
global_load_dword v64, v{VZ}, s[84:85] sc1
s_waitcnt vmcnt(0) lgkmcnt(0)
s_sub_u32 s52, s52, s50
s_cmp_lt_u32 s52, 0x400000
s_cbranch_scc1 K_TAGW
s_branch K_TAGOK
K_POLL_RETRY:
s_memrealtime s[52:53]
s_sleep {OPT['sleep']}
s_waitcnt lgkmcnt(0)
s_sub_u32 s52, s52, s50
s_cmp_lt_u32 s52, 0x400000
s_cbranch_scc1 K_POLL
""")
    for k in range(8):
        a(f"v_cndmask_b32 v{VTT+k}, v{VTT+k}, v{VZ}, vcc")
    a(f"""
s_branch K_POLLOK
K_LONG_ENTRY:
s_mov_b32 s14, 32
K_LONG:
v_add_u32 v6, s14, v2
s_mul_i32 s15, s14, 12
""")
    for k in range(8):
        a(f"""
s_mov_b64 exec, -1
v_cmp_gt_u32_sdwa vcc, v{VTT+k}, v6 src0_sel:WORD_1 src1_sel:DWORD
s_and_saveexec_b64 s[40:41], vcc
s_cbranch_execz K_LONG_S{k}
buffer_load_dwordx3 v[{R}:{R+2}], v{VRA+k}, s[32:35], s15 offen sc1
s_waitcnt vmcnt(0)
""")
        place_atomic(a, R, 4)
        a("s_waitcnt lgkmcnt(0)")
        place_write(a, R, 4)
        a(f"K_LONG_S{k}:")
    a(f"""
s_mov_b64 exec, -1
s_add_u32 s14, s14, 16
v_cmp_lt_u32 vcc, s14, v{VMAXL}
s_cbranch_vccnz K_LONG
s_branch K_PLACED
K_SLOW_ENTRY:
ds_max_u32 v{VZ}, v{VMAXL} offset:{L_MAXL}
s_waitcnt lgkmcnt(0)
s_barrier
ds_read_b32 v5, v{VZ} offset:{L_MAXL}
s_mov_b32 s{S_MODE}, 1
s_mov_b32 s{S_I}, 0
s_mov_b32 s{S_MO}, 0
s_waitcnt lgkmcnt(0)
v_readfirstlane_b32 s{S_ML}, v5
s_branch K_SLOW_BATCH
K_SLOW_NEXT:
s_add_u32 s{S_I}, s{S_I}, 1
s_cmp_lt_u32 s{S_I}, 64
s_cbranch_scc1 K_SLOW_BATCH
s_mov_b32 s{S_I}, 0
s_add_u32 s{S_MO}, s{S_MO}, 16
s_cmp_ge_u32 s{S_MO}, s{S_ML}
s_cbranch_scc1 K_FINAL
K_SLOW_BATCH:
s_waitcnt vmcnt(0) lgkmcnt(0)
s_barrier
""")
    slots_init(a, R, True)
    a(f"""
s_waitcnt lgkmcnt(0)
s_barrier
s_cmp_lg_u32 s3, 0
s_cbranch_scc1 K_SLOW_S
s_lshl_b32 s14, s{S_I}, 2
v_add_u32 v7, s14, v3
s_lshl_b32 s15, s{S_B}, 3
v_lshl_add_u32 v4, v7, 11, s15
buffer_load_dword v5, v4, s[32:35], 0 offen sc1
s_mov_b32 s15, {RECS}
v_mul_lo_u32 v7, v7, s15
v_add_u32 v6, s{S_MO}, v2
v_mad_u32_u24 v7, v6, 12, v7
v_add_u32 v7, {REC_REL}, v7
s_waitcnt vmcnt(0)
v_and_b32 v5, 0x0fff0fff, v5
v_mad_u32_u16 v4, v5, 12, v7
v_cmp_gt_u32_sdwa vcc, v5, v6 src0_sel:WORD_1 src1_sel:DWORD
s_and_saveexec_b64 s[40:41], vcc
s_cbranch_execz K_SLOW_S
buffer_load_dwordx3 v[{R}:{R+2}], v4, s[32:35], 0 offen sc1
s_waitcnt vmcnt(0)
""")
    place_atomic(a, R, 4)
    a("s_waitcnt lgkmcnt(0)")
    place_write(a, R, 4)
    a("""
K_SLOW_S:
s_mov_b64 exec, -1
s_waitcnt lgkmcnt(0)
s_barrier
s_branch K_RANK
""")
    return a.text()


HEADER = open("standalone__edge_featured_mpnn_gatedgcn__graph.s.ref").read().split("; Override launch")[0]


def main():
    out = HEADER
    out += f"; @launch grid=(256,1,1) block=(512,1,1) lds={LDS}\n"
    out += '.amdgcn_target "amdgcn-amd-amdhsa--gfx950"\n.text\n'
    out += f".globl {KNAME}\n.p2align 8\n.type {KNAME},@function\n" + kernel()
    out += f""".section .rodata,"a"
.p2align 6
.amdhsa_kernel {KNAME}
  .amdhsa_next_free_vgpr {NVGPR}
  .amdhsa_next_free_sgpr {101 if STAMPS else 98}
  .amdhsa_accum_offset {(NVGPR + 3) // 4 * 4}
  .amdhsa_group_segment_fixed_size 0
  .amdhsa_kernarg_size 96
  .amdhsa_user_sgpr_count 2
  .amdhsa_user_sgpr_kernarg_segment_ptr 1
  .amdhsa_system_sgpr_workgroup_id_x 1
.end_amdhsa_kernel
"""
    open(sys.argv[1], "w").write(out)


main()
```

```python
import sys
import struct
from math import gcd

N = 12500
E = 800000
QCH = 782
QH = QCH // 2
CH = QCH * 4
NQ = E // 4
RECB = CH * 12
RECS = 37632
TAB_ROWS = N + 1
TAB_BYTES = TAB_ROWS * 256
T_OFF = 0x310000
T2_REL = 0x80000
REC_REL = 0x81000
TR_BYTES = REC_REL + 256 * RECS
BIG = 0x40000000
NLOG2E = 0xbfb8aa3b
CAP = 128
CS = 132
XSS = 144
US = 272

OPT = dict(packpos="b", gs="2", nb="4", prio="1", order="", npf="352", pfs="128", sleep="2", ng0="2", st_out="nt", cadd="1")
for a_ in sys.argv[2:]:
    k_, v_ = a_.split("=")
    OPT[k_] = v_
STAMPS = bool(OPT.get("stamps"))
GS = int(OPT["gs"])
NB = int(OPT["nb"] or (6 if GS == 2 else 4))
UNR = NB * 2 // gcd(NB, 2)
MINPS = NB + 1
MAXIT = 62
KEXP = 60 if GS == 2 else 40
KBITS = (127 - KEXP) << 23
DBG_OFF = 0x1000000
KNAME = "standalone__edge_featured_mpnn_gatedgcn__graph_kernel"

L_CNT = 0
L_MASK = 256
L_MAXL = 324
L_ACKS = 328
L_ZERO = 384
L_TS = 640
L_TC = 1536
L_RK = 1792
L_HIST, L_START = 0, 1024
L_EA = 2048
EA_BYTES = 49 * CS * 8 + 32
L_KEYS = L_EA + EA_BYTES
KEY_BYTES = 49 * CS * 4 + 16
L_ACC = L_KEYS + KEY_BYTES
L_EXT = L_ACC + 52 * 512
L_STAGE = L_ACC
L_AP = L_EXT + 8 * 2048
L_U = L_AP + 49 * US
L_XS = L_U + 49 * US
L_WC = L_XS + 64 * XSS
LDS = L_WC + 512
assert 8 * GS * UNR + 8 <= L_TS - L_ZERO

_nv = [8]


def valloc(n, align=2):
    _nv[0] = (_nv[0] + align - 1) // align * align
    r = _nv[0]
    _nv[0] += n
    return r


GB = valloc(6 * GS * NB)
Y = (valloc(4 * GS), valloc(4 * GS))
HL = valloc(2 * GS)
P2, MM, SA, UU = valloc(4), valloc(4), valloc(4), valloc(4)
DEN = valloc(8)
NUM = DEN + 4
_nv[0] = max(_nv[0], 128)
AOP = [valloc(4) for _ in range(GS)]
CA, CN = valloc(4), valloc(4)
IDX = [valloc(2) for _ in range(GS)]
NX = valloc(2)
VK, VE, VF, VFN, VTK, VTE, NXE, VINC = [valloc(1, 1) for _ in range(8)]
TOT = valloc(16)
VTT = valloc(8)
VRA = valloc(8)
VCA = valloc(16)
PT = VCA
T2R = valloc(8)
VMAXL, VPF, VFOUR, VZ = [valloc(1, 1) for _ in range(4)]
VST = valloc(2)
NVGPR = _nv[0]
assert NVGPR <= 256, NVGPR
X0 = Y[0]
assert NUM + 4 - X0 >= 40

S_IT, S_MODE, S_I, S_MO, S_ML, S_CNT = 4, 5, 6, 7, 8, 9
S_K = 10
S_RAW = 12
S_B = 13
S_CM = 56
S_PR = 58
S_CS = 59
S_MASK = 60
S_AM = 62
S_TAG, S_TAG2, S_T2OK = 96, 97, 19


def stepbuf(p, i):
    return GB + 6 * (GS * (p % NB) + i)


def recset(j):
    return GB + 6 * j + 2 if j < GS * NB else X0 + 4 * (j - GS * NB)


class Asm:
    def __init__(self):
        self.L = []

    def __call__(self, s):
        for l in s.strip("\n").split("\n"):
            l = l.strip()
            if not l:
                continue
            if l.startswith("@"):
                if STAMPS:
                    self.special(l)
                continue
            self.L.append(l if l.endswith(":") else "    " + l)

    def special(self, l):
        if l.startswith("@S") or l.startswith("@C"):
            self(f"{'s_memtime' if l[1] == 'C' else 's_memrealtime'} s[98:99]")
            self("s_waitcnt lgkmcnt(0)")
            self(f"v_writelane_b32 v{VST}, s98, {int(l[2:])}")
        elif l.startswith("@W"):
            self("s_waitcnt " + l[2:])
        elif l.startswith("@V"):
            r, i = l[2:].split(",")
            self(f"v_writelane_b32 v{VST}, {r}, {i}")
        elif l.startswith("@OUT"):
            self(f"""
s_mov_b64 exec, -1
s_lshl_b32 s100, s2, 4
s_add_u32 s100, s100, s3
s_lshl_b32 s100, s100, 8
s_add_u32 s100, s100, {DBG_OFF + 0x100000:#x}
v_and_b32 v{VST+1}, 63, v0
v_lshl_add_u32 v{VST+1}, v{VST+1}, 2, s100
global_store_dword v{VST+1}, v{VST}, s[16:17]
""")

    def text(self):
        return "\n".join(self.L) + "\n"


def pr(r):
    return f"v[{r}:{r+1}]"


def q4(r):
    return f"v[{r}:{r+3}]"


def srd(a, d, lo, hi, nbytes, stride=0):
    a(f"s_mov_b32 s{d}, s{lo}")
    a(f"s_and_b32 s{d+1}, s{hi}, 0xffff")
    if stride:
        a(f"s_or_b32 s{d+1}, s{d+1}, {stride << 16:#x}")
    a(f"s_mov_b32 s{d+2}, {nbytes}")
    a(f"s_mov_b32 s{d+3}, 0x20000")


def scan(a, v, row_only=False, fill=()):
    fill = list(fill)
    steps = [f"row_shr:{d} row_mask:0xf" for d in (1, 2, 4, 8)]
    if not row_only:
        steps += ["row_bcast:15 row_mask:0xa", "row_bcast:31 row_mask:0xc"]
    for st in steps:
        if fill:
            a(fill.pop(0))
            a("s_nop 0")
        else:
            a("s_nop 1")
        a(f"v_add_u32_dpp v{v}, v{v}, v{v} {st} bank_mask:0xf")


SDWA_B0 = "dst_sel:DWORD dst_unused:UNUSED_PAD src0_sel:DWORD src1_sel:BYTE_0"


def tr_reads(a, vaddr, base, r0):
    for mat in range(2):
        for t in range(2):
            for s in range(2):
                r = r0 + 16 * mat + 8 * t + 4 * s
                o = base + mat * 8192 + s * 4096
                a(f"ds_read_b64_tr_b16 {pr(r)}, v{vaddr[t]} offset:{o}")
                a(f"ds_read_b64_tr_b16 {pr(r+2)}, v{vaddr[t]} offset:{o + 512}")


def tile_mfmas(a, r0, x0, d0):
    for s in range(2):
        for mat in range(2):
            for t in range(2):
                f = r0 + 16 * mat + 8 * t + 4 * s
                d = d0 + 8 * mat + 4 * t
                c = "0" if s == 0 else q4(d)
                a(f"v_mfma_f32_16x16x32_bf16 {q4(d)}, {q4(f)}, {q4(x0+4*s)}, {c}")


def slots_init(a, r, small):
    for i in range(4):
        a(f"v_mov_b32 v{r+i}, 0")
    for i in range(4):
        a(f"v_mov_b32 v{r+4+i}, {N}")
    z0 = 0 if small else L_EA
    a(f"v_lshlrev_b32 v{r+8}, 4, v0")
    a(f"v_add_u32 v{r+9}, {L_KEYS}, v{r+8}")
    nz, nk = (L_KEYS - z0) // 16, KEY_BYTES // 16
    for i in range(nz // 512):
        a(f"ds_write_b128 v{r+8}, {q4(r)} offset:{z0 + 8192*i}")
    for i in range(nk // 512):
        a(f"ds_write_b128 v{r+9}, {q4(r+4)} offset:{8192*i}")
    for rem, reg, data, off in sorted([(nz % 512, r + 8, r, z0 + 8192 * (nz // 512)), (nk % 512, r + 9, r + 4, 8192 * (nk // 512))], reverse=True):
        a(f"v_cmp_gt_u32 vcc, {rem}, v0")
        a("s_mov_b64 exec, vcc")
        a(f"ds_write_b128 v{reg}, {q4(data)} offset:{off}")
    a("s_mov_b64 exec, -1")


def place_atomic(a, r, ca):
    a(f"v_and_b32 v{ca}, 0xfc, v{r+2}")
    a(f"ds_add_rtn_u32 v{r+3}, v{ca}, v{VFOUR} offset:{L_CNT}")


def place_write(a, r, ca):
    a(f"v_min_u32 v{r+3}, {CAP*4}, v{r+3}")
    a(f"v_mad_u32_u24 v{ca}, v{ca}, s{S_CS}, v{r+3}")
    a(f"v_lshrrev_b32 v{r+2}, 8, v{r+2}")
    a(f"v_add_u32 v{r+3}, v{ca}, v{ca}")
    a(f"ds_write_b32 v{ca}, v{r+2} offset:{L_KEYS}")
    a(f"ds_write_b64 v{r+3}, {pr(r)} offset:{L_EA}")


def ev_k(a, sub):
    a(f"""
v_add_u32 v{VK}, {L_KEYS - sub}, v{NX}
v_add_u32 v4, v{NX+1}, v{IDX[0]+1}
v_add_u32 v{VTK}, 32, v{VTK}
v_add_u32 v{VTE}, 32, v{VTE}
ds_read_b128 {q4(CN)}, v4
ds_read_b32 v{NXE}, v{VTE} offset:{L_TS}
ds_read_b64 {pr(NX)}, v{VTK} offset:{L_TS + 32}
""")


def ev_e(a, sub):
    a(f"""
v_lshlrev_b32 v{VE}, 1, v{NXE}
v_add_u32 v{VE}, {L_EA - sub}, v{VE}
v_mov_b32 v4, {L_ZERO}
v_pk_mov_b32 {pr(CA)}, {pr(CN)}, {pr(CN)} op_sel:[0,1]
v_pk_mov_b32 {pr(CA+2)}, {pr(CN+2)}, {pr(CN+2)} op_sel:[0,1]
v_cndmask_b32_e64 v{VE}, v4, v{VE}, s[{S_AM}:{S_AM+1}]
""")


def gathers(p, idx):
    return [f"buffer_load_dwordx4 {q4(stepbuf(p, i) + 2)}, {pr(idx[i])}, s[24:27], 0 idxen offen sc1" for i in range(GS)]


def mfmas(p):
    y = Y[p & 1]
    return [f"v_mfma_f32_16x16x32_bf16 {q4(y+4*i)}, {q4(AOP[i])}, {q4(stepbuf(p, i))}, {q4(CA)}" for i in range(GS)]


def ops(k):
    y, yn = Y[k & 1], Y[1 - (k & 1)]
    b = [stepbuf(k, i) + 4 for i in range(GS)]
    sk = f"s[{S_K}:{S_K+1}]"
    d = {}
    for i in range(4 * GS):
        d[f"E{i}"] = f"v_exp_f32 v{yn+i}, v{yn+i}"
    for i in range(2 * GS):
        if OPT["cadd"] == "1":
            d[f"C{i}"] = f"v_pk_add_f32 {pr(y+2*i)}, {pr(y+2*i)}, {sk} clamp"
        else:
            d[f"C{i}"] = f"v_pk_fma_f32 {pr(y+2*i)}, {pr(y+2*i)}, {sk}, {sk} clamp"
    for i in range(4):
        d[f"R{i}"] = f"v_rcp_f32 v{MM+i}, v{MM+i}"
    for i in range(2):
        p = [pr(y + 4 * j + 2 * i) for j in range(GS)]
        h = [pr(HL + 2 * j) if i == 0 else pr(b[j]) for j in range(GS)]
        m, s, u, p2 = pr(MM + 2 * i), pr(SA + 2 * i), pr(UU + 2 * i), pr(P2 + 2 * i)
        d[f"m{i}"] = f"v_pk_mul_f32 {m if GS == 2 else p2}, {p[0]}, {p[1]}"
        d[f"a{i}"] = f"v_pk_add_f32 {s}, {p[0]}, {p[1]}"
        d[f"g{i}"] = f"v_pk_mul_f32 {u}, {p[1]}, {h[0]}"
        d[f"h{i}"] = f"v_pk_fma_f32 {u}, {p[0]}, {h[1]}, {u}"
        if GS == 3:
            d[f"M{i}"] = f"v_pk_mul_f32 {m}, {p2}, {p[2]}"
            d[f"s{i}"] = f"v_pk_fma_f32 {s}, {s}, {p[2]}, {p2}"
            d[f"i{i}"] = f"v_pk_mul_f32 {u}, {u}, {p[2]}"
            d[f"j{i}"] = f"v_pk_fma_f32 {u}, {p2}, {h[2]}, {u}"
        d[f"d{i}"] = f"v_pk_fma_f32 {pr(DEN+2*i)}, {s}, {m}, {pr(DEN+2*i)}"
        d[f"n{i}"] = f"v_pk_fma_f32 {pr(NUM+2*i)}, {u}, {m}, {pr(NUM+2*i)}"
    for i in range(GS):
        d[f"Q{i}"] = f"v_lshlrev_b64 {pr(HL+2*i)}, 16, {pr(b[i])}"
        d[f"N{i}"] = mfmas(k + 2)[i]
        d[f"L{i}"] = gathers(k, IDX)[i]
        d[f"k{i}"] = f"ds_read_b32 v{IDX[i]}, v{VK} offset:{4*(GS*k+i)}"
        d[f"e{i}"] = f"ds_read_b64 {pr(AOP[i])}, v{VE} offset:{8*(GS*k+i)}"
    d["W"] = f"s_waitcnt vmcnt({GS*(NB-3)}) lgkmcnt(0)"
    d["S"] = f"s_sub_u32 s{S_CNT}, s{S_CNT}, 1"
    d["A0"] = f"v_add_u32 v{VK}, {4*GS*UNR}, v{VK}" if k == UNR - 1 else ""
    d["A1"] = f"v_add_u32 v{VE}, v{VINC}, v{VE}" if k == UNR - 1 else ""
    return d


ORDERS = {
    2: {
        "": "k0 k1 e0 e1 C0 E0 C2 E1 C1 E2 C3 E3 m0 E4 m1 E5 Q0 Q1 A0 A1 a0 a1 g0 g1 h0 h1 W L0 L1 S N0 R0 R1 N1 R2 R3 E6 d0 E7 d1 n0 n1",
    },
    3: {
        "": "k0 k1 k2 e0 e1 e2 C0 E0 C2 E1 C4 E2 C1 E3 C3 E4 C5 E5 m0 E6 m1 E7 M0 M1 Q0 Q1 Q2 A0 A1 a0 a1 g0 g1 s0 s1 h0 h1 i0 i1 j0 j1 W L0 L1 L2 S N0 R0 R1 N1 R2 R3 N2 E8 E9 d0 E10 d1 E11 n0 n1",
        "b": "k0 k1 k2 e0 e1 e2 C0 E0 C2 E1 C4 E2 C1 E3 C3 E4 C5 E5 m0 m1 M0 M1 Q0 Q1 Q2 A0 A1 a0 a1 g0 g1 s0 s1 h0 h1 i0 i1 j0 j1 W N0 R0 R1 N1 R2 R3 N2 E6 E7 L0 L1 L2 S E8 d0 E9 d1 E10 n0 E11 n1",
        "c": "k0 k1 k2 e0 e1 e2 C0 E0 C2 E1 m0 E2 C4 E3 M0 E4 C1 E5 C3 E6 m1 E7 C5 M1 Q0 Q1 Q2 A0 A1 a0 a1 g0 g1 s0 s1 h0 h1 i0 i1 j0 j1 W L0 L1 L2 S N0 R0 R1 N1 R2 R3 N2 E8 E9 d0 E10 d1 E11 n0 n1",
    },
}


def t2_check(a):
    a(f"v_xor_b32 v4, s{S_TAG}, v{T2R}")
    for i in (2, 4, 6):
        a(f"v_xor_b32 v5, s{S_TAG}, v{T2R+i}")
        a("v_or_b32 v4, v4, v5")
    for i in (1, 3, 5, 7):
        a(f"v_xor_b32 v5, s{S_TAG2}, v{T2R+i}")
        a("v_or_b32 v4, v4, v5")
    a("v_cmp_ne_u32 vcc, 0, v4")


def t2_loads(a):
    a(f"""
v_lshlrev_b32 v4, 4, v1
s_mov_b32 s40, {T2_REL:#x}
buffer_load_dwordx4 {q4(T2R)}, v4, s[32:35], s40 offen sc1
buffer_load_dwordx4 {q4(T2R+4)}, v4, s[32:35], s40 offen offset:1024 sc1
""")


def kernel():
    a = Asm()
    VTR, VXA, VWC, VAU, VLOC = VK, VE, VF, VFN, NXE
    VE2, VT2 = VTK, VTE
    VTR1, VWG, XF = VMAXL, VPF, T2R
    a(f"""
{KNAME}:
s_cmp_ge_u32 s2, 256
s_cbranch_scc1 K_END
@S0
@C30
s_load_dwordx16 s[64:79], s[0:1], 0
s_load_dwordx8 s[80:87], s[0:1], 64
v_readfirstlane_b32 s3, v0
s_mul_i32 s40, s2, {QCH}
v_add_u32 v4, s40, v0
v_add_u32 v5, {QH}, v4
v_cmp_gt_u32 vcc, {QH}, v0
s_mov_b32 s41, {NQ}
v_cmp_gt_u32_e64 s[94:95], s41, v5
v_lshlrev_b32 v4, 4, v4
v_lshlrev_b32 v5, 4, v5
v_mov_b32 v6, {BIG:#x}
s_mov_b64 s[92:93], vcc
s_and_b64 s[94:95], s[94:95], vcc
s_lshr_b32 s3, s3, 6
v_cndmask_b32 v4, v6, v4, vcc
v_cndmask_b32_e64 v5, v6, v5, s[94:95]
v_and_b32 v7, 255, v0
v_lshlrev_b32 v7, 2, v7
v_mov_b32 v{VZ}, 0
ds_write_b32 v7, v{VZ} offset:{L_HIST}
s_and_b32 s{S_B}, s2, 7
s_lshl_b32 s{S_B}, s{S_B}, 5
s_lshr_b32 s40, s2, 3
s_or_b32 s{S_B}, s{S_B}, s40
v_lshlrev_b32 v61, 4, v0
v_lshrrev_b32 v62, 3, v0
v_lshlrev_b32 v90, 8, v62
v_add_u32 v90, s{S_B}, v90
v_lshlrev_b32 v90, 7, v90
v_and_b32 v63, 7, v0
v_lshl_add_u32 v90, v63, 4, v90
v_and_b32 v96, 16, v0
v_lshlrev_b32 v96, 1, v96
v_and_b32 v97, 64, v0
v_or_b32 v96, v96, v97
v_xor_b32 v96, v96, v61
v_mov_b32 v{VWG}, v96
s_mov_b32 s47, 0x20000
s_mov_b32 s46, {E*4}
s_or_b32 s40, s2, s3
s_cmp_lg_u32 s40, 0
s_waitcnt lgkmcnt(0)
s_mov_b32 s44, s70
s_cbranch_scc1 K_NONONCE
s_memrealtime s[40:41]
s_waitcnt lgkmcnt(0)
s_or_b32 s40, s40, 1
v_mov_b32 v7, s40
s_mov_b64 exec, 1
global_store_dword v{VZ}, v7, s[84:85] sc1
s_mov_b64 exec, -1
K_NONONCE:
""")
    if OPT.get("cpf", "0") != "0":
        a(f"""
s_cmp_lg_u32 s3, {OPT['cpf']}
s_cbranch_scc1 K_NOCPF
s_getpc_b64 s[42:43]
v_and_b32 v7, 63, v0
v_lshlrev_b32 v7, 7, v7
global_load_dword v{VFOUR}, v7, s[42:43]
v_add_u32 v7, 8192, v7
v_cmp_gt_u32 vcc, {8192 + 3072}, v7
s_mov_b64 exec, vcc
global_load_dword v{VFOUR}, v7, s[42:43]
s_mov_b64 exec, -1
K_NOCPF:
""")
    srd(a, 20, 64, 65, N * 128)
    a(f"""
s_and_b32 s45, s71, 0xffff
global_load_dwordx4 v[40:43], v96, s[74:75]
global_load_dwordx4 v[44:47], v96, s[80:81]
buffer_load_dwordx4 v[56:59], v90, s[20:23], 0 offen
buffer_load_dwordx4 v[8:11], v4, s[44:47], 0 offen
buffer_load_dwordx4 v[12:15], v5, s[44:47], 0 offen
""")
    srd(a, 48, 68, 69, E * 4)
    srd(a, 52, 66, 67, E * 8)
    a(f"""
v_lshlrev_b32 v6, 1, v4
v_lshlrev_b32 v7, 1, v5
v_mov_b32 v74, v4
v_mov_b32 v75, v5
@S1
""")
    NE = int(OPT.get("ne", 2))
    later = ["buffer_load_dwordx4 v[24:27], v6, s[52:55], 0 offen",
             "buffer_load_dwordx4 v[28:31], v6, s[52:55], 0 offen offset:16",
             "buffer_load_dwordx4 v[16:19], v74, s[48:51], 0 offen",
             "buffer_load_dwordx4 v[20:23], v75, s[48:51], 0 offen"]
    if NE:
        a("s_barrier")
    for l in later[:NE]:
        a(l)
    slots_init(a, 64, False)
    a(f"""
v_and_b32 v1, 63, v0
v_and_b32 v2, 15, v0
v_bfe_u32 v3, v0, 4, 2
v_and_b32 v91, 127, v0
v_lshlrev_b32 v91, 2, v91
v_mul_u32_u24 v62, {XSS}, v62
v_lshl_add_u32 v62, v63, 4, v62
v_add_u32 v62, {L_XS}, v62
v_add_u32 v63, {L_AP}, v61
s_mov_b64 s[16:17], s[86:87]
s_lshr_b32 s18, s3, 1
s_lshl_b32 s18, s18, 4
s_and_b32 s19, s3, 1
v_lshrrev_b32 v{VE2}, 2, v2
v_lshl_add_u32 v{VTR}, v3, 3, v{VE2}
v_lshlrev_b32 v{VTR}, 7, v{VTR}
v_and_b32 v{VT2}, 3, v2
v_lshl_add_u32 v{VTR}, v{VT2}, 3, v{VTR}
s_lshl_b32 s40, s19, 6
v_add_u32 v{VTR}, s40, v{VTR}
v_and_b32 v4, 8, v2
v_lshlrev_b32 v4, 2, v4
v_and_b32 v5, 1, v3
v_lshl_or_b32 v4, v5, 6, v4
v_xor_b32 v{VTR}, v4, v{VTR}
v_xor_b32 v{VTR1}, 32, v{VTR}
v_add_u32 v{VTR}, {L_AP}, v{VTR}
v_add_u32 v{VTR1}, {L_AP}, v{VTR1}
v_add_u32 v{VLOC}, s18, v2
v_mul_u32_u24 v{VXA}, {XSS}, v{VLOC}
v_lshl_add_u32 v{VXA}, v3, 4, v{VXA}
v_add_u32 v{VXA}, {L_XS}, v{VXA}
""")
    srd(a, 28, 16, 17, TAB_BYTES)
    a(f"""
v_lshlrev_b32 v4, 8, v{VLOC}
v_add_u32 v4, s{S_B}, v4
v_lshlrev_b32 v60, 8, v4
v_lshl_add_u32 v60, v3, 4, v60
s_lshl_b32 s40, s19, 7
v_add_u32 v60, s40, v60
v_cmp_eq_u32 vcc, {N}, v4
v_mov_b32 v4, 0x7f000000
v_mov_b32 v5, 0x7f007f00
s_mov_b32 s56, 0x07060100
s_mov_b32 s57, 0x07060302
@S2
s_waitcnt vmcnt({2 + NE})
ds_write_b128 v63, v[40:43]
ds_write_b128 v63, v[44:47] offset:8192
ds_write_b128 v62, v[56:59]
v_mov_b32 v63, 1
s_waitcnt lgkmcnt(0)
@S3
s_barrier
ds_read_b128 {q4(XF)}, v{VXA}
ds_read_b128 {q4(XF+4)}, v{VXA} offset:64
""")
    tr_reads(a, (VTR, VTR1), 0, 96)
    for l in later[NE:]:
        a(l)
    a("s_waitcnt vmcnt(5)")
    for i in range(4):
        a(f"v_lshlrev_b32_sdwa v{64+i}, 2, v{8+i} {SDWA_B0}")
    a("s_waitcnt vmcnt(4)")
    for i in range(4, 8):
        a(f"v_lshlrev_b32_sdwa v{64+i}, 2, v{8+i} {SDWA_B0}")
    a("s_mov_b64 exec, s[92:93]")
    for i in range(4):
        a(f"ds_add_rtn_u32 v{72+i}, v{64+i}, v63 offset:{L_HIST}")
    a("s_mov_b64 exec, s[94:95]")
    for i in range(4, 8):
        a(f"ds_add_rtn_u32 v{72+i}, v{64+i}, v63 offset:{L_HIST}")
    a("""
s_mov_b64 exec, -1
s_waitcnt lgkmcnt(8)
""")
    tile_mfmas(a, 96, XF, TOT)
    a(f"""
buffer_load_dwordx4 v[32:35], v7, s[52:55], 0 offen
buffer_load_dwordx4 v[36:39], v7, s[52:55], 0 offen offset:16
""")
    for i in range(8):
        a(f"v_lshrrev_b32 v{8+i}, 6, v{8+i}")
    a("v_lshlrev_b32 v7, 4, v1")
    seqs = []
    for t in range(2):
        b, h, o, tm = TOT + 4 * t, TOT + 8 + 4 * t, 40 + 4 * t, 88 + t
        q = [f"v_mul_f32 v{b+i}, {NLOG2E:#x}, v{b+i}" for i in range(4)]
        q += [f"v_med3_f32 v{b+i}, v{b+i}, v4, -v4" for i in range(4)]
        q += [f"v_cvt_pk_bf16_f32 v{tm}, v{h}, v{h}"]
        q += [f"v_cvt_pk_bf16_f32 v{o}, v{b}, v{b+1}", f"v_cvt_pk_bf16_f32 v{o+1}, v{b+2}, v{b+3}"]
        q += [f"v_perm_b32 v{o+2}, v{h+2}, v{tm}, s56", f"v_perm_b32 v{o+3}, v{h+3}, v{h+1}, s57"]
        q += [f"v_cndmask_b32 v{o}, v{o}, v5, vcc", f"v_cndmask_b32 v{o+1}, v{o+1}, v5, vcc"]
        seqs.append(q)
    pack = [z for xy in zip(*seqs) for z in xy]
    stores = [f"buffer_store_dwordx4 {q4(40+4*t)}, v60, s[28:31], 0 offen offset:{64*t} sc1" for t in range(2)]
    late = OPT.get("packpos", "a") == "b"
    if not late:
        for l in pack + stores:
            a(l)
    a(f"""
s_waitcnt lgkmcnt(0)
@S4
s_barrier
@S5
ds_read_b128 v[80:83], v7 offset:{L_HIST}
""")
    srd(a, 24, 16, 17, TAB_ROWS, stride=256)
    srd(a, 36, 82, 83, N * 128)
    a(f"""
s_mov_b32 s40, {L_STAGE}
s_waitcnt lgkmcnt(0)
v_add_u32 v85, v80, v81
v_add_u32 v86, v85, v82
v_add_u32 v90, v86, v83
v_mov_b32 v62, v90
""")
    wl = ["global_load_dwordx4 v[48:51], v96x, s[72:73]", "global_load_dwordx4 v[52:55], v96x, s[78:79]", "global_load_dword v56, v91, s[76:77]"]
    wl = [l.replace("v96x", f"v{VWG}") for l in wl]
    if late:
        steps = [f"row_shr:{d} row_mask:0xf" for d in (1, 2, 4, 8)] + ["row_bcast:15 row_mask:0xa", "row_bcast:31 row_mask:0xc"]
        for st in steps:
            a(pack.pop(0)); a(pack.pop(0))
            a(f"v_add_u32_dpp v90, v90, v90 {st} bank_mask:0xf")
    else:
        scan(a, 90, fill=wl)
    a(f"""
v_sub_u32 v84, v90, v62
v_add_u32 v87, v84, v86
v_add_u32 v86, v84, v85
v_add_u32 v85, v84, v80
ds_write_b128 v7, v[84:87] offset:{L_START}
""")
    for i in range(8):
        a(f"ds_read_b32 v{64+i}, v{64+i} offset:{L_START}")
    for i in range(4):
        a(f"v_lshl_or_b32 v{92+i}, v{80+i}, 16, v{84+i}")
    if late:
        for l in pack + stores + wl:
            a(l)
    a(f"""
s_add_u32 s32, s16, {T_OFF:#x}
s_addc_u32 s33, s17, 0
s_and_b32 s33, s33, 0xffff
s_mov_b32 s34, {TR_BYTES}
s_mov_b32 s35, 0x20000
s_mul_i32 s41, s2, {RECS}
s_add_u32 s41, s41, {T_OFF + REC_REL:#x}
s_add_u32 s88, s16, s41
s_addc_u32 s89, s17, 0
s_and_b32 s89, s89, 0xffff
s_mov_b32 s90, {RECB}
s_mov_b32 s91, 0x20000
s_waitcnt vmcnt(7)
""")
    for i in range(8):
        a(f"v_lshl_or_b32 v{16+i}, v{16+i}, 8, v{8+i}")
    for i in range(8):
        a(f"s_waitcnt lgkmcnt({7-i})")
        a(f"v_add_u32 v{64+i}, v{64+i}, v{72+i}")
        a(f"v_mad_u32_u24 v{64+i}, v{64+i}, 12, s40")
    a("s_mov_b64 exec, s[92:93]")
    for i in range(4):
        a(f"ds_write_b32 v{64+i}, v{16+i} offset:8")
        a(f"ds_write2_b32 v{64+i}, v{24+2*i}, v{25+2*i} offset0:0 offset1:1")
    a("s_mov_b64 exec, s[94:95]")
    for i in range(4, 8):
        a(f"ds_write_b32 v{64+i}, v{16+i} offset:8")
    a("s_waitcnt vmcnt(5)")
    for i in range(4, 8):
        a(f"ds_write2_b32 v{64+i}, v{24+2*i}, v{25+2*i} offset0:0 offset1:1")
    a(f"""
s_mov_b64 exec, -1
@S6
s_movk_i32 s14, {RECB//16 - 2048}
v_cmp_gt_u32_e64 s[14:15], s14, v0
v_add_u32 v63, {L_STAGE}, v61
v_add_u32 v91, {L_WC}, v91
s_movk_i32 s44, 0x2000
s_movk_i32 s45, 0x4000
s_movk_i32 s46, 0x6000
s_mov_b32 s47, 0x8000
v_cmp_gt_u32 vcc, 128, v0
s_waitcnt lgkmcnt(0)
@S7
s_barrier
@S8
""")
    for i in range(4):
        a(f"ds_read_b128 {q4(8+4*i)}, v63 offset:{8192*i}")
    a(f"""
s_mov_b64 exec, s[14:15]
ds_read_b128 v[24:27], v63 offset:32768
s_mov_b64 exec, -1
v_mov_b32 v28, 0
v_mov_b32 v29, 0
v_mov_b32 v30, 0
v_mov_b32 v31, 0
""")
    for i in range(4):
        a(f"s_waitcnt lgkmcnt({4-i})")
        so = "0" if i == 0 else f"s{43+i}"
        a(f"buffer_store_dwordx4 {q4(8+4*i)}, v61, s[88:91], {so} offen sc1")
    koff = struct.unpack("<I", struct.pack("<f", -float(KEXP) if OPT["cadd"] == "1" else 0.0))[0]
    a(f"""
s_mov_b64 exec, s[14:15]
s_waitcnt lgkmcnt(0)
buffer_store_dwordx4 v[24:27], v61, s[88:91], s47 offen sc1
s_mov_b64 exec, vcc
ds_write_b128 v61, v[28:31]
s_mov_b64 exec, -1
global_load_dword v64, v{VZ}, s[84:85] sc1
@S9
s_waitcnt vmcnt(6)
ds_write_b128 v63, v[48:51]
ds_write_b128 v63, v[52:55] offset:8192
ds_write_b32 v91, v56
v_add_u32 v{VTR}, {L_STAGE - L_AP}, v{VTR}
v_add_u32 v{VTR1}, {L_STAGE - L_AP}, v{VTR1}
v_lshl_add_u32 v{VWC}, v2, 2, v3
v_lshlrev_b32 v{VWC}, 1, v{VWC}
v_add_u32 v{VWC}, {L_WC}, v{VWC}
s_movk_i32 s40, {US}
s_lshl_b32 s41, s19, 7
s_add_u32 s41, s41, {L_AP}
v_mad_u32_u24 v{VAU}, v{VLOC}, s40, 0
v_lshl_add_u32 v{VAU}, v3, 4, v{VAU}
v_add_u32 v{VAU}, s41, v{VAU}
v_cmp_gt_u32_e64 s[14:15], 49, v{VLOC}
s_mov_b32 s{S_MODE}, 0
s_mov_b32 s{S_CS}, {CS}
s_mov_b32 s{S_AM}, 0x22221111
s_mov_b32 s{S_AM+1}, 0x88884444
s_mov_b32 s{S_K}, {KBITS:#x}
s_mov_b32 s{S_K+1}, {KBITS:#x}
s_mov_b32 s6, {NLOG2E:#x}
s_mov_b32 s7, {NLOG2E:#x}
v_mov_b32 v{NX}, {koff:#x}
v_mov_b32 v{NX+1}, {koff:#x}
v_and_b32 v5, 1, v{VT2}
v_lshlrev_b32 v5, 4, v5
v_mov_b32 v6, 0x3f80
v_lshlrev_b32 v5, v5, v6
v_cmp_eq_u32 vcc, v3, v{VE2}
v_cmp_gt_u32_e64 s[52:53], 2, v{VT2}
v_cmp_le_u32_e64 s[54:55], 2, v{VT2}
v_mov_b32 v6, {8*GS*UNR}
v_cndmask_b32 v5, 0, v5, vcc
v_cndmask_b32_e64 v{VINC}, 0, v6, s[{S_AM}:{S_AM+1}]
v_mov_b32 v{VFOUR}, 4
""")
    for i in range(GS):
        a(f"v_cndmask_b32_e64 v{AOP[i]+2}, 0, v5, s[52:53]")
        a(f"v_cndmask_b32_e64 v{AOP[i]+3}, 0, v5, s[54:55]")
        a(f"v_lshlrev_b32 v{IDX[i]+1}, 4, v2")
    a(f"""
s_lshl_b32 s41, s{S_B}, 3
v_lshl_add_u32 v4, v3, 11, s41
s_lshl_b32 s40, s3, 16
""")
    for k in range(1, 8):
        a(f"s_add_u32 s{40+k}, s40, {8192*k}")
    V0, V1, V2, V3, V4 = X0 + 16, X0 + 17, X0 + 18, X0 + 19, X0 + 20
    a(f"""
s_lshl_b32 s48, s3, 5
v_add_u32 v5, s48, v3
s_mov_b32 s49, {RECS}
v_mul_lo_u32 v5, v5, s49
v_mad_u32_u24 v5, v2, 12, v5
v_add_u32 v5, {REC_REL}, v5
v_add_u32 v6, 16, v2
s_memrealtime s[50:51]
@S18
s_waitcnt vmcnt(0)
K_TAGW:
v_readfirstlane_b32 s{S_TAG}, v64
s_cmp_lg_u32 s{S_TAG}, 0
s_cbranch_scc0 K_TAG_RETRY
K_TAGOK:
s_mul_i32 s48, s{S_TAG}, 0x9e3779b1
s_and_b32 s48, s48, 0xf000f000
s_waitcnt lgkmcnt(0)
@S19
s_barrier
s_cmp_lg_u32 s3, 0
s_cbranch_scc1 K_NOPUB
v_or_b32 v8, s48, v92
v_mov_b32 v9, s{S_TAG}
v_or_b32 v10, s48, v93
v_mov_b32 v11, s{S_TAG}
v_or_b32 v12, s48, v94
v_mov_b32 v13, s{S_TAG}
v_or_b32 v14, s48, v95
v_mov_b32 v15, s{S_TAG}
v_lshlrev_b32 v16, 5, v1
s_lshl_b32 s49, s2, 11
buffer_store_dwordx4 v[8:11], v16, s[32:35], s49 offen sc1
buffer_store_dwordx4 v[12:15], v16, s[32:35], s49 offen offset:16 sc1
K_NOPUB:
""")
    tr_reads(a, (VTR, VTR1), 0, 96)
    a(f"""
ds_read_u16 v{CA}, v{VWC}
ds_read_u16 v{CA+1}, v{VWC} offset:128
ds_read_u16 v{CA+2}, v{VWC} offset:256
ds_read_u16 v{CA+3}, v{VWC} offset:384
s_mov_b32 s49, 0xf000f000
s_waitcnt lgkmcnt(4)
""")
    tile_mfmas(a, 96, XF, TOT)
    a("s_waitcnt lgkmcnt(0)")
    for k in range(4):
        a(f"v_lshlrev_b32 v{CA+k}, 16, v{CA+k}")
    for k in range(4):
        a(f"v_mul_f32 v{CA+k}, {NLOG2E:#x}, v{CA+k}")
    a(f"v_cvt_pk_bf16_f32 v{CN}, v{CA}, v{CA+1}")
    a(f"v_cvt_pk_bf16_f32 v{CN+1}, v{CA+2}, v{CA+3}")
    a(f"v_mov_b32 v{V0}, s{S_TAG}")
    a(f"v_mov_b32 v{V1}, s48")
    a("s_mov_b64 exec, s[14:15]")
    a(f"ds_write_b128 v{VAU}, {q4(TOT+8)} offset:{L_U - L_AP}")
    a(f"ds_write_b128 v{VAU}, {q4(TOT+12)} offset:{L_U - L_AP + 64}")
    for i in range(0, 8, 2):
        a(f"v_pk_fma_f32 {pr(TOT+i)}, {pr(TOT+i)}, s[6:7], {pr(NX)}")
    a(f"""
ds_write_b128 v{VAU}, {q4(TOT)}
ds_write_b128 v{VAU}, {q4(TOT+4)} offset:64
s_mov_b64 exec, -1
""")
    for p in range(NB):
        for i in range(GS):
            a(f"v_pk_mov_b32 {pr(stepbuf(p, i))}, {pr(CN)}, {pr(CN)} op_sel:[0,1]")
    for i in range(0, 16, 2):
        a(f"v_pk_mov_b32 {pr(TOT+i)}, 0, 0")
    if int(OPT.get("presleep", 0)):
        a(f"s_sleep {OPT['presleep']}")
    a("""
@S23
K_POLL:
""")
    for k in range(8):
        a(f"buffer_load_dwordx2 {pr(PT+2*k)}, v4, s[32:35], s{40+k} offen sc1")
    a(f"v_mov_b32 v{V2}, 0")
    for k in range(8):
        a(f"s_waitcnt vmcnt({7-k})")
        a(f"v_xor_b32 v{V3}, v{PT+2*k}, v{V1}")
        a(f"v_xor_b32 v{V4}, v{PT+2*k+1}, v{V0}")
        a(f"v_and_or_b32 v{V2}, v{V3}, s49, v{V2}")
        a(f"v_and_b32 v{VTT+k}, 0x0fff0fff, v{PT+2*k}")
        a(f"v_or_b32 v{V2}, v{V4}, v{V2}")
    a(f"""
v_cmp_ne_u32 vcc, 0, v{V2}
s_cbranch_vccnz K_POLL_RETRY
K_POLLOK:
@S24
s_mov_b64 exec, 1
ds_add_u32 v{VZ}, v{VFOUR} offset:{L_ACKS}
s_mov_b64 exec, -1
""")
    for k in range(8):
        a(f"v_mad_u32_u16 v{VRA+k}, v{VTT+k}, 12, v5")
        a(f"v_cmp_gt_u32_sdwa s[{80+2*k}:{81+2*k}], v{VTT+k}, v6 src0_sel:WORD_1 src1_sel:DWORD")
        if k < 7:
            a(f"v_add_u32 v5, {4*RECS}, v5")
        r = recset(8 + k)
        a(f"s_mov_b64 exec, s[{80+2*k}:{81+2*k}]")
        a(f"s_cbranch_execz K_M1L{k}")
        a(f"buffer_load_dwordx3 v[{r}:{r+2}], v{VRA+k}, s[32:35], 0 offen offset:192 sc1")
        a(f"K_M1L{k}:")
        a("s_mov_b64 exec, -1")
        a(f"v_cmp_gt_u32_sdwa s[{64+2*k}:{65+2*k}], v{VTT+k}, v2 src0_sel:WORD_1 src1_sel:DWORD")
    for k in range(8):
        r = recset(k)
        a(f"s_mov_b64 exec, s[{64+2*k}:{65+2*k}]")
        a(f"buffer_load_dwordx3 v[{r}:{r+2}], v{VRA+k}, s[32:35], 0 offen sc1")
    a(f"""
s_mov_b64 exec, -1
@S25
v_max3_u32 v4, v{VTT}, v{VTT+1}, v{VTT+2}
v_max3_u32 v5, v{VTT+3}, v{VTT+4}, v{VTT+5}
v_max3_u32 v4, v4, v{VTT+6}, v{VTT+7}
v_max_u32 v4, v4, v5
v_lshrrev_b32 v{VMAXL}, 16, v4
s_waitcnt vmcnt(8)
""")

    def A_(j):
        a(f"s_waitcnt vmcnt({7 - j})")
        a(f"s_mov_b64 exec, s[{64+2*j}:{65+2*j}]")
        place_atomic(a, recset(j), VCA + j)

    def W_(j, n):
        a(f"s_mov_b64 exec, s[{64+2*j}:{65+2*j}]")
        if n is not None:
            a(f"s_waitcnt lgkmcnt({n})")
        place_write(a, recset(j), VCA + j)
    for j in range(8):
        a(f"s_mov_b64 exec, s[{80+2*j}:{81+2*j}]")
        a(f"s_cbranch_execz K_M1A{j}")
        place_atomic(a, recset(8 + j), VCA + 8 + j)
        a(f"K_M1A{j}:")
    A_(0); A_(1)
    a("s_waitcnt lgkmcnt(2)")
    for j in range(8):
        a(f"s_mov_b64 exec, s[{80+2*j}:{81+2*j}]")
        a(f"s_cbranch_execz K_M1W{j}")
        place_write(a, recset(8 + j), VCA + 8 + j)
        a(f"K_M1W{j}:")
    A_(2)
    W_(0, 1)
    W_(1, None)
    A_(3)
    W_(2, 5)
    A_(4)
    W_(3, 3)
    A_(5)
    W_(4, 3)
    A_(6)
    a("s_mov_b64 exec, -1")
    a(f"ds_read_b32 v7, v{VZ} offset:{L_ACKS}")
    W_(5, 4)
    A_(7)
    a("@S26")
    W_(6, 4)
    npf, pfs = int(OPT["npf"]), int(OPT["pfs"])
    a(f"""
s_mov_b64 exec, -1
s_waitcnt lgkmcnt(2)
v_readfirstlane_b32 s40, v7
s_cmp_lg_u32 s40, 32
s_cbranch_scc1 K_NOPF
""")
    if npf:
        a(f"""
s_lshr_b32 s40, s2, 3
s_mul_i32 s40, s40, {782*128}
v_mul_u32_u24 v7, {pfs}, v0
v_add_u32 v7, s40, v7
""")
        for p in range(-(-npf // 512)):
            if p:
                a(f"v_add_u32 v7, {512*pfs}, v7")
            if npf - 512 * p < 512:
                a(f"v_cmp_gt_u32 vcc, {npf - 512*p}, v0")
                a("s_mov_b64 exec, vcc")
            a(f"buffer_load_dword v{VPF}, v7, s[28:31], 0 offen sc1")
    a("K_NOPF:")
    W_(7, None)
    R = X0
    a(f"""
s_mov_b64 exec, -1
v_cmp_lt_u32 vcc, 32, v{VMAXL}
s_cbranch_vccnz K_LONG_ENTRY
K_PLACED:
s_waitcnt lgkmcnt(0)
@S27
s_barrier
@S28
K_RANK:
v_lshlrev_b32 v4, 2, v1
ds_read_b32 v{R}, v4 offset:{L_CNT}
""")
    for i in range(1, 6):
        a(f"s_add_u32 s{40+i}, s3, {8*i}")
    a(f"""
v_cmp_gt_u32_e64 s[52:53], 48, v1
v_lshl_add_u32 v{R+2}, v1, 3, s3
v_mul_u32_u24 v{R+6}, {CS*4}, v{R+2}
v_mul_u32_u24 v{R+7}, {US}, v{R+2}
v_add_u32 v{R+7}, {L_AP}, v{R+7}
v_lshlrev_b32 v{R+2}, 2, v{R+2}
s_waitcnt lgkmcnt(0)
v_cmp_lt_u32 vcc, {CAP*4}, v{R}
v_lshl_add_u32 v{R+1}, v{R}, 4, v1
v_add_u32 v{R+1}, 1, v{R+1}
s_cbranch_vccnz K_SLOW_ENTRY
v_cndmask_b32_e64 v{R+1}, 0, v{R+1}, s[52:53]
v_readlane_b32 s50, v{R}, 48
""")
    for i in range(6):
        a(f"v_readlane_b32 s{64+i}, v{R+1}, s{3 if i == 0 else 40+i}")
    a(f"s_add_u32 s51, s50, {4*(4*GS-1)}")
    for i in range(6):
        a(f"v_cmp_lt_u32_e64 s[{72+2*i}:{73+2*i}], s{64+i}, v{R+1}")
    if GS == 2:
        a("s_lshr_b32 s51, s51, 5")
    else:
        a("s_lshr_b32 s51, s51, 4")
        a("s_mul_i32 s51, s51, 0x5556")
        a("s_lshr_b32 s51, s51, 16")
    for i in range(6):
        a(f"v_writelane_b32 v{R+3}, s{64+i}, {i}")
        a(f"s_bcnt1_i32_b64 s{72+2*i}, s[{72+2*i}:{73+2*i}]")
    a(f"""
s_max_u32 s51, s51, {MINPS}
s_cmp_eq_u32 s50, 0
s_cselect_b32 s50, 0, s51
s_mul_i32 s50, s50, {GS}
""")
    for i in range(6):
        a(f"v_writelane_b32 v{R+4}, s{72+2*i}, {i}")
    a(f"""
v_lshrrev_b32 v{R+3}, 6, v{R+3}
v_add_u32 v{R+4}, 4, v{R+4}
v_lshlrev_b32 v{R+5}, 3, v{R+4}
v_lshlrev_b32 v{R+8}, 2, v{R+4}
s_mov_b64 exec, 63
ds_write_b64 v{R+5}, {pr(R+6)} offset:{L_TS}
ds_write_b32 v{R+8}, v{R+3} offset:{L_TC}
ds_write_b32 v{R+2}, v{R+4} offset:{L_RK}
s_mov_b64 exec, 15
v_mul_u32_u24 v{R+10}, s50, v4
v_add_u32 v{R+10}, {48*CS*4}, v{R+10}
v_mov_b32 v{R+11}, {L_AP + 48*US}
v_mov_b32 v{R+9}, s50
v_lshlrev_b32 v5, 3, v1
ds_write_b64 v5, {pr(R+10)} offset:{L_TS}
ds_write_b32 v4, v{R+9} offset:{L_TC}
ds_write_b32 v4, v1 offset:{L_RK + 192}
s_mov_b64 exec, -1
v_lshlrev_b32 v4, 4, v2
v_cmp_gt_u32_e64 s[52:53], 13, v2
s_add_u32 s15, s3, 1
s_waitcnt lgkmcnt(0)
s_barrier
@S29
ds_read_b32 v{R}, v4 offset:{L_TC}
v_mov_b32 v{R+4}, 1
v_mov_b32 v{R+5}, 0
s_waitcnt lgkmcnt(0)
v_cmp_ne_u32 vcc, 0, v{R}
v_add_u32 v{R}, {GS-1}, v{R}
""")
    if GS == 2:
        a(f"v_lshrrev_b32 v{R}, 1, v{R}")
    else:
        a(f"v_mul_u32_u24 v{R}, 0x5556, v{R}")
        a(f"v_lshrrev_b32 v{R}, 16, v{R}")
    a(f"""
s_and_b64 s[44:45], vcc, s[52:53]
v_max_u32 v{R}, {MINPS}, v{R}
v_cndmask_b32_e64 v{R}, 0, v{R}, s[44:45]
v_mov_b32 v{R+1}, v{R}
""")
    scan(a, R + 1, row_only=True)
    a(f"""
s_nop 0
v_readlane_b32 s14, v{R+1}, 15
v_sub_u32 v{R+2}, v{R+1}, v{R}
s_cmp_gt_u32 s14, {MAXIT*8}
s_cbranch_scc1 K_SLOW_ENTRY
s_mul_i32 s40, s14, s3
s_mul_i32 s41, s14, s15
s_lshr_b32 s40, s40, 3
s_lshr_b32 s41, s41, 3
s_sub_u32 s{S_IT}, s41, s40
s_cmp_eq_u32 s{S_IT}, 0
s_cbranch_scc1 K_LOOP_DONE
v_cmp_ge_u32_e64 s[42:43], s40, v{R+1}
v_subrev_u32 v{R+3}, s40, v{R+2}
s_and_b32 s42, s42, 0x1fff
s_bcnt1_i32_b32 s42, s42
s_lshl_b32 s46, s42, 5
v_lshl_add_u32 v{VTK}, v3, 3, s46
v_and_b32 v{VTE}, 12, v2
v_lshl_add_u32 v{VTE}, v{VTE}, 1, s46
v_readlane_b32 s43, v{R+2}, s42
ds_read_b64 {pr(R+6)}, v{VTK} offset:{L_TS}
ds_read_b32 v{NXE}, v{VTE} offset:{L_TS}
ds_read_b64 {pr(NX)}, v{VTK} offset:{L_TS + 32}
v_add_u32 v{R+8}, -1, v{R+3}
v_cmp_gt_u32 vcc, 63, v{R+8}
v_lshlrev_b64 {pr(R+4)}, v{R+3}, {pr(R+4)}
s_and_b64 vcc, vcc, s[44:45]
s_sub_u32 s43, s40, s43
v_cndmask_b32 v{R+4}, 0, v{R+4}, vcc
v_cndmask_b32 v{R+5}, 0, v{R+5}, vcc
s_mul_i32 s45, s43, {4*GS}
s_lshl_b32 s47, s45, 1
""")
    for d in (1, 2, 4, 8):
        a(f"v_or_b32_dpp v{R+4}, v{R+4}, v{R+4} row_shr:{d} row_mask:0xf bank_mask:0xf")
        a(f"v_or_b32_dpp v{R+5}, v{R+5}, v{R+5} row_shr:{d} row_mask:0xf bank_mask:0xf")
        a("s_nop 0")
    TI = {1: [Y[0] + 2 * i for i in range(GS)]}
    nxt = HL
    for p in range(2, NB):
        TI[p] = [nxt + 2 * i for i in range(GS)]
        nxt += 2 * GS
    assert nxt <= DEN, (nxt, DEN)
    a(f"""
s_add_u32 s45, s45, {L_KEYS}
s_add_u32 s47, s47, {L_EA}
v_readlane_b32 s{S_MASK}, v{R+4}, 15
v_readlane_b32 s{S_MASK+1}, v{R+5}, 15
s_bfm_b64 s[48:49], s{S_IT}, 0
s_waitcnt lgkmcnt(1)
v_add_u32 v{VK}, s45, v{R+6}
v_add_u32 v{R+7}, v{R+7}, v{IDX[0]+1}
s_and_b64 s[{S_MASK}:{S_MASK+1}], s[{S_MASK}:{S_MASK+1}], s[48:49]
""")
    for i in range(GS):
        a(f"ds_read_b32 v{IDX[i]}, v{VK} offset:{4*i}")
    a(f"""
ds_read_b128 {q4(CA)}, v{R+7}
v_lshl_add_u32 v{VE}, v{NXE}, 1, s47
v_mov_b32 v4, {L_ZERO}
""")
    for p in range(1, NB):
        for i in range(GS):
            a(f"v_mov_b32 v{TI[p][i]+1}, v{IDX[0]+1}")
    a(f"v_cndmask_b32_e64 v{VE}, v4, v{VE}, s[{S_AM}:{S_AM+1}]")
    a(f"s_waitcnt lgkmcnt({GS+1})")
    for p in range(1, NB):
        a(f"s_bitcmp1_b32 s{S_MASK}, {p}")
        a(f"s_cbranch_scc0 K_PK{p}")
        ev_k(a, 4 * GS * p)
        a(f"K_PK{p}:")
        for i in range(GS):
            a(f"ds_read_b32 v{TI[p][i]}, v{VK} offset:{4*(GS*p+i)}")
    for i in range(GS):
        a(f"ds_read_b64 {pr(AOP[i])}, v{VE} offset:{8*i}")
    a(f"""
s_lshr_b64 s[{S_CM}:{S_CM+1}], s[{S_MASK}:{S_MASK+1}], 3
s_lshr_b64 s[48:49], s[{S_MASK}:{S_MASK+1}], {NB+1}
s_or_b64 s[{S_CM}:{S_CM+1}], s[{S_CM}:{S_CM+1}], s[48:49]
s_mov_b32 s{S_RAW}, s{S_MASK}
s_bitset1_b64 s[{S_MASK}:{S_MASK+1}], s{S_IT}
s_lshr_b64 s[48:49], s[{S_MASK}:{S_MASK+1}], 1
s_or_b64 s[{S_CM}:{S_CM+1}], s[{S_CM}:{S_CM+1}], s[48:49]
s_waitcnt lgkmcnt({GS})
""")
    NG0 = int(OPT["ng0"])
    NG1 = max(NG0, min(NB, 4 if GS == 2 else 3))
    for l in gathers(0, IDX):
        a(l)
    for p in range(1, NG0):
        for l in gathers(p, TI[p]):
            a(l)
    if OPT["prio"] == "1":
        dflt = (24, 12, 4) if GS == 2 else (16, 8, 3)
        t1, t2, t3 = [int(OPT.get(f"thr{i+1}", dflt[i])) for i in range(3)]
        a(f"""
s_setprio 3
s_mov_b32 s{S_PR}, 3
s_mov_b64 s[54:55], 0
s_bitset1_b64 s[54:55], {63 - t1}
s_bitset1_b64 s[54:55], {63 - t2}
s_bitset1_b64 s[54:55], {63 - t3}
s_sub_u32 s46, 63, s{S_IT}
s_lshr_b64 s[54:55], s[54:55], s46
s_or_b64 s[{S_CM}:{S_CM+1}], s[{S_CM}:{S_CM+1}], s[54:55]
""")
    a(f"""
s_ff1_i32_b64 s{S_CNT}, s[{S_CM}:{S_CM+1}]
v_lshlrev_b32 v5, 9, v3
v_lshl_add_u32 v5, v2, 4, v5
s_lshl_b32 s45, s42, 11
s_add_u32 s45, s45, {L_ACC}
s_add_u32 s46, s45, 2048
v_add_u32 v{VFN}, s46, v5
s_cmp_eq_u32 s43, 0
s_cbranch_scc1 K_P2
s_lshl_b32 s45, s3, 11
s_add_u32 s45, s45, {L_EXT}
s_lshl_b32 s46, 1, s3
s_lshl_b32 s47, s42, 2
v_mov_b32 v6, s46
v_mov_b32 v7, s47
s_mov_b64 exec, 1
ds_or_b32 v7, v6 offset:{L_MASK}
s_mov_b64 exec, -1
K_P2:
v_add_u32 v{VF}, s45, v5
""")
    for i in range(0, 8, 2):
        a(f"v_pk_mov_b32 {pr(DEN+i)}, 0, 0")
    a(f"""
v_add_u32 v{VK}, {4*GS*NB}, v{VK}
s_bitcmp1_b32 s{S_RAW}, {NB}
s_cbranch_scc0 K_PK{NB}
""")
    ev_k(a, 0)
    a(f"""
K_PK{NB}:
v_mov_b32 v5, {16*GS}
@S10
s_waitcnt vmcnt({GS*(NG0-1)}) lgkmcnt(0)
@S15
""")
    for l in mfmas(0):
        a(l)
    for p in range(NG0, NG1):
        for l in gathers(p, TI[p]):
            a(l)
    a(f"""
s_bitcmp1_b32 s{S_RAW}, 1
s_cbranch_scc0 K_PE1
s_nop 2
""")
    ev_e(a, 8 * GS)
    a("K_PE1:")
    for i in range(GS):
        a(f"ds_read_b64 {pr(AOP[i])}, v{VE} offset:{8*(GS+i)}")
    a(f"""
v_cndmask_b32_e64 v5, 0, v5, s[{S_AM}:{S_AM+1}]
s_nop 3
""")
    for i in range(4 * GS):
        a(f"v_exp_f32 v{Y[0]+i}, v{Y[0]+i}")
    a(f"v_add_u32 v{VE}, v5, v{VE}")
    a(f"s_waitcnt vmcnt({GS*(NG1-2)}) lgkmcnt(0)")
    for l in mfmas(1):
        a(l)
    for p in range(NG1, NB):
        for l in gathers(p, TI[p]):
            a(l)
    a(f"""
s_bitcmp1_b32 s{S_RAW}, 2
s_cbranch_scc0 K_PE2
s_nop 2
""")
    ev_e(a, 0)
    a(f"""
K_PE2:
@C20
s_nop 4
{f".p2align {OPT['align']}, , 64" if OPT.get('align') else ''}
K_LOOP:
""")
    order = ORDERS[GS][OPT["order"]].split()
    for k in range(UNR):
        d = ops(k)
        for x in order:
            a(d[x])
        if k == UNR - 1:
            a("s_cbranch_scc0 K_LOOP")
        else:
            a(f"s_cbranch_scc1 K_EV{k}")
            a(f"K_RET{k}:")
    for k in [UNR - 1] + list(range(UNR - 1)):
        kn = (k + 1) % UNR
        ret = f"K_RET{k}" if k < UNR - 1 else "K_LOOP"
        a(f"""
K_EV{k}:
s_ff1_i32_b64 s14, s[{S_CM}:{S_CM+1}]
s_bitset0_b64 s[{S_CM}:{S_CM+1}], s14
s_ff1_i32_b64 s{S_CNT}, s[{S_CM}:{S_CM+1}]
s_lshr_b64 s[40:41], s[{S_MASK}:{S_MASK+1}], s14
s_sub_u32 s{S_CNT}, s{S_CNT}, s14
s_sub_u32 s{S_CNT}, s{S_CNT}, 1
s_bitcmp1_b32 s40, 1
s_cbranch_scc0 K_EV{k}A
ds_write_b128 v{VF}, {q4(DEN)}
ds_write_b128 v{VF}, {q4(NUM)} offset:256
s_lshr_b64 s[42:43], s[40:41], 2
s_cbranch_scc0 K_LOOP_DONE
v_mov_b32 v{VF}, v{VFN}
v_add_u32 v{VFN}, 2048, v{VFN}
""")
        for i in range(0, 8, 2):
            a(f"v_pk_mov_b32 {pr(DEN+i)}, 0, 0")
        a(f"""
K_EV{k}A:
s_bitcmp1_b32 s40, 3
s_cbranch_scc0 K_EV{k}B
""")
        ev_e(a, 8 * GS * kn)
        a(f"""
K_EV{k}B:
s_lshr_b64 s[42:43], s[40:41], {NB+2}
s_cbranch_scc0 K_EV{k}C
s_bitcmp1_b32 s40, {NB+1}
s_cbranch_scc0 K_EV{k}C
""")
        ev_k(a, 4 * GS * kn)
        a(f"K_EV{k}C:")
        if OPT["prio"] == "1":
            a(f"""
s_bitcmp1_b64 s[54:55], s14
s_cbranch_scc0 {ret}
s_sub_u32 s{S_PR}, s{S_PR}, 1
s_setprio 0
s_cmp_eq_u32 s{S_PR}, 0
s_cbranch_scc1 {ret}
s_setprio 1
s_cmp_eq_u32 s{S_PR}, 1
s_cbranch_scc1 {ret}
s_setprio 2
""")
        a(f"s_branch {ret}")
    D0, U0 = R + 16, R + 32
    a(f"""
K_LOOP_DONE:
@C21
@S11
s_setprio 0
v_lshrrev_b32 v{R}, 3, v0
v_min_u32 v{R+1}, 48, v{R}
v_lshlrev_b32 v{R+2}, 2, v{R}
v_lshlrev_b32 v{R+3}, 2, v{R+1}
v_and_b32 v{R+4}, 7, v0
v_lshlrev_b32 v{R+5}, 5, v{R+4}
v_cmp_gt_u32_e64 s[40:41], 52, v{R}
s_movk_i32 s14, {US}
v_mad_u32_u24 v{R+8}, v{R+1}, s14, v{R+5}
v_add_u32 v{R+8}, {L_U}, v{R+8}
v_mul_u32_u24 v{R+9}, {XSS}, v{R+1}
v_lshl_add_u32 v{R+9}, v{R+4}, 4, v{R+9}
v_add_u32 v{R+9}, {L_XS}, v{R+9}
ds_read_b32 v{R+6}, v{R+2} offset:{L_RK}
ds_read_b32 v{R+7}, v{R+3} offset:{L_CNT}
ds_read_b128 {q4(U0)}, v{R+8}
ds_read_b128 {q4(U0+4)}, v{R+8} offset:16
ds_read_b128 {q4(CA)}, v{R+9}
s_waitcnt lgkmcnt(0)
v_cmp_ne_u32 vcc, 0, v{R+7}
v_and_b32 v{R+10}, -4, v{R+6}
v_lshl_add_u32 v{R+11}, v{R+6}, 9, v{R+5}
v_add_u32 v{R+11}, {L_ACC}, v{R+11}
v_and_b32 v{R+12}, 3, v{R+6}
v_lshl_add_u32 v{R+12}, v{R+12}, 9, v{R+5}
v_add_u32 v{R+12}, {L_EXT}, v{R+12}
s_barrier
@S12
s_and_b64 exec, vcc, s[40:41]
s_cbranch_execz K_COMB_DONE
ds_read_b32 v{R+10}, v{R+10} offset:{L_MASK}
K_COMB_X:
ds_read_b128 {q4(D0)}, v{R+11}
ds_read_b128 {q4(D0+4)}, v{R+11} offset:16
ds_read_b128 {q4(D0+8)}, v{R+11} offset:256
ds_read_b128 {q4(D0+12)}, v{R+11} offset:272
s_waitcnt lgkmcnt(4)
v_ffbl_b32 v{R+11}, v{R+10}
v_cmp_ne_u32 vcc, 0, v{R+10}
v_add_u32 v{R+13}, -1, v{R+10}
v_and_b32 v{R+10}, v{R+10}, v{R+13}
v_lshl_add_u32 v{R+11}, v{R+11}, 11, v{R+12}
s_waitcnt lgkmcnt(0)
""")
    for i in range(0, 16, 2):
        a(f"v_pk_add_f32 {pr(TOT+i)}, {pr(TOT+i)}, {pr(D0+i)}")
    a(f"""
s_and_b64 exec, exec, vcc
s_cbranch_execnz K_COMB_X
K_COMB_DONE:
s_mov_b64 exec, -1
s_cmp_lg_u32 s{S_MODE}, 0
s_cbranch_scc1 K_SLOW_NEXT
K_FINAL:
s_cmp_lg_u32 s3, 6
s_cbranch_scc1 K_FIN2
""")
    for i in range(16):
        a(f"v_add_f32_dpp v{TOT+i}, v{TOT+i}, v{TOT+i} row_ror:8 row_mask:0xf bank_mask:0xf")
    for i in range(16):
        a(f"ds_swizzle_b32 v{D0+i}, v{TOT+i} offset:0x401F")
    a("s_waitcnt lgkmcnt(0)")
    for i in range(0, 16, 2):
        a(f"v_pk_add_f32 {pr(TOT+i)}, {pr(TOT+i)}, {pr(D0+i)}")
    eps = struct.unpack("<I", struct.pack("<f", 1e-6 * 2.0**KEXP))[0]
    a(f"""
K_FIN2:
s_mov_b32 s14, {eps:#x}
s_mov_b32 s15, {eps:#x}
v_lshlrev_b32 v{R}, 8, v{R}
v_add_u32 v{R}, s{S_B}, v{R}
v_lshlrev_b32 v{R}, 7, v{R}
v_lshl_add_u32 v{R}, v{R+4}, 4, v{R}
""")
    for i in range(0, 8, 2):
        a(f"v_pk_add_f32 {pr(TOT+i)}, {pr(TOT+i)}, s[14:15]")
    for i in range(8):
        a(f"v_rcp_f32 v{TOT+i}, v{TOT+i}")
    for i in range(4):
        a(f"v_lshlrev_b32 v{D0+2*i}, 16, v{CA+i}")
        a(f"v_and_b32 v{D0+2*i+1}, 0xffff0000, v{CA+i}")
    for i in range(0, 8, 2):
        a(f"v_pk_fma_f32 {pr(U0+i)}, {pr(TOT+8+i)}, {pr(TOT+i)}, {pr(U0+i)}")
    for i in range(8):
        a(f"v_max_f32 v{U0+i}, 0, v{U0+i}")
    for i in range(0, 8, 2):
        a(f"v_pk_add_f32 {pr(D0+i)}, {pr(D0+i)}, {pr(U0+i)}")
    for i in range(4):
        a(f"v_cvt_pk_bf16_f32 v{D0+i}, v{D0+2*i}, v{D0+2*i+1}")
    a(f"""
buffer_store_dwordx4 {q4(D0)}, v{R}, s[36:39], 0 offen {OPT['st_out']}
@S13
@Wvmcnt(0)
@S14
@Vs{S_IT},22
@OUT
K_END:
s_endpgm
K_TAG_RETRY:
s_waitcnt lgkmcnt(0)
s_memrealtime s[52:53]
s_sleep 4
global_load_dword v64, v{VZ}, s[84:85] sc1
s_waitcnt vmcnt(0) lgkmcnt(0)
s_sub_u32 s52, s52, s50
s_cmp_lt_u32 s52, 0x400000
s_cbranch_scc1 K_TAGW
s_branch K_TAGOK
K_POLL_RETRY:
s_memrealtime s[52:53]
s_sleep {OPT['sleep']}
s_waitcnt lgkmcnt(0)
s_sub_u32 s52, s52, s50
s_cmp_lt_u32 s52, 0x400000
s_cbranch_scc1 K_POLL
""")
    for k in range(8):
        a(f"v_cndmask_b32 v{VTT+k}, v{VTT+k}, v{VZ}, vcc")
    a(f"""
s_branch K_POLLOK
K_LONG_ENTRY:
s_mov_b32 s14, 32
K_LONG:
v_add_u32 v6, s14, v2
s_mul_i32 s15, s14, 12
""")
    for k in range(8):
        a(f"""
s_mov_b64 exec, -1
v_cmp_gt_u32_sdwa vcc, v{VTT+k}, v6 src0_sel:WORD_1 src1_sel:DWORD
s_and_saveexec_b64 s[40:41], vcc
s_cbranch_execz K_LONG_S{k}
buffer_load_dwordx3 v[{R}:{R+2}], v{VRA+k}, s[32:35], s15 offen sc1
s_waitcnt vmcnt(0)
""")
        place_atomic(a, R, 4)
        a("s_waitcnt lgkmcnt(0)")
        place_write(a, R, 4)
        a(f"K_LONG_S{k}:")
    a(f"""
s_mov_b64 exec, -1
s_add_u32 s14, s14, 16
v_cmp_lt_u32 vcc, s14, v{VMAXL}
s_cbranch_vccnz K_LONG
s_branch K_PLACED
K_SLOW_ENTRY:
ds_max_u32 v{VZ}, v{VMAXL} offset:{L_MAXL}
s_waitcnt lgkmcnt(0)
s_barrier
ds_read_b32 v5, v{VZ} offset:{L_MAXL}
s_mov_b32 s{S_MODE}, 1
s_mov_b32 s{S_I}, 0
s_mov_b32 s{S_MO}, 0
s_waitcnt lgkmcnt(0)
v_readfirstlane_b32 s{S_ML}, v5
s_branch K_SLOW_BATCH
K_SLOW_NEXT:
s_add_u32 s{S_I}, s{S_I}, 1
s_cmp_lt_u32 s{S_I}, 64
s_cbranch_scc1 K_SLOW_BATCH
s_mov_b32 s{S_I}, 0
s_add_u32 s{S_MO}, s{S_MO}, 16
s_cmp_ge_u32 s{S_MO}, s{S_ML}
s_cbranch_scc1 K_FINAL
K_SLOW_BATCH:
s_waitcnt vmcnt(0) lgkmcnt(0)
s_barrier
""")
    slots_init(a, R, True)
    a(f"""
s_waitcnt lgkmcnt(0)
s_barrier
s_cmp_lg_u32 s3, 0
s_cbranch_scc1 K_SLOW_S
s_lshl_b32 s14, s{S_I}, 2
v_add_u32 v7, s14, v3
s_lshl_b32 s15, s{S_B}, 3
v_lshl_add_u32 v4, v7, 11, s15
buffer_load_dword v5, v4, s[32:35], 0 offen sc1
s_mov_b32 s15, {RECS}
v_mul_lo_u32 v7, v7, s15
v_add_u32 v6, s{S_MO}, v2
v_mad_u32_u24 v7, v6, 12, v7
v_add_u32 v7, {REC_REL}, v7
s_waitcnt vmcnt(0)
v_and_b32 v5, 0x0fff0fff, v5
v_mad_u32_u16 v4, v5, 12, v7
v_cmp_gt_u32_sdwa vcc, v5, v6 src0_sel:WORD_1 src1_sel:DWORD
s_and_saveexec_b64 s[40:41], vcc
s_cbranch_execz K_SLOW_S
buffer_load_dwordx3 v[{R}:{R+2}], v4, s[32:35], 0 offen sc1
s_waitcnt vmcnt(0)
""")
    place_atomic(a, R, 4)
    a("s_waitcnt lgkmcnt(0)")
    place_write(a, R, 4)
    a("""
K_SLOW_S:
s_mov_b64 exec, -1
s_waitcnt lgkmcnt(0)
s_barrier
s_branch K_RANK
""")
    return a.text()


HEADER = open("standalone__edge_featured_mpnn_gatedgcn__graph.s.ref").read().split("; Override launch")[0]


def main():
    out = HEADER
    out += f"; @launch grid=(256,1,1) block=(512,1,1) lds={LDS}\n"
    out += '.amdgcn_target "amdgcn-amd-amdhsa--gfx950"\n.text\n'
    out += f".globl {KNAME}\n.p2align 8\n.type {KNAME},@function\n" + kernel()
    out += f""".section .rodata,"a"
.p2align 6
.amdhsa_kernel {KNAME}
  .amdhsa_next_free_vgpr {NVGPR}
  .amdhsa_next_free_sgpr {101 if STAMPS else 98}
  .amdhsa_accum_offset {(NVGPR + 3) // 4 * 4}
  .amdhsa_group_segment_fixed_size 0
  .amdhsa_kernarg_size 96
  .amdhsa_user_sgpr_count 2
  .amdhsa_user_sgpr_kernarg_segment_ptr 1
  .amdhsa_system_sgpr_workgroup_id_x 1
.end_amdhsa_kernel
"""
    open(sys.argv[1], "w").write(out)


main()
```

```python
import sys
import struct
from math import gcd

N = 12500
E = 800000
QCH = 782
QH = QCH // 2
CH = QCH * 4
NQ = E // 4
RECB = CH * 12
RECS = 37632
TAB_ROWS = N + 1
TAB_BYTES = TAB_ROWS * 256
T_OFF = 0x310000
T2_REL = 0x80000
REC_REL = 0x81000
TR_BYTES = REC_REL + 256 * RECS
BIG = 0x40000000
NLOG2E = 0xbfb8aa3b
CAP = 128
CS = 132
XSS = 144
US = 272

OPT = dict(align="3", cpf="7", packpos="b", gs="2", nb="4", prio="1", order="c", npf="352", pfs="128", sleep="2", ng0="2", st_out="nt", cadd="1")
for a_ in sys.argv[2:]:
    k_, v_ = a_.split("=")
    OPT[k_] = v_
STAMPS = bool(OPT.get("stamps"))
GS = int(OPT["gs"])
NB = int(OPT["nb"] or (6 if GS == 2 else 4))
UNR = NB * 2 // gcd(NB, 2)
MINPS = NB + 1
MAXIT = 62
KEXP = 60 if GS == 2 else 40
KBITS = (127 - KEXP) << 23
DBG_OFF = 0x1000000
KNAME = "standalone__edge_featured_mpnn_gatedgcn__graph_kernel"

L_CNT = 0
L_MASK = 256
L_MAXL = 324
L_ACKS = 328
L_ZERO = 384
L_TS = 640
L_TC = 1536
L_RK = 1792
L_HIST, L_START = 0, 1024
L_EA = 2048
EA_BYTES = 49 * CS * 8 + 32
L_KEYS = L_EA + EA_BYTES
KEY_BYTES = 49 * CS * 4 + 16
L_ACC = L_KEYS + KEY_BYTES
L_EXT = L_ACC + 52 * 512
L_STAGE = L_ACC
L_AP = L_EXT + 8 * 2048
L_U = L_AP + 49 * US
L_XS = L_U + 49 * US
L_WC = L_XS + 64 * XSS
LDS = L_WC + 512
assert 8 * GS * UNR + 8 <= L_TS - L_ZERO

_nv = [8]


def valloc(n, align=2):
    _nv[0] = (_nv[0] + align - 1) // align * align
    r = _nv[0]
    _nv[0] += n
    return r


GB = valloc(6 * GS * NB)
Y = (valloc(4 * GS), valloc(4 * GS))
HL = valloc(2 * GS)
P2, MM, SA, UU = valloc(4), valloc(4), valloc(4), valloc(4)
DEN = valloc(8)
NUM = DEN + 4
_nv[0] = max(_nv[0], 128)
AOP = [valloc(4) for _ in range(GS)]
CA, CN = valloc(4), valloc(4)
IDX = [valloc(2) for _ in range(GS)]
NX = valloc(2)
VK, VE, VF, VFN, VTK, VTE, NXE, VINC = [valloc(1, 1) for _ in range(8)]
TOT = valloc(16)
VTT = valloc(8)
VRA = valloc(8)
VCA = valloc(16)
PT = VCA
T2R = valloc(8)
VMAXL, VPF, VFOUR, VZ = [valloc(1, 1) for _ in range(4)]
VST = valloc(2)
NVGPR = _nv[0]
assert NVGPR <= 256, NVGPR
X0 = Y[0]
assert NUM + 4 - X0 >= 40

S_IT, S_MODE, S_I, S_MO, S_ML, S_CNT = 4, 5, 6, 7, 8, 9
S_K = 10
S_RAW = 12
S_B = 13
S_CM = 56
S_PR = 58
S_CS = 59
S_MASK = 60
S_AM = 62
S_TAG, S_TAG2, S_T2OK = 96, 97, 19


def stepbuf(p, i):
    return GB + 6 * (GS * (p % NB) + i)


def recset(j):
    return GB + 6 * j + 2 if j < GS * NB else X0 + 4 * (j - GS * NB)


class Asm:
    def __init__(self):
        self.L = []

    def __call__(self, s):
        for l in s.strip("\n").split("\n"):
            l = l.strip()
            if not l:
                continue
            if l.startswith("@"):
                if STAMPS:
                    self.special(l)
                continue
            self.L.append(l if l.endswith(":") else "    " + l)

    def special(self, l):
        if l.startswith("@S") or l.startswith("@C"):
            self(f"{'s_memtime' if l[1] == 'C' else 's_memrealtime'} s[98:99]")
            self("s_waitcnt lgkmcnt(0)")
            self(f"v_writelane_b32 v{VST}, s98, {int(l[2:])}")
        elif l.startswith("@W"):
            self("s_waitcnt " + l[2:])
        elif l.startswith("@V"):
            r, i = l[2:].split(",")
            self(f"v_writelane_b32 v{VST}, {r}, {i}")
        elif l.startswith("@OUT"):
            self(f"""
s_mov_b64 exec, -1
s_lshl_b32 s100, s2, 4
s_add_u32 s100, s100, s3
s_lshl_b32 s100, s100, 8
s_add_u32 s100, s100, {DBG_OFF + 0x100000:#x}
v_and_b32 v{VST+1}, 63, v0
v_lshl_add_u32 v{VST+1}, v{VST+1}, 2, s100
global_store_dword v{VST+1}, v{VST}, s[16:17]
""")

    def text(self):
        return "\n".join(self.L) + "\n"


def pr(r):
    return f"v[{r}:{r+1}]"


def q4(r):
    return f"v[{r}:{r+3}]"


def srd(a, d, lo, hi, nbytes, stride=0):
    a(f"s_mov_b32 s{d}, s{lo}")
    a(f"s_and_b32 s{d+1}, s{hi}, 0xffff")
    if stride:
        a(f"s_or_b32 s{d+1}, s{d+1}, {stride << 16:#x}")
    a(f"s_mov_b32 s{d+2}, {nbytes}")
    a(f"s_mov_b32 s{d+3}, 0x20000")


def scan(a, v, row_only=False, fill=()):
    fill = list(fill)
    steps = [f"row_shr:{d} row_mask:0xf" for d in (1, 2, 4, 8)]
    if not row_only:
        steps += ["row_bcast:15 row_mask:0xa", "row_bcast:31 row_mask:0xc"]
    for st in steps:
        if fill:
            a(fill.pop(0))
            a("s_nop 0")
        else:
            a("s_nop 1")
        a(f"v_add_u32_dpp v{v}, v{v}, v{v} {st} bank_mask:0xf")


SDWA_B0 = "dst_sel:DWORD dst_unused:UNUSED_PAD src0_sel:DWORD src1_sel:BYTE_0"


def tr_reads(a, vaddr, base, r0):
    for mat in range(2):
        for t in range(2):
            for s in range(2):
                r = r0 + 16 * mat + 8 * t + 4 * s
                o = base + mat * 8192 + s * 4096
                a(f"ds_read_b64_tr_b16 {pr(r)}, v{vaddr[t]} offset:{o}")
                a(f"ds_read_b64_tr_b16 {pr(r+2)}, v{vaddr[t]} offset:{o + 512}")


def tile_mfmas(a, r0, x0, d0):
    for s in range(2):
        for mat in range(2):
            for t in range(2):
                f = r0 + 16 * mat + 8 * t + 4 * s
                d = d0 + 8 * mat + 4 * t
                c = "0" if s == 0 else q4(d)
                a(f"v_mfma_f32_16x16x32_bf16 {q4(d)}, {q4(f)}, {q4(x0+4*s)}, {c}")


def slots_init(a, r, small):
    for i in range(4):
        a(f"v_mov_b32 v{r+i}, 0")
    for i in range(4):
        a(f"v_mov_b32 v{r+4+i}, {N}")
    z0 = 0 if small else L_EA
    a(f"v_lshlrev_b32 v{r+8}, 4, v0")
    a(f"v_add_u32 v{r+9}, {L_KEYS}, v{r+8}")
    nz, nk = (L_KEYS - z0) // 16, KEY_BYTES // 16
    for i in range(nz // 512):
        a(f"ds_write_b128 v{r+8}, {q4(r)} offset:{z0 + 8192*i}")
    for i in range(nk // 512):
        a(f"ds_write_b128 v{r+9}, {q4(r+4)} offset:{8192*i}")
    for rem, reg, data, off in sorted([(nz % 512, r + 8, r, z0 + 8192 * (nz // 512)), (nk % 512, r + 9, r + 4, 8192 * (nk // 512))], reverse=True):
        a(f"v_cmp_gt_u32 vcc, {rem}, v0")
        a("s_mov_b64 exec, vcc")
        a(f"ds_write_b128 v{reg}, {q4(data)} offset:{off}")
    a("s_mov_b64 exec, -1")


def place_atomic(a, r, ca):
    a(f"v_and_b32 v{ca}, 0xfc, v{r+2}")
    a(f"ds_add_rtn_u32 v{r+3}, v{ca}, v{VFOUR} offset:{L_CNT}")


def place_write(a, r, ca):
    a(f"v_min_u32 v{r+3}, {CAP*4}, v{r+3}")
    a(f"v_mad_u32_u24 v{ca}, v{ca}, s{S_CS}, v{r+3}")
    a(f"v_lshrrev_b32 v{r+2}, 8, v{r+2}")
    a(f"v_add_u32 v{r+3}, v{ca}, v{ca}")
    a(f"ds_write_b32 v{ca}, v{r+2} offset:{L_KEYS}")
    a(f"ds_write_b64 v{r+3}, {pr(r)} offset:{L_EA}")


def ev_k(a, sub):
    a(f"""
v_add_u32 v{VK}, {L_KEYS - sub}, v{NX}
v_add_u32 v4, v{NX+1}, v{IDX[0]+1}
v_add_u32 v{VTK}, 32, v{VTK}
v_add_u32 v{VTE}, 32, v{VTE}
ds_read_b128 {q4(CN)}, v4
ds_read_b32 v{NXE}, v{VTE} offset:{L_TS}
ds_read_b64 {pr(NX)}, v{VTK} offset:{L_TS + 32}
""")


def ev_e(a, sub):
    a(f"""
v_lshlrev_b32 v{VE}, 1, v{NXE}
v_add_u32 v{VE}, {L_EA - sub}, v{VE}
v_mov_b32 v4, {L_ZERO}
v_pk_mov_b32 {pr(CA)}, {pr(CN)}, {pr(CN)} op_sel:[0,1]
v_pk_mov_b32 {pr(CA+2)}, {pr(CN+2)}, {pr(CN+2)} op_sel:[0,1]
v_cndmask_b32_e64 v{VE}, v4, v{VE}, s[{S_AM}:{S_AM+1}]
""")


def gathers(p, idx):
    return [f"buffer_load_dwordx4 {q4(stepbuf(p, i) + 2)}, {pr(idx[i])}, s[24:27], 0 idxen offen sc1" for i in range(GS)]


def mfmas(p):
    y = Y[p & 1]
    return [f"v_mfma_f32_16x16x32_bf16 {q4(y+4*i)}, {q4(AOP[i])}, {q4(stepbuf(p, i))}, {q4(CA)}" for i in range(GS)]


def ops(k):
    y, yn = Y[k & 1], Y[1 - (k & 1)]
    b = [stepbuf(k, i) + 4 for i in range(GS)]
    sk = f"s[{S_K}:{S_K+1}]"
    d = {}
    for i in range(4 * GS):
        d[f"E{i}"] = f"v_exp_f32 v{yn+i}, v{yn+i}"
    for i in range(2 * GS):
        if OPT["cadd"] == "1":
            d[f"C{i}"] = f"v_pk_add_f32 {pr(y+2*i)}, {pr(y+2*i)}, {sk} clamp"
        else:
            d[f"C{i}"] = f"v_pk_fma_f32 {pr(y+2*i)}, {pr(y+2*i)}, {sk}, {sk} clamp"
    for i in range(4):
        d[f"R{i}"] = f"v_rcp_f32 v{MM+i}, v{MM+i}"
    for i in range(2):
        p = [pr(y + 4 * j + 2 * i) for j in range(GS)]
        h = [pr(HL + 2 * j) if i == 0 else pr(b[j]) for j in range(GS)]
        m, s, u, p2 = pr(MM + 2 * i), pr(SA + 2 * i), pr(UU + 2 * i), pr(P2 + 2 * i)
        d[f"m{i}"] = f"v_pk_mul_f32 {m if GS == 2 else p2}, {p[0]}, {p[1]}"
        d[f"a{i}"] = f"v_pk_add_f32 {s}, {p[0]}, {p[1]}"
        d[f"g{i}"] = f"v_pk_mul_f32 {u}, {p[1]}, {h[0]}"
        d[f"h{i}"] = f"v_pk_fma_f32 {u}, {p[0]}, {h[1]}, {u}"
        if GS == 3:
            d[f"M{i}"] = f"v_pk_mul_f32 {m}, {p2}, {p[2]}"
            d[f"s{i}"] = f"v_pk_fma_f32 {s}, {s}, {p[2]}, {p2}"
            d[f"i{i}"] = f"v_pk_mul_f32 {u}, {u}, {p[2]}"
            d[f"j{i}"] = f"v_pk_fma_f32 {u}, {p2}, {h[2]}, {u}"
        d[f"d{i}"] = f"v_pk_fma_f32 {pr(DEN+2*i)}, {s}, {m}, {pr(DEN+2*i)}"
        d[f"n{i}"] = f"v_pk_fma_f32 {pr(NUM+2*i)}, {u}, {m}, {pr(NUM+2*i)}"
    for i in range(GS):
        d[f"Q{i}"] = f"v_lshlrev_b64 {pr(HL+2*i)}, 16, {pr(b[i])}"
        d[f"N{i}"] = mfmas(k + 2)[i]
        d[f"L{i}"] = gathers(k, IDX)[i]
        d[f"k{i}"] = f"ds_read_b32 v{IDX[i]}, v{VK} offset:{4*(GS*k+i)}"
        d[f"e{i}"] = f"ds_read_b64 {pr(AOP[i])}, v{VE} offset:{8*(GS*k+i)}"
    d["W"] = f"s_waitcnt vmcnt({GS*(NB-3)}) lgkmcnt(0)"
    d["S"] = f"s_sub_u32 s{S_CNT}, s{S_CNT}, 1"
    d["A0"] = f"v_add_u32 v{VK}, {4*GS*UNR}, v{VK}" if k == UNR - 1 else ""
    d["A1"] = f"v_add_u32 v{VE}, v{VINC}, v{VE}" if k == UNR - 1 else ""
    return d


ORDERS = {
    2: {
        "b": "k0 k1 e0 e1 C0 E0 C2 E1 C1 E2 C3 E3 m0 E4 m1 E5 S Q0 Q1 A0 A1 a0 a1 g0 g1 h0 h1 W N0 R0 R1 N1 R2 R3 L0 L1 E6 d0 E7 d1 n0 n1",
        "c": "k0 k1 e0 e1 C0 C2 E0 m0 E1 C1 C3 E2 m1 E3 Q0 E4 Q1 E5 A0 A1 a0 a1 g0 g1 h0 h1 W L0 L1 S N0 R0 R1 N1 R2 R3 E6 d0 E7 d1 n0 n1",
        "d": "k0 k1 e0 e1 Q0 Q1 C0 E0 C2 E1 C1 E2 C3 E3 g0 E4 g1 E5 h0 h1 A0 A1 m0 m1 a0 a1 W L0 L1 S N0 R0 R1 N1 R2 R3 E6 d0 E7 d1 n0 n1",
        "e": "k0 k1 e0 e1 C0 E0 C2 E1 m0 E2 C1 R0 C3 R1 m1 E3 Q0 Q1 A0 A1 a0 a1 g0 g1 h0 h1 W L0 L1 S N0 R2 R3 N1 E4 E5 d0 E6 n0 E7 d1 n1",
        "f": "k0 k1 e0 e1 C0 E0 C2 E1 C1 E2 C3 E3 m0 m1 Q0 Q1 A0 A1 a0 a1 g0 g1 h0 h1 W L0 L1 S N0 R0 R1 E4 N1 R2 R3 E5 d0 E6 d1 E7 n0 n1",
        "g": "C0 E0 C2 E1 C1 E2 C3 E3 k0 k1 e0 e1 m0 E4 m1 E5 Q0 Q1 A0 A1 a0 a1 g0 g1 h0 h1 W L0 L1 S N0 R0 R1 N1 R2 R3 E6 d0 E7 d1 n0 n1",
        "h": "k0 k1 e0 e1 C0 E0 C2 E1 C1 E2 C3 E3 m0 E4 m1 E5 Q0 Q1 A0 A1 g0 g1 h0 h1 a0 a1 W L0 L1 S N0 R0 R1 N1 R2 R3 E6 E7 d0 d1 n0 n1",
        "": "k0 k1 e0 e1 C0 E0 C2 E1 C1 E2 C3 E3 m0 E4 m1 E5 Q0 Q1 A0 A1 a0 a1 g0 g1 h0 h1 W L0 L1 S N0 R0 R1 N1 R2 R3 E6 d0 E7 d1 n0 n1",
    },
    3: {
        "d": "k0 k1 k2 e0 e1 e2 C0 E0 C2 E1 C4 E2 C1 E3 C3 E4 C5 E5 m0 m1 M0 M1 Q0 Q1 Q2 A0 A1 a0 a1 g0 g1 s0 s1 h0 h1 i0 i1 j0 j1 W L0 L1 L2 S N0 R0 R1 N1 R2 R3 N2 E6 E7 E8 d0 E9 d1 E10 n0 E11 n1",
        "e": "k0 k1 k2 e0 e1 e2 Q0 Q1 Q2 C0 E0 C2 E1 C4 E2 C1 E3 C3 E4 C5 E5 m0 m1 g0 g1 M0 M1 A0 A1 h0 h1 a0 a1 i0 i1 s0 s1 j0 j1 W N0 R0 R1 N1 R2 R3 N2 E6 E7 L0 L1 L2 S E8 d0 E9 d1 E10 n0 E11 n1",
        "": "k0 k1 k2 e0 e1 e2 C0 E0 C2 E1 C4 E2 C1 E3 C3 E4 C5 E5 m0 E6 m1 E7 M0 M1 Q0 Q1 Q2 A0 A1 a0 a1 g0 g1 s0 s1 h0 h1 i0 i1 j0 j1 W L0 L1 L2 S N0 R0 R1 N1 R2 R3 N2 E8 E9 d0 E10 d1 E11 n0 n1",
        "b": "k0 k1 k2 e0 e1 e2 C0 E0 C2 E1 C4 E2 C1 E3 C3 E4 C5 E5 m0 m1 M0 M1 Q0 Q1 Q2 A0 A1 a0 a1 g0 g1 s0 s1 h0 h1 i0 i1 j0 j1 W N0 R0 R1 N1 R2 R3 N2 E6 E7 L0 L1 L2 S E8 d0 E9 d1 E10 n0 E11 n1",
        "c": "k0 k1 k2 e0 e1 e2 C0 E0 C2 E1 m0 E2 C4 E3 M0 E4 C1 E5 C3 E6 m1 E7 C5 M1 Q0 Q1 Q2 A0 A1 a0 a1 g0 g1 s0 s1 h0 h1 i0 i1 j0 j1 W L0 L1 L2 S N0 R0 R1 N1 R2 R3 N2 E8 E9 d0 E10 d1 E11 n0 n1",
    },
}


def t2_check(a):
    a(f"v_xor_b32 v4, s{S_TAG}, v{T2R}")
    for i in (2, 4, 6):
        a(f"v_xor_b32 v5, s{S_TAG}, v{T2R+i}")
        a("v_or_b32 v4, v4, v5")
    for i in (1, 3, 5, 7):
        a(f"v_xor_b32 v5, s{S_TAG2}, v{T2R+i}")
        a("v_or_b32 v4, v4, v5")
    a("v_cmp_ne_u32 vcc, 0, v4")


def t2_loads(a):
    a(f"""
v_lshlrev_b32 v4, 4, v1
s_mov_b32 s40, {T2_REL:#x}
buffer_load_dwordx4 {q4(T2R)}, v4, s[32:35], s40 offen sc1
buffer_load_dwordx4 {q4(T2R+4)}, v4, s[32:35], s40 offen offset:1024 sc1
""")


def kernel():
    a = Asm()
    VTR, VXA, VWC, VAU, VLOC = VK, VE, VF, VFN, NXE
    VE2, VT2 = VTK, VTE
    VTR1, VWG, XF = VMAXL, VPF, T2R
    a(f"""
{KNAME}:
s_cmp_ge_u32 s2, 256
s_cbranch_scc1 K_END
@S0
@C30
s_load_dwordx16 s[64:79], s[0:1], 0
s_load_dwordx8 s[80:87], s[0:1], 64
s_getpc_b64 s[42:43]
v_and_b32 v6, 63, v0
v_lshlrev_b32 v6, 7, v6
v_add_u32 v7, 8192, v6
v_cmp_le_u32 vcc, {int(OPT.get('cw', 7))*64}, v0
s_mov_b64 exec, vcc
global_load_dword v{VFOUR}, v6, s[42:43]
v_cmp_gt_u32 vcc, {8192 + 3072}, v7
s_mov_b64 exec, vcc
global_load_dword v{VFOUR}, v7, s[42:43]
s_mov_b64 exec, -1
s_mul_i32 s40, s2, {QCH}
v_add_u32 v4, s40, v0
v_add_u32 v5, {QH}, v4
v_cmp_gt_u32 vcc, {QH}, v0
v_lshlrev_b32 v4, 4, v4
v_mov_b32 v6, {BIG:#x}
v_and_b32 v7, 255, v0
v_cndmask_b32 v4, v6, v4, vcc
v_lshlrev_b32 v7, 2, v7
v_mov_b32 v{VZ}, 0
ds_write_b32 v7, v{VZ} offset:{L_HIST}
s_mov_b32 s47, 0x20000
s_mov_b32 s46, {E*4}
s_movk_i32 s58, {QH*16}
s_waitcnt lgkmcnt(0)
s_mov_b32 s44, s70
s_and_b32 s45, s71, 0xffff
buffer_load_dwordx4 v[8:11], v4, s[44:47], 0 offen
buffer_load_dwordx4 v[12:15], v4, s[44:47], s58 offen
v_readfirstlane_b32 s3, v0
s_mov_b32 s41, {NQ}
v_cmp_gt_u32_e64 s[94:95], s41, v5
s_mov_b64 s[92:93], vcc
v_add_u32 v5, s58, v4
s_and_b32 s{S_B}, s2, 7
s_lshl_b32 s{S_B}, s{S_B}, 5
s_lshr_b32 s40, s2, 3
s_or_b32 s{S_B}, s{S_B}, s40
s_and_b64 s[94:95], s[94:95], vcc
s_lshr_b32 s3, s3, 6
v_lshlrev_b32 v61, 4, v0
v_and_b32 v96, 16, v0
v_lshlrev_b32 v96, 1, v96
v_and_b32 v97, 64, v0
v_or_b32 v96, v96, v97
v_xor_b32 v{VWG}, v96, v61
global_load_dwordx4 v[40:43], v{VWG}, s[74:75]
global_load_dwordx4 v[44:47], v{VWG}, s[80:81]
v_lshrrev_b32 v62, 3, v0
v_lshlrev_b32 v90, 8, v62
v_add_u32 v90, s{S_B}, v90
v_lshlrev_b32 v90, 7, v90
v_and_b32 v63, 7, v0
v_lshl_add_u32 v90, v63, 4, v90
""")
    srd(a, 20, 64, 65, N * 128)
    a(f"""
buffer_load_dwordx4 v[56:59], v90, s[20:23], 0 offen
s_or_b32 s40, s2, s3
s_cmp_lg_u32 s40, 0
s_cbranch_scc1 K_NONONCE
s_memrealtime s[40:41]
s_waitcnt lgkmcnt(0)
s_or_b32 s40, s40, 1
v_mov_b32 v7, s40
s_mov_b64 exec, 1
global_store_dword v{VZ}, v7, s[84:85] sc1
s_mov_b64 exec, -1
K_NONONCE:
""")
    srd(a, 48, 68, 69, E * 4)
    srd(a, 52, 66, 67, E * 8)
    a(f"""
v_lshlrev_b32 v6, 1, v4
v_lshlrev_b32 v7, 1, v5
v_mov_b32 v74, v4
v_mov_b32 v75, v5
@S1
""")
    NE = int(OPT.get("ne", 2))
    later = ["buffer_load_dwordx4 v[24:27], v6, s[52:55], 0 offen",
             "buffer_load_dwordx4 v[28:31], v6, s[52:55], 0 offen offset:16",
             "buffer_load_dwordx4 v[16:19], v74, s[48:51], 0 offen",
             "buffer_load_dwordx4 v[20:23], v75, s[48:51], 0 offen"]
    a("s_barrier")
    for l in later[:NE]:
        a(l)
    slots_init(a, 64, False)
    a(f"""
v_and_b32 v1, 63, v0
v_and_b32 v2, 15, v0
v_bfe_u32 v3, v0, 4, 2
v_and_b32 v91, 127, v0
v_lshlrev_b32 v91, 2, v91
v_mul_u32_u24 v62, {XSS}, v62
v_lshl_add_u32 v62, v63, 4, v62
v_add_u32 v62, {L_XS}, v62
v_add_u32 v63, {L_AP}, v61
s_mov_b64 s[16:17], s[86:87]
s_lshr_b32 s18, s3, 1
s_lshl_b32 s18, s18, 4
s_and_b32 s19, s3, 1
v_lshrrev_b32 v{VE2}, 2, v2
v_lshl_add_u32 v{VTR}, v3, 3, v{VE2}
v_lshlrev_b32 v{VTR}, 7, v{VTR}
v_and_b32 v{VT2}, 3, v2
v_lshl_add_u32 v{VTR}, v{VT2}, 3, v{VTR}
s_lshl_b32 s40, s19, 6
v_add_u32 v{VTR}, s40, v{VTR}
v_and_b32 v4, 8, v2
v_lshlrev_b32 v4, 2, v4
v_and_b32 v5, 1, v3
v_lshl_or_b32 v4, v5, 6, v4
v_xor_b32 v{VTR}, v4, v{VTR}
v_xor_b32 v{VTR1}, 32, v{VTR}
v_add_u32 v{VTR}, {L_AP}, v{VTR}
v_add_u32 v{VTR1}, {L_AP}, v{VTR1}
v_add_u32 v{VLOC}, s18, v2
v_mul_u32_u24 v{VXA}, {XSS}, v{VLOC}
v_lshl_add_u32 v{VXA}, v3, 4, v{VXA}
v_add_u32 v{VXA}, {L_XS}, v{VXA}
""")
    srd(a, 28, 16, 17, TAB_BYTES)
    a(f"""
v_lshlrev_b32 v4, 8, v{VLOC}
v_add_u32 v4, s{S_B}, v4
v_lshlrev_b32 v60, 8, v4
v_lshl_add_u32 v60, v3, 4, v60
s_lshl_b32 s40, s19, 7
v_add_u32 v60, s40, v60
v_cmp_eq_u32 vcc, {N}, v4
v_mov_b32 v4, 0x7f000000
v_mov_b32 v5, 0x7f007f00
s_mov_b32 s56, 0x07060100
s_mov_b32 s57, 0x07060302
v_mov_b32 v76, 1
@S2
s_waitcnt vmcnt({4 + NE})
@S3
""")
    for i in range(4):
        a(f"v_lshlrev_b32_sdwa v{64+i}, 2, v{8+i} {SDWA_B0}")
    a("s_mov_b64 exec, s[92:93]")
    for i in range(4):
        a(f"ds_add_rtn_u32 v{80+i}, v{64+i}, v76 offset:{L_HIST}")
    a("s_mov_b64 exec, -1")
    a(f"s_waitcnt vmcnt({3 + NE})")
    for i in range(4, 8):
        a(f"v_lshlrev_b32_sdwa v{64+i}, 2, v{8+i} {SDWA_B0}")
    a("s_mov_b64 exec, s[94:95]")
    for i in range(4, 8):
        a(f"ds_add_rtn_u32 v{80+i}, v{64+i}, v76 offset:{L_HIST}")
    a(f"""
s_mov_b64 exec, -1
s_waitcnt vmcnt({NE})
ds_write_b128 v63, v[40:43]
ds_write_b128 v63, v[44:47] offset:8192
ds_write_b128 v62, v[56:59]
""")
    NL = int(OPT.get("nl", 4))
    rest = later[NE:] + ["buffer_load_dwordx4 v[32:35], v7, s[52:55], 0 offen", "buffer_load_dwordx4 v[36:39], v7, s[52:55], 0 offen offset:16"]
    for l in rest[:NL]:
        a(l)
    for i in range(8):
        a(f"v_lshrrev_b32 v{8+i}, 6, v{8+i}")
    a("v_lshlrev_b32 v77, 4, v1")
    seqs = []
    for t in range(2):
        b, h, o, tm = TOT + 4 * t, TOT + 8 + 4 * t, 40 + 4 * t, 78 + t
        q = [f"v_mul_f32 v{b+i}, {NLOG2E:#x}, v{b+i}" for i in range(4)]
        q += [f"v_med3_f32 v{b+i}, v{b+i}, v4, -v4" for i in range(4)]
        q += [f"v_cvt_pk_bf16_f32 v{tm}, v{h}, v{h}"]
        q += [f"v_cvt_pk_bf16_f32 v{o}, v{b}, v{b+1}", f"v_cvt_pk_bf16_f32 v{o+1}, v{b+2}, v{b+3}"]
        q += [f"v_perm_b32 v{o+2}, v{h+2}, v{tm}, s56", f"v_perm_b32 v{o+3}, v{h+3}, v{h+1}, s57"]
        q += [f"v_cndmask_b32 v{o}, v{o}, v5, vcc", f"v_cndmask_b32 v{o+1}, v{o+1}, v5, vcc"]
        seqs.append(q)
    pack = [z for xy in zip(*seqs) for z in xy]
    stores = [f"buffer_store_dwordx4 {q4(40+4*t)}, v60, s[28:31], 0 offen offset:{64*t} sc1" for t in range(2)]
    wl = [f"global_load_dwordx4 v[48:51], v{VWG}, s[72:73]", f"global_load_dwordx4 v[52:55], v{VWG}, s[78:79]", "global_load_dword v56, v91, s[76:77]"]
    a(f"""
s_waitcnt lgkmcnt(0)
@S4
s_barrier
@S5
ds_read_b128 v[72:75], v77 offset:{L_HIST}
ds_read_b128 {q4(XF)}, v{VXA}
ds_read_b128 {q4(XF+4)}, v{VXA} offset:64
""")
    for l in rest[NL:]:
        a(l)
    tr = Asm()
    tr_reads(tr, (VTR, VTR1), 0, 96)
    tr = tr.L
    for l in tr[:4]:
        a(l)
    a(f"""
s_waitcnt lgkmcnt(6)
v_add_u32 v89, v72, v73
v_add_u32 v90, v89, v74
v_add_u32 v62, v90, v75
v_mov_b32 v63, v62
""")
    steps = [f"row_shr:{d} row_mask:0xf" for d in (1, 2, 4, 8)] + ["row_bcast:15 row_mask:0xa", "row_bcast:31 row_mask:0xc"]
    for i, st in enumerate(steps):
        a(tr[4 + 2 * i]); a(tr[5 + 2 * i])
        a(f"v_add_u32_dpp v62, v62, v62 {st} bank_mask:0xf")
    a(f"""
v_sub_u32 v88, v62, v63
v_add_u32 v91x, v88, v90
v_add_u32 v90, v88, v89
v_add_u32 v89, v88, v72
ds_write_b128 v77, v[88:91] offset:{L_START}
""".replace("v91x", "v91"))
    for i in range(8):
        a(f"ds_read_b32 v{64+i}, v{64+i} offset:{L_START}")
    for i in range(4):
        a(f"v_lshl_or_b32 v{92+i}, v{72+i}, 16, v{88+i}")
    a("s_waitcnt lgkmcnt(9)")
    tile_mfmas(a, 96, XF, TOT)
    a("v_and_b32 v91, 127, v0")
    a("v_lshlrev_b32 v91, 2, v91")
    srd(a, 24, 16, 17, TAB_ROWS, stride=256)
    srd(a, 36, 82, 83, N * 128)
    a(f"s_mov_b32 s40, {L_STAGE}")
    PKP = OPT.get("pkp", "0")
    if PKP == "0":
        for l in pack + stores + wl:
            a(l)
    a(f"""
s_add_u32 s32, s16, {T_OFF:#x}
s_addc_u32 s33, s17, 0
s_and_b32 s33, s33, 0xffff
s_mov_b32 s34, {TR_BYTES}
s_mov_b32 s35, 0x20000
s_mul_i32 s41, s2, {RECS}
s_add_u32 s41, s41, {T_OFF + REC_REL:#x}
s_add_u32 s88, s16, s41
s_addc_u32 s89, s17, 0
s_and_b32 s89, s89, 0xffff
s_mov_b32 s90, {RECB}
s_mov_b32 s91, 0x20000
s_waitcnt vmcnt({7 if PKP == "0" else 2})
""")
    for i in range(8):
        a(f"v_lshl_or_b32 v{16+i}, v{16+i}, 8, v{8+i}")
    for i in range(8):
        a(f"s_waitcnt lgkmcnt({7-i})")
        a(f"v_add_u32 v{64+i}, v{64+i}, v{80+i}")
        a(f"v_mad_u32_u24 v{64+i}, v{64+i}, 12, s40")
    a("s_mov_b64 exec, s[92:93]")
    for i in range(4):
        a(f"ds_write_b32 v{64+i}, v{16+i} offset:8")
        a(f"ds_write2_b32 v{64+i}, v{24+2*i}, v{25+2*i} offset0:0 offset1:1")
    a("s_mov_b64 exec, s[94:95]")
    for i in range(4, 8):
        a(f"ds_write_b32 v{64+i}, v{16+i} offset:8")
    a(f"s_waitcnt vmcnt({5 if PKP == '0' else 0})")
    for i in range(4, 8):
        a(f"ds_write2_b32 v{64+i}, v{24+2*i}, v{25+2*i} offset0:0 offset1:1")
    a("s_mov_b64 exec, -1")
    if PKP == "1":
        for l in pack + stores + wl:
            a(l)
    a(f"""
@S6
s_movk_i32 s14, {RECB//16 - 2048}
v_cmp_gt_u32_e64 s[14:15], s14, v0
v_add_u32 v63, {L_STAGE}, v61
v_add_u32 v91, {L_WC}, v91
s_movk_i32 s44, 0x2000
s_movk_i32 s45, 0x4000
s_movk_i32 s46, 0x6000
s_mov_b32 s47, 0x8000
v_cmp_gt_u32 vcc, 128, v0
s_waitcnt lgkmcnt(0)
@S7
s_barrier
@S8
""")
    for i in range(4):
        a(f"ds_read_b128 {q4(8+4*i)}, v63 offset:{8192*i}")
    a(f"""
s_mov_b64 exec, s[14:15]
ds_read_b128 v[24:27], v63 offset:32768
s_mov_b64 exec, -1
v_mov_b32 v28, 0
v_mov_b32 v29, 0
v_mov_b32 v30, 0
v_mov_b32 v31, 0
""")
    for i in range(4):
        a(f"s_waitcnt lgkmcnt({4-i})")
        so = "0" if i == 0 else f"s{43+i}"
        a(f"buffer_store_dwordx4 {q4(8+4*i)}, v61, s[88:91], {so} offen sc1")
    koff = struct.unpack("<I", struct.pack("<f", -float(KEXP) if OPT["cadd"] == "1" else 0.0))[0]
    a(f"""
s_mov_b64 exec, s[14:15]
s_waitcnt lgkmcnt(0)
buffer_store_dwordx4 v[24:27], v61, s[88:91], s47 offen sc1
s_mov_b64 exec, vcc
ds_write_b128 v61, v[28:31]
s_mov_b64 exec, -1
global_load_dword v64, v{VZ}, s[84:85] sc1
@S9
s_waitcnt vmcnt(6)
ds_write_b128 v63, v[48:51]
ds_write_b128 v63, v[52:55] offset:8192
ds_write_b32 v91, v56
v_add_u32 v{VTR}, {L_STAGE - L_AP}, v{VTR}
v_add_u32 v{VTR1}, {L_STAGE - L_AP}, v{VTR1}
v_lshl_add_u32 v{VWC}, v2, 2, v3
v_lshlrev_b32 v{VWC}, 1, v{VWC}
v_add_u32 v{VWC}, {L_WC}, v{VWC}
s_movk_i32 s40, {US}
s_lshl_b32 s41, s19, 7
s_add_u32 s41, s41, {L_AP}
v_mad_u32_u24 v{VAU}, v{VLOC}, s40, 0
v_lshl_add_u32 v{VAU}, v3, 4, v{VAU}
v_add_u32 v{VAU}, s41, v{VAU}
v_cmp_gt_u32_e64 s[14:15], 49, v{VLOC}
s_mov_b32 s{S_MODE}, 0
s_mov_b32 s{S_CS}, {CS}
s_mov_b32 s{S_AM}, 0x22221111
s_mov_b32 s{S_AM+1}, 0x88884444
s_mov_b32 s{S_K}, {KBITS:#x}
s_mov_b32 s{S_K+1}, {KBITS:#x}
s_mov_b32 s6, {NLOG2E:#x}
s_mov_b32 s7, {NLOG2E:#x}
v_mov_b32 v{NX}, {koff:#x}
v_mov_b32 v{NX+1}, {koff:#x}
v_and_b32 v5, 1, v{VT2}
v_lshlrev_b32 v5, 4, v5
v_mov_b32 v6, 0x3f80
v_lshlrev_b32 v5, v5, v6
v_cmp_eq_u32 vcc, v3, v{VE2}
v_cmp_gt_u32_e64 s[52:53], 2, v{VT2}
v_cmp_le_u32_e64 s[54:55], 2, v{VT2}
v_mov_b32 v6, {8*GS*UNR}
v_cndmask_b32 v5, 0, v5, vcc
v_cndmask_b32_e64 v{VINC}, 0, v6, s[{S_AM}:{S_AM+1}]
v_mov_b32 v{VFOUR}, 4
""")
    for i in range(GS):
        a(f"v_cndmask_b32_e64 v{AOP[i]+2}, 0, v5, s[52:53]")
        a(f"v_cndmask_b32_e64 v{AOP[i]+3}, 0, v5, s[54:55]")
        a(f"v_lshlrev_b32 v{IDX[i]+1}, 4, v2")
    a(f"""
s_lshl_b32 s41, s{S_B}, 3
v_lshl_add_u32 v4, v3, 11, s41
s_lshl_b32 s40, s3, 16
""")
    for k in range(1, 8):
        a(f"s_add_u32 s{40+k}, s40, {8192*k}")
    V0, V1, V2, V3, V4 = X0 + 16, X0 + 17, X0 + 18, X0 + 19, X0 + 20
    a(f"""
s_lshl_b32 s48, s3, 5
v_add_u32 v5, s48, v3
s_mov_b32 s49, {RECS}
v_mul_lo_u32 v5, v5, s49
v_mad_u32_u24 v5, v2, 12, v5
v_add_u32 v5, {REC_REL}, v5
v_add_u32 v6, 16, v2
s_memrealtime s[50:51]
@S18
s_waitcnt vmcnt(0)
K_TAGW:
v_readfirstlane_b32 s{S_TAG}, v64
s_cmp_lg_u32 s{S_TAG}, 0
s_cbranch_scc0 K_TAG_RETRY
K_TAGOK:
s_mul_i32 s48, s{S_TAG}, 0x9e3779b1
s_and_b32 s48, s48, 0xf000f000
s_waitcnt lgkmcnt(0)
@S19
s_barrier
s_cmp_lg_u32 s3, 0
s_cbranch_scc1 K_NOPUB
v_or_b32 v8, s48, v92
v_mov_b32 v9, s{S_TAG}
v_or_b32 v10, s48, v93
v_mov_b32 v11, s{S_TAG}
v_or_b32 v12, s48, v94
v_mov_b32 v13, s{S_TAG}
v_or_b32 v14, s48, v95
v_mov_b32 v15, s{S_TAG}
v_lshlrev_b32 v16, 5, v1
s_lshl_b32 s49, s2, 11
buffer_store_dwordx4 v[8:11], v16, s[32:35], s49 offen sc1
buffer_store_dwordx4 v[12:15], v16, s[32:35], s49 offen offset:16 sc1
K_NOPUB:
""")
    tr_reads(a, (VTR, VTR1), 0, 96)
    a(f"""
ds_read_u16 v{CA}, v{VWC}
ds_read_u16 v{CA+1}, v{VWC} offset:128
ds_read_u16 v{CA+2}, v{VWC} offset:256
ds_read_u16 v{CA+3}, v{VWC} offset:384
s_mov_b32 s49, 0xf000f000
s_waitcnt lgkmcnt(4)
""")
    tile_mfmas(a, 96, XF, TOT)
    a("s_waitcnt lgkmcnt(0)")
    for k in range(4):
        a(f"v_lshlrev_b32 v{CA+k}, 16, v{CA+k}")
    for k in range(4):
        a(f"v_mul_f32 v{CA+k}, {NLOG2E:#x}, v{CA+k}")
    a(f"v_cvt_pk_bf16_f32 v{CN}, v{CA}, v{CA+1}")
    a(f"v_cvt_pk_bf16_f32 v{CN+1}, v{CA+2}, v{CA+3}")
    a(f"v_mov_b32 v{V0}, s{S_TAG}")
    a(f"v_mov_b32 v{V1}, s48")
    a("s_mov_b64 exec, s[14:15]")
    a(f"ds_write_b128 v{VAU}, {q4(TOT+8)} offset:{L_U - L_AP}")
    a(f"ds_write_b128 v{VAU}, {q4(TOT+12)} offset:{L_U - L_AP + 64}")
    for i in range(0, 8, 2):
        a(f"v_pk_fma_f32 {pr(TOT+i)}, {pr(TOT+i)}, s[6:7], {pr(NX)}")
    a(f"""
ds_write_b128 v{VAU}, {q4(TOT)}
ds_write_b128 v{VAU}, {q4(TOT+4)} offset:64
s_mov_b64 exec, -1
""")
    for p in range(NB):
        for i in range(GS):
            a(f"v_pk_mov_b32 {pr(stepbuf(p, i))}, {pr(CN)}, {pr(CN)} op_sel:[0,1]")
    for i in range(0, 16, 2):
        a(f"v_pk_mov_b32 {pr(TOT+i)}, 0, 0")
    if int(OPT.get("presleep", 0)):
        a(f"s_sleep {OPT['presleep']}")
    a("""
@S23
K_POLL:
""")
    for k in range(8):
        a(f"buffer_load_dwordx2 {pr(PT+2*k)}, v4, s[32:35], s{40+k} offen sc1")
    a(f"v_mov_b32 v{V2}, 0")
    for k in range(8):
        a(f"s_waitcnt vmcnt({7-k})")
        a(f"v_xor_b32 v{V3}, v{PT+2*k}, v{V1}")
        a(f"v_xor_b32 v{V4}, v{PT+2*k+1}, v{V0}")
        a(f"v_and_or_b32 v{V2}, v{V3}, s49, v{V2}")
        a(f"v_and_b32 v{VTT+k}, 0x0fff0fff, v{PT+2*k}")
        a(f"v_or_b32 v{V2}, v{V4}, v{V2}")
    a(f"""
v_cmp_ne_u32 vcc, 0, v{V2}
s_cbranch_vccnz K_POLL_RETRY
K_POLLOK:
@S24
s_mov_b64 exec, 1
ds_add_u32 v{VZ}, v{VFOUR} offset:{L_ACKS}
s_mov_b64 exec, -1
""")
    for k in range(8):
        a(f"v_mad_u32_u16 v{VRA+k}, v{VTT+k}, 12, v5")
        a(f"v_cmp_gt_u32_sdwa s[{80+2*k}:{81+2*k}], v{VTT+k}, v6 src0_sel:WORD_1 src1_sel:DWORD")
        if k < 7:
            a(f"v_add_u32 v5, {4*RECS}, v5")
        r = recset(8 + k)
        a(f"s_mov_b64 exec, s[{80+2*k}:{81+2*k}]")
        a(f"s_cbranch_execz K_M1L{k}")
        a(f"buffer_load_dwordx3 v[{r}:{r+2}], v{VRA+k}, s[32:35], 0 offen offset:192 sc1")
        a(f"K_M1L{k}:")
        a("s_mov_b64 exec, -1")
        a(f"v_cmp_gt_u32_sdwa s[{64+2*k}:{65+2*k}], v{VTT+k}, v2 src0_sel:WORD_1 src1_sel:DWORD")
    for k in range(8):
        r = recset(k)
        a(f"s_mov_b64 exec, s[{64+2*k}:{65+2*k}]")
        a(f"buffer_load_dwordx3 v[{r}:{r+2}], v{VRA+k}, s[32:35], 0 offen sc1")
    a(f"""
s_mov_b64 exec, -1
@S25
v_max3_u32 v4, v{VTT}, v{VTT+1}, v{VTT+2}
v_max3_u32 v5, v{VTT+3}, v{VTT+4}, v{VTT+5}
v_max3_u32 v4, v4, v{VTT+6}, v{VTT+7}
v_max_u32 v4, v4, v5
v_lshrrev_b32 v{VMAXL}, 16, v4
s_waitcnt vmcnt(8)
""")

    def A_(j):
        a(f"s_waitcnt vmcnt({7 - j})")
        a(f"s_mov_b64 exec, s[{64+2*j}:{65+2*j}]")
        place_atomic(a, recset(j), VCA + j)

    def W_(j, n):
        a(f"s_mov_b64 exec, s[{64+2*j}:{65+2*j}]")
        if n is not None:
            a(f"s_waitcnt lgkmcnt({n})")
        place_write(a, recset(j), VCA + j)
    for j in range(8):
        a(f"s_mov_b64 exec, s[{80+2*j}:{81+2*j}]")
        a(f"s_cbranch_execz K_M1A{j}")
        place_atomic(a, recset(8 + j), VCA + 8 + j)
        a(f"K_M1A{j}:")
    A_(0); A_(1)
    a("s_waitcnt lgkmcnt(2)")
    for j in range(8):
        a(f"s_mov_b64 exec, s[{80+2*j}:{81+2*j}]")
        a(f"s_cbranch_execz K_M1W{j}")
        place_write(a, recset(8 + j), VCA + 8 + j)
        a(f"K_M1W{j}:")
    A_(2)
    W_(0, 1)
    W_(1, None)
    A_(3)
    W_(2, 5)
    A_(4)
    W_(3, 3)
    A_(5)
    W_(4, 3)
    A_(6)
    a("s_mov_b64 exec, -1")
    a(f"ds_read_b32 v7, v{VZ} offset:{L_ACKS}")
    W_(5, 4)
    A_(7)
    a("@S26")
    W_(6, 4)
    npf, pfs = int(OPT["npf"]), int(OPT["pfs"])
    a(f"""
s_mov_b64 exec, -1
s_waitcnt lgkmcnt(2)
v_readfirstlane_b32 s40, v7
s_cmp_lg_u32 s40, 32
s_cbranch_scc1 K_NOPF
""")
    if npf:
        a(f"""
s_lshr_b32 s40, s2, 3
s_mul_i32 s40, s40, {782*128}
v_mul_u32_u24 v7, {pfs}, v0
v_add_u32 v7, s40, v7
""")
        for p in range(-(-npf // 512)):
            if p:
                a(f"v_add_u32 v7, {512*pfs}, v7")
            if npf - 512 * p < 512:
                a(f"v_cmp_gt_u32 vcc, {npf - 512*p}, v0")
                a("s_mov_b64 exec, vcc")
            a(f"buffer_load_dword v{VPF}, v7, s[28:31], 0 offen sc1")
    a("K_NOPF:")
    W_(7, None)
    R = X0
    a(f"""
s_mov_b64 exec, -1
v_cmp_lt_u32 vcc, 32, v{VMAXL}
s_cbranch_vccnz K_LONG_ENTRY
K_PLACED:
s_waitcnt lgkmcnt(0)
@S27
s_barrier
@S28
K_RANK:
v_lshlrev_b32 v4, 2, v1
ds_read_b32 v{R}, v4 offset:{L_CNT}
""")
    for i in range(1, 6):
        a(f"s_add_u32 s{40+i}, s3, {8*i}")
    a(f"""
v_cmp_gt_u32_e64 s[52:53], 48, v1
v_lshl_add_u32 v{R+2}, v1, 3, s3
v_mul_u32_u24 v{R+6}, {CS*4}, v{R+2}
v_mul_u32_u24 v{R+7}, {US}, v{R+2}
v_add_u32 v{R+7}, {L_AP}, v{R+7}
v_lshlrev_b32 v{R+2}, 2, v{R+2}
s_waitcnt lgkmcnt(0)
v_cmp_lt_u32 vcc, {CAP*4}, v{R}
v_lshl_add_u32 v{R+1}, v{R}, 4, v1
v_add_u32 v{R+1}, 1, v{R+1}
s_cbranch_vccnz K_SLOW_ENTRY
v_cndmask_b32_e64 v{R+1}, 0, v{R+1}, s[52:53]
v_readlane_b32 s50, v{R}, 48
""")
    for i in range(6):
        a(f"v_readlane_b32 s{64+i}, v{R+1}, s{3 if i == 0 else 40+i}")
    a(f"s_add_u32 s51, s50, {4*(4*GS-1)}")
    for i in range(6):
        a(f"v_cmp_lt_u32_e64 s[{72+2*i}:{73+2*i}], s{64+i}, v{R+1}")
    if GS == 2:
        a("s_lshr_b32 s51, s51, 5")
    else:
        a("s_lshr_b32 s51, s51, 4")
        a("s_mul_i32 s51, s51, 0x5556")
        a("s_lshr_b32 s51, s51, 16")
    for i in range(6):
        a(f"v_writelane_b32 v{R+3}, s{64+i}, {i}")
        a(f"s_bcnt1_i32_b64 s{72+2*i}, s[{72+2*i}:{73+2*i}]")
    a(f"""
s_max_u32 s51, s51, {MINPS}
s_cmp_eq_u32 s50, 0
s_cselect_b32 s50, 0, s51
s_mul_i32 s50, s50, {GS}
""")
    for i in range(6):
        a(f"v_writelane_b32 v{R+4}, s{72+2*i}, {i}")
    a(f"""
v_lshrrev_b32 v{R+3}, 6, v{R+3}
v_add_u32 v{R+4}, 4, v{R+4}
v_lshlrev_b32 v{R+5}, 3, v{R+4}
v_lshlrev_b32 v{R+8}, 2, v{R+4}
s_mov_b64 exec, 63
ds_write_b64 v{R+5}, {pr(R+6)} offset:{L_TS}
ds_write_b32 v{R+8}, v{R+3} offset:{L_TC}
ds_write_b32 v{R+2}, v{R+4} offset:{L_RK}
s_mov_b64 exec, 15
v_mul_u32_u24 v{R+10}, s50, v4
v_add_u32 v{R+10}, {48*CS*4}, v{R+10}
v_mov_b32 v{R+11}, {L_AP + 48*US}
v_mov_b32 v{R+9}, s50
v_lshlrev_b32 v5, 3, v1
ds_write_b64 v5, {pr(R+10)} offset:{L_TS}
ds_write_b32 v4, v{R+9} offset:{L_TC}
ds_write_b32 v4, v1 offset:{L_RK + 192}
s_mov_b64 exec, -1
v_lshlrev_b32 v4, 4, v2
v_cmp_gt_u32_e64 s[52:53], 13, v2
s_add_u32 s15, s3, 1
s_waitcnt lgkmcnt(0)
s_barrier
@S29
ds_read_b32 v{R}, v4 offset:{L_TC}
v_mov_b32 v{R+4}, 1
v_mov_b32 v{R+5}, 0
s_waitcnt lgkmcnt(0)
v_cmp_ne_u32 vcc, 0, v{R}
v_add_u32 v{R}, {GS-1}, v{R}
""")
    if GS == 2:
        a(f"v_lshrrev_b32 v{R}, 1, v{R}")
    else:
        a(f"v_mul_u32_u24 v{R}, 0x5556, v{R}")
        a(f"v_lshrrev_b32 v{R}, 16, v{R}")
    a(f"""
s_and_b64 s[44:45], vcc, s[52:53]
v_max_u32 v{R}, {MINPS}, v{R}
v_cndmask_b32_e64 v{R}, 0, v{R}, s[44:45]
v_mov_b32 v{R+1}, v{R}
""")
    scan(a, R + 1, row_only=True)
    a(f"""
s_nop 0
v_readlane_b32 s14, v{R+1}, 15
v_sub_u32 v{R+2}, v{R+1}, v{R}
s_cmp_gt_u32 s14, {MAXIT*8}
s_cbranch_scc1 K_SLOW_ENTRY
s_mul_i32 s40, s14, s3
s_mul_i32 s41, s14, s15
s_lshr_b32 s40, s40, 3
s_lshr_b32 s41, s41, 3
s_sub_u32 s{S_IT}, s41, s40
s_cmp_eq_u32 s{S_IT}, 0
s_cbranch_scc1 K_LOOP_DONE
v_cmp_ge_u32_e64 s[42:43], s40, v{R+1}
v_subrev_u32 v{R+3}, s40, v{R+2}
s_and_b32 s42, s42, 0x1fff
s_bcnt1_i32_b32 s42, s42
s_lshl_b32 s46, s42, 5
v_lshl_add_u32 v{VTK}, v3, 3, s46
v_and_b32 v{VTE}, 12, v2
v_lshl_add_u32 v{VTE}, v{VTE}, 1, s46
v_readlane_b32 s43, v{R+2}, s42
ds_read_b64 {pr(R+6)}, v{VTK} offset:{L_TS}
ds_read_b32 v{NXE}, v{VTE} offset:{L_TS}
ds_read_b64 {pr(NX)}, v{VTK} offset:{L_TS + 32}
v_add_u32 v{R+8}, -1, v{R+3}
v_cmp_gt_u32 vcc, 63, v{R+8}
v_lshlrev_b64 {pr(R+4)}, v{R+3}, {pr(R+4)}
s_and_b64 vcc, vcc, s[44:45]
s_sub_u32 s43, s40, s43
v_cndmask_b32 v{R+4}, 0, v{R+4}, vcc
v_cndmask_b32 v{R+5}, 0, v{R+5}, vcc
s_mul_i32 s45, s43, {4*GS}
s_lshl_b32 s47, s45, 1
""")
    for d in (1, 2, 4, 8):
        a(f"v_or_b32_dpp v{R+4}, v{R+4}, v{R+4} row_shr:{d} row_mask:0xf bank_mask:0xf")
        a(f"v_or_b32_dpp v{R+5}, v{R+5}, v{R+5} row_shr:{d} row_mask:0xf bank_mask:0xf")
        a("s_nop 0")
    TI = {1: [Y[0] + 2 * i for i in range(GS)]}
    nxt = HL
    for p in range(2, NB):
        TI[p] = [nxt + 2 * i for i in range(GS)]
        nxt += 2 * GS
    assert nxt <= DEN, (nxt, DEN)
    a(f"""
s_add_u32 s45, s45, {L_KEYS}
s_add_u32 s47, s47, {L_EA}
v_readlane_b32 s{S_MASK}, v{R+4}, 15
v_readlane_b32 s{S_MASK+1}, v{R+5}, 15
s_bfm_b64 s[48:49], s{S_IT}, 0
s_waitcnt lgkmcnt(1)
v_add_u32 v{VK}, s45, v{R+6}
v_add_u32 v{R+7}, v{R+7}, v{IDX[0]+1}
s_and_b64 s[{S_MASK}:{S_MASK+1}], s[{S_MASK}:{S_MASK+1}], s[48:49]
""")
    for i in range(GS):
        a(f"ds_read_b32 v{IDX[i]}, v{VK} offset:{4*i}")
    a(f"""
ds_read_b128 {q4(CA)}, v{R+7}
v_lshl_add_u32 v{VE}, v{NXE}, 1, s47
v_mov_b32 v4, {L_ZERO}
""")
    for p in range(1, NB):
        for i in range(GS):
            a(f"v_mov_b32 v{TI[p][i]+1}, v{IDX[0]+1}")
    a(f"v_cndmask_b32_e64 v{VE}, v4, v{VE}, s[{S_AM}:{S_AM+1}]")
    a(f"s_waitcnt lgkmcnt({GS+1})")
    for p in range(1, NB):
        a(f"s_bitcmp1_b32 s{S_MASK}, {p}")
        a(f"s_cbranch_scc0 K_PK{p}")
        ev_k(a, 4 * GS * p)
        a(f"K_PK{p}:")
        for i in range(GS):
            a(f"ds_read_b32 v{TI[p][i]}, v{VK} offset:{4*(GS*p+i)}")
    for i in range(GS):
        a(f"ds_read_b64 {pr(AOP[i])}, v{VE} offset:{8*i}")
    a(f"""
s_lshr_b64 s[{S_CM}:{S_CM+1}], s[{S_MASK}:{S_MASK+1}], 3
s_lshr_b64 s[48:49], s[{S_MASK}:{S_MASK+1}], {NB+1}
s_or_b64 s[{S_CM}:{S_CM+1}], s[{S_CM}:{S_CM+1}], s[48:49]
s_mov_b32 s{S_RAW}, s{S_MASK}
s_bitset1_b64 s[{S_MASK}:{S_MASK+1}], s{S_IT}
s_lshr_b64 s[48:49], s[{S_MASK}:{S_MASK+1}], 1
s_or_b64 s[{S_CM}:{S_CM+1}], s[{S_CM}:{S_CM+1}], s[48:49]
s_waitcnt lgkmcnt({GS})
""")
    NG0 = int(OPT["ng0"])
    NG1 = max(NG0, min(NB, 4 if GS == 2 else 3))
    for l in gathers(0, IDX):
        a(l)
    for p in range(1, NG0):
        for l in gathers(p, TI[p]):
            a(l)
    if OPT["prio"] == "1":
        dflt = (24, 12, 4) if GS == 2 else (16, 8, 3)
        t1, t2, t3 = [int(OPT.get(f"thr{i+1}", dflt[i])) for i in range(3)]
        a(f"""
s_setprio 3
s_mov_b32 s{S_PR}, 3
s_mov_b64 s[54:55], 0
s_bitset1_b64 s[54:55], {63 - t1}
s_bitset1_b64 s[54:55], {63 - t2}
s_bitset1_b64 s[54:55], {63 - t3}
s_sub_u32 s46, 63, s{S_IT}
s_lshr_b64 s[54:55], s[54:55], s46
s_or_b64 s[{S_CM}:{S_CM+1}], s[{S_CM}:{S_CM+1}], s[54:55]
""")
    a(f"""
s_ff1_i32_b64 s{S_CNT}, s[{S_CM}:{S_CM+1}]
v_lshlrev_b32 v5, 9, v3
v_lshl_add_u32 v5, v2, 4, v5
s_lshl_b32 s45, s42, 11
s_add_u32 s45, s45, {L_ACC}
s_add_u32 s46, s45, 2048
v_add_u32 v{VFN}, s46, v5
s_cmp_eq_u32 s43, 0
s_cbranch_scc1 K_P2
s_lshl_b32 s45, s3, 11
s_add_u32 s45, s45, {L_EXT}
s_lshl_b32 s46, 1, s3
s_lshl_b32 s47, s42, 2
v_mov_b32 v6, s46
v_mov_b32 v7, s47
s_mov_b64 exec, 1
ds_or_b32 v7, v6 offset:{L_MASK}
s_mov_b64 exec, -1
K_P2:
v_add_u32 v{VF}, s45, v5
""")
    for i in range(0, 8, 2):
        a(f"v_pk_mov_b32 {pr(DEN+i)}, 0, 0")
    a(f"""
v_add_u32 v{VK}, {4*GS*NB}, v{VK}
s_bitcmp1_b32 s{S_RAW}, {NB}
s_cbranch_scc0 K_PK{NB}
""")
    ev_k(a, 0)
    a(f"""
K_PK{NB}:
v_mov_b32 v5, {16*GS}
@S10
s_waitcnt vmcnt({GS*(NG0-1)}) lgkmcnt(0)
@S15
""")
    for l in mfmas(0):
        a(l)
    for p in range(NG0, NG1):
        for l in gathers(p, TI[p]):
            a(l)
    a(f"""
s_bitcmp1_b32 s{S_RAW}, 1
s_cbranch_scc0 K_PE1
s_nop 2
""")
    ev_e(a, 8 * GS)
    a("K_PE1:")
    for i in range(GS):
        a(f"ds_read_b64 {pr(AOP[i])}, v{VE} offset:{8*(GS+i)}")
    a(f"""
v_cndmask_b32_e64 v5, 0, v5, s[{S_AM}:{S_AM+1}]
s_nop 3
""")
    for i in range(4 * GS):
        a(f"v_exp_f32 v{Y[0]+i}, v{Y[0]+i}")
    a(f"v_add_u32 v{VE}, v5, v{VE}")
    a(f"s_waitcnt vmcnt({GS*(NG1-2)}) lgkmcnt(0)")
    for l in mfmas(1):
        a(l)
    for p in range(NG1, NB):
        for l in gathers(p, TI[p]):
            a(l)
    a(f"""
s_bitcmp1_b32 s{S_RAW}, 2
s_cbranch_scc0 K_PE2
s_nop 2
""")
    ev_e(a, 0)
    a(f"""
K_PE2:
@C20
s_nop 4
{f".p2align {OPT['align']}" if OPT.get('align') else ''}
K_LOOP:
""")
    order = ORDERS[GS][OPT["order"]].split()
    for k in range(UNR):
        d = ops(k)
        for x in order:
            a(d[x])
        if k == UNR - 1:
            a("s_cbranch_scc0 K_LOOP")
        else:
            a(f"s_cbranch_scc1 K_EV{k}")
            a(f"K_RET{k}:")
    for k in [UNR - 1] + list(range(UNR - 1)):
        kn = (k + 1) % UNR
        ret = f"K_RET{k}" if k < UNR - 1 else "K_LOOP"
        a(f"""
K_EV{k}:
s_ff1_i32_b64 s14, s[{S_CM}:{S_CM+1}]
s_bitset0_b64 s[{S_CM}:{S_CM+1}], s14
s_ff1_i32_b64 s{S_CNT}, s[{S_CM}:{S_CM+1}]
s_lshr_b64 s[40:41], s[{S_MASK}:{S_MASK+1}], s14
s_sub_u32 s{S_CNT}, s{S_CNT}, s14
s_sub_u32 s{S_CNT}, s{S_CNT}, 1
s_bitcmp1_b32 s40, 1
s_cbranch_scc0 K_EV{k}A
ds_write_b128 v{VF}, {q4(DEN)}
ds_write_b128 v{VF}, {q4(NUM)} offset:256
s_lshr_b64 s[42:43], s[40:41], 2
s_cbranch_scc0 K_LOOP_DONE
v_mov_b32 v{VF}, v{VFN}
v_add_u32 v{VFN}, 2048, v{VFN}
""")
        for i in range(0, 8, 2):
            a(f"v_pk_mov_b32 {pr(DEN+i)}, 0, 0")
        a(f"""
K_EV{k}A:
s_bitcmp1_b32 s40, 3
s_cbranch_scc0 K_EV{k}B
""")
        ev_e(a, 8 * GS * kn)
        a(f"""
K_EV{k}B:
s_lshr_b64 s[42:43], s[40:41], {NB+2}
s_cbranch_scc0 K_EV{k}C
s_bitcmp1_b32 s40, {NB+1}
s_cbranch_scc0 K_EV{k}C
""")
        ev_k(a, 4 * GS * kn)
        a(f"K_EV{k}C:")
        if OPT["prio"] == "1":
            a(f"""
s_bitcmp1_b64 s[54:55], s14
s_cbranch_scc0 {ret}
s_sub_u32 s{S_PR}, s{S_PR}, 1
s_setprio 0
s_cmp_eq_u32 s{S_PR}, 0
s_cbranch_scc1 {ret}
s_setprio 1
s_cmp_eq_u32 s{S_PR}, 1
s_cbranch_scc1 {ret}
s_setprio 2
""")
        a(f"s_branch {ret}")
    D0, U0 = R + 16, R + 32
    a(f"""
K_LOOP_DONE:
@C21
@S11
s_setprio 0
v_lshrrev_b32 v{R}, 3, v0
v_min_u32 v{R+1}, 48, v{R}
v_lshlrev_b32 v{R+2}, 2, v{R}
v_lshlrev_b32 v{R+3}, 2, v{R+1}
v_and_b32 v{R+4}, 7, v0
v_lshlrev_b32 v{R+5}, 5, v{R+4}
v_cmp_gt_u32_e64 s[40:41], 52, v{R}
s_movk_i32 s14, {US}
v_mad_u32_u24 v{R+8}, v{R+1}, s14, v{R+5}
v_add_u32 v{R+8}, {L_U}, v{R+8}
v_mul_u32_u24 v{R+9}, {XSS}, v{R+1}
v_lshl_add_u32 v{R+9}, v{R+4}, 4, v{R+9}
v_add_u32 v{R+9}, {L_XS}, v{R+9}
ds_read_b32 v{R+6}, v{R+2} offset:{L_RK}
ds_read_b32 v{R+7}, v{R+3} offset:{L_CNT}
ds_read_b128 {q4(U0)}, v{R+8}
ds_read_b128 {q4(U0+4)}, v{R+8} offset:16
ds_read_b128 {q4(CA)}, v{R+9}
s_waitcnt lgkmcnt(0)
v_cmp_ne_u32 vcc, 0, v{R+7}
v_and_b32 v{R+10}, -4, v{R+6}
v_lshl_add_u32 v{R+11}, v{R+6}, 9, v{R+5}
v_add_u32 v{R+11}, {L_ACC}, v{R+11}
v_and_b32 v{R+12}, 3, v{R+6}
v_lshl_add_u32 v{R+12}, v{R+12}, 9, v{R+5}
v_add_u32 v{R+12}, {L_EXT}, v{R+12}
s_barrier
@S12
s_and_b64 exec, vcc, s[40:41]
s_cbranch_execz K_COMB_DONE
ds_read_b32 v{R+10}, v{R+10} offset:{L_MASK}
K_COMB_X:
ds_read_b128 {q4(D0)}, v{R+11}
ds_read_b128 {q4(D0+4)}, v{R+11} offset:16
ds_read_b128 {q4(D0+8)}, v{R+11} offset:256
ds_read_b128 {q4(D0+12)}, v{R+11} offset:272
s_waitcnt lgkmcnt(4)
v_ffbl_b32 v{R+11}, v{R+10}
v_cmp_ne_u32 vcc, 0, v{R+10}
v_add_u32 v{R+13}, -1, v{R+10}
v_and_b32 v{R+10}, v{R+10}, v{R+13}
v_lshl_add_u32 v{R+11}, v{R+11}, 11, v{R+12}
s_waitcnt lgkmcnt(0)
""")
    for i in range(0, 16, 2):
        a(f"v_pk_add_f32 {pr(TOT+i)}, {pr(TOT+i)}, {pr(D0+i)}")
    a(f"""
s_and_b64 exec, exec, vcc
s_cbranch_execnz K_COMB_X
K_COMB_DONE:
s_mov_b64 exec, -1
s_cmp_lg_u32 s{S_MODE}, 0
s_cbranch_scc1 K_SLOW_NEXT
K_FINAL:
s_cmp_lg_u32 s3, 6
s_cbranch_scc1 K_FIN2
""")
    for i in range(16):
        a(f"v_add_f32_dpp v{TOT+i}, v{TOT+i}, v{TOT+i} row_ror:8 row_mask:0xf bank_mask:0xf")
    for i in range(16):
        a(f"ds_swizzle_b32 v{D0+i}, v{TOT+i} offset:0x401F")
    a("s_waitcnt lgkmcnt(0)")
    for i in range(0, 16, 2):
        a(f"v_pk_add_f32 {pr(TOT+i)}, {pr(TOT+i)}, {pr(D0+i)}")
    eps = struct.unpack("<I", struct.pack("<f", 1e-6 * 2.0**KEXP))[0]
    a(f"""
K_FIN2:
s_mov_b32 s14, {eps:#x}
s_mov_b32 s15, {eps:#x}
v_lshlrev_b32 v{R}, 8, v{R}
v_add_u32 v{R}, s{S_B}, v{R}
v_lshlrev_b32 v{R}, 7, v{R}
v_lshl_add_u32 v{R}, v{R+4}, 4, v{R}
""")
    for i in range(0, 8, 2):
        a(f"v_pk_add_f32 {pr(TOT+i)}, {pr(TOT+i)}, s[14:15]")
    for i in range(8):
        a(f"v_rcp_f32 v{TOT+i}, v{TOT+i}")
    for i in range(4):
        a(f"v_lshlrev_b32 v{D0+2*i}, 16, v{CA+i}")
        a(f"v_and_b32 v{D0+2*i+1}, 0xffff0000, v{CA+i}")
    for i in range(0, 8, 2):
        a(f"v_pk_fma_f32 {pr(U0+i)}, {pr(TOT+8+i)}, {pr(TOT+i)}, {pr(U0+i)}")
    for i in range(8):
        a(f"v_max_f32 v{U0+i}, 0, v{U0+i}")
    for i in range(0, 8, 2):
        a(f"v_pk_add_f32 {pr(D0+i)}, {pr(D0+i)}, {pr(U0+i)}")
    for i in range(4):
        a(f"v_cvt_pk_bf16_f32 v{D0+i}, v{D0+2*i}, v{D0+2*i+1}")
    a(f"""
buffer_store_dwordx4 {q4(D0)}, v{R}, s[36:39], 0 offen {OPT['st_out']}
@S13
@Wvmcnt(0)
@S14
@Vs{S_IT},22
@OUT
K_END:
s_endpgm
K_TAG_RETRY:
s_waitcnt lgkmcnt(0)
s_memrealtime s[52:53]
s_sleep 4
global_load_dword v64, v{VZ}, s[84:85] sc1
s_waitcnt vmcnt(0) lgkmcnt(0)
s_sub_u32 s52, s52, s50
s_cmp_lt_u32 s52, 0x400000
s_cbranch_scc1 K_TAGW
s_branch K_TAGOK
K_POLL_RETRY:
s_memrealtime s[52:53]
s_sleep {OPT['sleep']}
s_waitcnt lgkmcnt(0)
s_sub_u32 s52, s52, s50
s_cmp_lt_u32 s52, 0x400000
s_cbranch_scc1 K_POLL
""")
    for k in range(8):
        a(f"v_cndmask_b32 v{VTT+k}, v{VTT+k}, v{VZ}, vcc")
    a(f"""
s_branch K_POLLOK
K_LONG_ENTRY:
s_mov_b32 s14, 32
K_LONG:
v_add_u32 v6, s14, v2
s_mul_i32 s15, s14, 12
""")
    for k in range(8):
        a(f"""
s_mov_b64 exec, -1
v_cmp_gt_u32_sdwa vcc, v{VTT+k}, v6 src0_sel:WORD_1 src1_sel:DWORD
s_and_saveexec_b64 s[40:41], vcc
s_cbranch_execz K_LONG_S{k}
buffer_load_dwordx3 v[{R}:{R+2}], v{VRA+k}, s[32:35], s15 offen sc1
s_waitcnt vmcnt(0)
""")
        place_atomic(a, R, 4)
        a("s_waitcnt lgkmcnt(0)")
        place_write(a, R, 4)
        a(f"K_LONG_S{k}:")
    a(f"""
s_mov_b64 exec, -1
s_add_u32 s14, s14, 16
v_cmp_lt_u32 vcc, s14, v{VMAXL}
s_cbranch_vccnz K_LONG
s_branch K_PLACED
K_SLOW_ENTRY:
ds_max_u32 v{VZ}, v{VMAXL} offset:{L_MAXL}
s_waitcnt lgkmcnt(0)
s_barrier
ds_read_b32 v5, v{VZ} offset:{L_MAXL}
s_mov_b32 s{S_MODE}, 1
s_mov_b32 s{S_I}, 0
s_mov_b32 s{S_MO}, 0
s_waitcnt lgkmcnt(0)
v_readfirstlane_b32 s{S_ML}, v5
s_branch K_SLOW_BATCH
K_SLOW_NEXT:
s_add_u32 s{S_I}, s{S_I}, 1
s_cmp_lt_u32 s{S_I}, 64
s_cbranch_scc1 K_SLOW_BATCH
s_mov_b32 s{S_I}, 0
s_add_u32 s{S_MO}, s{S_MO}, 16
s_cmp_ge_u32 s{S_MO}, s{S_ML}
s_cbranch_scc1 K_FINAL
K_SLOW_BATCH:
s_waitcnt vmcnt(0) lgkmcnt(0)
s_barrier
""")
    slots_init(a, R, True)
    a(f"""
s_waitcnt lgkmcnt(0)
s_barrier
s_cmp_lg_u32 s3, 0
s_cbranch_scc1 K_SLOW_S
s_lshl_b32 s14, s{S_I}, 2
v_add_u32 v7, s14, v3
s_lshl_b32 s15, s{S_B}, 3
v_lshl_add_u32 v4, v7, 11, s15
buffer_load_dword v5, v4, s[32:35], 0 offen sc1
s_mov_b32 s15, {RECS}
v_mul_lo_u32 v7, v7, s15
v_add_u32 v6, s{S_MO}, v2
v_mad_u32_u24 v7, v6, 12, v7
v_add_u32 v7, {REC_REL}, v7
s_waitcnt vmcnt(0)
v_and_b32 v5, 0x0fff0fff, v5
v_mad_u32_u16 v4, v5, 12, v7
v_cmp_gt_u32_sdwa vcc, v5, v6 src0_sel:WORD_1 src1_sel:DWORD
s_and_saveexec_b64 s[40:41], vcc
s_cbranch_execz K_SLOW_S
buffer_load_dwordx3 v[{R}:{R+2}], v4, s[32:35], 0 offen sc1
s_waitcnt vmcnt(0)
""")
    place_atomic(a, R, 4)
    a("s_waitcnt lgkmcnt(0)")
    place_write(a, R, 4)
    a("""
K_SLOW_S:
s_mov_b64 exec, -1
s_waitcnt lgkmcnt(0)
s_barrier
s_branch K_RANK
""")
    return a.text()


HEADER = open("standalone__edge_featured_mpnn_gatedgcn__graph.s.ref").read().split("; Override launch")[0]


def main():
    out = HEADER
    out += f"; @launch grid=(256,1,1) block=(512,1,1) lds={LDS}\n"
    out += '.amdgcn_target "amdgcn-amd-amdhsa--gfx950"\n.text\n'
    out += f".globl {KNAME}\n.p2align 8\n.type {KNAME},@function\n" + kernel()
    out += f""".section .rodata,"a"
.p2align 6
.amdhsa_kernel {KNAME}
  .amdhsa_next_free_vgpr {NVGPR}
  .amdhsa_next_free_sgpr {101 if STAMPS else 98}
  .amdhsa_accum_offset {(NVGPR + 3) // 4 * 4}
  .amdhsa_group_segment_fixed_size 0
  .amdhsa_kernarg_size 96
  .amdhsa_user_sgpr_count 2
  .amdhsa_user_sgpr_kernarg_segment_ptr 1
  .amdhsa_system_sgpr_workgroup_id_x 1
.end_amdhsa_kernel
"""
    open(sys.argv[1], "w").write(out)


main()
```

```python
import sys
import struct
from math import gcd

N = 12500
E = 800000
QCH = 782
QH = QCH // 2
CH = QCH * 4
NQ = E // 4
RECB = CH * 12
RECS = 37632
TAB_ROWS = N + 1
TAB_BYTES = TAB_ROWS * 256
T_OFF = 0x310000
T2_REL = 0x80000
REC_REL = 0x81000
TR_BYTES = REC_REL + 256 * RECS
BIG = 0x40000000
NLOG2E = 0xbfb8aa3b
CAP = 128
CS = 132
XSS = 144
US = 272

OPT = dict(align="3", cpf="7", packpos="b", gs="2", nb="4", prio="1", order="c", npf="352", pfs="128", sleep="2", ng0="2", st_out="nt", cadd="1")
for a_ in sys.argv[2:]:
    k_, v_ = a_.split("=")
    OPT[k_] = v_
STAMPS = bool(OPT.get("stamps"))
GS = int(OPT["gs"])
NB = int(OPT["nb"] or (6 if GS == 2 else 4))
UNR = NB * 2 // gcd(NB, 2)
MINPS = NB + 1
MAXIT = 62
KEXP = 60 if GS == 2 else 40
KBITS = (127 - KEXP) << 23
DBG_OFF = 0x1000000
KNAME = "standalone__edge_featured_mpnn_gatedgcn__graph_kernel"

L_CNT = 0
L_MASK = 256
L_MAXL = 324
L_ACKS = 328
L_ZERO = 384
L_TS = 640
L_TC = 1536
L_RK = 1792
L_HIST, L_START = 0, 1024
L_EA = 2048
EA_BYTES = 49 * CS * 8 + 32
L_KEYS = L_EA + EA_BYTES
KEY_BYTES = 49 * CS * 4 + 16
L_ACC = L_KEYS + KEY_BYTES
L_EXT = L_ACC + 52 * 512
L_STAGE = L_ACC
L_AP = L_EXT + 8 * 2048
L_U = L_AP + 49 * US
L_XS = L_U + 49 * US
L_WC = L_XS + 64 * XSS
LDS = L_WC + 512
assert 8 * GS * UNR + 8 <= L_TS - L_ZERO

_nv = [8]


def valloc(n, align=2):
    _nv[0] = (_nv[0] + align - 1) // align * align
    r = _nv[0]
    _nv[0] += n
    return r


GB = valloc(6 * GS * NB)
Y = (valloc(4 * GS), valloc(4 * GS))
HL = valloc(2 * GS)
P2, MM, SA, UU = valloc(4), valloc(4), valloc(4), valloc(4)
DEN = valloc(8)
NUM = DEN + 4
_nv[0] = max(_nv[0], 128)
AOP = [valloc(4) for _ in range(GS)]
CA, CN = valloc(4), valloc(4)
IDX = [valloc(2) for _ in range(GS)]
NX = valloc(2)
VK, VE, VF, VFN, VTK, VTE, NXE, VINC = [valloc(1, 1) for _ in range(8)]
TOT = valloc(16)
VTT = valloc(8)
VRA = valloc(8)
VCA = valloc(16)
PT = VCA
T2R = valloc(8)
VMAXL, VPF, VFOUR, VZ = [valloc(1, 1) for _ in range(4)]
VST = valloc(2)
NVGPR = _nv[0]
assert NVGPR <= 256, NVGPR
X0 = Y[0]
assert NUM + 4 - X0 >= 40

S_IT, S_MODE, S_I, S_MO, S_ML, S_CNT = 4, 5, 6, 7, 8, 9
S_K = 10
S_RAW = 12
S_B = 13
S_CM = 56
S_PR = 58
S_CS = 59
S_MASK = 60
S_AM = 62
S_TAG, S_TAG2, S_T2OK = 96, 97, 19


def stepbuf(p, i):
    return GB + 6 * (GS * (p % NB) + i)


def recset(j):
    return GB + 6 * j + 2 if j < GS * NB else X0 + 4 * (j - GS * NB)


class Asm:
    def __init__(self):
        self.L = []

    def __call__(self, s):
        for l in s.strip("\n").split("\n"):
            l = l.strip()
            if not l:
                continue
            if l.startswith("@"):
                if STAMPS:
                    self.special(l)
                continue
            self.L.append(l if l.endswith(":") else "    " + l)

    def special(self, l):
        if l.startswith("@S") or l.startswith("@C"):
            self(f"{'s_memtime' if l[1] == 'C' else 's_memrealtime'} s[98:99]")
            self("s_waitcnt lgkmcnt(0)")
            self(f"v_writelane_b32 v{VST}, s98, {int(l[2:])}")
        elif l.startswith("@W"):
            self("s_waitcnt " + l[2:])
        elif l.startswith("@V"):
            r, i = l[2:].split(",")
            self(f"v_writelane_b32 v{VST}, {r}, {i}")
        elif l.startswith("@OUT"):
            self(f"""
s_mov_b64 exec, -1
s_lshl_b32 s100, s2, 4
s_add_u32 s100, s100, s3
s_lshl_b32 s100, s100, 8
s_add_u32 s100, s100, {DBG_OFF + 0x100000:#x}
v_and_b32 v{VST+1}, 63, v0
v_lshl_add_u32 v{VST+1}, v{VST+1}, 2, s100
global_store_dword v{VST+1}, v{VST}, s[16:17]
""")

    def text(self):
        return "\n".join(self.L) + "\n"


def pr(r):
    return f"v[{r}:{r+1}]"


def q4(r):
    return f"v[{r}:{r+3}]"


def srd(a, d, lo, hi, nbytes, stride=0):
    a(f"s_mov_b32 s{d}, s{lo}")
    a(f"s_and_b32 s{d+1}, s{hi}, 0xffff")
    if stride:
        a(f"s_or_b32 s{d+1}, s{d+1}, {stride << 16:#x}")
    a(f"s_mov_b32 s{d+2}, {nbytes}")
    a(f"s_mov_b32 s{d+3}, 0x20000")


def scan(a, v, row_only=False, fill=()):
    fill = list(fill)
    steps = [f"row_shr:{d} row_mask:0xf" for d in (1, 2, 4, 8)]
    if not row_only:
        steps += ["row_bcast:15 row_mask:0xa", "row_bcast:31 row_mask:0xc"]
    for st in steps:
        if fill:
            a(fill.pop(0))
            a("s_nop 0")
        else:
            a("s_nop 1")
        a(f"v_add_u32_dpp v{v}, v{v}, v{v} {st} bank_mask:0xf")


SDWA_B0 = "dst_sel:DWORD dst_unused:UNUSED_PAD src0_sel:DWORD src1_sel:BYTE_0"


def tr_reads(a, vaddr, base, r0):
    for mat in range(2):
        for t in range(2):
            for s in range(2):
                r = r0 + 16 * mat + 8 * t + 4 * s
                o = base + mat * 8192 + s * 4096
                a(f"ds_read_b64_tr_b16 {pr(r)}, v{vaddr[t]} offset:{o}")
                a(f"ds_read_b64_tr_b16 {pr(r+2)}, v{vaddr[t]} offset:{o + 512}")


def tile_mfmas(a, r0, x0, d0):
    for s in range(2):
        for mat in range(2):
            for t in range(2):
                f = r0 + 16 * mat + 8 * t + 4 * s
                d = d0 + 8 * mat + 4 * t
                c = "0" if s == 0 else q4(d)
                a(f"v_mfma_f32_16x16x32_bf16 {q4(d)}, {q4(f)}, {q4(x0+4*s)}, {c}")


def slots_init(a, r, small):
    for i in range(4):
        a(f"v_mov_b32 v{r+i}, 0")
    for i in range(4):
        a(f"v_mov_b32 v{r+4+i}, {N}")
    z0 = 0 if small else L_EA
    a(f"v_lshlrev_b32 v{r+8}, 4, v0")
    a(f"v_add_u32 v{r+9}, {L_KEYS}, v{r+8}")
    nz, nk = (L_KEYS - z0) // 16, KEY_BYTES // 16
    for i in range(nz // 512):
        a(f"ds_write_b128 v{r+8}, {q4(r)} offset:{z0 + 8192*i}")
    for i in range(nk // 512):
        a(f"ds_write_b128 v{r+9}, {q4(r+4)} offset:{8192*i}")
    for rem, reg, data, off in sorted([(nz % 512, r + 8, r, z0 + 8192 * (nz // 512)), (nk % 512, r + 9, r + 4, 8192 * (nk // 512))], reverse=True):
        a(f"v_cmp_gt_u32 vcc, {rem}, v0")
        a("s_mov_b64 exec, vcc")
        a(f"ds_write_b128 v{reg}, {q4(data)} offset:{off}")
    a("s_mov_b64 exec, -1")


def place_atomic(a, r, ca):
    a(f"v_and_b32 v{ca}, 0xfc, v{r+2}")
    a(f"ds_add_rtn_u32 v{r+3}, v{ca}, v{VFOUR} offset:{L_CNT}")


def place_write(a, r, ca):
    a(f"v_min_u32 v{r+3}, {CAP*4}, v{r+3}")
    a(f"v_mad_u32_u24 v{ca}, v{ca}, s{S_CS}, v{r+3}")
    a(f"v_lshrrev_b32 v{r+2}, 8, v{r+2}")
    a(f"v_add_u32 v{r+3}, v{ca}, v{ca}")
    a(f"ds_write_b32 v{ca}, v{r+2} offset:{L_KEYS}")
    a(f"ds_write_b64 v{r+3}, {pr(r)} offset:{L_EA}")


def ev_k(a, sub):
    a(f"""
v_add_u32 v{VK}, {L_KEYS - sub}, v{NX}
v_add_u32 v4, v{NX+1}, v{IDX[0]+1}
v_add_u32 v{VTK}, 32, v{VTK}
v_add_u32 v{VTE}, 32, v{VTE}
ds_read_b128 {q4(CN)}, v4
ds_read_b32 v{NXE}, v{VTE} offset:{L_TS}
ds_read_b64 {pr(NX)}, v{VTK} offset:{L_TS + 32}
""")


def ev_e(a, sub):
    a(f"""
v_lshlrev_b32 v{VE}, 1, v{NXE}
v_add_u32 v{VE}, {L_EA - sub}, v{VE}
v_mov_b32 v4, {L_ZERO}
v_pk_mov_b32 {pr(CA)}, {pr(CN)}, {pr(CN)} op_sel:[0,1]
v_pk_mov_b32 {pr(CA+2)}, {pr(CN+2)}, {pr(CN+2)} op_sel:[0,1]
v_cndmask_b32_e64 v{VE}, v4, v{VE}, s[{S_AM}:{S_AM+1}]
""")


def gathers(p, idx):
    return [f"buffer_load_dwordx4 {q4(stepbuf(p, i) + 2)}, {pr(idx[i])}, s[24:27], 0 idxen offen sc1" for i in range(GS)]


def mfmas(p):
    y = Y[p & 1]
    return [f"v_mfma_f32_16x16x32_bf16 {q4(y+4*i)}, {q4(AOP[i])}, {q4(stepbuf(p, i))}, {q4(CA)}" for i in range(GS)]


def ops(k):
    y, yn = Y[k & 1], Y[1 - (k & 1)]
    b = [stepbuf(k, i) + 4 for i in range(GS)]
    sk = f"s[{S_K}:{S_K+1}]"
    d = {}
    for i in range(4 * GS):
        d[f"E{i}"] = f"v_exp_f32 v{yn+i}, v{yn+i}"
    for i in range(2 * GS):
        if OPT["cadd"] == "1":
            d[f"C{i}"] = f"v_pk_add_f32 {pr(y+2*i)}, {pr(y+2*i)}, {sk} clamp"
        else:
            d[f"C{i}"] = f"v_pk_fma_f32 {pr(y+2*i)}, {pr(y+2*i)}, {sk}, {sk} clamp"
    for i in range(4):
        d[f"R{i}"] = f"v_rcp_f32 v{MM+i}, v{MM+i}"
    for i in range(2):
        p = [pr(y + 4 * j + 2 * i) for j in range(GS)]
        h = [pr(HL + 2 * j) if i == 0 else pr(b[j]) for j in range(GS)]
        m, s, u, p2 = pr(MM + 2 * i), pr(SA + 2 * i), pr(UU + 2 * i), pr(P2 + 2 * i)
        d[f"m{i}"] = f"v_pk_mul_f32 {m if GS == 2 else p2}, {p[0]}, {p[1]}"
        d[f"a{i}"] = f"v_pk_add_f32 {s}, {p[0]}, {p[1]}"
        d[f"g{i}"] = f"v_pk_mul_f32 {u}, {p[1]}, {h[0]}"
        d[f"h{i}"] = f"v_pk_fma_f32 {u}, {p[0]}, {h[1]}, {u}"
        if GS == 3:
            d[f"M{i}"] = f"v_pk_mul_f32 {m}, {p2}, {p[2]}"
            d[f"s{i}"] = f"v_pk_fma_f32 {s}, {s}, {p[2]}, {p2}"
            d[f"i{i}"] = f"v_pk_mul_f32 {u}, {u}, {p[2]}"
            d[f"j{i}"] = f"v_pk_fma_f32 {u}, {p2}, {h[2]}, {u}"
        d[f"d{i}"] = f"v_pk_fma_f32 {pr(DEN+2*i)}, {s}, {m}, {pr(DEN+2*i)}"
        d[f"n{i}"] = f"v_pk_fma_f32 {pr(NUM+2*i)}, {u}, {m}, {pr(NUM+2*i)}"
    for i in range(GS):
        d[f"Q{i}"] = f"v_lshlrev_b64 {pr(HL+2*i)}, 16, {pr(b[i])}"
        d[f"N{i}"] = mfmas(k + 2)[i]
        d[f"L{i}"] = gathers(k, IDX)[i]
        d[f"k{i}"] = f"ds_read_b32 v{IDX[i]}, v{VK} offset:{4*(GS*k+i)}"
        d[f"e{i}"] = f"ds_read_b64 {pr(AOP[i])}, v{VE} offset:{8*(GS*k+i)}"
    d["W"] = f"s_waitcnt vmcnt({GS*(NB-3)}) lgkmcnt(0)"
    d["S"] = f"s_sub_u32 s{S_CNT}, s{S_CNT}, 1"
    d["A0"] = f"v_add_u32 v{VK}, {4*GS*UNR}, v{VK}" if k == UNR - 1 else ""
    d["A1"] = f"v_add_u32 v{VE}, v{VINC}, v{VE}" if k == UNR - 1 else ""
    return d


ORDERS = {
    2: {
        "b": "k0 k1 e0 e1 C0 E0 C2 E1 C1 E2 C3 E3 m0 E4 m1 E5 S Q0 Q1 A0 A1 a0 a1 g0 g1 h0 h1 W N0 R0 R1 N1 R2 R3 L0 L1 E6 d0 E7 d1 n0 n1",
        "c": "k0 k1 e0 e1 C0 C2 E0 m0 E1 C1 C3 E2 m1 E3 Q0 E4 Q1 E5 A0 A1 a0 a1 g0 g1 h0 h1 W L0 L1 S N0 R0 R1 N1 R2 R3 E6 d0 E7 d1 n0 n1",
        "d": "k0 k1 e0 e1 Q0 Q1 C0 E0 C2 E1 C1 E2 C3 E3 g0 E4 g1 E5 h0 h1 A0 A1 m0 m1 a0 a1 W L0 L1 S N0 R0 R1 N1 R2 R3 E6 d0 E7 d1 n0 n1",
        "e": "k0 k1 e0 e1 C0 E0 C2 E1 m0 E2 C1 R0 C3 R1 m1 E3 Q0 Q1 A0 A1 a0 a1 g0 g1 h0 h1 W L0 L1 S N0 R2 R3 N1 E4 E5 d0 E6 n0 E7 d1 n1",
        "f": "k0 k1 e0 e1 C0 E0 C2 E1 C1 E2 C3 E3 m0 m1 Q0 Q1 A0 A1 a0 a1 g0 g1 h0 h1 W L0 L1 S N0 R0 R1 E4 N1 R2 R3 E5 d0 E6 d1 E7 n0 n1",
        "g": "C0 E0 C2 E1 C1 E2 C3 E3 k0 k1 e0 e1 m0 E4 m1 E5 Q0 Q1 A0 A1 a0 a1 g0 g1 h0 h1 W L0 L1 S N0 R0 R1 N1 R2 R3 E6 d0 E7 d1 n0 n1",
        "h": "k0 k1 e0 e1 C0 E0 C2 E1 C1 E2 C3 E3 m0 E4 m1 E5 Q0 Q1 A0 A1 g0 g1 h0 h1 a0 a1 W L0 L1 S N0 R0 R1 N1 R2 R3 E6 E7 d0 d1 n0 n1",
        "": "k0 k1 e0 e1 C0 E0 C2 E1 C1 E2 C3 E3 m0 E4 m1 E5 Q0 Q1 A0 A1 a0 a1 g0 g1 h0 h1 W L0 L1 S N0 R0 R1 N1 R2 R3 E6 d0 E7 d1 n0 n1",
    },
    3: {
        "d": "k0 k1 k2 e0 e1 e2 C0 E0 C2 E1 C4 E2 C1 E3 C3 E4 C5 E5 m0 m1 M0 M1 Q0 Q1 Q2 A0 A1 a0 a1 g0 g1 s0 s1 h0 h1 i0 i1 j0 j1 W L0 L1 L2 S N0 R0 R1 N1 R2 R3 N2 E6 E7 E8 d0 E9 d1 E10 n0 E11 n1",
        "e": "k0 k1 k2 e0 e1 e2 Q0 Q1 Q2 C0 E0 C2 E1 C4 E2 C1 E3 C3 E4 C5 E5 m0 m1 g0 g1 M0 M1 A0 A1 h0 h1 a0 a1 i0 i1 s0 s1 j0 j1 W N0 R0 R1 N1 R2 R3 N2 E6 E7 L0 L1 L2 S E8 d0 E9 d1 E10 n0 E11 n1",
        "": "k0 k1 k2 e0 e1 e2 C0 E0 C2 E1 C4 E2 C1 E3 C3 E4 C5 E5 m0 E6 m1 E7 M0 M1 Q0 Q1 Q2 A0 A1 a0 a1 g0 g1 s0 s1 h0 h1 i0 i1 j0 j1 W L0 L1 L2 S N0 R0 R1 N1 R2 R3 N2 E8 E9 d0 E10 d1 E11 n0 n1",
        "b": "k0 k1 k2 e0 e1 e2 C0 E0 C2 E1 C4 E2 C1 E3 C3 E4 C5 E5 m0 m1 M0 M1 Q0 Q1 Q2 A0 A1 a0 a1 g0 g1 s0 s1 h0 h1 i0 i1 j0 j1 W N0 R0 R1 N1 R2 R3 N2 E6 E7 L0 L1 L2 S E8 d0 E9 d1 E10 n0 E11 n1",
        "c": "k0 k1 k2 e0 e1 e2 C0 E0 C2 E1 m0 E2 C4 E3 M0 E4 C1 E5 C3 E6 m1 E7 C5 M1 Q0 Q1 Q2 A0 A1 a0 a1 g0 g1 s0 s1 h0 h1 i0 i1 j0 j1 W L0 L1 L2 S N0 R0 R1 N1 R2 R3 N2 E8 E9 d0 E10 d1 E11 n0 n1",
    },
}


def t2_check(a):
    a(f"v_xor_b32 v4, s{S_TAG}, v{T2R}")
    for i in (2, 4, 6):
        a(f"v_xor_b32 v5, s{S_TAG}, v{T2R+i}")
        a("v_or_b32 v4, v4, v5")
    for i in (1, 3, 5, 7):
        a(f"v_xor_b32 v5, s{S_TAG2}, v{T2R+i}")
        a("v_or_b32 v4, v4, v5")
    a("v_cmp_ne_u32 vcc, 0, v4")


def t2_loads(a):
    a(f"""
v_lshlrev_b32 v4, 4, v1
s_mov_b32 s40, {T2_REL:#x}
buffer_load_dwordx4 {q4(T2R)}, v4, s[32:35], s40 offen sc1
buffer_load_dwordx4 {q4(T2R+4)}, v4, s[32:35], s40 offen offset:1024 sc1
""")


def kernel():
    a = Asm()
    VTR, VXA, VWC, VAU, VLOC = VK, VE, VF, VFN, NXE
    VE2, VT2 = VTK, VTE
    VTR1, VWG, XF = VMAXL, VPF, T2R
    a(f"""
{KNAME}:
s_cmp_ge_u32 s2, 256
s_cbranch_scc1 K_END
@S0
@C30
s_load_dwordx16 s[64:79], s[0:1], 0
s_load_dwordx8 s[80:87], s[0:1], 64
v_readfirstlane_b32 s3, v0
s_getpc_b64 s[42:43]
s_lshr_b32 s3, s3, 6
s_cmp_lg_u32 s3, 7
s_cbranch_scc1 K_NOSPF
""")
    for i in range(int(OPT.get("spf", 11))):
        a(f"s_load_dword s61, s[42:43], {128*(i+1)}")
    a(f"""
K_NOSPF:
s_mul_i32 s40, s2, {QCH}
v_add_u32 v4, s40, v0
v_add_u32 v5, {QH}, v4
v_cmp_gt_u32 vcc, {QH}, v0
v_lshlrev_b32 v4, 4, v4
v_mov_b32 v6, {BIG:#x}
v_and_b32 v7, 255, v0
v_cndmask_b32 v4, v6, v4, vcc
v_lshlrev_b32 v7, 2, v7
v_mov_b32 v{VZ}, 0
ds_write_b32 v7, v{VZ} offset:{L_HIST}
s_mov_b32 s47, 0x20000
s_mov_b32 s46, {E*4}
s_movk_i32 s58, {QH*16}
s_waitcnt lgkmcnt(0)
s_mov_b32 s44, s70
s_and_b32 s45, s71, 0xffff
buffer_load_dwordx4 v[8:11], v4, s[44:47], 0 offen
buffer_load_dwordx4 v[12:15], v4, s[44:47], s58 offen
s_mov_b32 s41, {NQ}
v_cmp_gt_u32_e64 s[94:95], s41, v5
s_mov_b64 s[92:93], vcc
v_add_u32 v5, s58, v4
s_and_b32 s{S_B}, s2, 7
s_lshl_b32 s{S_B}, s{S_B}, 5
s_lshr_b32 s40, s2, 3
s_or_b32 s{S_B}, s{S_B}, s40
s_and_b64 s[94:95], s[94:95], vcc
v_lshlrev_b32 v61, 4, v0
v_and_b32 v96, 16, v0
v_lshlrev_b32 v96, 1, v96
v_and_b32 v97, 64, v0
v_or_b32 v96, v96, v97
v_xor_b32 v{VWG}, v96, v61
global_load_dwordx4 v[40:43], v{VWG}, s[74:75]
global_load_dwordx4 v[44:47], v{VWG}, s[80:81]
v_lshrrev_b32 v62, 3, v0
v_lshlrev_b32 v90, 8, v62
v_add_u32 v90, s{S_B}, v90
v_lshlrev_b32 v90, 7, v90
v_and_b32 v63, 7, v0
v_lshl_add_u32 v90, v63, 4, v90
""")
    srd(a, 20, 64, 65, N * 128)
    a(f"""
buffer_load_dwordx4 v[56:59], v90, s[20:23], 0 offen
s_or_b32 s40, s2, s3
s_cmp_lg_u32 s40, 0
s_cbranch_scc1 K_NONONCE
s_memrealtime s[40:41]
s_waitcnt lgkmcnt(0)
s_or_b32 s40, s40, 1
v_mov_b32 v7, s40
s_mov_b64 exec, 1
global_store_dword v{VZ}, v7, s[84:85] sc1
s_mov_b64 exec, -1
K_NONONCE:
""")
    srd(a, 48, 68, 69, E * 4)
    srd(a, 52, 66, 67, E * 8)
    a(f"""
v_lshlrev_b32 v6, 1, v4
v_lshlrev_b32 v7, 1, v5
v_mov_b32 v74, v4
v_mov_b32 v75, v5
@S1
""")
    NE = int(OPT.get("ne", 2))
    later = ["buffer_load_dwordx4 v[24:27], v6, s[52:55], 0 offen",
             "buffer_load_dwordx4 v[28:31], v6, s[52:55], 0 offen offset:16",
             "buffer_load_dwordx4 v[16:19], v74, s[48:51], 0 offen",
             "buffer_load_dwordx4 v[20:23], v75, s[48:51], 0 offen"]
    a("s_barrier")
    for l in later[:NE]:
        a(l)
    a(f"""
s_cmp_lg_u32 s3, 7
s_cbranch_scc1 K_NOCPF
v_and_b32 v76, 63, v0
v_lshlrev_b32 v76, 7, v76
v_add_u32 v76, {128*12}, v76
global_load_dword v{VFOUR}, v76, s[42:43]
v_add_u32 v76, 8192, v76
v_cmp_gt_u32 vcc, {8192 + 3072}, v76
s_mov_b64 exec, vcc
global_load_dword v{VFOUR}, v76, s[42:43]
s_mov_b64 exec, -1
K_NOCPF:
""")
    slots_init(a, 64, False)
    a(f"""
v_and_b32 v1, 63, v0
v_and_b32 v2, 15, v0
v_bfe_u32 v3, v0, 4, 2
v_and_b32 v91, 127, v0
v_lshlrev_b32 v91, 2, v91
v_mul_u32_u24 v62, {XSS}, v62
v_lshl_add_u32 v62, v63, 4, v62
v_add_u32 v62, {L_XS}, v62
v_add_u32 v63, {L_AP}, v61
s_mov_b64 s[16:17], s[86:87]
s_lshr_b32 s18, s3, 1
s_lshl_b32 s18, s18, 4
s_and_b32 s19, s3, 1
v_lshrrev_b32 v{VE2}, 2, v2
v_lshl_add_u32 v{VTR}, v3, 3, v{VE2}
v_lshlrev_b32 v{VTR}, 7, v{VTR}
v_and_b32 v{VT2}, 3, v2
v_lshl_add_u32 v{VTR}, v{VT2}, 3, v{VTR}
s_lshl_b32 s40, s19, 6
v_add_u32 v{VTR}, s40, v{VTR}
v_and_b32 v4, 8, v2
v_lshlrev_b32 v4, 2, v4
v_and_b32 v5, 1, v3
v_lshl_or_b32 v4, v5, 6, v4
v_xor_b32 v{VTR}, v4, v{VTR}
v_xor_b32 v{VTR1}, 32, v{VTR}
v_add_u32 v{VTR}, {L_AP}, v{VTR}
v_add_u32 v{VTR1}, {L_AP}, v{VTR1}
v_add_u32 v{VLOC}, s18, v2
v_mul_u32_u24 v{VXA}, {XSS}, v{VLOC}
v_lshl_add_u32 v{VXA}, v3, 4, v{VXA}
v_add_u32 v{VXA}, {L_XS}, v{VXA}
""")
    srd(a, 28, 16, 17, TAB_BYTES)
    a(f"""
v_lshlrev_b32 v4, 8, v{VLOC}
v_add_u32 v4, s{S_B}, v4
v_lshlrev_b32 v60, 8, v4
v_lshl_add_u32 v60, v3, 4, v60
s_lshl_b32 s40, s19, 7
v_add_u32 v60, s40, v60
v_cmp_eq_u32 vcc, {N}, v4
v_mov_b32 v4, 0x7f000000
v_mov_b32 v5, 0x7f007f00
s_mov_b32 s56, 0x07060100
s_mov_b32 s57, 0x07060302
v_mov_b32 v76, 1
@S2
s_waitcnt vmcnt({4 + NE})
@S3
""")
    for i in range(4):
        a(f"v_lshlrev_b32_sdwa v{64+i}, 2, v{8+i} {SDWA_B0}")
    a("s_mov_b64 exec, s[92:93]")
    for i in range(4):
        a(f"ds_add_rtn_u32 v{80+i}, v{64+i}, v76 offset:{L_HIST}")
    a("s_mov_b64 exec, -1")
    a(f"s_waitcnt vmcnt({3 + NE})")
    for i in range(4, 8):
        a(f"v_lshlrev_b32_sdwa v{64+i}, 2, v{8+i} {SDWA_B0}")
    a("s_mov_b64 exec, s[94:95]")
    for i in range(4, 8):
        a(f"ds_add_rtn_u32 v{80+i}, v{64+i}, v76 offset:{L_HIST}")
    a(f"""
s_mov_b64 exec, -1
s_waitcnt vmcnt({NE})
ds_write_b128 v63, v[40:43]
ds_write_b128 v63, v[44:47] offset:8192
ds_write_b128 v62, v[56:59]
""")
    NL = int(OPT.get("nl", 4))
    rest = later[NE:] + ["buffer_load_dwordx4 v[32:35], v7, s[52:55], 0 offen", "buffer_load_dwordx4 v[36:39], v7, s[52:55], 0 offen offset:16"]
    for l in rest[:NL]:
        a(l)
    for i in range(8):
        a(f"v_lshrrev_b32 v{8+i}, 6, v{8+i}")
    a("v_lshlrev_b32 v77, 4, v1")
    seqs = []
    for t in range(2):
        b, h, o, tm = TOT + 4 * t, TOT + 8 + 4 * t, 40 + 4 * t, 78 + t
        q = [f"v_mul_f32 v{b+i}, {NLOG2E:#x}, v{b+i}" for i in range(4)]
        q += [f"v_med3_f32 v{b+i}, v{b+i}, v4, -v4" for i in range(4)]
        q += [f"v_cvt_pk_bf16_f32 v{tm}, v{h}, v{h}"]
        q += [f"v_cvt_pk_bf16_f32 v{o}, v{b}, v{b+1}", f"v_cvt_pk_bf16_f32 v{o+1}, v{b+2}, v{b+3}"]
        q += [f"v_perm_b32 v{o+2}, v{h+2}, v{tm}, s56", f"v_perm_b32 v{o+3}, v{h+3}, v{h+1}, s57"]
        q += [f"v_cndmask_b32 v{o}, v{o}, v5, vcc", f"v_cndmask_b32 v{o+1}, v{o+1}, v5, vcc"]
        seqs.append(q)
    pack = [z for xy in zip(*seqs) for z in xy]
    stores = [f"buffer_store_dwordx4 {q4(40+4*t)}, v60, s[28:31], 0 offen offset:{64*t} sc1" for t in range(2)]
    wl = [f"global_load_dwordx4 v[48:51], v{VWG}, s[72:73]", f"global_load_dwordx4 v[52:55], v{VWG}, s[78:79]", "global_load_dword v56, v91, s[76:77]"]
    a(f"""
s_waitcnt lgkmcnt(0)
@S4
s_barrier
@S5
ds_read_b128 v[72:75], v77 offset:{L_HIST}
ds_read_b128 {q4(XF)}, v{VXA}
ds_read_b128 {q4(XF+4)}, v{VXA} offset:64
""")
    for l in rest[NL:]:
        a(l)
    tr = Asm()
    tr_reads(tr, (VTR, VTR1), 0, 96)
    tr = tr.L
    for l in tr[:4]:
        a(l)
    a(f"""
s_waitcnt lgkmcnt(6)
v_add_u32 v89, v72, v73
v_add_u32 v90, v89, v74
v_add_u32 v62, v90, v75
v_mov_b32 v63, v62
""")
    steps = [f"row_shr:{d} row_mask:0xf" for d in (1, 2, 4, 8)] + ["row_bcast:15 row_mask:0xa", "row_bcast:31 row_mask:0xc"]
    for i, st in enumerate(steps):
        a(tr[4 + 2 * i]); a(tr[5 + 2 * i])
        a(f"v_add_u32_dpp v62, v62, v62 {st} bank_mask:0xf")
    a(f"""
v_sub_u32 v88, v62, v63
v_add_u32 v91x, v88, v90
v_add_u32 v90, v88, v89
v_add_u32 v89, v88, v72
ds_write_b128 v77, v[88:91] offset:{L_START}
""".replace("v91x", "v91"))
    for i in range(8):
        a(f"ds_read_b32 v{64+i}, v{64+i} offset:{L_START}")
    for i in range(4):
        a(f"v_lshl_or_b32 v{92+i}, v{72+i}, 16, v{88+i}")
    a("s_waitcnt lgkmcnt(9)")
    tile_mfmas(a, 96, XF, TOT)
    a("v_and_b32 v91, 127, v0")
    a("v_lshlrev_b32 v91, 2, v91")
    srd(a, 24, 16, 17, TAB_ROWS, stride=256)
    srd(a, 36, 82, 83, N * 128)
    a(f"s_mov_b32 s40, {L_STAGE}")
    PKP = OPT.get("pkp", "0")
    if PKP == "0":
        for l in pack + stores + wl:
            a(l)
    a(f"""
s_add_u32 s32, s16, {T_OFF:#x}
s_addc_u32 s33, s17, 0
s_and_b32 s33, s33, 0xffff
s_mov_b32 s34, {TR_BYTES}
s_mov_b32 s35, 0x20000
s_mul_i32 s41, s2, {RECS}
s_add_u32 s41, s41, {T_OFF + REC_REL:#x}
s_add_u32 s88, s16, s41
s_addc_u32 s89, s17, 0
s_and_b32 s89, s89, 0xffff
s_mov_b32 s90, {RECB}
s_mov_b32 s91, 0x20000
s_waitcnt vmcnt({7 if PKP == "0" else 2})
""")
    for i in range(8):
        a(f"v_lshl_or_b32 v{16+i}, v{16+i}, 8, v{8+i}")
    for i in range(8):
        a(f"s_waitcnt lgkmcnt({7-i})")
        a(f"v_add_u32 v{64+i}, v{64+i}, v{80+i}")
        a(f"v_mad_u32_u24 v{64+i}, v{64+i}, 12, s40")
    a("s_mov_b64 exec, s[92:93]")
    for i in range(4):
        a(f"ds_write_b32 v{64+i}, v{16+i} offset:8")
        a(f"ds_write2_b32 v{64+i}, v{24+2*i}, v{25+2*i} offset0:0 offset1:1")
    a("s_mov_b64 exec, s[94:95]")
    for i in range(4, 8):
        a(f"ds_write_b32 v{64+i}, v{16+i} offset:8")
    a(f"s_waitcnt vmcnt({5 if PKP == '0' else 0})")
    for i in range(4, 8):
        a(f"ds_write2_b32 v{64+i}, v{24+2*i}, v{25+2*i} offset0:0 offset1:1")
    a("s_mov_b64 exec, -1")
    if PKP == "1":
        for l in pack + stores + wl:
            a(l)
    a(f"""
@S6
s_movk_i32 s14, {RECB//16 - 2048}
v_cmp_gt_u32_e64 s[14:15], s14, v0
v_add_u32 v63, {L_STAGE}, v61
v_add_u32 v91, {L_WC}, v91
s_movk_i32 s44, 0x2000
s_movk_i32 s45, 0x4000
s_movk_i32 s46, 0x6000
s_mov_b32 s47, 0x8000
v_cmp_gt_u32 vcc, 128, v0
s_waitcnt lgkmcnt(0)
@S7
s_barrier
@S8
""")
    for i in range(4):
        a(f"ds_read_b128 {q4(8+4*i)}, v63 offset:{8192*i}")
    a(f"""
s_mov_b64 exec, s[14:15]
ds_read_b128 v[24:27], v63 offset:32768
s_mov_b64 exec, -1
v_mov_b32 v28, 0
v_mov_b32 v29, 0
v_mov_b32 v30, 0
v_mov_b32 v31, 0
""")
    for i in range(4):
        a(f"s_waitcnt lgkmcnt({4-i})")
        so = "0" if i == 0 else f"s{43+i}"
        a(f"buffer_store_dwordx4 {q4(8+4*i)}, v61, s[88:91], {so} offen sc1")
    koff = struct.unpack("<I", struct.pack("<f", -float(KEXP) if OPT["cadd"] == "1" else 0.0))[0]
    a(f"""
s_mov_b64 exec, s[14:15]
s_waitcnt lgkmcnt(0)
buffer_store_dwordx4 v[24:27], v61, s[88:91], s47 offen sc1
s_mov_b64 exec, vcc
ds_write_b128 v61, v[28:31]
s_mov_b64 exec, -1
global_load_dword v64, v{VZ}, s[84:85] sc1
@S9
s_waitcnt vmcnt(6)
ds_write_b128 v63, v[48:51]
ds_write_b128 v63, v[52:55] offset:8192
ds_write_b32 v91, v56
v_add_u32 v{VTR}, {L_STAGE - L_AP}, v{VTR}
v_add_u32 v{VTR1}, {L_STAGE - L_AP}, v{VTR1}
v_lshl_add_u32 v{VWC}, v2, 2, v3
v_lshlrev_b32 v{VWC}, 1, v{VWC}
v_add_u32 v{VWC}, {L_WC}, v{VWC}
s_movk_i32 s40, {US}
s_lshl_b32 s41, s19, 7
s_add_u32 s41, s41, {L_AP}
v_mad_u32_u24 v{VAU}, v{VLOC}, s40, 0
v_lshl_add_u32 v{VAU}, v3, 4, v{VAU}
v_add_u32 v{VAU}, s41, v{VAU}
v_cmp_gt_u32_e64 s[14:15], 49, v{VLOC}
s_mov_b32 s{S_MODE}, 0
s_mov_b32 s{S_CS}, {CS}
s_mov_b32 s{S_AM}, 0x22221111
s_mov_b32 s{S_AM+1}, 0x88884444
s_mov_b32 s{S_K}, {KBITS:#x}
s_mov_b32 s{S_K+1}, {KBITS:#x}
s_mov_b32 s6, {NLOG2E:#x}
s_mov_b32 s7, {NLOG2E:#x}
v_mov_b32 v{NX}, {koff:#x}
v_mov_b32 v{NX+1}, {koff:#x}
v_and_b32 v5, 1, v{VT2}
v_lshlrev_b32 v5, 4, v5
v_mov_b32 v6, 0x3f80
v_lshlrev_b32 v5, v5, v6
v_cmp_eq_u32 vcc, v3, v{VE2}
v_cmp_gt_u32_e64 s[52:53], 2, v{VT2}
v_cmp_le_u32_e64 s[54:55], 2, v{VT2}
v_mov_b32 v6, {8*GS*UNR}
v_cndmask_b32 v5, 0, v5, vcc
v_cndmask_b32_e64 v{VINC}, 0, v6, s[{S_AM}:{S_AM+1}]
v_mov_b32 v{VFOUR}, 4
""")
    for i in range(GS):
        a(f"v_cndmask_b32_e64 v{AOP[i]+2}, 0, v5, s[52:53]")
        a(f"v_cndmask_b32_e64 v{AOP[i]+3}, 0, v5, s[54:55]")
        a(f"v_lshlrev_b32 v{IDX[i]+1}, 4, v2")
    a(f"""
s_lshl_b32 s41, s{S_B}, 3
v_lshl_add_u32 v4, v3, 11, s41
s_lshl_b32 s40, s3, 16
""")
    for k in range(1, 8):
        a(f"s_add_u32 s{40+k}, s40, {8192*k}")
    V0, V1, V2, V3, V4 = X0 + 16, X0 + 17, X0 + 18, X0 + 19, X0 + 20
    a(f"""
s_lshl_b32 s48, s3, 5
v_add_u32 v5, s48, v3
s_mov_b32 s49, {RECS}
v_mul_lo_u32 v5, v5, s49
v_mad_u32_u24 v5, v2, 12, v5
v_add_u32 v5, {REC_REL}, v5
v_add_u32 v6, 16, v2
s_memrealtime s[50:51]
@S18
s_waitcnt vmcnt(0)
K_TAGW:
v_readfirstlane_b32 s{S_TAG}, v64
s_cmp_lg_u32 s{S_TAG}, 0
s_cbranch_scc0 K_TAG_RETRY
K_TAGOK:
s_mul_i32 s48, s{S_TAG}, 0x9e3779b1
s_and_b32 s48, s48, 0xf000f000
s_waitcnt lgkmcnt(0)
@S19
s_barrier
s_cmp_lg_u32 s3, 0
s_cbranch_scc1 K_NOPUB
v_or_b32 v8, s48, v92
v_mov_b32 v9, s{S_TAG}
v_or_b32 v10, s48, v93
v_mov_b32 v11, s{S_TAG}
v_or_b32 v12, s48, v94
v_mov_b32 v13, s{S_TAG}
v_or_b32 v14, s48, v95
v_mov_b32 v15, s{S_TAG}
v_lshlrev_b32 v16, 5, v1
s_lshl_b32 s49, s2, 11
buffer_store_dwordx4 v[8:11], v16, s[32:35], s49 offen sc1
buffer_store_dwordx4 v[12:15], v16, s[32:35], s49 offen offset:16 sc1
K_NOPUB:
""")
    tr_reads(a, (VTR, VTR1), 0, 96)
    a(f"""
ds_read_u16 v{CA}, v{VWC}
ds_read_u16 v{CA+1}, v{VWC} offset:128
ds_read_u16 v{CA+2}, v{VWC} offset:256
ds_read_u16 v{CA+3}, v{VWC} offset:384
s_mov_b32 s49, 0xf000f000
s_waitcnt lgkmcnt(4)
""")
    tile_mfmas(a, 96, XF, TOT)
    a("s_waitcnt lgkmcnt(0)")
    for k in range(4):
        a(f"v_lshlrev_b32 v{CA+k}, 16, v{CA+k}")
    for k in range(4):
        a(f"v_mul_f32 v{CA+k}, {NLOG2E:#x}, v{CA+k}")
    a(f"v_cvt_pk_bf16_f32 v{CN}, v{CA}, v{CA+1}")
    a(f"v_cvt_pk_bf16_f32 v{CN+1}, v{CA+2}, v{CA+3}")
    a(f"v_mov_b32 v{V0}, s{S_TAG}")
    a(f"v_mov_b32 v{V1}, s48")
    a("s_mov_b64 exec, s[14:15]")
    a(f"ds_write_b128 v{VAU}, {q4(TOT+8)} offset:{L_U - L_AP}")
    a(f"ds_write_b128 v{VAU}, {q4(TOT+12)} offset:{L_U - L_AP + 64}")
    for i in range(0, 8, 2):
        a(f"v_pk_fma_f32 {pr(TOT+i)}, {pr(TOT+i)}, s[6:7], {pr(NX)}")
    a(f"""
ds_write_b128 v{VAU}, {q4(TOT)}
ds_write_b128 v{VAU}, {q4(TOT+4)} offset:64
s_mov_b64 exec, -1
""")
    for p in range(NB):
        for i in range(GS):
            a(f"v_pk_mov_b32 {pr(stepbuf(p, i))}, {pr(CN)}, {pr(CN)} op_sel:[0,1]")
    for i in range(0, 16, 2):
        a(f"v_pk_mov_b32 {pr(TOT+i)}, 0, 0")
    if int(OPT.get("presleep", 0)):
        a(f"s_sleep {OPT['presleep']}")
    a("""
@S23
K_POLL:
""")
    for k in range(8):
        a(f"buffer_load_dwordx2 {pr(PT+2*k)}, v4, s[32:35], s{40+k} offen sc1")
    a(f"v_mov_b32 v{V2}, 0")
    for k in range(8):
        a(f"s_waitcnt vmcnt({7-k})")
        a(f"v_xor_b32 v{V3}, v{PT+2*k}, v{V1}")
        a(f"v_xor_b32 v{V4}, v{PT+2*k+1}, v{V0}")
        a(f"v_and_or_b32 v{V2}, v{V3}, s49, v{V2}")
        a(f"v_and_b32 v{VTT+k}, 0x0fff0fff, v{PT+2*k}")
        a(f"v_or_b32 v{V2}, v{V4}, v{V2}")
    a(f"""
v_cmp_ne_u32 vcc, 0, v{V2}
s_cbranch_vccnz K_POLL_RETRY
K_POLLOK:
@S24
s_mov_b64 exec, 1
ds_add_u32 v{VZ}, v{VFOUR} offset:{L_ACKS}
s_mov_b64 exec, -1
""")
    for k in range(8):
        a(f"v_mad_u32_u16 v{VRA+k}, v{VTT+k}, 12, v5")
        a(f"v_cmp_gt_u32_sdwa s[{80+2*k}:{81+2*k}], v{VTT+k}, v6 src0_sel:WORD_1 src1_sel:DWORD")
        if k < 7:
            a(f"v_add_u32 v5, {4*RECS}, v5")
        r = recset(8 + k)
        a(f"s_mov_b64 exec, s[{80+2*k}:{81+2*k}]")
        a(f"s_cbranch_execz K_M1L{k}")
        a(f"buffer_load_dwordx3 v[{r}:{r+2}], v{VRA+k}, s[32:35], 0 offen offset:192 sc1")
        a(f"K_M1L{k}:")
        a("s_mov_b64 exec, -1")
        a(f"v_cmp_gt_u32_sdwa s[{64+2*k}:{65+2*k}], v{VTT+k}, v2 src0_sel:WORD_1 src1_sel:DWORD")
    for k in range(8):
        r = recset(k)
        a(f"s_mov_b64 exec, s[{64+2*k}:{65+2*k}]")
        a(f"buffer_load_dwordx3 v[{r}:{r+2}], v{VRA+k}, s[32:35], 0 offen sc1")
    a(f"""
s_mov_b64 exec, -1
@S25
v_max3_u32 v4, v{VTT}, v{VTT+1}, v{VTT+2}
v_max3_u32 v5, v{VTT+3}, v{VTT+4}, v{VTT+5}
v_max3_u32 v4, v4, v{VTT+6}, v{VTT+7}
v_max_u32 v4, v4, v5
v_lshrrev_b32 v{VMAXL}, 16, v4
s_waitcnt vmcnt(8)
""")

    def A_(j):
        a(f"s_waitcnt vmcnt({7 - j})")
        a(f"s_mov_b64 exec, s[{64+2*j}:{65+2*j}]")
        place_atomic(a, recset(j), VCA + j)

    def W_(j, n):
        a(f"s_mov_b64 exec, s[{64+2*j}:{65+2*j}]")
        if n is not None:
            a(f"s_waitcnt lgkmcnt({n})")
        place_write(a, recset(j), VCA + j)
    for j in range(8):
        a(f"s_mov_b64 exec, s[{80+2*j}:{81+2*j}]")
        a(f"s_cbranch_execz K_M1A{j}")
        place_atomic(a, recset(8 + j), VCA + 8 + j)
        a(f"K_M1A{j}:")
    A_(0); A_(1)
    a("s_waitcnt lgkmcnt(2)")
    for j in range(8):
        a(f"s_mov_b64 exec, s[{80+2*j}:{81+2*j}]")
        a(f"s_cbranch_execz K_M1W{j}")
        place_write(a, recset(8 + j), VCA + 8 + j)
        a(f"K_M1W{j}:")
    A_(2)
    W_(0, 1)
    W_(1, None)
    A_(3)
    W_(2, 5)
    A_(4)
    W_(3, 3)
    A_(5)
    W_(4, 3)
    A_(6)
    a("s_mov_b64 exec, -1")
    a(f"ds_read_b32 v7, v{VZ} offset:{L_ACKS}")
    W_(5, 4)
    A_(7)
    a("@S26")
    W_(6, 4)
    npf, pfs = int(OPT["npf"]), int(OPT["pfs"])
    a(f"""
s_mov_b64 exec, -1
s_waitcnt lgkmcnt(2)
v_readfirstlane_b32 s40, v7
s_cmp_lg_u32 s40, 32
s_cbranch_scc1 K_NOPF
""")
    if npf:
        a(f"""
s_lshr_b32 s40, s2, 3
s_mul_i32 s40, s40, {782*128}
v_mul_u32_u24 v7, {pfs}, v0
v_add_u32 v7, s40, v7
""")
        for p in range(-(-npf // 512)):
            if p:
                a(f"v_add_u32 v7, {512*pfs}, v7")
            if npf - 512 * p < 512:
                a(f"v_cmp_gt_u32 vcc, {npf - 512*p}, v0")
                a("s_mov_b64 exec, vcc")
            a(f"buffer_load_dword v{VPF}, v7, s[28:31], 0 offen sc1")
    a("K_NOPF:")
    W_(7, None)
    R = X0
    a(f"""
s_mov_b64 exec, -1
v_cmp_lt_u32 vcc, 32, v{VMAXL}
s_cbranch_vccnz K_LONG_ENTRY
K_PLACED:
s_waitcnt lgkmcnt(0)
@S27
s_barrier
@S28
K_RANK:
v_lshlrev_b32 v4, 2, v1
ds_read_b32 v{R}, v4 offset:{L_CNT}
""")
    for i in range(1, 6):
        a(f"s_add_u32 s{40+i}, s3, {8*i}")
    a(f"""
v_cmp_gt_u32_e64 s[52:53], 48, v1
v_lshl_add_u32 v{R+2}, v1, 3, s3
v_mul_u32_u24 v{R+6}, {CS*4}, v{R+2}
v_mul_u32_u24 v{R+7}, {US}, v{R+2}
v_add_u32 v{R+7}, {L_AP}, v{R+7}
v_lshlrev_b32 v{R+2}, 2, v{R+2}
s_waitcnt lgkmcnt(0)
v_cmp_lt_u32 vcc, {CAP*4}, v{R}
v_lshl_add_u32 v{R+1}, v{R}, 4, v1
v_add_u32 v{R+1}, 1, v{R+1}
s_cbranch_vccnz K_SLOW_ENTRY
v_cndmask_b32_e64 v{R+1}, 0, v{R+1}, s[52:53]
v_readlane_b32 s50, v{R}, 48
""")
    for i in range(6):
        a(f"v_readlane_b32 s{64+i}, v{R+1}, s{3 if i == 0 else 40+i}")
    a(f"s_add_u32 s51, s50, {4*(4*GS-1)}")
    for i in range(6):
        a(f"v_cmp_lt_u32_e64 s[{72+2*i}:{73+2*i}], s{64+i}, v{R+1}")
    if GS == 2:
        a("s_lshr_b32 s51, s51, 5")
    else:
        a("s_lshr_b32 s51, s51, 4")
        a("s_mul_i32 s51, s51, 0x5556")
        a("s_lshr_b32 s51, s51, 16")
    for i in range(6):
        a(f"v_writelane_b32 v{R+3}, s{64+i}, {i}")
        a(f"s_bcnt1_i32_b64 s{72+2*i}, s[{72+2*i}:{73+2*i}]")
    a(f"""
s_max_u32 s51, s51, {MINPS}
s_cmp_eq_u32 s50, 0
s_cselect_b32 s50, 0, s51
s_mul_i32 s50, s50, {GS}
""")
    for i in range(6):
        a(f"v_writelane_b32 v{R+4}, s{72+2*i}, {i}")
    a(f"""
v_lshrrev_b32 v{R+3}, 6, v{R+3}
v_add_u32 v{R+4}, 4, v{R+4}
v_lshlrev_b32 v{R+5}, 3, v{R+4}
v_lshlrev_b32 v{R+8}, 2, v{R+4}
s_mov_b64 exec, 63
ds_write_b64 v{R+5}, {pr(R+6)} offset:{L_TS}
ds_write_b32 v{R+8}, v{R+3} offset:{L_TC}
ds_write_b32 v{R+2}, v{R+4} offset:{L_RK}
s_mov_b64 exec, 15
v_mul_u32_u24 v{R+10}, s50, v4
v_add_u32 v{R+10}, {48*CS*4}, v{R+10}
v_mov_b32 v{R+11}, {L_AP + 48*US}
v_mov_b32 v{R+9}, s50
v_lshlrev_b32 v5, 3, v1
ds_write_b64 v5, {pr(R+10)} offset:{L_TS}
ds_write_b32 v4, v{R+9} offset:{L_TC}
ds_write_b32 v4, v1 offset:{L_RK + 192}
s_mov_b64 exec, -1
v_lshlrev_b32 v4, 4, v2
v_cmp_gt_u32_e64 s[52:53], 13, v2
s_add_u32 s15, s3, 1
s_waitcnt lgkmcnt(0)
s_barrier
@S29
ds_read_b32 v{R}, v4 offset:{L_TC}
v_mov_b32 v{R+4}, 1
v_mov_b32 v{R+5}, 0
s_waitcnt lgkmcnt(0)
v_cmp_ne_u32 vcc, 0, v{R}
v_add_u32 v{R}, {GS-1}, v{R}
""")
    if GS == 2:
        a(f"v_lshrrev_b32 v{R}, 1, v{R}")
    else:
        a(f"v_mul_u32_u24 v{R}, 0x5556, v{R}")
        a(f"v_lshrrev_b32 v{R}, 16, v{R}")
    a(f"""
s_and_b64 s[44:45], vcc, s[52:53]
v_max_u32 v{R}, {MINPS}, v{R}
v_cndmask_b32_e64 v{R}, 0, v{R}, s[44:45]
v_mov_b32 v{R+1}, v{R}
""")
    scan(a, R + 1, row_only=True)
    a(f"""
s_nop 0
v_readlane_b32 s14, v{R+1}, 15
v_sub_u32 v{R+2}, v{R+1}, v{R}
s_cmp_gt_u32 s14, {MAXIT*8}
s_cbranch_scc1 K_SLOW_ENTRY
s_mul_i32 s40, s14, s3
s_mul_i32 s41, s14, s15
s_lshr_b32 s40, s40, 3
s_lshr_b32 s41, s41, 3
s_sub_u32 s{S_IT}, s41, s40
s_cmp_eq_u32 s{S_IT}, 0
s_cbranch_scc1 K_LOOP_DONE
v_cmp_ge_u32_e64 s[42:43], s40, v{R+1}
v_subrev_u32 v{R+3}, s40, v{R+2}
s_and_b32 s42, s42, 0x1fff
s_bcnt1_i32_b32 s42, s42
s_lshl_b32 s46, s42, 5
v_lshl_add_u32 v{VTK}, v3, 3, s46
v_and_b32 v{VTE}, 12, v2
v_lshl_add_u32 v{VTE}, v{VTE}, 1, s46
v_readlane_b32 s43, v{R+2}, s42
ds_read_b64 {pr(R+6)}, v{VTK} offset:{L_TS}
ds_read_b32 v{NXE}, v{VTE} offset:{L_TS}
ds_read_b64 {pr(NX)}, v{VTK} offset:{L_TS + 32}
v_add_u32 v{R+8}, -1, v{R+3}
v_cmp_gt_u32 vcc, 63, v{R+8}
v_lshlrev_b64 {pr(R+4)}, v{R+3}, {pr(R+4)}
s_and_b64 vcc, vcc, s[44:45]
s_sub_u32 s43, s40, s43
v_cndmask_b32 v{R+4}, 0, v{R+4}, vcc
v_cndmask_b32 v{R+5}, 0, v{R+5}, vcc
s_mul_i32 s45, s43, {4*GS}
s_lshl_b32 s47, s45, 1
""")
    for d in (1, 2, 4, 8):
        a(f"v_or_b32_dpp v{R+4}, v{R+4}, v{R+4} row_shr:{d} row_mask:0xf bank_mask:0xf")
        a(f"v_or_b32_dpp v{R+5}, v{R+5}, v{R+5} row_shr:{d} row_mask:0xf bank_mask:0xf")
        a("s_nop 0")
    TI = {1: [Y[0] + 2 * i for i in range(GS)]}
    nxt = HL
    for p in range(2, NB):
        TI[p] = [nxt + 2 * i for i in range(GS)]
        nxt += 2 * GS
    assert nxt <= DEN, (nxt, DEN)
    a(f"""
s_add_u32 s45, s45, {L_KEYS}
s_add_u32 s47, s47, {L_EA}
v_readlane_b32 s{S_MASK}, v{R+4}, 15
v_readlane_b32 s{S_MASK+1}, v{R+5}, 15
s_bfm_b64 s[48:49], s{S_IT}, 0
s_waitcnt lgkmcnt(1)
v_add_u32 v{VK}, s45, v{R+6}
v_add_u32 v{R+7}, v{R+7}, v{IDX[0]+1}
s_and_b64 s[{S_MASK}:{S_MASK+1}], s[{S_MASK}:{S_MASK+1}], s[48:49]
""")
    for i in range(GS):
        a(f"ds_read_b32 v{IDX[i]}, v{VK} offset:{4*i}")
    a(f"""
ds_read_b128 {q4(CA)}, v{R+7}
v_lshl_add_u32 v{VE}, v{NXE}, 1, s47
v_mov_b32 v4, {L_ZERO}
""")
    for p in range(1, NB):
        for i in range(GS):
            a(f"v_mov_b32 v{TI[p][i]+1}, v{IDX[0]+1}")
    a(f"v_cndmask_b32_e64 v{VE}, v4, v{VE}, s[{S_AM}:{S_AM+1}]")
    a(f"s_waitcnt lgkmcnt({GS+1})")
    for p in range(1, NB):
        a(f"s_bitcmp1_b32 s{S_MASK}, {p}")
        a(f"s_cbranch_scc0 K_PK{p}")
        ev_k(a, 4 * GS * p)
        a(f"K_PK{p}:")
        for i in range(GS):
            a(f"ds_read_b32 v{TI[p][i]}, v{VK} offset:{4*(GS*p+i)}")
    for i in range(GS):
        a(f"ds_read_b64 {pr(AOP[i])}, v{VE} offset:{8*i}")
    a(f"""
s_lshr_b64 s[{S_CM}:{S_CM+1}], s[{S_MASK}:{S_MASK+1}], 3
s_lshr_b64 s[48:49], s[{S_MASK}:{S_MASK+1}], {NB+1}
s_or_b64 s[{S_CM}:{S_CM+1}], s[{S_CM}:{S_CM+1}], s[48:49]
s_mov_b32 s{S_RAW}, s{S_MASK}
s_bitset1_b64 s[{S_MASK}:{S_MASK+1}], s{S_IT}
s_lshr_b64 s[48:49], s[{S_MASK}:{S_MASK+1}], 1
s_or_b64 s[{S_CM}:{S_CM+1}], s[{S_CM}:{S_CM+1}], s[48:49]
s_waitcnt lgkmcnt({GS})
""")
    NG0 = int(OPT["ng0"])
    NG1 = max(NG0, min(NB, 4 if GS == 2 else 3))
    for l in gathers(0, IDX):
        a(l)
    for p in range(1, NG0):
        for l in gathers(p, TI[p]):
            a(l)
    if OPT["prio"] == "1":
        dflt = (24, 12, 4) if GS == 2 else (16, 8, 3)
        t1, t2, t3 = [int(OPT.get(f"thr{i+1}", dflt[i])) for i in range(3)]
        a(f"""
s_setprio 3
s_mov_b32 s{S_PR}, 3
s_mov_b64 s[54:55], 0
s_bitset1_b64 s[54:55], {63 - t1}
s_bitset1_b64 s[54:55], {63 - t2}
s_bitset1_b64 s[54:55], {63 - t3}
s_sub_u32 s46, 63, s{S_IT}
s_lshr_b64 s[54:55], s[54:55], s46
s_or_b64 s[{S_CM}:{S_CM+1}], s[{S_CM}:{S_CM+1}], s[54:55]
""")
    a(f"""
s_ff1_i32_b64 s{S_CNT}, s[{S_CM}:{S_CM+1}]
v_lshlrev_b32 v5, 9, v3
v_lshl_add_u32 v5, v2, 4, v5
s_lshl_b32 s45, s42, 11
s_add_u32 s45, s45, {L_ACC}
s_add_u32 s46, s45, 2048
v_add_u32 v{VFN}, s46, v5
s_cmp_eq_u32 s43, 0
s_cbranch_scc1 K_P2
s_lshl_b32 s45, s3, 11
s_add_u32 s45, s45, {L_EXT}
s_lshl_b32 s46, 1, s3
s_lshl_b32 s47, s42, 2
v_mov_b32 v6, s46
v_mov_b32 v7, s47
s_mov_b64 exec, 1
ds_or_b32 v7, v6 offset:{L_MASK}
s_mov_b64 exec, -1
K_P2:
v_add_u32 v{VF}, s45, v5
""")
    for i in range(0, 8, 2):
        a(f"v_pk_mov_b32 {pr(DEN+i)}, 0, 0")
    a(f"""
v_add_u32 v{VK}, {4*GS*NB}, v{VK}
s_bitcmp1_b32 s{S_RAW}, {NB}
s_cbranch_scc0 K_PK{NB}
""")
    ev_k(a, 0)
    a(f"""
K_PK{NB}:
v_mov_b32 v5, {16*GS}
@S10
s_waitcnt vmcnt({GS*(NG0-1)}) lgkmcnt(0)
@S15
""")
    for l in mfmas(0):
        a(l)
    for p in range(NG0, NG1):
        for l in gathers(p, TI[p]):
            a(l)
    a(f"""
s_bitcmp1_b32 s{S_RAW}, 1
s_cbranch_scc0 K_PE1
s_nop 2
""")
    ev_e(a, 8 * GS)
    a("K_PE1:")
    for i in range(GS):
        a(f"ds_read_b64 {pr(AOP[i])}, v{VE} offset:{8*(GS+i)}")
    a(f"""
v_cndmask_b32_e64 v5, 0, v5, s[{S_AM}:{S_AM+1}]
s_nop 3
""")
    for i in range(4 * GS):
        a(f"v_exp_f32 v{Y[0]+i}, v{Y[0]+i}")
    a(f"v_add_u32 v{VE}, v5, v{VE}")
    a(f"s_waitcnt vmcnt({GS*(NG1-2)}) lgkmcnt(0)")
    for l in mfmas(1):
        a(l)
    for p in range(NG1, NB):
        for l in gathers(p, TI[p]):
            a(l)
    a(f"""
s_bitcmp1_b32 s{S_RAW}, 2
s_cbranch_scc0 K_PE2
s_nop 2
""")
    ev_e(a, 0)
    a(f"""
K_PE2:
@C20
s_nop 4
{f".p2align {OPT['align']}" if OPT.get('align') else ''}
K_LOOP:
""")
    order = ORDERS[GS][OPT["order"]].split()
    for k in range(UNR):
        d = ops(k)
        for x in order:
            a(d[x])
        if k == UNR - 1:
            a("s_cbranch_scc0 K_LOOP")
        else:
            a(f"s_cbranch_scc1 K_EV{k}")
            a(f"K_RET{k}:")
    for k in [UNR - 1] + list(range(UNR - 1)):
        kn = (k + 1) % UNR
        ret = f"K_RET{k}" if k < UNR - 1 else "K_LOOP"
        a(f"""
K_EV{k}:
s_ff1_i32_b64 s14, s[{S_CM}:{S_CM+1}]
s_bitset0_b64 s[{S_CM}:{S_CM+1}], s14
s_ff1_i32_b64 s{S_CNT}, s[{S_CM}:{S_CM+1}]
s_lshr_b64 s[40:41], s[{S_MASK}:{S_MASK+1}], s14
s_sub_u32 s{S_CNT}, s{S_CNT}, s14
s_sub_u32 s{S_CNT}, s{S_CNT}, 1
s_bitcmp1_b32 s40, 1
s_cbranch_scc0 K_EV{k}A
ds_write_b128 v{VF}, {q4(DEN)}
ds_write_b128 v{VF}, {q4(NUM)} offset:256
s_lshr_b64 s[42:43], s[40:41], 2
s_cbranch_scc0 K_LOOP_DONE
v_mov_b32 v{VF}, v{VFN}
v_add_u32 v{VFN}, 2048, v{VFN}
""")
        for i in range(0, 8, 2):
            a(f"v_pk_mov_b32 {pr(DEN+i)}, 0, 0")
        a(f"""
K_EV{k}A:
s_bitcmp1_b32 s40, 3
s_cbranch_scc0 K_EV{k}B
""")
        ev_e(a, 8 * GS * kn)
        a(f"""
K_EV{k}B:
s_lshr_b64 s[42:43], s[40:41], {NB+2}
s_cbranch_scc0 K_EV{k}C
s_bitcmp1_b32 s40, {NB+1}
s_cbranch_scc0 K_EV{k}C
""")
        ev_k(a, 4 * GS * kn)
        a(f"K_EV{k}C:")
        if OPT["prio"] == "1":
            a(f"""
s_bitcmp1_b64 s[54:55], s14
s_cbranch_scc0 {ret}
s_sub_u32 s{S_PR}, s{S_PR}, 1
s_setprio 0
s_cmp_eq_u32 s{S_PR}, 0
s_cbranch_scc1 {ret}
s_setprio 1
s_cmp_eq_u32 s{S_PR}, 1
s_cbranch_scc1 {ret}
s_setprio 2
""")
        a(f"s_branch {ret}")
    D0, U0 = R + 16, R + 32
    a(f"""
K_LOOP_DONE:
@C21
@S11
s_setprio 0
v_lshrrev_b32 v{R}, 3, v0
v_min_u32 v{R+1}, 48, v{R}
v_lshlrev_b32 v{R+2}, 2, v{R}
v_lshlrev_b32 v{R+3}, 2, v{R+1}
v_and_b32 v{R+4}, 7, v0
v_lshlrev_b32 v{R+5}, 5, v{R+4}
v_cmp_gt_u32_e64 s[40:41], 52, v{R}
s_movk_i32 s14, {US}
v_mad_u32_u24 v{R+8}, v{R+1}, s14, v{R+5}
v_add_u32 v{R+8}, {L_U}, v{R+8}
v_mul_u32_u24 v{R+9}, {XSS}, v{R+1}
v_lshl_add_u32 v{R+9}, v{R+4}, 4, v{R+9}
v_add_u32 v{R+9}, {L_XS}, v{R+9}
ds_read_b32 v{R+6}, v{R+2} offset:{L_RK}
ds_read_b32 v{R+7}, v{R+3} offset:{L_CNT}
ds_read_b128 {q4(U0)}, v{R+8}
ds_read_b128 {q4(U0+4)}, v{R+8} offset:16
ds_read_b128 {q4(CA)}, v{R+9}
s_waitcnt lgkmcnt(0)
v_cmp_ne_u32 vcc, 0, v{R+7}
v_and_b32 v{R+10}, -4, v{R+6}
v_lshl_add_u32 v{R+11}, v{R+6}, 9, v{R+5}
v_add_u32 v{R+11}, {L_ACC}, v{R+11}
v_and_b32 v{R+12}, 3, v{R+6}
v_lshl_add_u32 v{R+12}, v{R+12}, 9, v{R+5}
v_add_u32 v{R+12}, {L_EXT}, v{R+12}
s_barrier
@S12
s_and_b64 exec, vcc, s[40:41]
s_cbranch_execz K_COMB_DONE
ds_read_b32 v{R+10}, v{R+10} offset:{L_MASK}
K_COMB_X:
ds_read_b128 {q4(D0)}, v{R+11}
ds_read_b128 {q4(D0+4)}, v{R+11} offset:16
ds_read_b128 {q4(D0+8)}, v{R+11} offset:256
ds_read_b128 {q4(D0+12)}, v{R+11} offset:272
s_waitcnt lgkmcnt(4)
v_ffbl_b32 v{R+11}, v{R+10}
v_cmp_ne_u32 vcc, 0, v{R+10}
v_add_u32 v{R+13}, -1, v{R+10}
v_and_b32 v{R+10}, v{R+10}, v{R+13}
v_lshl_add_u32 v{R+11}, v{R+11}, 11, v{R+12}
s_waitcnt lgkmcnt(0)
""")
    for i in range(0, 16, 2):
        a(f"v_pk_add_f32 {pr(TOT+i)}, {pr(TOT+i)}, {pr(D0+i)}")
    a(f"""
s_and_b64 exec, exec, vcc
s_cbranch_execnz K_COMB_X
K_COMB_DONE:
s_mov_b64 exec, -1
s_cmp_lg_u32 s{S_MODE}, 0
s_cbranch_scc1 K_SLOW_NEXT
K_FINAL:
s_cmp_lg_u32 s3, 6
s_cbranch_scc1 K_FIN2
""")
    for i in range(16):
        a(f"v_add_f32_dpp v{TOT+i}, v{TOT+i}, v{TOT+i} row_ror:8 row_mask:0xf bank_mask:0xf")
    for i in range(16):
        a(f"ds_swizzle_b32 v{D0+i}, v{TOT+i} offset:0x401F")
    a("s_waitcnt lgkmcnt(0)")
    for i in range(0, 16, 2):
        a(f"v_pk_add_f32 {pr(TOT+i)}, {pr(TOT+i)}, {pr(D0+i)}")
    eps = struct.unpack("<I", struct.pack("<f", 1e-6 * 2.0**KEXP))[0]
    a(f"""
K_FIN2:
s_mov_b32 s14, {eps:#x}
s_mov_b32 s15, {eps:#x}
v_lshlrev_b32 v{R}, 8, v{R}
v_add_u32 v{R}, s{S_B}, v{R}
v_lshlrev_b32 v{R}, 7, v{R}
v_lshl_add_u32 v{R}, v{R+4}, 4, v{R}
""")
    for i in range(0, 8, 2):
        a(f"v_pk_add_f32 {pr(TOT+i)}, {pr(TOT+i)}, s[14:15]")
    for i in range(8):
        a(f"v_rcp_f32 v{TOT+i}, v{TOT+i}")
    for i in range(4):
        a(f"v_lshlrev_b32 v{D0+2*i}, 16, v{CA+i}")
        a(f"v_and_b32 v{D0+2*i+1}, 0xffff0000, v{CA+i}")
    for i in range(0, 8, 2):
        a(f"v_pk_fma_f32 {pr(U0+i)}, {pr(TOT+8+i)}, {pr(TOT+i)}, {pr(U0+i)}")
    for i in range(8):
        a(f"v_max_f32 v{U0+i}, 0, v{U0+i}")
    for i in range(0, 8, 2):
        a(f"v_pk_add_f32 {pr(D0+i)}, {pr(D0+i)}, {pr(U0+i)}")
    for i in range(4):
        a(f"v_cvt_pk_bf16_f32 v{D0+i}, v{D0+2*i}, v{D0+2*i+1}")
    a(f"""
buffer_store_dwordx4 {q4(D0)}, v{R}, s[36:39], 0 offen {OPT['st_out']}
@S13
@Wvmcnt(0)
@S14
@Vs{S_IT},22
@OUT
K_END:
s_endpgm
K_TAG_RETRY:
s_waitcnt lgkmcnt(0)
s_memrealtime s[52:53]
s_sleep 4
global_load_dword v64, v{VZ}, s[84:85] sc1
s_waitcnt vmcnt(0) lgkmcnt(0)
s_sub_u32 s52, s52, s50
s_cmp_lt_u32 s52, 0x400000
s_cbranch_scc1 K_TAGW
s_branch K_TAGOK
K_POLL_RETRY:
s_memrealtime s[52:53]
s_sleep {OPT['sleep']}
s_waitcnt lgkmcnt(0)
s_sub_u32 s52, s52, s50
s_cmp_lt_u32 s52, 0x400000
s_cbranch_scc1 K_POLL
""")
    for k in range(8):
        a(f"v_cndmask_b32 v{VTT+k}, v{VTT+k}, v{VZ}, vcc")
    a(f"""
s_branch K_POLLOK
K_LONG_ENTRY:
s_mov_b32 s14, 32
K_LONG:
v_add_u32 v6, s14, v2
s_mul_i32 s15, s14, 12
""")
    for k in range(8):
        a(f"""
s_mov_b64 exec, -1
v_cmp_gt_u32_sdwa vcc, v{VTT+k}, v6 src0_sel:WORD_1 src1_sel:DWORD
s_and_saveexec_b64 s[40:41], vcc
s_cbranch_execz K_LONG_S{k}
buffer_load_dwordx3 v[{R}:{R+2}], v{VRA+k}, s[32:35], s15 offen sc1
s_waitcnt vmcnt(0)
""")
        place_atomic(a, R, 4)
        a("s_waitcnt lgkmcnt(0)")
        place_write(a, R, 4)
        a(f"K_LONG_S{k}:")
    a(f"""
s_mov_b64 exec, -1
s_add_u32 s14, s14, 16
v_cmp_lt_u32 vcc, s14, v{VMAXL}
s_cbranch_vccnz K_LONG
s_branch K_PLACED
K_SLOW_ENTRY:
ds_max_u32 v{VZ}, v{VMAXL} offset:{L_MAXL}
s_waitcnt lgkmcnt(0)
s_barrier
ds_read_b32 v5, v{VZ} offset:{L_MAXL}
s_mov_b32 s{S_MODE}, 1
s_mov_b32 s{S_I}, 0
s_mov_b32 s{S_MO}, 0
s_waitcnt lgkmcnt(0)
v_readfirstlane_b32 s{S_ML}, v5
s_branch K_SLOW_BATCH
K_SLOW_NEXT:
s_add_u32 s{S_I}, s{S_I}, 1
s_cmp_lt_u32 s{S_I}, 64
s_cbranch_scc1 K_SLOW_BATCH
s_mov_b32 s{S_I}, 0
s_add_u32 s{S_MO}, s{S_MO}, 16
s_cmp_ge_u32 s{S_MO}, s{S_ML}
s_cbranch_scc1 K_FINAL
K_SLOW_BATCH:
s_waitcnt vmcnt(0) lgkmcnt(0)
s_barrier
""")
    slots_init(a, R, True)
    a(f"""
s_waitcnt lgkmcnt(0)
s_barrier
s_cmp_lg_u32 s3, 0
s_cbranch_scc1 K_SLOW_S
s_lshl_b32 s14, s{S_I}, 2
v_add_u32 v7, s14, v3
s_lshl_b32 s15, s{S_B}, 3
v_lshl_add_u32 v4, v7, 11, s15
buffer_load_dword v5, v4, s[32:35], 0 offen sc1
s_mov_b32 s15, {RECS}
v_mul_lo_u32 v7, v7, s15
v_add_u32 v6, s{S_MO}, v2
v_mad_u32_u24 v7, v6, 12, v7
v_add_u32 v7, {REC_REL}, v7
s_waitcnt vmcnt(0)
v_and_b32 v5, 0x0fff0fff, v5
v_mad_u32_u16 v4, v5, 12, v7
v_cmp_gt_u32_sdwa vcc, v5, v6 src0_sel:WORD_1 src1_sel:DWORD
s_and_saveexec_b64 s[40:41], vcc
s_cbranch_execz K_SLOW_S
buffer_load_dwordx3 v[{R}:{R+2}], v4, s[32:35], 0 offen sc1
s_waitcnt vmcnt(0)
""")
    place_atomic(a, R, 4)
    a("s_waitcnt lgkmcnt(0)")
    place_write(a, R, 4)
    a("""
K_SLOW_S:
s_mov_b64 exec, -1
s_waitcnt lgkmcnt(0)
s_barrier
s_branch K_RANK
""")
    return a.text()


HEADER = open("standalone__edge_featured_mpnn_gatedgcn__graph.s.ref").read().split("; Override launch")[0]


def main():
    out = HEADER
    out += f"; @launch grid=(256,1,1) block=(512,1,1) lds={LDS}\n"
    out += '.amdgcn_target "amdgcn-amd-amdhsa--gfx950"\n.text\n'
    out += f".globl {KNAME}\n.p2align 8\n.type {KNAME},@function\n" + kernel()
    out += f""".section .rodata,"a"
.p2align 6
.amdhsa_kernel {KNAME}
  .amdhsa_next_free_vgpr {NVGPR}
  .amdhsa_next_free_sgpr {101 if STAMPS else 98}
  .amdhsa_accum_offset {(NVGPR + 3) // 4 * 4}
  .amdhsa_group_segment_fixed_size 0
  .amdhsa_kernarg_size 96
  .amdhsa_user_sgpr_count 2
  .amdhsa_user_sgpr_kernarg_segment_ptr 1
  .amdhsa_system_sgpr_workgroup_id_x 1
.end_amdhsa_kernel
"""
    open(sys.argv[1], "w").write(out)


main()
```

```python
import sys
import struct
from math import gcd

N = 12500
E = 800000
QCH = 782
QH = QCH // 2
CH = QCH * 4
NQ = E // 4
RECB = CH * 12
RECS = 37760
TAB_ROWS = N + 1
TAB_BYTES = TAB_ROWS * 256
T_OFF = 0x310000
T2_REL = 0x80000
REC_REL = 0x81000
TR_BYTES = REC_REL + 256 * RECS
BIG = 0x40000000
NLOG2E = 0xbfb8aa3b
CAP = 128
CS = 132
XSS = 144
US = 272

OPT = dict(align="3", cpf="7", packpos="b", gs="2", nb="5", prio="1", order="c", npf="352", pfs="128", sleep="2", ng0="2", st_out="nt", cadd="1")
for a_ in sys.argv[2:]:
    k_, v_ = a_.split("=")
    OPT[k_] = v_
STAMPS = bool(OPT.get("stamps"))
GS = int(OPT["gs"])
NB = int(OPT["nb"] or (6 if GS == 2 else 4))
UNR = NB * 2 // gcd(NB, 2)
MINPS = NB + 1
MAXIT = 62
KEXP = 60 if GS == 2 else 40
KBITS = (127 - KEXP) << 23
DBG_OFF = 0x1000000
KNAME = "standalone__edge_featured_mpnn_gatedgcn__graph_kernel"

L_CNT = 0
L_MASK = 256
L_MAXL = 324
L_ACKS = 328
L_ZERO = 384
L_TS = 640
L_TC = 1536
L_RK = 1792
L_HIST, L_START = 0, 1024
L_EA = 2048
EA_BYTES = 49 * CS * 8 + 32
L_KEYS = L_EA + EA_BYTES
KEY_BYTES = 49 * CS * 4 + 16
L_ACC = L_KEYS + KEY_BYTES
L_EXT = L_ACC + 52 * 512
L_STAGE = L_ACC
L_AP = L_EXT + 8 * 2048
L_U = L_AP + 49 * US
L_XS = L_U + 49 * US
L_WC = L_XS + 64 * XSS
LDS = L_WC + 512
assert 8 * GS * UNR + 8 <= L_TS - L_ZERO

_nv = [8]


def valloc(n, align=2):
    _nv[0] = (_nv[0] + align - 1) // align * align
    r = _nv[0]
    _nv[0] += n
    return r


GB = valloc(6 * GS * NB)
Y = (valloc(4 * GS), valloc(4 * GS))
HL = valloc(2 * GS)
P2, MM, SA, UU = valloc(4), valloc(4), valloc(4), valloc(4)
DEN = valloc(8)
NUM = DEN + 4
_nv[0] = max(_nv[0], 128)
AOP = [valloc(4) for _ in range(GS)]
CA, CN = valloc(4), valloc(4)
IDX = [valloc(2) for _ in range(GS)]
NX = valloc(2)
VK, VE, VF, VFN, VTK, VTE, NXE, VINC = [valloc(1, 1) for _ in range(8)]
TOT = valloc(16)
VTT = valloc(8)
VRA = valloc(8)
VCA = valloc(16)
PT = VCA
T2R = valloc(8)
VMAXL, VPF, VFOUR, VZ = [valloc(1, 1) for _ in range(4)]
VST = valloc(2)
NVGPR = _nv[0]
assert NVGPR <= 256, NVGPR
X0 = Y[0]
assert NUM + 4 - X0 >= 40

S_IT, S_MODE, S_I, S_MO, S_ML, S_CNT = 4, 5, 6, 7, 8, 9
S_K = 10
S_RAW = 12
S_B = 13
S_CM = 56
S_PR = 58
S_CS = 59
S_MASK = 60
S_AM = 62
S_TAG, S_TAG2, S_T2OK = 96, 97, 19


def stepbuf(p, i):
    return GB + 6 * (GS * (p % NB) + i)


def recset(j):
    return GB + 6 * j + 2 if j < GS * NB else X0 + 4 * (j - GS * NB)


class Asm:
    def __init__(self):
        self.L = []

    def __call__(self, s):
        for l in s.strip("\n").split("\n"):
            l = l.strip()
            if not l:
                continue
            if l.startswith("@"):
                if STAMPS:
                    self.special(l)
                continue
            self.L.append(l if l.endswith(":") else "    " + l)

    def special(self, l):
        if l.startswith("@S") or l.startswith("@C"):
            self(f"{'s_memtime' if l[1] == 'C' else 's_memrealtime'} s[98:99]")
            self("s_waitcnt lgkmcnt(0)")
            self(f"v_writelane_b32 v{VST}, s98, {int(l[2:])}")
        elif l.startswith("@W"):
            self("s_waitcnt " + l[2:])
        elif l.startswith("@V"):
            r, i = l[2:].split(",")
            self(f"v_writelane_b32 v{VST}, {r}, {i}")
        elif l.startswith("@OUT"):
            self(f"""
s_mov_b64 exec, -1
s_lshl_b32 s100, s2, 4
s_add_u32 s100, s100, s3
s_lshl_b32 s100, s100, 8
s_add_u32 s100, s100, {DBG_OFF + 0x100000:#x}
v_and_b32 v{VST+1}, 63, v0
v_lshl_add_u32 v{VST+1}, v{VST+1}, 2, s100
global_store_dword v{VST+1}, v{VST}, s[16:17]
""")

    def text(self):
        return "\n".join(self.L) + "\n"


def pr(r):
    return f"v[{r}:{r+1}]"


def q4(r):
    return f"v[{r}:{r+3}]"


def srd(a, d, lo, hi, nbytes, stride=0):
    a(f"s_mov_b32 s{d}, s{lo}")
    a(f"s_and_b32 s{d+1}, s{hi}, 0xffff")
    if stride:
        a(f"s_or_b32 s{d+1}, s{d+1}, {stride << 16:#x}")
    a(f"s_mov_b32 s{d+2}, {nbytes}")
    a(f"s_mov_b32 s{d+3}, 0x20000")


def scan(a, v, row_only=False, fill=()):
    fill = list(fill)
    steps = [f"row_shr:{d} row_mask:0xf" for d in (1, 2, 4, 8)]
    if not row_only:
        steps += ["row_bcast:15 row_mask:0xa", "row_bcast:31 row_mask:0xc"]
    for st in steps:
        if fill:
            a(fill.pop(0))
            a("s_nop 0")
        else:
            a("s_nop 1")
        a(f"v_add_u32_dpp v{v}, v{v}, v{v} {st} bank_mask:0xf")


SDWA_B0 = "dst_sel:DWORD dst_unused:UNUSED_PAD src0_sel:DWORD src1_sel:BYTE_0"


def tr_reads(a, vaddr, base, r0):
    for mat in range(2):
        for t in range(2):
            for s in range(2):
                r = r0 + 16 * mat + 8 * t + 4 * s
                o = base + mat * 8192 + s * 4096
                a(f"ds_read_b64_tr_b16 {pr(r)}, v{vaddr[t]} offset:{o}")
                a(f"ds_read_b64_tr_b16 {pr(r+2)}, v{vaddr[t]} offset:{o + 512}")


def tile_mfmas(a, r0, x0, d0):
    for s in range(2):
        for mat in range(2):
            for t in range(2):
                f = r0 + 16 * mat + 8 * t + 4 * s
                d = d0 + 8 * mat + 4 * t
                c = "0" if s == 0 else q4(d)
                a(f"v_mfma_f32_16x16x32_bf16 {q4(d)}, {q4(f)}, {q4(x0+4*s)}, {c}")


def slots_init(a, r, small):
    for i in range(4):
        a(f"v_mov_b32 v{r+i}, 0")
    for i in range(4):
        a(f"v_mov_b32 v{r+4+i}, {N}")
    z0 = 0 if small else L_EA
    a(f"v_lshlrev_b32 v{r+8}, 4, v0")
    a(f"v_add_u32 v{r+9}, {L_KEYS}, v{r+8}")
    nz, nk = (L_KEYS - z0) // 16, KEY_BYTES // 16
    for i in range(nz // 512):
        a(f"ds_write_b128 v{r+8}, {q4(r)} offset:{z0 + 8192*i}")
    for i in range(nk // 512):
        a(f"ds_write_b128 v{r+9}, {q4(r+4)} offset:{8192*i}")
    for rem, reg, data, off in sorted([(nz % 512, r + 8, r, z0 + 8192 * (nz // 512)), (nk % 512, r + 9, r + 4, 8192 * (nk // 512))], reverse=True):
        a(f"v_cmp_gt_u32 vcc, {rem}, v0")
        a("s_mov_b64 exec, vcc")
        a(f"ds_write_b128 v{reg}, {q4(data)} offset:{off}")
    a("s_mov_b64 exec, -1")


def place_atomic(a, r, ca):
    a(f"v_and_b32 v{ca}, 0xfc, v{r+2}")
    a(f"ds_add_rtn_u32 v{r+3}, v{ca}, v{VFOUR} offset:{L_CNT}")


def place_write(a, r, ca):
    a(f"v_min_u32 v{r+3}, {CAP*4}, v{r+3}")
    a(f"v_mad_u32_u24 v{ca}, v{ca}, s{S_CS}, v{r+3}")
    a(f"v_lshrrev_b32 v{r+2}, 8, v{r+2}")
    a(f"v_add_u32 v{r+3}, v{ca}, v{ca}")
    a(f"ds_write_b32 v{ca}, v{r+2} offset:{L_KEYS}")
    a(f"ds_write_b64 v{r+3}, {pr(r)} offset:{L_EA}")


def ev_k(a, sub):
    a(f"""
v_add_u32 v{VK}, {L_KEYS - sub}, v{NX}
v_add_u32 v4, v{NX+1}, v{IDX[0]+1}
v_add_u32 v{VTK}, 32, v{VTK}
v_add_u32 v{VTE}, 32, v{VTE}
ds_read_b128 {q4(CN)}, v4
ds_read_b32 v{NXE}, v{VTE} offset:{L_TS}
ds_read_b64 {pr(NX)}, v{VTK} offset:{L_TS + 32}
""")


def ev_e(a, sub):
    a(f"""
v_lshlrev_b32 v{VE}, 1, v{NXE}
v_add_u32 v{VE}, {L_EA - sub}, v{VE}
v_mov_b32 v4, {L_ZERO}
v_pk_mov_b32 {pr(CA)}, {pr(CN)}, {pr(CN)} op_sel:[0,1]
v_pk_mov_b32 {pr(CA+2)}, {pr(CN+2)}, {pr(CN+2)} op_sel:[0,1]
v_cndmask_b32_e64 v{VE}, v4, v{VE}, s[{S_AM}:{S_AM+1}]
""")


def gathers(p, idx):
    return [f"buffer_load_dwordx4 {q4(stepbuf(p, i) + 2)}, {pr(idx[i])}, s[24:27], 0 idxen offen sc1" for i in range(GS)]


def mfmas(p):
    y = Y[p & 1]
    return [f"v_mfma_f32_16x16x32_bf16 {q4(y+4*i)}, {q4(AOP[i])}, {q4(stepbuf(p, i))}, {q4(CA)}" for i in range(GS)]


def ops(k):
    y, yn = Y[k & 1], Y[1 - (k & 1)]
    b = [stepbuf(k, i) + 4 for i in range(GS)]
    sk = f"s[{S_K}:{S_K+1}]"
    d = {}
    for i in range(4 * GS):
        d[f"E{i}"] = f"v_exp_f32 v{yn+i}, v{yn+i}"
    for i in range(2 * GS):
        if OPT["cadd"] == "1":
            d[f"C{i}"] = f"v_pk_add_f32 {pr(y+2*i)}, {pr(y+2*i)}, {sk} clamp"
        else:
            d[f"C{i}"] = f"v_pk_fma_f32 {pr(y+2*i)}, {pr(y+2*i)}, {sk}, {sk} clamp"
    for i in range(4):
        d[f"R{i}"] = f"v_rcp_f32 v{MM+i}, v{MM+i}"
    for i in range(2):
        p = [pr(y + 4 * j + 2 * i) for j in range(GS)]
        h = [pr(HL + 2 * j) if i == 0 else pr(b[j]) for j in range(GS)]
        m, s, u, p2 = pr(MM + 2 * i), pr(SA + 2 * i), pr(UU + 2 * i), pr(P2 + 2 * i)
        d[f"m{i}"] = f"v_pk_mul_f32 {m if GS == 2 else p2}, {p[0]}, {p[1]}"
        d[f"a{i}"] = f"v_pk_add_f32 {s}, {p[0]}, {p[1]}"
        d[f"g{i}"] = f"v_pk_mul_f32 {u}, {p[1]}, {h[0]}"
        d[f"h{i}"] = f"v_pk_fma_f32 {u}, {p[0]}, {h[1]}, {u}"
        if GS == 3:
            d[f"M{i}"] = f"v_pk_mul_f32 {m}, {p2}, {p[2]}"
            d[f"s{i}"] = f"v_pk_fma_f32 {s}, {s}, {p[2]}, {p2}"
            d[f"i{i}"] = f"v_pk_mul_f32 {u}, {u}, {p[2]}"
            d[f"j{i}"] = f"v_pk_fma_f32 {u}, {p2}, {h[2]}, {u}"
        d[f"d{i}"] = f"v_pk_fma_f32 {pr(DEN+2*i)}, {s}, {m}, {pr(DEN+2*i)}"
        d[f"n{i}"] = f"v_pk_fma_f32 {pr(NUM+2*i)}, {u}, {m}, {pr(NUM+2*i)}"
    for i in range(GS):
        d[f"Q{i}"] = f"v_lshlrev_b64 {pr(HL+2*i)}, 16, {pr(b[i])}"
        d[f"N{i}"] = mfmas(k + 2)[i]
        d[f"L{i}"] = gathers(k, IDX)[i]
        d[f"k{i}"] = f"ds_read_b32 v{IDX[i]}, v{VK} offset:{4*(GS*k+i)}"
        d[f"e{i}"] = f"ds_read_b64 {pr(AOP[i])}, v{VE} offset:{8*(GS*k+i)}"
    d["W"] = f"s_waitcnt vmcnt({GS*(NB-3)}) lgkmcnt(0)"
    d["S"] = f"s_sub_u32 s{S_CNT}, s{S_CNT}, 1"
    d["A0"] = f"v_add_u32 v{VK}, {4*GS*UNR}, v{VK}" if k == UNR - 1 else ""
    d["A1"] = f"v_add_u32 v{VE}, v{VINC}, v{VE}" if k == UNR - 1 else ""
    return d


ORDERS = {
    2: {
        "b": "k0 k1 e0 e1 C0 E0 C2 E1 C1 E2 C3 E3 m0 E4 m1 E5 S Q0 Q1 A0 A1 a0 a1 g0 g1 h0 h1 W N0 R0 R1 N1 R2 R3 L0 L1 E6 d0 E7 d1 n0 n1",
        "c": "k0 k1 e0 e1 C0 C2 E0 m0 E1 C1 C3 E2 m1 E3 Q0 E4 Q1 E5 A0 A1 a0 a1 g0 g1 h0 h1 W L0 L1 S N0 R0 R1 N1 R2 R3 E6 d0 E7 d1 n0 n1",
        "d": "k0 k1 e0 e1 Q0 Q1 C0 E0 C2 E1 C1 E2 C3 E3 g0 E4 g1 E5 h0 h1 A0 A1 m0 m1 a0 a1 W L0 L1 S N0 R0 R1 N1 R2 R3 E6 d0 E7 d1 n0 n1",
        "e": "k0 k1 e0 e1 C0 E0 C2 E1 m0 E2 C1 R0 C3 R1 m1 E3 Q0 Q1 A0 A1 a0 a1 g0 g1 h0 h1 W L0 L1 S N0 R2 R3 N1 E4 E5 d0 E6 n0 E7 d1 n1",
        "f": "k0 k1 e0 e1 C0 E0 C2 E1 C1 E2 C3 E3 m0 m1 Q0 Q1 A0 A1 a0 a1 g0 g1 h0 h1 W L0 L1 S N0 R0 R1 E4 N1 R2 R3 E5 d0 E6 d1 E7 n0 n1",
        "g": "C0 E0 C2 E1 C1 E2 C3 E3 k0 k1 e0 e1 m0 E4 m1 E5 Q0 Q1 A0 A1 a0 a1 g0 g1 h0 h1 W L0 L1 S N0 R0 R1 N1 R2 R3 E6 d0 E7 d1 n0 n1",
        "h": "k0 k1 e0 e1 C0 E0 C2 E1 C1 E2 C3 E3 m0 E4 m1 E5 Q0 Q1 A0 A1 g0 g1 h0 h1 a0 a1 W L0 L1 S N0 R0 R1 N1 R2 R3 E6 E7 d0 d1 n0 n1",
        "": "k0 k1 e0 e1 C0 E0 C2 E1 C1 E2 C3 E3 m0 E4 m1 E5 Q0 Q1 A0 A1 a0 a1 g0 g1 h0 h1 W L0 L1 S N0 R0 R1 N1 R2 R3 E6 d0 E7 d1 n0 n1",
    },
    3: {
        "d": "k0 k1 k2 e0 e1 e2 C0 E0 C2 E1 C4 E2 C1 E3 C3 E4 C5 E5 m0 m1 M0 M1 Q0 Q1 Q2 A0 A1 a0 a1 g0 g1 s0 s1 h0 h1 i0 i1 j0 j1 W L0 L1 L2 S N0 R0 R1 N1 R2 R3 N2 E6 E7 E8 d0 E9 d1 E10 n0 E11 n1",
        "e": "k0 k1 k2 e0 e1 e2 Q0 Q1 Q2 C0 E0 C2 E1 C4 E2 C1 E3 C3 E4 C5 E5 m0 m1 g0 g1 M0 M1 A0 A1 h0 h1 a0 a1 i0 i1 s0 s1 j0 j1 W N0 R0 R1 N1 R2 R3 N2 E6 E7 L0 L1 L2 S E8 d0 E9 d1 E10 n0 E11 n1",
        "": "k0 k1 k2 e0 e1 e2 C0 E0 C2 E1 C4 E2 C1 E3 C3 E4 C5 E5 m0 E6 m1 E7 M0 M1 Q0 Q1 Q2 A0 A1 a0 a1 g0 g1 s0 s1 h0 h1 i0 i1 j0 j1 W L0 L1 L2 S N0 R0 R1 N1 R2 R3 N2 E8 E9 d0 E10 d1 E11 n0 n1",
        "b": "k0 k1 k2 e0 e1 e2 C0 E0 C2 E1 C4 E2 C1 E3 C3 E4 C5 E5 m0 m1 M0 M1 Q0 Q1 Q2 A0 A1 a0 a1 g0 g1 s0 s1 h0 h1 i0 i1 j0 j1 W N0 R0 R1 N1 R2 R3 N2 E6 E7 L0 L1 L2 S E8 d0 E9 d1 E10 n0 E11 n1",
        "c": "k0 k1 k2 e0 e1 e2 C0 E0 C2 E1 m0 E2 C4 E3 M0 E4 C1 E5 C3 E6 m1 E7 C5 M1 Q0 Q1 Q2 A0 A1 a0 a1 g0 g1 s0 s1 h0 h1 i0 i1 j0 j1 W L0 L1 L2 S N0 R0 R1 N1 R2 R3 N2 E8 E9 d0 E10 d1 E11 n0 n1",
    },
}


def t2_check(a):
    a(f"v_xor_b32 v4, s{S_TAG}, v{T2R}")
    for i in (2, 4, 6):
        a(f"v_xor_b32 v5, s{S_TAG}, v{T2R+i}")
        a("v_or_b32 v4, v4, v5")
    for i in (1, 3, 5, 7):
        a(f"v_xor_b32 v5, s{S_TAG2}, v{T2R+i}")
        a("v_or_b32 v4, v4, v5")
    a("v_cmp_ne_u32 vcc, 0, v4")


def t2_loads(a):
    a(f"""
v_lshlrev_b32 v4, 4, v1
s_mov_b32 s40, {T2_REL:#x}
buffer_load_dwordx4 {q4(T2R)}, v4, s[32:35], s40 offen sc1
buffer_load_dwordx4 {q4(T2R+4)}, v4, s[32:35], s40 offen offset:1024 sc1
""")


def kernel():
    a = Asm()
    VTR, VXA, VWC, VAU, VLOC = VK, VE, VF, VFN, NXE
    VE2, VT2 = VTK, VTE
    VTR1, VWG, XF = VMAXL, VPF, T2R
    a(f"""
{KNAME}:
s_cmp_ge_u32 s2, 256
s_cbranch_scc1 K_END
@S0
@C30
s_load_dwordx16 s[64:79], s[0:1], 0
s_load_dwordx8 s[80:87], s[0:1], 64
s_getpc_b64 s[42:43]
v_and_b32 v6, 63, v0
v_lshlrev_b32 v6, 7, v6
v_add_u32 v7, 8192, v6
v_cmp_le_u32 vcc, {int(OPT.get('cw', 7))*64}, v0
s_mov_b64 exec, vcc
global_load_dword v{VFOUR}, v6, s[42:43]
v_cmp_gt_u32 vcc, {8192 + 3072}, v7
s_mov_b64 exec, vcc
global_load_dword v{VFOUR}, v7, s[42:43]
s_mov_b64 exec, -1
s_mul_i32 s40, s2, {QCH}
v_add_u32 v4, s40, v0
v_add_u32 v5, {QH}, v4
v_cmp_gt_u32 vcc, {QH}, v0
v_lshlrev_b32 v4, 4, v4
v_mov_b32 v6, {BIG:#x}
v_and_b32 v7, 255, v0
v_cndmask_b32 v4, v6, v4, vcc
v_lshlrev_b32 v7, 2, v7
v_mov_b32 v{VZ}, 0
ds_write_b32 v7, v{VZ} offset:{L_HIST}
s_mov_b32 s47, 0x20000
s_mov_b32 s46, {E*4}
s_movk_i32 s58, {QH*16}
s_waitcnt lgkmcnt(0)
s_mov_b32 s44, s70
s_and_b32 s45, s71, 0xffff
buffer_load_dwordx4 v[8:11], v4, s[44:47], 0 offen
buffer_load_dwordx4 v[12:15], v4, s[44:47], s58 offen
v_readfirstlane_b32 s3, v0
s_mov_b32 s41, {NQ}
v_cmp_gt_u32_e64 s[94:95], s41, v5
s_mov_b64 s[92:93], vcc
v_add_u32 v5, s58, v4
s_and_b32 s{S_B}, s2, 7
s_lshl_b32 s{S_B}, s{S_B}, 5
s_lshr_b32 s40, s2, 3
s_or_b32 s{S_B}, s{S_B}, s40
s_and_b64 s[94:95], s[94:95], vcc
s_lshr_b32 s3, s3, 6
v_lshlrev_b32 v61, 4, v0
v_and_b32 v96, 16, v0
v_lshlrev_b32 v96, 1, v96
v_and_b32 v97, 64, v0
v_or_b32 v96, v96, v97
v_xor_b32 v{VWG}, v96, v61
global_load_dwordx4 v[40:43], v{VWG}, s[74:75]
global_load_dwordx4 v[44:47], v{VWG}, s[80:81]
v_lshrrev_b32 v62, 3, v0
v_lshlrev_b32 v90, 8, v62
v_add_u32 v90, s{S_B}, v90
v_lshlrev_b32 v90, 7, v90
v_and_b32 v63, 7, v0
v_lshl_add_u32 v90, v63, 4, v90
""")
    srd(a, 20, 64, 65, N * 128)
    a(f"""
buffer_load_dwordx4 v[56:59], v90, s[20:23], 0 offen
s_or_b32 s40, s2, s3
s_cmp_lg_u32 s40, 0
s_cbranch_scc1 K_NONONCE
s_memrealtime s[40:41]
s_waitcnt lgkmcnt(0)
s_or_b32 s40, s40, 1
v_mov_b32 v7, s40
s_mov_b64 exec, 1
global_store_dword v{VZ}, v7, s[84:85] sc1
s_mov_b64 exec, -1
K_NONONCE:
""")
    srd(a, 48, 68, 69, E * 4)
    srd(a, 52, 66, 67, E * 8)
    a(f"""
v_lshlrev_b32 v6, 1, v4
v_lshlrev_b32 v7, 1, v5
v_mov_b32 v74, v4
v_mov_b32 v75, v5
@S1
""")
    NE = int(OPT.get("ne", 2))
    later = ["buffer_load_dwordx4 v[24:27], v6, s[52:55], 0 offen",
             "buffer_load_dwordx4 v[28:31], v6, s[52:55], 0 offen offset:16",
             "buffer_load_dwordx4 v[16:19], v74, s[48:51], 0 offen",
             "buffer_load_dwordx4 v[20:23], v75, s[48:51], 0 offen"]
    a("s_barrier")
    for l in later[:NE]:
        a(l)
    if OPT.get("tlb", "0") == "1":
        a(f"""
s_cmp_lg_u32 s3, 7
s_cbranch_scc1 K_NOTLB
v_and_b32 v76, 63, v0
v_lshlrev_b32 v77, 14, v76
global_load_dword v{VFOUR}, v77, s[82:83]
v_mul_u32_u24 v76, {4*RECS}, v76
v_add_u32 v76, {T_OFF + REC_REL - 128}, v76
global_load_dword v{VFOUR}, v76, s[86:87]
K_NOTLB:
""")
    slots_init(a, 64, False)
    a(f"""
v_and_b32 v1, 63, v0
v_and_b32 v2, 15, v0
v_bfe_u32 v3, v0, 4, 2
v_and_b32 v91, 127, v0
v_lshlrev_b32 v91, 2, v91
v_mul_u32_u24 v62, {XSS}, v62
v_lshl_add_u32 v62, v63, 4, v62
v_add_u32 v62, {L_XS}, v62
v_add_u32 v63, {L_AP}, v61
s_mov_b64 s[16:17], s[86:87]
s_lshr_b32 s18, s3, 1
s_lshl_b32 s18, s18, 4
s_and_b32 s19, s3, 1
v_lshrrev_b32 v{VE2}, 2, v2
v_lshl_add_u32 v{VTR}, v3, 3, v{VE2}
v_lshlrev_b32 v{VTR}, 7, v{VTR}
v_and_b32 v{VT2}, 3, v2
v_lshl_add_u32 v{VTR}, v{VT2}, 3, v{VTR}
s_lshl_b32 s40, s19, 6
v_add_u32 v{VTR}, s40, v{VTR}
v_and_b32 v4, 8, v2
v_lshlrev_b32 v4, 2, v4
v_and_b32 v5, 1, v3
v_lshl_or_b32 v4, v5, 6, v4
v_xor_b32 v{VTR}, v4, v{VTR}
v_xor_b32 v{VTR1}, 32, v{VTR}
v_add_u32 v{VTR}, {L_AP}, v{VTR}
v_add_u32 v{VTR1}, {L_AP}, v{VTR1}
v_add_u32 v{VLOC}, s18, v2
v_mul_u32_u24 v{VXA}, {XSS}, v{VLOC}
v_lshl_add_u32 v{VXA}, v3, 4, v{VXA}
v_add_u32 v{VXA}, {L_XS}, v{VXA}
""")
    srd(a, 28, 16, 17, TAB_BYTES)
    a(f"""
v_lshlrev_b32 v4, 8, v{VLOC}
v_add_u32 v4, s{S_B}, v4
v_lshlrev_b32 v60, 8, v4
v_lshl_add_u32 v60, v3, 4, v60
s_lshl_b32 s40, s19, 7
v_add_u32 v60, s40, v60
v_cmp_eq_u32 vcc, {N}, v4
v_mov_b32 v4, 0x7f000000
v_mov_b32 v5, 0x7f007f00
s_mov_b32 s56, 0x07060100
s_mov_b32 s57, 0x07060302
v_mov_b32 v76, 1
@S2
s_waitcnt vmcnt({4 + NE})
@S3
""")
    for i in range(4):
        a(f"v_lshlrev_b32_sdwa v{64+i}, 2, v{8+i} {SDWA_B0}")
    a("s_mov_b64 exec, s[92:93]")
    for i in range(4):
        a(f"ds_add_rtn_u32 v{80+i}, v{64+i}, v76 offset:{L_HIST}")
    a("s_mov_b64 exec, -1")
    a(f"s_waitcnt vmcnt({3 + NE})")
    for i in range(4, 8):
        a(f"v_lshlrev_b32_sdwa v{64+i}, 2, v{8+i} {SDWA_B0}")
    a("s_mov_b64 exec, s[94:95]")
    for i in range(4, 8):
        a(f"ds_add_rtn_u32 v{80+i}, v{64+i}, v76 offset:{L_HIST}")
    a(f"""
s_mov_b64 exec, -1
s_waitcnt vmcnt({NE})
ds_write_b128 v63, v[40:43]
ds_write_b128 v63, v[44:47] offset:8192
ds_write_b128 v62, v[56:59]
""")
    NL = int(OPT.get("nl", 4))
    rest = later[NE:] + ["buffer_load_dwordx4 v[32:35], v7, s[52:55], 0 offen", "buffer_load_dwordx4 v[36:39], v7, s[52:55], 0 offen offset:16"]
    for l in rest[:NL]:
        a(l)
    for i in range(8):
        a(f"v_lshrrev_b32 v{8+i}, 6, v{8+i}")
    a("v_lshlrev_b32 v77, 4, v1")
    seqs = []
    for t in range(2):
        b, h, o, tm = TOT + 4 * t, TOT + 8 + 4 * t, 40 + 4 * t, 78 + t
        q = [f"v_mul_f32 v{b+i}, {NLOG2E:#x}, v{b+i}" for i in range(4)]
        q += [f"v_med3_f32 v{b+i}, v{b+i}, v4, -v4" for i in range(4)]
        q += [f"v_cvt_pk_bf16_f32 v{tm}, v{h}, v{h}"]
        q += [f"v_cvt_pk_bf16_f32 v{o}, v{b}, v{b+1}", f"v_cvt_pk_bf16_f32 v{o+1}, v{b+2}, v{b+3}"]
        q += [f"v_perm_b32 v{o+2}, v{h+2}, v{tm}, s56", f"v_perm_b32 v{o+3}, v{h+3}, v{h+1}, s57"]
        q += [f"v_cndmask_b32 v{o}, v{o}, v5, vcc", f"v_cndmask_b32 v{o+1}, v{o+1}, v5, vcc"]
        seqs.append(q)
    pack = [z for xy in zip(*seqs) for z in xy]
    stores = [f"buffer_store_dwordx4 {q4(40+4*t)}, v60, s[28:31], 0 offen offset:{64*t} sc1" for t in range(2)]
    wl = [f"global_load_dwordx4 v[48:51], v{VWG}, s[72:73]", f"global_load_dwordx4 v[52:55], v{VWG}, s[78:79]", "global_load_dword v56, v91, s[76:77]"]
    a(f"""
s_waitcnt lgkmcnt(0)
@S4
s_barrier
@S5
ds_read_b128 v[72:75], v77 offset:{L_HIST}
ds_read_b128 {q4(XF)}, v{VXA}
ds_read_b128 {q4(XF+4)}, v{VXA} offset:64
""")
    for l in rest[NL:]:
        a(l)
    tr = Asm()
    tr_reads(tr, (VTR, VTR1), 0, 96)
    tr = tr.L
    for l in tr[:4]:
        a(l)
    a(f"""
s_waitcnt lgkmcnt(6)
v_add_u32 v89, v72, v73
v_add_u32 v90, v89, v74
v_add_u32 v62, v90, v75
v_mov_b32 v63, v62
""")
    steps = [f"row_shr:{d} row_mask:0xf" for d in (1, 2, 4, 8)] + ["row_bcast:15 row_mask:0xa", "row_bcast:31 row_mask:0xc"]
    for i, st in enumerate(steps):
        a(tr[4 + 2 * i]); a(tr[5 + 2 * i])
        a(f"v_add_u32_dpp v62, v62, v62 {st} bank_mask:0xf")
    a(f"""
v_sub_u32 v88, v62, v63
v_add_u32 v91x, v88, v90
v_add_u32 v90, v88, v89
v_add_u32 v89, v88, v72
ds_write_b128 v77, v[88:91] offset:{L_START}
""".replace("v91x", "v91"))
    for i in range(8):
        a(f"ds_read_b32 v{64+i}, v{64+i} offset:{L_START}")
    for i in range(4):
        a(f"v_lshl_or_b32 v{92+i}, v{72+i}, 16, v{88+i}")
    a("s_waitcnt lgkmcnt(9)")
    tile_mfmas(a, 96, XF, TOT)
    a("v_and_b32 v91, 127, v0")
    a("v_lshlrev_b32 v91, 2, v91")
    srd(a, 24, 16, 17, TAB_ROWS, stride=256)
    srd(a, 36, 82, 83, N * 128)
    a(f"s_mov_b32 s40, {L_STAGE}")
    PKP = OPT.get("pkp", "0")
    if PKP == "0":
        for l in pack + stores + wl:
            a(l)
    a(f"""
s_add_u32 s32, s16, {T_OFF:#x}
s_addc_u32 s33, s17, 0
s_and_b32 s33, s33, 0xffff
s_mov_b32 s34, {TR_BYTES}
s_mov_b32 s35, 0x20000
s_mul_i32 s41, s2, {RECS}
s_add_u32 s41, s41, {T_OFF + REC_REL:#x}
s_add_u32 s88, s16, s41
s_addc_u32 s89, s17, 0
s_and_b32 s89, s89, 0xffff
s_mov_b32 s90, {RECB}
s_mov_b32 s91, 0x20000
s_waitcnt vmcnt({7 if PKP == "0" else 2})
""")
    for i in range(8):
        a(f"v_lshl_or_b32 v{16+i}, v{16+i}, 8, v{8+i}")
    for i in range(8):
        a(f"s_waitcnt lgkmcnt({7-i})")
        a(f"v_add_u32 v{64+i}, v{64+i}, v{80+i}")
        a(f"v_mad_u32_u24 v{64+i}, v{64+i}, 12, s40")
    a("s_mov_b64 exec, s[92:93]")
    for i in range(4):
        a(f"ds_write_b32 v{64+i}, v{16+i} offset:8")
        a(f"ds_write2_b32 v{64+i}, v{24+2*i}, v{25+2*i} offset0:0 offset1:1")
    a("s_mov_b64 exec, s[94:95]")
    for i in range(4, 8):
        a(f"ds_write_b32 v{64+i}, v{16+i} offset:8")
    a(f"s_waitcnt vmcnt({5 if PKP == '0' else 0})")
    for i in range(4, 8):
        a(f"ds_write2_b32 v{64+i}, v{24+2*i}, v{25+2*i} offset0:0 offset1:1")
    a("s_mov_b64 exec, -1")
    if PKP == "1":
        for l in pack + stores + wl:
            a(l)
    a(f"""
@S6
s_movk_i32 s14, {RECB//16 - 2048}
v_cmp_gt_u32_e64 s[14:15], s14, v0
v_add_u32 v63, {L_STAGE}, v61
v_add_u32 v91, {L_WC}, v91
s_movk_i32 s44, 0x2000
s_movk_i32 s45, 0x4000
s_movk_i32 s46, 0x6000
s_mov_b32 s47, 0x8000
v_cmp_gt_u32 vcc, 128, v0
s_waitcnt lgkmcnt(0)
@S7
s_barrier
@S8
""")
    for i in range(4):
        a(f"ds_read_b128 {q4(8+4*i)}, v63 offset:{8192*i}")
    a(f"""
s_mov_b64 exec, s[14:15]
ds_read_b128 v[24:27], v63 offset:32768
s_mov_b64 exec, -1
v_mov_b32 v28, 0
v_mov_b32 v29, 0
v_mov_b32 v30, 0
v_mov_b32 v31, 0
""")
    for i in range(4):
        a(f"s_waitcnt lgkmcnt({4-i})")
        so = "0" if i == 0 else f"s{43+i}"
        a(f"buffer_store_dwordx4 {q4(8+4*i)}, v61, s[88:91], {so} offen sc1")
    koff = struct.unpack("<I", struct.pack("<f", -float(KEXP) if OPT["cadd"] == "1" else 0.0))[0]
    a(f"""
s_mov_b64 exec, s[14:15]
s_waitcnt lgkmcnt(0)
buffer_store_dwordx4 v[24:27], v61, s[88:91], s47 offen sc1
s_mov_b64 exec, vcc
ds_write_b128 v61, v[28:31]
s_mov_b64 exec, -1
global_load_dword v64, v{VZ}, s[84:85] sc1
@S9
s_waitcnt vmcnt(6)
ds_write_b128 v63, v[48:51]
ds_write_b128 v63, v[52:55] offset:8192
ds_write_b32 v91, v56
v_add_u32 v{VTR}, {L_STAGE - L_AP}, v{VTR}
v_add_u32 v{VTR1}, {L_STAGE - L_AP}, v{VTR1}
v_lshl_add_u32 v{VWC}, v2, 2, v3
v_lshlrev_b32 v{VWC}, 1, v{VWC}
v_add_u32 v{VWC}, {L_WC}, v{VWC}
s_movk_i32 s40, {US}
s_lshl_b32 s41, s19, 7
s_add_u32 s41, s41, {L_AP}
v_mad_u32_u24 v{VAU}, v{VLOC}, s40, 0
v_lshl_add_u32 v{VAU}, v3, 4, v{VAU}
v_add_u32 v{VAU}, s41, v{VAU}
v_cmp_gt_u32_e64 s[14:15], 49, v{VLOC}
s_mov_b32 s{S_MODE}, 0
s_mov_b32 s{S_CS}, {CS}
s_mov_b32 s{S_AM}, 0x22221111
s_mov_b32 s{S_AM+1}, 0x88884444
s_mov_b32 s{S_K}, {KBITS:#x}
s_mov_b32 s{S_K+1}, {KBITS:#x}
s_mov_b32 s6, {NLOG2E:#x}
s_mov_b32 s7, {NLOG2E:#x}
v_mov_b32 v{NX}, {koff:#x}
v_mov_b32 v{NX+1}, {koff:#x}
v_and_b32 v5, 1, v{VT2}
v_lshlrev_b32 v5, 4, v5
v_mov_b32 v6, 0x3f80
v_lshlrev_b32 v5, v5, v6
v_cmp_eq_u32 vcc, v3, v{VE2}
v_cmp_gt_u32_e64 s[52:53], 2, v{VT2}
v_cmp_le_u32_e64 s[54:55], 2, v{VT2}
v_mov_b32 v6, {8*GS*UNR}
v_cndmask_b32 v5, 0, v5, vcc
v_cndmask_b32_e64 v{VINC}, 0, v6, s[{S_AM}:{S_AM+1}]
v_mov_b32 v{VFOUR}, 4
""")
    for i in range(GS):
        a(f"v_cndmask_b32_e64 v{AOP[i]+2}, 0, v5, s[52:53]")
        a(f"v_cndmask_b32_e64 v{AOP[i]+3}, 0, v5, s[54:55]")
        a(f"v_lshlrev_b32 v{IDX[i]+1}, 4, v2")
    a(f"""
s_lshl_b32 s41, s{S_B}, 3
v_lshl_add_u32 v4, v3, 11, s41
s_lshl_b32 s40, s3, 16
""")
    for k in range(1, 8):
        a(f"s_add_u32 s{40+k}, s40, {8192*k}")
    V0, V1, V2, V3, V4 = X0 + 16, X0 + 17, X0 + 18, X0 + 19, X0 + 20
    a(f"""
s_lshl_b32 s48, s3, 5
v_add_u32 v5, s48, v3
s_mov_b32 s49, {RECS}
v_mul_lo_u32 v5, v5, s49
v_mad_u32_u24 v5, v2, 12, v5
v_add_u32 v5, {REC_REL}, v5
v_add_u32 v6, 16, v2
s_memrealtime s[50:51]
@S18
s_waitcnt vmcnt(0)
K_TAGW:
v_readfirstlane_b32 s{S_TAG}, v64
s_cmp_lg_u32 s{S_TAG}, 0
s_cbranch_scc0 K_TAG_RETRY
K_TAGOK:
s_mul_i32 s48, s{S_TAG}, 0x9e3779b1
s_and_b32 s48, s48, 0xf000f000
s_waitcnt lgkmcnt(0)
@S19
s_barrier
s_cmp_lg_u32 s3, 0
s_cbranch_scc1 K_NOPUB
v_or_b32 v8, s48, v92
v_mov_b32 v9, s{S_TAG}
v_or_b32 v10, s48, v93
v_mov_b32 v11, s{S_TAG}
v_or_b32 v12, s48, v94
v_mov_b32 v13, s{S_TAG}
v_or_b32 v14, s48, v95
v_mov_b32 v15, s{S_TAG}
v_lshlrev_b32 v16, 5, v1
s_lshl_b32 s49, s2, 11
buffer_store_dwordx4 v[8:11], v16, s[32:35], s49 offen sc1
buffer_store_dwordx4 v[12:15], v16, s[32:35], s49 offen offset:16 sc1
K_NOPUB:
""")
    tr_reads(a, (VTR, VTR1), 0, 96)
    a(f"""
ds_read_u16 v{CA}, v{VWC}
ds_read_u16 v{CA+1}, v{VWC} offset:128
ds_read_u16 v{CA+2}, v{VWC} offset:256
ds_read_u16 v{CA+3}, v{VWC} offset:384
s_mov_b32 s49, 0xf000f000
s_waitcnt lgkmcnt(4)
""")
    tile_mfmas(a, 96, XF, TOT)
    a("s_waitcnt lgkmcnt(0)")
    for k in range(4):
        a(f"v_lshlrev_b32 v{CA+k}, 16, v{CA+k}")
    for k in range(4):
        a(f"v_mul_f32 v{CA+k}, {NLOG2E:#x}, v{CA+k}")
    a(f"v_cvt_pk_bf16_f32 v{CN}, v{CA}, v{CA+1}")
    a(f"v_cvt_pk_bf16_f32 v{CN+1}, v{CA+2}, v{CA+3}")
    a(f"v_mov_b32 v{V0}, s{S_TAG}")
    a(f"v_mov_b32 v{V1}, s48")
    a("s_mov_b64 exec, s[14:15]")
    a(f"ds_write_b128 v{VAU}, {q4(TOT+8)} offset:{L_U - L_AP}")
    a(f"ds_write_b128 v{VAU}, {q4(TOT+12)} offset:{L_U - L_AP + 64}")
    for i in range(0, 8, 2):
        a(f"v_pk_fma_f32 {pr(TOT+i)}, {pr(TOT+i)}, s[6:7], {pr(NX)}")
    a(f"""
ds_write_b128 v{VAU}, {q4(TOT)}
ds_write_b128 v{VAU}, {q4(TOT+4)} offset:64
s_mov_b64 exec, -1
""")
    for p in range(NB):
        for i in range(GS):
            a(f"v_pk_mov_b32 {pr(stepbuf(p, i))}, {pr(CN)}, {pr(CN)} op_sel:[0,1]")
    for i in range(0, 16, 2):
        a(f"v_pk_mov_b32 {pr(TOT+i)}, 0, 0")
    if int(OPT.get("presleep", 0)):
        a(f"s_sleep {OPT['presleep']}")
    a("""
@S23
K_POLL:
""")
    for k in range(8):
        a(f"buffer_load_dwordx2 {pr(PT+2*k)}, v4, s[32:35], s{40+k} offen sc1")
    a(f"v_mov_b32 v{V2}, 0")
    for k in range(8):
        a(f"s_waitcnt vmcnt({7-k})")
        a(f"v_xor_b32 v{V3}, v{PT+2*k}, v{V1}")
        a(f"v_xor_b32 v{V4}, v{PT+2*k+1}, v{V0}")
        a(f"v_and_or_b32 v{V2}, v{V3}, s49, v{V2}")
        a(f"v_and_b32 v{VTT+k}, 0x0fff0fff, v{PT+2*k}")
        a(f"v_or_b32 v{V2}, v{V4}, v{V2}")
    a(f"""
v_cmp_ne_u32 vcc, 0, v{V2}
s_cbranch_vccnz K_POLL_RETRY
K_POLLOK:
@S24
s_mov_b64 exec, 1
ds_add_u32 v{VZ}, v{VFOUR} offset:{L_ACKS}
s_mov_b64 exec, -1
""")
    for k in range(8):
        a(f"v_mad_u32_u16 v{VRA+k}, v{VTT+k}, 12, v5")
        a(f"v_cmp_gt_u32_sdwa s[{80+2*k}:{81+2*k}], v{VTT+k}, v6 src0_sel:WORD_1 src1_sel:DWORD")
        if k < 7:
            a(f"v_add_u32 v5, {4*RECS}, v5")
        r = recset(8 + k)
        a(f"s_mov_b64 exec, s[{80+2*k}:{81+2*k}]")
        a(f"s_cbranch_execz K_M1L{k}")
        a(f"buffer_load_dwordx3 v[{r}:{r+2}], v{VRA+k}, s[32:35], 0 offen offset:192 sc1")
        a(f"K_M1L{k}:")
        a("s_mov_b64 exec, -1")
        a(f"v_cmp_gt_u32_sdwa s[{64+2*k}:{65+2*k}], v{VTT+k}, v2 src0_sel:WORD_1 src1_sel:DWORD")
    for k in range(8):
        r = recset(k)
        a(f"s_mov_b64 exec, s[{64+2*k}:{65+2*k}]")
        a(f"buffer_load_dwordx3 v[{r}:{r+2}], v{VRA+k}, s[32:35], 0 offen sc1")
    a(f"""
s_mov_b64 exec, -1
@S25
v_max3_u32 v4, v{VTT}, v{VTT+1}, v{VTT+2}
v_max3_u32 v5, v{VTT+3}, v{VTT+4}, v{VTT+5}
v_max3_u32 v4, v4, v{VTT+6}, v{VTT+7}
v_max_u32 v4, v4, v5
v_lshrrev_b32 v{VMAXL}, 16, v4
s_waitcnt vmcnt(8)
""")

    def A_(j):
        a(f"s_waitcnt vmcnt({7 - j})")
        a(f"s_mov_b64 exec, s[{64+2*j}:{65+2*j}]")
        place_atomic(a, recset(j), VCA + j)

    def W_(j, n):
        a(f"s_mov_b64 exec, s[{64+2*j}:{65+2*j}]")
        if n is not None:
            a(f"s_waitcnt lgkmcnt({n})")
        place_write(a, recset(j), VCA + j)
    for j in range(8):
        a(f"s_mov_b64 exec, s[{80+2*j}:{81+2*j}]")
        a(f"s_cbranch_execz K_M1A{j}")
        place_atomic(a, recset(8 + j), VCA + 8 + j)
        a(f"K_M1A{j}:")
    A_(0); A_(1)
    a("s_waitcnt lgkmcnt(2)")
    for j in range(8):
        a(f"s_mov_b64 exec, s[{80+2*j}:{81+2*j}]")
        a(f"s_cbranch_execz K_M1W{j}")
        place_write(a, recset(8 + j), VCA + 8 + j)
        a(f"K_M1W{j}:")
    A_(2)
    W_(0, 1)
    W_(1, None)
    A_(3)
    W_(2, 5)
    A_(4)
    W_(3, 3)
    A_(5)
    W_(4, 3)
    A_(6)
    a("s_mov_b64 exec, -1")
    a(f"ds_read_b32 v7, v{VZ} offset:{L_ACKS}")
    W_(5, 4)
    A_(7)
    a("@S26")
    W_(6, 4)
    npf, pfs = int(OPT["npf"]), int(OPT["pfs"])
    a(f"""
s_mov_b64 exec, -1
s_waitcnt lgkmcnt(2)
v_readfirstlane_b32 s40, v7
s_cmp_lg_u32 s40, 32
s_cbranch_scc1 K_NOPF
""")
    if npf:
        a(f"""
s_lshr_b32 s40, s2, 3
s_mul_i32 s40, s40, {782*128}
v_mul_u32_u24 v7, {pfs}, v0
v_add_u32 v7, s40, v7
""")
        for p in range(-(-npf // 512)):
            if p:
                a(f"v_add_u32 v7, {512*pfs}, v7")
            if npf - 512 * p < 512:
                a(f"v_cmp_gt_u32 vcc, {npf - 512*p}, v0")
                a("s_mov_b64 exec, vcc")
            a(f"buffer_load_dword v{VPF}, v7, s[28:31], 0 offen sc1")
    a("K_NOPF:")
    W_(7, None)
    R = X0
    a(f"""
s_mov_b64 exec, -1
v_cmp_lt_u32 vcc, 32, v{VMAXL}
s_cbranch_vccnz K_LONG_ENTRY
K_PLACED:
s_waitcnt lgkmcnt(0)
@S27
s_barrier
@S28
K_RANK:
v_lshlrev_b32 v4, 2, v1
ds_read_b32 v{R}, v4 offset:{L_CNT}
""")
    for i in range(1, 6):
        a(f"s_add_u32 s{40+i}, s3, {8*i}")
    a(f"""
v_cmp_gt_u32_e64 s[52:53], 48, v1
v_lshl_add_u32 v{R+2}, v1, 3, s3
v_mul_u32_u24 v{R+6}, {CS*4}, v{R+2}
v_mul_u32_u24 v{R+7}, {US}, v{R+2}
v_add_u32 v{R+7}, {L_AP}, v{R+7}
v_lshlrev_b32 v{R+2}, 2, v{R+2}
s_waitcnt lgkmcnt(0)
v_cmp_lt_u32 vcc, {CAP*4}, v{R}
v_lshl_add_u32 v{R+1}, v{R}, 4, v1
v_add_u32 v{R+1}, 1, v{R+1}
s_cbranch_vccnz K_SLOW_ENTRY
v_cndmask_b32_e64 v{R+1}, 0, v{R+1}, s[52:53]
v_readlane_b32 s50, v{R}, 48
""")
    for i in range(6):
        a(f"v_readlane_b32 s{64+i}, v{R+1}, s{3 if i == 0 else 40+i}")
    a(f"s_add_u32 s51, s50, {4*(4*GS-1)}")
    for i in range(6):
        a(f"v_cmp_lt_u32_e64 s[{72+2*i}:{73+2*i}], s{64+i}, v{R+1}")
    if GS == 2:
        a("s_lshr_b32 s51, s51, 5")
    else:
        a("s_lshr_b32 s51, s51, 4")
        a("s_mul_i32 s51, s51, 0x5556")
        a("s_lshr_b32 s51, s51, 16")
    for i in range(6):
        a(f"v_writelane_b32 v{R+3}, s{64+i}, {i}")
        a(f"s_bcnt1_i32_b64 s{72+2*i}, s[{72+2*i}:{73+2*i}]")
    a(f"""
s_max_u32 s51, s51, {MINPS}
s_cmp_eq_u32 s50, 0
s_cselect_b32 s50, 0, s51
s_mul_i32 s50, s50, {GS}
""")
    for i in range(6):
        a(f"v_writelane_b32 v{R+4}, s{72+2*i}, {i}")
    a(f"""
v_lshrrev_b32 v{R+3}, 6, v{R+3}
v_add_u32 v{R+4}, 4, v{R+4}
v_lshlrev_b32 v{R+5}, 3, v{R+4}
v_lshlrev_b32 v{R+8}, 2, v{R+4}
s_mov_b64 exec, 63
ds_write_b64 v{R+5}, {pr(R+6)} offset:{L_TS}
ds_write_b32 v{R+8}, v{R+3} offset:{L_TC}
ds_write_b32 v{R+2}, v{R+4} offset:{L_RK}
s_mov_b64 exec, 15
v_mul_u32_u24 v{R+10}, s50, v4
v_add_u32 v{R+10}, {48*CS*4}, v{R+10}
v_mov_b32 v{R+11}, {L_AP + 48*US}
v_mov_b32 v{R+9}, s50
v_lshlrev_b32 v5, 3, v1
ds_write_b64 v5, {pr(R+10)} offset:{L_TS}
ds_write_b32 v4, v{R+9} offset:{L_TC}
ds_write_b32 v4, v1 offset:{L_RK + 192}
s_mov_b64 exec, -1
v_lshlrev_b32 v4, 4, v2
v_cmp_gt_u32_e64 s[52:53], 13, v2
s_add_u32 s15, s3, 1
s_waitcnt lgkmcnt(0)
s_barrier
@S29
ds_read_b32 v{R}, v4 offset:{L_TC}
v_mov_b32 v{R+4}, 1
v_mov_b32 v{R+5}, 0
s_waitcnt lgkmcnt(0)
v_cmp_ne_u32 vcc, 0, v{R}
v_add_u32 v{R}, {GS-1}, v{R}
""")
    if GS == 2:
        a(f"v_lshrrev_b32 v{R}, 1, v{R}")
    else:
        a(f"v_mul_u32_u24 v{R}, 0x5556, v{R}")
        a(f"v_lshrrev_b32 v{R}, 16, v{R}")
    a(f"""
s_and_b64 s[44:45], vcc, s[52:53]
v_max_u32 v{R}, {MINPS}, v{R}
v_cndmask_b32_e64 v{R}, 0, v{R}, s[44:45]
v_mov_b32 v{R+1}, v{R}
""")
    scan(a, R + 1, row_only=True)
    a(f"""
s_nop 0
v_readlane_b32 s14, v{R+1}, 15
v_sub_u32 v{R+2}, v{R+1}, v{R}
s_cmp_gt_u32 s14, {MAXIT*8}
s_cbranch_scc1 K_SLOW_ENTRY
s_mul_i32 s40, s14, s3
s_mul_i32 s41, s14, s15
s_lshr_b32 s40, s40, 3
s_lshr_b32 s41, s41, 3
s_sub_u32 s{S_IT}, s41, s40
s_cmp_eq_u32 s{S_IT}, 0
s_cbranch_scc1 K_LOOP_DONE
v_cmp_ge_u32_e64 s[42:43], s40, v{R+1}
v_subrev_u32 v{R+3}, s40, v{R+2}
s_and_b32 s42, s42, 0x1fff
s_bcnt1_i32_b32 s42, s42
s_lshl_b32 s46, s42, 5
v_lshl_add_u32 v{VTK}, v3, 3, s46
v_and_b32 v{VTE}, 12, v2
v_lshl_add_u32 v{VTE}, v{VTE}, 1, s46
v_readlane_b32 s43, v{R+2}, s42
ds_read_b64 {pr(R+6)}, v{VTK} offset:{L_TS}
ds_read_b32 v{NXE}, v{VTE} offset:{L_TS}
ds_read_b64 {pr(NX)}, v{VTK} offset:{L_TS + 32}
v_add_u32 v{R+8}, -1, v{R+3}
v_cmp_gt_u32 vcc, 63, v{R+8}
v_lshlrev_b64 {pr(R+4)}, v{R+3}, {pr(R+4)}
s_and_b64 vcc, vcc, s[44:45]
s_sub_u32 s43, s40, s43
v_cndmask_b32 v{R+4}, 0, v{R+4}, vcc
v_cndmask_b32 v{R+5}, 0, v{R+5}, vcc
s_mul_i32 s45, s43, {4*GS}
s_lshl_b32 s47, s45, 1
""")
    for d in (1, 2, 4, 8):
        a(f"v_or_b32_dpp v{R+4}, v{R+4}, v{R+4} row_shr:{d} row_mask:0xf bank_mask:0xf")
        a(f"v_or_b32_dpp v{R+5}, v{R+5}, v{R+5} row_shr:{d} row_mask:0xf bank_mask:0xf")
        a("s_nop 0")
    TI = {1: [Y[0] + 2 * i for i in range(GS)]}
    nxt = HL
    for p in range(2, NB):
        TI[p] = [nxt + 2 * i for i in range(GS)]
        nxt += 2 * GS
    assert nxt <= DEN, (nxt, DEN)
    a(f"""
s_add_u32 s45, s45, {L_KEYS}
s_add_u32 s47, s47, {L_EA}
v_readlane_b32 s{S_MASK}, v{R+4}, 15
v_readlane_b32 s{S_MASK+1}, v{R+5}, 15
s_bfm_b64 s[48:49], s{S_IT}, 0
s_waitcnt lgkmcnt(1)
v_add_u32 v{VK}, s45, v{R+6}
v_add_u32 v{R+7}, v{R+7}, v{IDX[0]+1}
s_and_b64 s[{S_MASK}:{S_MASK+1}], s[{S_MASK}:{S_MASK+1}], s[48:49]
""")
    for i in range(GS):
        a(f"ds_read_b32 v{IDX[i]}, v{VK} offset:{4*i}")
    a(f"""
ds_read_b128 {q4(CA)}, v{R+7}
v_lshl_add_u32 v{VE}, v{NXE}, 1, s47
v_mov_b32 v4, {L_ZERO}
""")
    for p in range(1, NB):
        for i in range(GS):
            a(f"v_mov_b32 v{TI[p][i]+1}, v{IDX[0]+1}")
    a(f"v_cndmask_b32_e64 v{VE}, v4, v{VE}, s[{S_AM}:{S_AM+1}]")
    a(f"s_waitcnt lgkmcnt({GS+1})")
    for p in range(1, NB):
        a(f"s_bitcmp1_b32 s{S_MASK}, {p}")
        a(f"s_cbranch_scc0 K_PK{p}")
        ev_k(a, 4 * GS * p)
        a(f"K_PK{p}:")
        for i in range(GS):
            a(f"ds_read_b32 v{TI[p][i]}, v{VK} offset:{4*(GS*p+i)}")
    for i in range(GS):
        a(f"ds_read_b64 {pr(AOP[i])}, v{VE} offset:{8*i}")
    a(f"""
s_lshr_b64 s[{S_CM}:{S_CM+1}], s[{S_MASK}:{S_MASK+1}], 3
s_lshr_b64 s[48:49], s[{S_MASK}:{S_MASK+1}], {NB+1}
s_or_b64 s[{S_CM}:{S_CM+1}], s[{S_CM}:{S_CM+1}], s[48:49]
s_mov_b32 s{S_RAW}, s{S_MASK}
s_bitset1_b64 s[{S_MASK}:{S_MASK+1}], s{S_IT}
s_lshr_b64 s[48:49], s[{S_MASK}:{S_MASK+1}], 1
s_or_b64 s[{S_CM}:{S_CM+1}], s[{S_CM}:{S_CM+1}], s[48:49]
s_waitcnt lgkmcnt({GS})
""")
    NG0 = int(OPT["ng0"])
    NG1 = max(NG0, min(NB, 4 if GS == 2 else 3))
    for l in gathers(0, IDX):
        a(l)
    for p in range(1, NG0):
        for l in gathers(p, TI[p]):
            a(l)
    if OPT["prio"] == "1":
        dflt = (24, 12, 4) if GS == 2 else (16, 8, 3)
        t1, t2, t3 = [int(OPT.get(f"thr{i+1}", dflt[i])) for i in range(3)]
        a(f"""
s_setprio 3
s_mov_b32 s{S_PR}, 3
s_mov_b64 s[54:55], 0
s_bitset1_b64 s[54:55], {63 - t1}
s_bitset1_b64 s[54:55], {63 - t2}
s_bitset1_b64 s[54:55], {63 - t3}
s_sub_u32 s46, 63, s{S_IT}
s_lshr_b64 s[54:55], s[54:55], s46
s_or_b64 s[{S_CM}:{S_CM+1}], s[{S_CM}:{S_CM+1}], s[54:55]
""")
    a(f"""
s_ff1_i32_b64 s{S_CNT}, s[{S_CM}:{S_CM+1}]
v_lshlrev_b32 v5, 9, v3
v_lshl_add_u32 v5, v2, 4, v5
s_lshl_b32 s45, s42, 11
s_add_u32 s45, s45, {L_ACC}
s_add_u32 s46, s45, 2048
v_add_u32 v{VFN}, s46, v5
s_cmp_eq_u32 s43, 0
s_cbranch_scc1 K_P2
s_lshl_b32 s45, s3, 11
s_add_u32 s45, s45, {L_EXT}
s_lshl_b32 s46, 1, s3
s_lshl_b32 s47, s42, 2
v_mov_b32 v6, s46
v_mov_b32 v7, s47
s_mov_b64 exec, 1
ds_or_b32 v7, v6 offset:{L_MASK}
s_mov_b64 exec, -1
K_P2:
v_add_u32 v{VF}, s45, v5
""")
    for i in range(0, 8, 2):
        a(f"v_pk_mov_b32 {pr(DEN+i)}, 0, 0")
    a(f"""
v_add_u32 v{VK}, {4*GS*NB}, v{VK}
s_bitcmp1_b32 s{S_RAW}, {NB}
s_cbranch_scc0 K_PK{NB}
""")
    ev_k(a, 0)
    a(f"""
K_PK{NB}:
v_mov_b32 v5, {16*GS}
@S10
s_waitcnt vmcnt({GS*(NG0-1)}) lgkmcnt(0)
@S15
""")
    for l in mfmas(0):
        a(l)
    for p in range(NG0, NG1):
        for l in gathers(p, TI[p]):
            a(l)
    a(f"""
s_bitcmp1_b32 s{S_RAW}, 1
s_cbranch_scc0 K_PE1
s_nop 2
""")
    ev_e(a, 8 * GS)
    a("K_PE1:")
    for i in range(GS):
        a(f"ds_read_b64 {pr(AOP[i])}, v{VE} offset:{8*(GS+i)}")
    a(f"""
v_cndmask_b32_e64 v5, 0, v5, s[{S_AM}:{S_AM+1}]
s_nop 3
""")
    for i in range(4 * GS):
        a(f"v_exp_f32 v{Y[0]+i}, v{Y[0]+i}")
    a(f"v_add_u32 v{VE}, v5, v{VE}")
    a(f"s_waitcnt vmcnt({GS*(NG1-2)}) lgkmcnt(0)")
    for l in mfmas(1):
        a(l)
    for p in range(NG1, NB):
        for l in gathers(p, TI[p]):
            a(l)
    a(f"""
s_bitcmp1_b32 s{S_RAW}, 2
s_cbranch_scc0 K_PE2
s_nop 2
""")
    ev_e(a, 0)
    a(f"""
K_PE2:
@C20
s_nop 4
{f".p2align {OPT['align']}" if OPT.get('align') else ''}
K_LOOP:
""")
    order = ORDERS[GS][OPT["order"]].split()
    for k in range(UNR):
        d = ops(k)
        for x in order:
            a(d[x])
        if k == UNR - 1:
            a("s_cbranch_scc0 K_LOOP")
        else:
            a(f"s_cbranch_scc1 K_EV{k}")
            a(f"K_RET{k}:")
    for k in [UNR - 1] + list(range(UNR - 1)):
        kn = (k + 1) % UNR
        ret = f"K_RET{k}" if k < UNR - 1 else "K_LOOP"
        a(f"""
K_EV{k}:
s_ff1_i32_b64 s14, s[{S_CM}:{S_CM+1}]
s_bitset0_b64 s[{S_CM}:{S_CM+1}], s14
s_ff1_i32_b64 s{S_CNT}, s[{S_CM}:{S_CM+1}]
s_lshr_b64 s[40:41], s[{S_MASK}:{S_MASK+1}], s14
s_sub_u32 s{S_CNT}, s{S_CNT}, s14
s_sub_u32 s{S_CNT}, s{S_CNT}, 1
s_bitcmp1_b32 s40, 1
s_cbranch_scc0 K_EV{k}A
ds_write_b128 v{VF}, {q4(DEN)}
ds_write_b128 v{VF}, {q4(NUM)} offset:256
s_lshr_b64 s[42:43], s[40:41], 2
s_cbranch_scc0 K_LOOP_DONE
v_mov_b32 v{VF}, v{VFN}
v_add_u32 v{VFN}, 2048, v{VFN}
""")
        for i in range(0, 8, 2):
            a(f"v_pk_mov_b32 {pr(DEN+i)}, 0, 0")
        a(f"""
K_EV{k}A:
s_bitcmp1_b32 s40, 3
s_cbranch_scc0 K_EV{k}B
""")
        ev_e(a, 8 * GS * kn)
        a(f"""
K_EV{k}B:
s_lshr_b64 s[42:43], s[40:41], {NB+2}
s_cbranch_scc0 K_EV{k}C
s_bitcmp1_b32 s40, {NB+1}
s_cbranch_scc0 K_EV{k}C
""")
        ev_k(a, 4 * GS * kn)
        a(f"K_EV{k}C:")
        if OPT["prio"] == "1":
            a(f"""
s_bitcmp1_b64 s[54:55], s14
s_cbranch_scc0 {ret}
s_sub_u32 s{S_PR}, s{S_PR}, 1
s_setprio 0
s_cmp_eq_u32 s{S_PR}, 0
s_cbranch_scc1 {ret}
s_setprio 1
s_cmp_eq_u32 s{S_PR}, 1
s_cbranch_scc1 {ret}
s_setprio 2
""")
        a(f"s_branch {ret}")
    D0, U0 = R + 16, R + 32
    a(f"""
K_LOOP_DONE:
@C21
@S11
s_setprio 0
v_lshrrev_b32 v{R}, 3, v0
v_min_u32 v{R+1}, 48, v{R}
v_lshlrev_b32 v{R+2}, 2, v{R}
v_lshlrev_b32 v{R+3}, 2, v{R+1}
v_and_b32 v{R+4}, 7, v0
v_lshlrev_b32 v{R+5}, 5, v{R+4}
v_cmp_gt_u32_e64 s[40:41], 52, v{R}
s_movk_i32 s14, {US}
v_mad_u32_u24 v{R+8}, v{R+1}, s14, v{R+5}
v_add_u32 v{R+8}, {L_U}, v{R+8}
v_mul_u32_u24 v{R+9}, {XSS}, v{R+1}
v_lshl_add_u32 v{R+9}, v{R+4}, 4, v{R+9}
v_add_u32 v{R+9}, {L_XS}, v{R+9}
ds_read_b32 v{R+6}, v{R+2} offset:{L_RK}
ds_read_b32 v{R+7}, v{R+3} offset:{L_CNT}
ds_read_b128 {q4(U0)}, v{R+8}
ds_read_b128 {q4(U0+4)}, v{R+8} offset:16
ds_read_b128 {q4(CA)}, v{R+9}
s_waitcnt lgkmcnt(0)
v_cmp_ne_u32 vcc, 0, v{R+7}
v_and_b32 v{R+10}, -4, v{R+6}
v_lshl_add_u32 v{R+11}, v{R+6}, 9, v{R+5}
v_add_u32 v{R+11}, {L_ACC}, v{R+11}
v_and_b32 v{R+12}, 3, v{R+6}
v_lshl_add_u32 v{R+12}, v{R+12}, 9, v{R+5}
v_add_u32 v{R+12}, {L_EXT}, v{R+12}
s_barrier
@S12
s_and_b64 exec, vcc, s[40:41]
s_cbranch_execz K_COMB_DONE
ds_read_b32 v{R+10}, v{R+10} offset:{L_MASK}
K_COMB_X:
ds_read_b128 {q4(D0)}, v{R+11}
ds_read_b128 {q4(D0+4)}, v{R+11} offset:16
ds_read_b128 {q4(D0+8)}, v{R+11} offset:256
ds_read_b128 {q4(D0+12)}, v{R+11} offset:272
s_waitcnt lgkmcnt(4)
v_ffbl_b32 v{R+11}, v{R+10}
v_cmp_ne_u32 vcc, 0, v{R+10}
v_add_u32 v{R+13}, -1, v{R+10}
v_and_b32 v{R+10}, v{R+10}, v{R+13}
v_lshl_add_u32 v{R+11}, v{R+11}, 11, v{R+12}
s_waitcnt lgkmcnt(0)
""")
    for i in range(0, 16, 2):
        a(f"v_pk_add_f32 {pr(TOT+i)}, {pr(TOT+i)}, {pr(D0+i)}")
    a(f"""
s_and_b64 exec, exec, vcc
s_cbranch_execnz K_COMB_X
K_COMB_DONE:
s_mov_b64 exec, -1
s_cmp_lg_u32 s{S_MODE}, 0
s_cbranch_scc1 K_SLOW_NEXT
K_FINAL:
s_cmp_lg_u32 s3, 6
s_cbranch_scc1 K_FIN2
""")
    for i in range(16):
        a(f"v_add_f32_dpp v{TOT+i}, v{TOT+i}, v{TOT+i} row_ror:8 row_mask:0xf bank_mask:0xf")
    for i in range(16):
        a(f"ds_swizzle_b32 v{D0+i}, v{TOT+i} offset:0x401F")
    a("s_waitcnt lgkmcnt(0)")
    for i in range(0, 16, 2):
        a(f"v_pk_add_f32 {pr(TOT+i)}, {pr(TOT+i)}, {pr(D0+i)}")
    eps = struct.unpack("<I", struct.pack("<f", 1e-6 * 2.0**KEXP))[0]
    a(f"""
K_FIN2:
s_mov_b32 s14, {eps:#x}
s_mov_b32 s15, {eps:#x}
v_lshlrev_b32 v{R}, 8, v{R}
v_add_u32 v{R}, s{S_B}, v{R}
v_lshlrev_b32 v{R}, 7, v{R}
v_lshl_add_u32 v{R}, v{R+4}, 4, v{R}
""")
    for i in range(0, 8, 2):
        a(f"v_pk_add_f32 {pr(TOT+i)}, {pr(TOT+i)}, s[14:15]")
    for i in range(8):
        a(f"v_rcp_f32 v{TOT+i}, v{TOT+i}")
    for i in range(4):
        a(f"v_lshlrev_b32 v{D0+2*i}, 16, v{CA+i}")
        a(f"v_and_b32 v{D0+2*i+1}, 0xffff0000, v{CA+i}")
    for i in range(0, 8, 2):
        a(f"v_pk_fma_f32 {pr(U0+i)}, {pr(TOT+8+i)}, {pr(TOT+i)}, {pr(U0+i)}")
    for i in range(8):
        a(f"v_max_f32 v{U0+i}, 0, v{U0+i}")
    for i in range(0, 8, 2):
        a(f"v_pk_add_f32 {pr(D0+i)}, {pr(D0+i)}, {pr(U0+i)}")
    for i in range(4):
        a(f"v_cvt_pk_bf16_f32 v{D0+i}, v{D0+2*i}, v{D0+2*i+1}")
    a(f"""
buffer_store_dwordx4 {q4(D0)}, v{R}, s[36:39], 0 offen {OPT['st_out']}
@S13
@Wvmcnt(0)
@S14
@Vs{S_IT},22
@OUT
K_END:
s_endpgm
K_TAG_RETRY:
s_waitcnt lgkmcnt(0)
s_memrealtime s[52:53]
s_sleep 4
global_load_dword v64, v{VZ}, s[84:85] sc1
s_waitcnt vmcnt(0) lgkmcnt(0)
s_sub_u32 s52, s52, s50
s_cmp_lt_u32 s52, 0x400000
s_cbranch_scc1 K_TAGW
s_branch K_TAGOK
K_POLL_RETRY:
s_memrealtime s[52:53]
s_sleep {OPT['sleep']}
s_waitcnt lgkmcnt(0)
s_sub_u32 s52, s52, s50
s_cmp_lt_u32 s52, 0x400000
s_cbranch_scc1 K_POLL
""")
    for k in range(8):
        a(f"v_cndmask_b32 v{VTT+k}, v{VTT+k}, v{VZ}, vcc")
    a(f"""
s_branch K_POLLOK
K_LONG_ENTRY:
s_mov_b32 s14, 32
K_LONG:
v_add_u32 v6, s14, v2
s_mul_i32 s15, s14, 12
""")
    for k in range(8):
        a(f"""
s_mov_b64 exec, -1
v_cmp_gt_u32_sdwa vcc, v{VTT+k}, v6 src0_sel:WORD_1 src1_sel:DWORD
s_and_saveexec_b64 s[40:41], vcc
s_cbranch_execz K_LONG_S{k}
buffer_load_dwordx3 v[{R}:{R+2}], v{VRA+k}, s[32:35], s15 offen sc1
s_waitcnt vmcnt(0)
""")
        place_atomic(a, R, 4)
        a("s_waitcnt lgkmcnt(0)")
        place_write(a, R, 4)
        a(f"K_LONG_S{k}:")
    a(f"""
s_mov_b64 exec, -1
s_add_u32 s14, s14, 16
v_cmp_lt_u32 vcc, s14, v{VMAXL}
s_cbranch_vccnz K_LONG
s_branch K_PLACED
K_SLOW_ENTRY:
ds_max_u32 v{VZ}, v{VMAXL} offset:{L_MAXL}
s_waitcnt lgkmcnt(0)
s_barrier
ds_read_b32 v5, v{VZ} offset:{L_MAXL}
s_mov_b32 s{S_MODE}, 1
s_mov_b32 s{S_I}, 0
s_mov_b32 s{S_MO}, 0
s_waitcnt lgkmcnt(0)
v_readfirstlane_b32 s{S_ML}, v5
s_branch K_SLOW_BATCH
K_SLOW_NEXT:
s_add_u32 s{S_I}, s{S_I}, 1
s_cmp_lt_u32 s{S_I}, 64
s_cbranch_scc1 K_SLOW_BATCH
s_mov_b32 s{S_I}, 0
s_add_u32 s{S_MO}, s{S_MO}, 16
s_cmp_ge_u32 s{S_MO}, s{S_ML}
s_cbranch_scc1 K_FINAL
K_SLOW_BATCH:
s_waitcnt vmcnt(0) lgkmcnt(0)
s_barrier
""")
    slots_init(a, R, True)
    a(f"""
s_waitcnt lgkmcnt(0)
s_barrier
s_cmp_lg_u32 s3, 0
s_cbranch_scc1 K_SLOW_S
s_lshl_b32 s14, s{S_I}, 2
v_add_u32 v7, s14, v3
s_lshl_b32 s15, s{S_B}, 3
v_lshl_add_u32 v4, v7, 11, s15
buffer_load_dword v5, v4, s[32:35], 0 offen sc1
s_mov_b32 s15, {RECS}
v_mul_lo_u32 v7, v7, s15
v_add_u32 v6, s{S_MO}, v2
v_mad_u32_u24 v7, v6, 12, v7
v_add_u32 v7, {REC_REL}, v7
s_waitcnt vmcnt(0)
v_and_b32 v5, 0x0fff0fff, v5
v_mad_u32_u16 v4, v5, 12, v7
v_cmp_gt_u32_sdwa vcc, v5, v6 src0_sel:WORD_1 src1_sel:DWORD
s_and_saveexec_b64 s[40:41], vcc
s_cbranch_execz K_SLOW_S
buffer_load_dwordx3 v[{R}:{R+2}], v4, s[32:35], 0 offen sc1
s_waitcnt vmcnt(0)
""")
    place_atomic(a, R, 4)
    a("s_waitcnt lgkmcnt(0)")
    place_write(a, R, 4)
    a("""
K_SLOW_S:
s_mov_b64 exec, -1
s_waitcnt lgkmcnt(0)
s_barrier
s_branch K_RANK
""")
    return a.text()


HEADER = open("standalone__edge_featured_mpnn_gatedgcn__graph.s.ref").read().split("; Override launch")[0]


def main():
    out = HEADER
    out += f"; @launch grid=(256,1,1) block=(512,1,1) lds={LDS}\n"
    out += '.amdgcn_target "amdgcn-amd-amdhsa--gfx950"\n.text\n'
    out += f".globl {KNAME}\n.p2align 8\n.type {KNAME},@function\n" + kernel()
    out += f""".section .rodata,"a"
.p2align 6
.amdhsa_kernel {KNAME}
  .amdhsa_next_free_vgpr {NVGPR}
  .amdhsa_next_free_sgpr {101 if STAMPS else 98}
  .amdhsa_accum_offset {(NVGPR + 3) // 4 * 4}
  .amdhsa_group_segment_fixed_size 0
  .amdhsa_kernarg_size 96
  .amdhsa_user_sgpr_count 2
  .amdhsa_user_sgpr_kernarg_segment_ptr 1
  .amdhsa_system_sgpr_workgroup_id_x 1
.end_amdhsa_kernel
"""
    open(sys.argv[1], "w").write(out)


main()
```

```python
import sys
import struct
from math import gcd

N = 12500
E = 800000
QCH = 782
QH = QCH // 2
CH = QCH * 4
NQ = E // 4
RECB = CH * 12
RECS = 37760
TAB_ROWS = N + 1
TAB_BYTES = TAB_ROWS * 256
T_OFF = 0x310000
T2_REL = 0x80000
REC_REL = 0x81000
TR_BYTES = REC_REL + 256 * RECS
BIG = 0x40000000
NLOG2E = 0xbfb8aa3b
CAP = 128
CS = 132
XSS = 144
US = 272

OPT = dict(align="3", cpf="7", packpos="b", gs="2", nb="5", prio="1", order="c", npf="352", pfs="128", sleep="2", ng0="2", st_out="nt", cadd="1")
for a_ in sys.argv[2:]:
    k_, v_ = a_.split("=")
    OPT[k_] = v_
STAMPS = bool(OPT.get("stamps"))
GS = int(OPT["gs"])
NB = int(OPT["nb"] or (6 if GS == 2 else 4))
UNR = NB * 2 // gcd(NB, 2)
MINPS = NB + 1
MAXIT = 62
PLAIN = OPT.get('plain') == '1'
KEXP = 0 if PLAIN else (60 if GS == 2 else 40)
KBITS = (127 - KEXP) << 23
DBG_OFF = 0x1000000
KNAME = "standalone__edge_featured_mpnn_gatedgcn__graph_kernel"

L_CNT = 0
L_MASK = 256
L_MAXL = 324
L_ACKS = 328
L_ZERO = 384
L_TS = 640
L_TC = 1536
L_RK = 1792
L_HIST, L_START = 0, 1024
L_EA = 2048
EA_BYTES = 49 * CS * 8 + 32
L_KEYS = L_EA + EA_BYTES
KEY_BYTES = 49 * CS * 4 + 16
L_ACC = L_KEYS + KEY_BYTES
L_EXT = L_ACC + 52 * 512
L_STAGE = L_ACC
L_AP = L_EXT + 8 * 2048
L_U = L_AP + 49 * US
L_XS = L_U + 49 * US
L_WC = L_XS + 64 * XSS
LDS = L_WC + 512
assert 8 * GS * UNR + 8 <= L_TS - L_ZERO

_nv = [8]


def valloc(n, align=2):
    _nv[0] = (_nv[0] + align - 1) // align * align
    r = _nv[0]
    _nv[0] += n
    return r


GB = valloc(6 * GS * NB)
Y = (valloc(4 * GS), valloc(4 * GS))
HL = valloc(2 * GS)
P2, MM, SA, UU = valloc(4), valloc(4), valloc(4), valloc(4)
DEN = valloc(8)
NUM = DEN + 4
_nv[0] = max(_nv[0], 128)
AOP = [valloc(4) for _ in range(GS)]
CA, CN = valloc(4), valloc(4)
IDX = [valloc(2) for _ in range(GS)]
NX = valloc(2)
VK, VE, VF, VFN, VTK, VTE, NXE, VINC = [valloc(1, 1) for _ in range(8)]
TOT = valloc(16)
VTT = valloc(8)
VRA = valloc(8)
VCA = valloc(16)
PT = VCA
T2R = valloc(8)
VMAXL, VPF, VFOUR, VZ = [valloc(1, 1) for _ in range(4)]
EU, EX = valloc(8), valloc(8)
EACC, EEXT, EMSK, EOUT, ERK, ECN = [valloc(1, 1) for _ in range(6)]
VST = valloc(2)
NVGPR = _nv[0]
assert NVGPR <= 256, NVGPR
X0 = Y[0]
assert NUM + 4 - X0 >= 40

S_IT, S_MODE, S_I, S_MO, S_ML, S_CNT = 4, 5, 6, 7, 8, 9
S_K = 10
S_RAW = 12
S_B = 13
S_CM = 56
S_PR = 58
S_CS = 59
S_MASK = 60
S_AM = 62
S_TAG, S_TAG2, S_T2OK = 96, 97, 19


def stepbuf(p, i):
    return GB + 6 * (GS * (p % NB) + i)


def recset(j):
    return GB + 6 * j + 2 if j < GS * NB else X0 + 4 * (j - GS * NB)


class Asm:
    def __init__(self):
        self.L = []

    def __call__(self, s):
        for l in s.strip("\n").split("\n"):
            l = l.strip()
            if not l:
                continue
            if l.startswith("@"):
                if STAMPS:
                    self.special(l)
                continue
            self.L.append(l if l.endswith(":") else "    " + l)

    def special(self, l):
        if l.startswith("@S") or l.startswith("@C"):
            self(f"{'s_memtime' if l[1] == 'C' else 's_memrealtime'} s[98:99]")
            self("s_waitcnt lgkmcnt(0)")
            self(f"v_writelane_b32 v{VST}, s98, {int(l[2:])}")
        elif l.startswith("@W"):
            self("s_waitcnt " + l[2:])
        elif l.startswith("@V"):
            r, i = l[2:].split(",")
            self(f"v_writelane_b32 v{VST}, {r}, {i}")
        elif l.startswith("@OUT"):
            self(f"""
s_mov_b64 exec, -1
s_lshl_b32 s100, s2, 4
s_add_u32 s100, s100, s3
s_lshl_b32 s100, s100, 8
s_add_u32 s100, s100, {DBG_OFF + 0x100000:#x}
v_and_b32 v{VST+1}, 63, v0
v_lshl_add_u32 v{VST+1}, v{VST+1}, 2, s100
global_store_dword v{VST+1}, v{VST}, s[16:17]
""")

    def text(self):
        return "\n".join(self.L) + "\n"


def pr(r):
    return f"v[{r}:{r+1}]"


def q4(r):
    return f"v[{r}:{r+3}]"


def srd(a, d, lo, hi, nbytes, stride=0):
    a(f"s_mov_b32 s{d}, s{lo}")
    a(f"s_and_b32 s{d+1}, s{hi}, 0xffff")
    if stride:
        a(f"s_or_b32 s{d+1}, s{d+1}, {stride << 16:#x}")
    a(f"s_mov_b32 s{d+2}, {nbytes}")
    a(f"s_mov_b32 s{d+3}, 0x20000")


def scan(a, v, row_only=False, fill=()):
    fill = list(fill)
    steps = [f"row_shr:{d} row_mask:0xf" for d in (1, 2, 4, 8)]
    if not row_only:
        steps += ["row_bcast:15 row_mask:0xa", "row_bcast:31 row_mask:0xc"]
    for st in steps:
        if fill:
            a(fill.pop(0))
            a("s_nop 0")
        else:
            a("s_nop 1")
        a(f"v_add_u32_dpp v{v}, v{v}, v{v} {st} bank_mask:0xf")


SDWA_B0 = "dst_sel:DWORD dst_unused:UNUSED_PAD src0_sel:DWORD src1_sel:BYTE_0"


def tr_reads(a, vaddr, base, r0):
    for mat in range(2):
        for t in range(2):
            for s in range(2):
                r = r0 + 16 * mat + 8 * t + 4 * s
                o = base + mat * 8192 + s * 4096
                a(f"ds_read_b64_tr_b16 {pr(r)}, v{vaddr[t]} offset:{o}")
                a(f"ds_read_b64_tr_b16 {pr(r+2)}, v{vaddr[t]} offset:{o + 512}")


def tile_mfmas(a, r0, x0, d0):
    for s in range(2):
        for mat in range(2):
            for t in range(2):
                f = r0 + 16 * mat + 8 * t + 4 * s
                d = d0 + 8 * mat + 4 * t
                c = "0" if s == 0 else q4(d)
                a(f"v_mfma_f32_16x16x32_bf16 {q4(d)}, {q4(f)}, {q4(x0+4*s)}, {c}")


def slots_init(a, r, small):
    for i in range(4):
        a(f"v_mov_b32 v{r+i}, 0")
    for i in range(4):
        a(f"v_mov_b32 v{r+4+i}, {N}")
    z0 = 0 if small else L_EA
    a(f"v_lshlrev_b32 v{r+8}, 4, v0")
    a(f"v_add_u32 v{r+9}, {L_KEYS}, v{r+8}")
    nz, nk = (L_KEYS - z0) // 16, KEY_BYTES // 16
    for i in range(nz // 512):
        a(f"ds_write_b128 v{r+8}, {q4(r)} offset:{z0 + 8192*i}")
    for i in range(nk // 512):
        a(f"ds_write_b128 v{r+9}, {q4(r+4)} offset:{8192*i}")
    for rem, reg, data, off in sorted([(nz % 512, r + 8, r, z0 + 8192 * (nz // 512)), (nk % 512, r + 9, r + 4, 8192 * (nk // 512))], reverse=True):
        a(f"v_cmp_gt_u32 vcc, {rem}, v0")
        a("s_mov_b64 exec, vcc")
        a(f"ds_write_b128 v{reg}, {q4(data)} offset:{off}")
    a("s_mov_b64 exec, -1")


def place_atomic(a, r, ca):
    a(f"v_and_b32 v{ca}, 0xfc, v{r+2}")
    a(f"ds_add_rtn_u32 v{r+3}, v{ca}, v{VFOUR} offset:{L_CNT}")


def place_write(a, r, ca):
    a(f"v_min_u32 v{r+3}, {CAP*4}, v{r+3}")
    a(f"v_mad_u32_u24 v{ca}, v{ca}, s{S_CS}, v{r+3}")
    a(f"v_lshrrev_b32 v{r+2}, 8, v{r+2}")
    a(f"v_add_u32 v{r+3}, v{ca}, v{ca}")
    a(f"ds_write_b32 v{ca}, v{r+2} offset:{L_KEYS}")
    a(f"ds_write_b64 v{r+3}, {pr(r)} offset:{L_EA}")


def ev_k(a, sub):
    a(f"""
v_add_u32 v{VK}, {L_KEYS - sub}, v{NX}
v_add_u32 v4, v{NX+1}, v{IDX[0]+1}
v_add_u32 v{VTK}, 32, v{VTK}
v_add_u32 v{VTE}, 32, v{VTE}
ds_read_b128 {q4(CN)}, v4
ds_read_b32 v{NXE}, v{VTE} offset:{L_TS}
ds_read_b64 {pr(NX)}, v{VTK} offset:{L_TS + 32}
""")


def ev_e(a, sub):
    a(f"""
v_lshlrev_b32 v{VE}, 1, v{NXE}
v_add_u32 v{VE}, {L_EA - sub}, v{VE}
v_mov_b32 v4, {L_ZERO}
v_pk_mov_b32 {pr(CA)}, {pr(CN)}, {pr(CN)} op_sel:[0,1]
v_pk_mov_b32 {pr(CA+2)}, {pr(CN+2)}, {pr(CN+2)} op_sel:[0,1]
v_cndmask_b32_e64 v{VE}, v4, v{VE}, s[{S_AM}:{S_AM+1}]
""")


def gathers(p, idx):
    return [f"buffer_load_dwordx4 {q4(stepbuf(p, i) + 2)}, {pr(idx[i])}, s[24:27], 0 idxen offen sc1" for i in range(GS)]


def mfmas(p):
    y = Y[p & 1]
    return [f"v_mfma_f32_16x16x32_bf16 {q4(y+4*i)}, {q4(AOP[i])}, {q4(stepbuf(p, i))}, {q4(CA)}" for i in range(GS)]


def ops(k):
    y, yn = Y[k & 1], Y[1 - (k & 1)]
    b = [stepbuf(k, i) + 4 for i in range(GS)]
    sk = f"s[{S_K}:{S_K+1}]"
    d = {}
    for i in range(4 * GS):
        d[f"E{i}"] = f"v_exp_f32 v{yn+i}, v{yn+i}"
    for i in range(2 * GS):
        if OPT["cadd"] == "1":
            d[f"C{i}"] = f"v_pk_add_f32 {pr(y+2*i)}, {pr(y+2*i)}, {sk} clamp"
        else:
            d[f"C{i}"] = f"v_pk_fma_f32 {pr(y+2*i)}, {pr(y+2*i)}, {sk}, {sk} clamp"
    for i in range(4):
        d[f"R{i}"] = f"v_rcp_f32 v{MM+i}, v{MM+i}"
    for i in range(2):
        p = [pr(y + 4 * j + 2 * i) for j in range(GS)]
        h = [pr(HL + 2 * j) if i == 0 else pr(b[j]) for j in range(GS)]
        m, s, u, p2 = pr(MM + 2 * i), pr(SA + 2 * i), pr(UU + 2 * i), pr(P2 + 2 * i)
        d[f"m{i}"] = f"v_pk_mul_f32 {m if GS == 2 else p2}, {p[0]}, {p[1]}"
        d[f"a{i}"] = f"v_pk_add_f32 {s}, {p[0]}, {p[1]}"
        d[f"g{i}"] = f"v_pk_mul_f32 {u}, {p[1]}, {h[0]}"
        d[f"h{i}"] = f"v_pk_fma_f32 {u}, {p[0]}, {h[1]}, {u}"
        if GS == 3:
            d[f"M{i}"] = f"v_pk_mul_f32 {m}, {p2}, {p[2]}"
            d[f"s{i}"] = f"v_pk_fma_f32 {s}, {s}, {p[2]}, {p2}"
            d[f"i{i}"] = f"v_pk_mul_f32 {u}, {u}, {p[2]}"
            d[f"j{i}"] = f"v_pk_fma_f32 {u}, {p2}, {h[2]}, {u}"
        d[f"d{i}"] = f"v_pk_fma_f32 {pr(DEN+2*i)}, {s}, {m}, {pr(DEN+2*i)}"
        d[f"n{i}"] = f"v_pk_fma_f32 {pr(NUM+2*i)}, {u}, {m}, {pr(NUM+2*i)}"
    if PLAIN:
        for i in range(2 * GS):
            d[f"C{i}"] = f"v_pk_add_f32 {pr(y+2*i)}, {pr(y+2*i)}, {sk}"
            j, hf = i >> 1, i & 1
            hh = pr(HL + 2 * j) if hf == 0 else pr(b[j])
            d[f"D{i}"] = f"v_pk_add_f32 {pr(DEN+2*hf)}, {pr(DEN+2*hf)}, {pr(y+2*i)}"
            d[f"U{i}"] = f"v_pk_fma_f32 {pr(NUM+2*hf)}, {pr(y+2*i)}, {hh}, {pr(NUM+2*hf)}"
        for i in range(4 * GS):
            d[f"r{i}"] = f"v_rcp_f32 v{y+i}, v{y+i}"
    for i in range(GS):
        d[f"Q{i}"] = f"v_lshlrev_b64 {pr(HL+2*i)}, 16, {pr(b[i])}"
        d[f"N{i}"] = mfmas(k + 2)[i]
        d[f"L{i}"] = gathers(k, IDX)[i]
        d[f"k{i}"] = f"ds_read_b32 v{IDX[i]}, v{VK} offset:{4*(GS*k+i)}"
        d[f"e{i}"] = f"ds_read_b64 {pr(AOP[i])}, v{VE} offset:{8*(GS*k+i)}"
    if OPT.get("eam") == "1":
        d["e0"] = f"s_mov_b64 exec, s[{S_AM}:{S_AM+1}]\n" + d["e0"]
        d[f"e{GS-1}"] += "\ns_mov_b64 exec, -1"
    if OPT.get("exp") == "nold":
        for i in range(GS): d[f"L{i}"] = ""
    if OPT.get("exp") == "nolds":
        for i in range(GS): d[f"k{i}"] = ""; d[f"e{i}"] = ""
    if OPT.get("exp") == "nom":
        for i in range(GS): d[f"N{i}"] = ""
    for ch in OPT.get("drop", ""):
        for key in list(d):
            if key[0] == ch and key[1:].isdigit(): d[key] = ""
    d["W"] = f"s_waitcnt vmcnt({GS*(NB-3)}) lgkmcnt(0)"
    d["S"] = f"s_sub_u32 s{S_CNT}, s{S_CNT}, 1"
    d["A0"] = f"v_add_u32 v{VK}, {4*GS*UNR}, v{VK}" if k == UNR - 1 else ""
    d["A1"] = f"v_add_u32 v{VE}, v{VINC}, v{VE}" if k == UNR - 1 else ""
    return d


ORDERS = {
    2: {
        "p": "k0 k1 e0 e1 C0 C1 r0 C2 r1 C3 r2 Q0 r3 Q1 r4 D0 r5 U0 r6 D1 r7 U1 E0 D2 E1 U2 E2 D3 E3 U3 A0 A1 W L0 L1 S N0 E4 E5 N1 E6 E7",
        "q": "k0 k1 e0 e1 C0 C1 C2 C3 r0 r1 r2 r3 Q0 Q1 r4 r5 r6 r7 D0 U0 D1 U1 D2 U2 D3 U3 A0 A1 W L0 L1 S N0 E0 E1 E2 E3 N1 E4 E5 E6 E7",
        "b": "k0 k1 e0 e1 C0 E0 C2 E1 C1 E2 C3 E3 m0 E4 m1 E5 S Q0 Q1 A0 A1 a0 a1 g0 g1 h0 h1 W N0 R0 R1 N1 R2 R3 L0 L1 E6 d0 E7 d1 n0 n1",
        "c": "k0 k1 e0 e1 C0 C2 E0 m0 E1 C1 C3 E2 m1 E3 Q0 E4 Q1 E5 A0 A1 a0 a1 g0 g1 h0 h1 W L0 L1 S N0 R0 R1 N1 R2 R3 E6 d0 E7 d1 n0 n1",
        "d": "k0 k1 e0 e1 Q0 Q1 C0 E0 C2 E1 C1 E2 C3 E3 g0 E4 g1 E5 h0 h1 A0 A1 m0 m1 a0 a1 W L0 L1 S N0 R0 R1 N1 R2 R3 E6 d0 E7 d1 n0 n1",
        "e": "k0 k1 e0 e1 C0 E0 C2 E1 m0 E2 C1 R0 C3 R1 m1 E3 Q0 Q1 A0 A1 a0 a1 g0 g1 h0 h1 W L0 L1 S N0 R2 R3 N1 E4 E5 d0 E6 n0 E7 d1 n1",
        "f": "k0 k1 e0 e1 C0 E0 C2 E1 C1 E2 C3 E3 m0 m1 Q0 Q1 A0 A1 a0 a1 g0 g1 h0 h1 W L0 L1 S N0 R0 R1 E4 N1 R2 R3 E5 d0 E6 d1 E7 n0 n1",
        "g": "C0 E0 C2 E1 C1 E2 C3 E3 k0 k1 e0 e1 m0 E4 m1 E5 Q0 Q1 A0 A1 a0 a1 g0 g1 h0 h1 W L0 L1 S N0 R0 R1 N1 R2 R3 E6 d0 E7 d1 n0 n1",
        "h": "k0 k1 e0 e1 C0 E0 C2 E1 C1 E2 C3 E3 m0 E4 m1 E5 Q0 Q1 A0 A1 g0 g1 h0 h1 a0 a1 W L0 L1 S N0 R0 R1 N1 R2 R3 E6 E7 d0 d1 n0 n1",
        "": "k0 k1 e0 e1 C0 E0 C2 E1 C1 E2 C3 E3 m0 E4 m1 E5 Q0 Q1 A0 A1 a0 a1 g0 g1 h0 h1 W L0 L1 S N0 R0 R1 N1 R2 R3 E6 d0 E7 d1 n0 n1",
    },
    3: {
        "d": "k0 k1 k2 e0 e1 e2 C0 E0 C2 E1 C4 E2 C1 E3 C3 E4 C5 E5 m0 m1 M0 M1 Q0 Q1 Q2 A0 A1 a0 a1 g0 g1 s0 s1 h0 h1 i0 i1 j0 j1 W L0 L1 L2 S N0 R0 R1 N1 R2 R3 N2 E6 E7 E8 d0 E9 d1 E10 n0 E11 n1",
        "e": "k0 k1 k2 e0 e1 e2 Q0 Q1 Q2 C0 E0 C2 E1 C4 E2 C1 E3 C3 E4 C5 E5 m0 m1 g0 g1 M0 M1 A0 A1 h0 h1 a0 a1 i0 i1 s0 s1 j0 j1 W N0 R0 R1 N1 R2 R3 N2 E6 E7 L0 L1 L2 S E8 d0 E9 d1 E10 n0 E11 n1",
        "": "k0 k1 k2 e0 e1 e2 C0 E0 C2 E1 C4 E2 C1 E3 C3 E4 C5 E5 m0 E6 m1 E7 M0 M1 Q0 Q1 Q2 A0 A1 a0 a1 g0 g1 s0 s1 h0 h1 i0 i1 j0 j1 W L0 L1 L2 S N0 R0 R1 N1 R2 R3 N2 E8 E9 d0 E10 d1 E11 n0 n1",
        "b": "k0 k1 k2 e0 e1 e2 C0 E0 C2 E1 C4 E2 C1 E3 C3 E4 C5 E5 m0 m1 M0 M1 Q0 Q1 Q2 A0 A1 a0 a1 g0 g1 s0 s1 h0 h1 i0 i1 j0 j1 W N0 R0 R1 N1 R2 R3 N2 E6 E7 L0 L1 L2 S E8 d0 E9 d1 E10 n0 E11 n1",
        "c": "k0 k1 k2 e0 e1 e2 C0 E0 C2 E1 m0 E2 C4 E3 M0 E4 C1 E5 C3 E6 m1 E7 C5 M1 Q0 Q1 Q2 A0 A1 a0 a1 g0 g1 s0 s1 h0 h1 i0 i1 j0 j1 W L0 L1 L2 S N0 R0 R1 N1 R2 R3 N2 E8 E9 d0 E10 d1 E11 n0 n1",
    },
}


def eprep1(a):
    a(f"""
v_lshrrev_b32 v{EOUT}, 3, v0
v_min_u32 v{EACC}, 48, v{EOUT}
v_lshlrev_b32 v{ERK}, 2, v{EOUT}
v_lshlrev_b32 v{ECN}, 2, v{EACC}
v_and_b32 v{EMSK}, 7, v0
v_lshlrev_b32 v{EEXT}, 5, v{EMSK}
v_cmp_gt_u32_e64 s[20:21], 52, v{EOUT}
s_movk_i32 s22, {US}
v_mad_u32_u24 v6, v{EACC}, s22, v{EEXT}
v_add_u32 v6, {L_U}, v6
v_mul_u32_u24 v7, {XSS}, v{EACC}
v_lshl_add_u32 v7, v{EMSK}, 4, v7
v_add_u32 v7, {L_XS}, v7
ds_read_b32 v{ERK}, v{ERK} offset:{L_RK}
ds_read_b32 v{ECN}, v{ECN} offset:{L_CNT}
ds_read_b128 {q4(EU)}, v6
ds_read_b128 {q4(EU+4)}, v6 offset:16
ds_read_b128 {q4(EX+4)}, v7
v_lshlrev_b32 v{EOUT}, 8, v{EOUT}
v_add_u32 v{EOUT}, s{S_B}, v{EOUT}
v_lshlrev_b32 v{EOUT}, 7, v{EOUT}
v_lshl_add_u32 v{EOUT}, v{EMSK}, 4, v{EOUT}
""")


def eprep2(a):
    a(f"""
v_cmp_ne_u32_e64 s[22:23], 0, v{ECN}
v_and_b32 v{EMSK}, -4, v{ERK}
v_lshl_add_u32 v{EACC}, v{ERK}, 9, v{EEXT}
v_add_u32 v{EACC}, {L_ACC}, v{EACC}
v_and_b32 v{ERK}, 3, v{ERK}
v_lshl_add_u32 v{EEXT}, v{ERK}, 9, v{EEXT}
v_add_u32 v{EEXT}, {L_EXT}, v{EEXT}
s_and_b64 s[20:21], s[20:21], s[22:23]
""")
    for i in range(4):
        a(f"v_lshlrev_b32 v{EX+2*i}, 16, v{EX+4+i}" if i < 2 else "")
        a(f"v_and_b32 v{EX+2*i+1}, 0xffff0000, v{EX+4+i}" if i < 2 else "")
    a(f"v_lshlrev_b32 v{EX+4}, 16, v{EX+6}")
    a(f"v_and_b32 v{EX+5}, 0xffff0000, v{EX+6}")
    a(f"v_lshlrev_b32 v{EX+6}, 16, v{EX+7}")
    a(f"v_and_b32 v{EX+7}, 0xffff0000, v{EX+7}")


def t2_check(a):
    a(f"v_xor_b32 v4, s{S_TAG}, v{T2R}")
    for i in (2, 4, 6):
        a(f"v_xor_b32 v5, s{S_TAG}, v{T2R+i}")
        a("v_or_b32 v4, v4, v5")
    for i in (1, 3, 5, 7):
        a(f"v_xor_b32 v5, s{S_TAG2}, v{T2R+i}")
        a("v_or_b32 v4, v4, v5")
    a("v_cmp_ne_u32 vcc, 0, v4")


def t2_loads(a):
    a(f"""
v_lshlrev_b32 v4, 4, v1
s_mov_b32 s40, {T2_REL:#x}
buffer_load_dwordx4 {q4(T2R)}, v4, s[32:35], s40 offen sc1
buffer_load_dwordx4 {q4(T2R+4)}, v4, s[32:35], s40 offen offset:1024 sc1
""")


def kernel():
    a = Asm()
    VTR, VXA, VWC, VAU, VLOC = VK, VE, VF, VFN, NXE
    VE2, VT2 = VTK, VTE
    VTR1, VWG, XF = VMAXL, VPF, T2R
    a(f"""
{KNAME}:
s_cmp_ge_u32 s2, 256
s_cbranch_scc1 K_END
@S0
@C30
s_load_dwordx16 s[64:79], s[0:1], 0
s_load_dwordx8 s[80:87], s[0:1], 64
s_getpc_b64 s[42:43]
K_PC0:
v_and_b32 v6, 63, v0
v_lshlrev_b32 v6, 7, v6
v_add_u32 v7, 8192, v6
v_cmp_le_u32 vcc, {int(OPT.get('cw', 7))*64}, v0
s_mov_b64 exec, vcc
global_load_dword v{VFOUR}, v6, s[42:43]
v_cmp_gt_u32 vcc, K_LONG_ENTRY-K_PC0, v7
s_mov_b64 exec, vcc
global_load_dword v{VFOUR}, v7, s[42:43]
s_mov_b64 exec, -1
s_mul_i32 s40, s2, {QCH}
v_add_u32 v4, s40, v0
v_add_u32 v5, {QH}, v4
v_cmp_gt_u32 vcc, {QH}, v0
v_lshlrev_b32 v4, 4, v4
v_mov_b32 v6, {BIG:#x}
v_and_b32 v7, 255, v0
v_cndmask_b32 v4, v6, v4, vcc
v_lshlrev_b32 v7, 2, v7
v_mov_b32 v{VZ}, 0
ds_write_b32 v7, v{VZ} offset:{L_HIST}
s_mov_b32 s47, 0x20000
s_mov_b32 s46, {E*4}
s_movk_i32 s58, {QH*16}
s_waitcnt lgkmcnt(0)
s_mov_b32 s44, s70
s_and_b32 s45, s71, 0xffff
buffer_load_dwordx4 v[8:11], v4, s[44:47], 0 offen
buffer_load_dwordx4 v[12:15], v4, s[44:47], s58 offen
v_readfirstlane_b32 s3, v0
s_mov_b32 s41, {NQ}
v_cmp_gt_u32_e64 s[94:95], s41, v5
s_mov_b64 s[92:93], vcc
v_add_u32 v5, s58, v4
s_and_b32 s{S_B}, s2, 7
s_lshl_b32 s{S_B}, s{S_B}, 5
s_lshr_b32 s40, s2, 3
s_or_b32 s{S_B}, s{S_B}, s40
s_and_b64 s[94:95], s[94:95], vcc
s_lshr_b32 s3, s3, 6
v_lshlrev_b32 v61, 4, v0
v_and_b32 v96, 16, v0
v_lshlrev_b32 v96, 1, v96
v_and_b32 v97, 64, v0
v_or_b32 v96, v96, v97
v_xor_b32 v{VWG}, v96, v61
global_load_dwordx4 v[40:43], v{VWG}, s[74:75]
global_load_dwordx4 v[44:47], v{VWG}, s[80:81]
v_lshrrev_b32 v62, 3, v0
v_lshlrev_b32 v90, 8, v62
v_add_u32 v90, s{S_B}, v90
v_lshlrev_b32 v90, 7, v90
v_and_b32 v63, 7, v0
v_lshl_add_u32 v90, v63, 4, v90
""")
    srd(a, 20, 64, 65, N * 128)
    a(f"""
buffer_load_dwordx4 v[56:59], v90, s[20:23], 0 offen
s_or_b32 s40, s2, s3
s_cmp_lg_u32 s40, 0
s_cbranch_scc1 K_NONONCE
s_memrealtime s[40:41]
s_waitcnt lgkmcnt(0)
s_or_b32 s40, s40, 1
v_mov_b32 v7, s40
s_mov_b64 exec, 1
global_store_dword v{VZ}, v7, s[84:85] sc1
s_mov_b64 exec, -1
K_NONONCE:
""")
    srd(a, 48, 68, 69, E * 4)
    srd(a, 52, 66, 67, E * 8)
    a(f"""
v_lshlrev_b32 v6, 1, v4
v_lshlrev_b32 v7, 1, v5
v_mov_b32 v74, v4
v_mov_b32 v75, v5
@S1
""")
    NE = int(OPT.get("ne", 2))
    later = ["buffer_load_dwordx4 v[24:27], v6, s[52:55], 0 offen",
             "buffer_load_dwordx4 v[28:31], v6, s[52:55], 0 offen offset:16",
             "buffer_load_dwordx4 v[16:19], v74, s[48:51], 0 offen",
             "buffer_load_dwordx4 v[20:23], v75, s[48:51], 0 offen"]
    a("s_barrier")
    for l in later[:NE]:
        a(l)
    if OPT.get("tlb", "0") == "1":
        a(f"""
s_cmp_lg_u32 s3, 7
s_cbranch_scc1 K_NOTLB
v_and_b32 v76, 63, v0
v_lshlrev_b32 v77, 14, v76
global_load_dword v{VFOUR}, v77, s[82:83]
v_mul_u32_u24 v76, {4*RECS}, v76
v_add_u32 v76, {T_OFF + REC_REL - 128}, v76
global_load_dword v{VFOUR}, v76, s[86:87]
K_NOTLB:
""")
    slots_init(a, 64, False)
    a(f"""
v_and_b32 v1, 63, v0
v_and_b32 v2, 15, v0
v_bfe_u32 v3, v0, 4, 2
v_and_b32 v91, 127, v0
v_lshlrev_b32 v91, 2, v91
v_mul_u32_u24 v62, {XSS}, v62
v_lshl_add_u32 v62, v63, 4, v62
v_add_u32 v62, {L_XS}, v62
v_add_u32 v63, {L_AP}, v61
s_mov_b64 s[16:17], s[86:87]
s_lshr_b32 s18, s3, 1
s_lshl_b32 s18, s18, 4
s_and_b32 s19, s3, 1
v_lshrrev_b32 v{VE2}, 2, v2
v_lshl_add_u32 v{VTR}, v3, 3, v{VE2}
v_lshlrev_b32 v{VTR}, 7, v{VTR}
v_and_b32 v{VT2}, 3, v2
v_lshl_add_u32 v{VTR}, v{VT2}, 3, v{VTR}
s_lshl_b32 s40, s19, 6
v_add_u32 v{VTR}, s40, v{VTR}
v_and_b32 v4, 8, v2
v_lshlrev_b32 v4, 2, v4
v_and_b32 v5, 1, v3
v_lshl_or_b32 v4, v5, 6, v4
v_xor_b32 v{VTR}, v4, v{VTR}
v_xor_b32 v{VTR1}, 32, v{VTR}
v_add_u32 v{VTR}, {L_AP}, v{VTR}
v_add_u32 v{VTR1}, {L_AP}, v{VTR1}
v_add_u32 v{VLOC}, s18, v2
v_mul_u32_u24 v{VXA}, {XSS}, v{VLOC}
v_lshl_add_u32 v{VXA}, v3, 4, v{VXA}
v_add_u32 v{VXA}, {L_XS}, v{VXA}
""")
    srd(a, 28, 16, 17, TAB_BYTES)
    a(f"""
v_lshlrev_b32 v4, 8, v{VLOC}
v_add_u32 v4, s{S_B}, v4
v_lshlrev_b32 v60, 8, v4
v_lshl_add_u32 v60, v3, 4, v60
s_lshl_b32 s40, s19, 7
v_add_u32 v60, s40, v60
v_cmp_eq_u32 vcc, {N}, v4
v_mov_b32 v4, 0x7f000000
v_mov_b32 v5, 0x7f007f00
s_mov_b32 s56, 0x07060100
s_mov_b32 s57, 0x07060302
v_mov_b32 v76, 1
@S2
s_waitcnt vmcnt({4 + NE})
@S3
""")
    for i in range(4):
        a(f"v_lshlrev_b32_sdwa v{64+i}, 2, v{8+i} {SDWA_B0}")
    a("s_mov_b64 exec, s[92:93]")
    for i in range(4):
        a(f"ds_add_rtn_u32 v{80+i}, v{64+i}, v76 offset:{L_HIST}")
    a("s_mov_b64 exec, -1")
    a(f"s_waitcnt vmcnt({3 + NE})")
    for i in range(4, 8):
        a(f"v_lshlrev_b32_sdwa v{64+i}, 2, v{8+i} {SDWA_B0}")
    a("s_mov_b64 exec, s[94:95]")
    for i in range(4, 8):
        a(f"ds_add_rtn_u32 v{80+i}, v{64+i}, v76 offset:{L_HIST}")
    a(f"""
s_mov_b64 exec, -1
s_waitcnt vmcnt({NE})
ds_write_b128 v63, v[40:43]
ds_write_b128 v63, v[44:47] offset:8192
ds_write_b128 v62, v[56:59]
""")
    NL = int(OPT.get("nl", 4))
    rest = later[NE:] + ["buffer_load_dwordx4 v[32:35], v7, s[52:55], 0 offen", "buffer_load_dwordx4 v[36:39], v7, s[52:55], 0 offen offset:16"]
    for l in rest[:NL]:
        a(l)
    for i in range(8):
        a(f"v_lshrrev_b32 v{8+i}, 6, v{8+i}")
    a("v_lshlrev_b32 v77, 4, v1")
    seqs = []
    for t in range(2):
        b, h, o, tm = TOT + 4 * t, TOT + 8 + 4 * t, 40 + 4 * t, 78 + t
        q = [f"v_mul_f32 v{b+i}, {NLOG2E:#x}, v{b+i}" for i in range(4)]
        q += [f"v_med3_f32 v{b+i}, v{b+i}, v4, -v4" for i in range(4)]
        q += [f"v_cvt_pk_bf16_f32 v{tm}, v{h}, v{h}"]
        q += [f"v_cvt_pk_bf16_f32 v{o}, v{b}, v{b+1}", f"v_cvt_pk_bf16_f32 v{o+1}, v{b+2}, v{b+3}"]
        q += [f"v_perm_b32 v{o+2}, v{h+2}, v{tm}, s56", f"v_perm_b32 v{o+3}, v{h+3}, v{h+1}, s57"]
        q += [f"v_cndmask_b32 v{o}, v{o}, v5, vcc", f"v_cndmask_b32 v{o+1}, v{o+1}, v5, vcc"]
        seqs.append(q)
    pack = [z for xy in zip(*seqs) for z in xy]
    stores = [f"buffer_store_dwordx4 {q4(40+4*t)}, v60, s[28:31], 0 offen offset:{64*t} sc1" for t in range(2)]
    wl = [f"global_load_dwordx4 v[48:51], v{VWG}, s[72:73]", f"global_load_dwordx4 v[52:55], v{VWG}, s[78:79]", "global_load_dword v56, v91, s[76:77]"]
    a(f"""
s_waitcnt lgkmcnt(0)
@S4
s_barrier
@S5
ds_read_b128 v[72:75], v77 offset:{L_HIST}
ds_read_b128 {q4(XF)}, v{VXA}
ds_read_b128 {q4(XF+4)}, v{VXA} offset:64
""")
    for l in rest[NL:]:
        a(l)
    tr = Asm()
    tr_reads(tr, (VTR, VTR1), 0, 96)
    tr = tr.L
    for l in tr[:4]:
        a(l)
    a(f"""
s_waitcnt lgkmcnt(6)
v_add_u32 v89, v72, v73
v_add_u32 v90, v89, v74
v_add_u32 v62, v90, v75
v_mov_b32 v63, v62
""")
    steps = [f"row_shr:{d} row_mask:0xf" for d in (1, 2, 4, 8)] + ["row_bcast:15 row_mask:0xa", "row_bcast:31 row_mask:0xc"]
    for i, st in enumerate(steps):
        a(tr[4 + 2 * i]); a(tr[5 + 2 * i])
        a(f"v_add_u32_dpp v62, v62, v62 {st} bank_mask:0xf")
    a(f"""
v_sub_u32 v88, v62, v63
v_add_u32 v91x, v88, v90
v_add_u32 v90, v88, v89
v_add_u32 v89, v88, v72
ds_write_b128 v77, v[88:91] offset:{L_START}
""".replace("v91x", "v91"))
    for i in range(8):
        a(f"ds_read_b32 v{64+i}, v{64+i} offset:{L_START}")
    for i in range(4):
        a(f"v_lshl_or_b32 v{92+i}, v{72+i}, 16, v{88+i}")
    a("s_waitcnt lgkmcnt(9)")
    tile_mfmas(a, 96, XF, TOT)
    a("v_and_b32 v91, 127, v0")
    a("v_lshlrev_b32 v91, 2, v91")
    srd(a, 24, 16, 17, TAB_ROWS, stride=256)
    srd(a, 36, 82, 83, N * 128)
    a(f"s_mov_b32 s40, {L_STAGE}")
    PKP = OPT.get("pkp", "0")
    if PKP == "0":
        for l in pack + stores + wl:
            a(l)
    a(f"""
s_add_u32 s32, s16, {T_OFF:#x}
s_addc_u32 s33, s17, 0
s_and_b32 s33, s33, 0xffff
s_mov_b32 s34, {TR_BYTES}
s_mov_b32 s35, 0x20000
s_mul_i32 s41, s2, {RECS}
s_add_u32 s41, s41, {T_OFF + REC_REL:#x}
s_add_u32 s88, s16, s41
s_addc_u32 s89, s17, 0
s_and_b32 s89, s89, 0xffff
s_mov_b32 s90, {RECB}
s_mov_b32 s91, 0x20000
s_waitcnt vmcnt({7 if PKP == "0" else 2})
""")
    for i in range(8):
        a(f"v_lshl_or_b32 v{16+i}, v{16+i}, 8, v{8+i}")
    for i in range(8):
        a(f"s_waitcnt lgkmcnt({7-i})")
        a(f"v_add_u32 v{64+i}, v{64+i}, v{80+i}")
        a(f"v_mad_u32_u24 v{64+i}, v{64+i}, 12, s40")
    a("s_mov_b64 exec, s[92:93]")
    for i in range(4):
        a(f"ds_write_b32 v{64+i}, v{16+i} offset:8")
        a(f"ds_write2_b32 v{64+i}, v{24+2*i}, v{25+2*i} offset0:0 offset1:1")
    a("s_mov_b64 exec, s[94:95]")
    for i in range(4, 8):
        a(f"ds_write_b32 v{64+i}, v{16+i} offset:8")
    a(f"s_waitcnt vmcnt({5 if PKP == '0' else 0})")
    for i in range(4, 8):
        a(f"ds_write2_b32 v{64+i}, v{24+2*i}, v{25+2*i} offset0:0 offset1:1")
    a("s_mov_b64 exec, -1")
    if PKP == "1":
        for l in pack + stores + wl:
            a(l)
    a(f"""
@S6
s_movk_i32 s14, {RECB//16 - 2048}
v_cmp_gt_u32_e64 s[14:15], s14, v0
v_add_u32 v63, {L_STAGE}, v61
v_add_u32 v91, {L_WC}, v91
s_movk_i32 s44, 0x2000
s_movk_i32 s45, 0x4000
s_movk_i32 s46, 0x6000
s_mov_b32 s47, 0x8000
v_cmp_gt_u32 vcc, 128, v0
global_load_dword v64, v{VZ}, s[84:85] sc1
s_waitcnt lgkmcnt(0)
@S7
s_barrier
@S8
""")
    for i in range(4):
        a(f"ds_read_b128 {q4(8+4*i)}, v63 offset:{8192*i}")
    a(f"""
s_mov_b64 exec, s[14:15]
ds_read_b128 v[24:27], v63 offset:32768
s_mov_b64 exec, -1
v_mov_b32 v28, 0
v_mov_b32 v29, 0
v_mov_b32 v30, 0
v_mov_b32 v31, 0
""")
    for i in range(4):
        a(f"s_waitcnt lgkmcnt({4-i})")
        so = "0" if i == 0 else f"s{43+i}"
        a(f"buffer_store_dwordx4 {q4(8+4*i)}, v61, s[88:91], {so} offen sc1")
    koff = struct.unpack("<I", struct.pack("<f", -float(KEXP) if OPT["cadd"] == "1" else 0.0))[0]
    a(f"""
s_mov_b64 exec, s[14:15]
s_waitcnt lgkmcnt(0)
buffer_store_dwordx4 v[24:27], v61, s[88:91], s47 offen sc1
s_mov_b64 exec, vcc
ds_write_b128 v61, v[28:31]
s_mov_b64 exec, -1
@S9
s_waitcnt vmcnt(5)
ds_write_b128 v63, v[48:51]
ds_write_b128 v63, v[52:55] offset:8192
ds_write_b32 v91, v56
v_add_u32 v{VTR}, {L_STAGE - L_AP}, v{VTR}
v_add_u32 v{VTR1}, {L_STAGE - L_AP}, v{VTR1}
v_lshl_add_u32 v{VWC}, v2, 2, v3
v_lshlrev_b32 v{VWC}, 1, v{VWC}
v_add_u32 v{VWC}, {L_WC}, v{VWC}
s_movk_i32 s40, {US}
s_lshl_b32 s41, s19, 7
s_add_u32 s41, s41, {L_AP}
v_mad_u32_u24 v{VAU}, v{VLOC}, s40, 0
v_lshl_add_u32 v{VAU}, v3, 4, v{VAU}
v_add_u32 v{VAU}, s41, v{VAU}
v_cmp_gt_u32_e64 s[14:15], 49, v{VLOC}
s_mov_b32 s{S_MODE}, 0
s_mov_b32 s{S_CS}, {CS}
s_mov_b32 s{S_AM}, 0x22221111
s_mov_b32 s{S_AM+1}, 0x88884444
s_mov_b32 s{S_K}, {KBITS:#x}
s_mov_b32 s{S_K+1}, {KBITS:#x}
s_mov_b32 s6, {NLOG2E:#x}
s_mov_b32 s7, {NLOG2E:#x}
v_mov_b32 v{NX}, {koff:#x}
v_mov_b32 v{NX+1}, {koff:#x}
v_and_b32 v5, 1, v{VT2}
v_lshlrev_b32 v5, 4, v5
v_mov_b32 v6, 0x3f80
v_lshlrev_b32 v5, v5, v6
v_cmp_eq_u32 vcc, v3, v{VE2}
v_cmp_gt_u32_e64 s[52:53], 2, v{VT2}
v_cmp_le_u32_e64 s[54:55], 2, v{VT2}
v_mov_b32 v6, {8*GS*UNR}
v_cndmask_b32 v5, 0, v5, vcc
v_cndmask_b32_e64 v{VINC}, 0, v6, s[{S_AM}:{S_AM+1}]
v_mov_b32 v{VFOUR}, 4
""")
    for i in range(GS):
        a(f"v_cndmask_b32_e64 v{AOP[i]+2}, 0, v5, s[52:53]")
        a(f"v_cndmask_b32_e64 v{AOP[i]+3}, 0, v5, s[54:55]")
        a(f"v_lshlrev_b32 v{IDX[i]+1}, 4, v2")
    a(f"""
s_lshl_b32 s41, s{S_B}, 3
v_lshl_add_u32 v4, v3, 11, s41
s_lshl_b32 s40, s3, 16
""")
    for k in range(1, 8):
        a(f"s_add_u32 s{40+k}, s40, {8192*k}")
    V0, V1, V2, V3, V4 = X0 + 16, X0 + 17, X0 + 18, X0 + 19, X0 + 20
    a(f"""
s_lshl_b32 s48, s3, 5
v_add_u32 v5, s48, v3
s_mov_b32 s49, {RECS}
v_mul_lo_u32 v5, v5, s49
v_mad_u32_u24 v5, v2, 12, v5
v_add_u32 v5, {REC_REL}, v5
v_add_u32 v6, 16, v2
s_memrealtime s[50:51]
K_TAGW:
v_readfirstlane_b32 s{S_TAG}, v64
s_cmp_lg_u32 s{S_TAG}, 0
s_cbranch_scc0 K_TAG_RETRY
K_TAGOK:
s_mul_i32 s48, s{S_TAG}, 0x9e3779b1
s_and_b32 s48, s48, 0xf000f000
v_or_b32 v32, s48, v92
v_mov_b32 v33, s{S_TAG}
v_or_b32 v34, s48, v93
v_mov_b32 v35, s{S_TAG}
v_or_b32 v36, s48, v94
v_mov_b32 v37, s{S_TAG}
v_or_b32 v38, s48, v95
v_mov_b32 v39, s{S_TAG}
v_lshlrev_b32 v40, 5, v1
s_lshl_b32 s49, s2, 11
s_cmp_lg_u32 s3, 0
@S18
s_waitcnt vmcnt(0) lgkmcnt(0)
@S19
s_barrier
s_cbranch_scc1 K_NOPUB
buffer_store_dwordx4 v[32:35], v40, s[32:35], s49 offen sc1
buffer_store_dwordx4 v[36:39], v40, s[32:35], s49 offen offset:16 sc1
K_NOPUB:
""")
    tr_reads(a, (VTR, VTR1), 0, 96)
    a(f"""
ds_read_u16 v{CA}, v{VWC}
ds_read_u16 v{CA+1}, v{VWC} offset:128
ds_read_u16 v{CA+2}, v{VWC} offset:256
ds_read_u16 v{CA+3}, v{VWC} offset:384
s_mov_b32 s49, 0xf000f000
s_waitcnt lgkmcnt(4)
""")
    PP = OPT.get("pollpos", "2")
    polls = [f"buffer_load_dwordx2 {pr(PT+2*k)}, v4, s[32:35], s{40+k} offen sc1" for k in range(8)]
    tile_mfmas(a, 96, XF, TOT)
    if PP == "0":
        for l in polls:
            a(l)
    a("s_waitcnt lgkmcnt(0)")
    for k in range(4):
        a(f"v_lshlrev_b32 v{CA+k}, 16, v{CA+k}")
    for k in range(4):
        a(f"v_mul_f32 v{CA+k}, {NLOG2E:#x}, v{CA+k}")
    a(f"v_cvt_pk_bf16_f32 v{CN}, v{CA}, v{CA+1}")
    a(f"v_cvt_pk_bf16_f32 v{CN+1}, v{CA+2}, v{CA+3}")
    a(f"v_mov_b32 v{V0}, s{S_TAG}")
    a(f"v_mov_b32 v{V1}, s48")
    a("s_mov_b64 exec, s[14:15]")
    a(f"ds_write_b128 v{VAU}, {q4(TOT+8)} offset:{L_U - L_AP}")
    a(f"ds_write_b128 v{VAU}, {q4(TOT+12)} offset:{L_U - L_AP + 64}")
    for i in range(0, 8, 2):
        a(f"v_pk_fma_f32 {pr(TOT+i)}, {pr(TOT+i)}, s[6:7], {pr(NX)}")
    a(f"""
ds_write_b128 v{VAU}, {q4(TOT)}
ds_write_b128 v{VAU}, {q4(TOT+4)} offset:64
s_mov_b64 exec, -1
""")
    if PP == "1":
        for l in polls:
            a(l)
    for p in range(NB):
        for i in range(GS):
            a(f"v_pk_mov_b32 {pr(stepbuf(p, i))}, {pr(CN)}, {pr(CN)} op_sel:[0,1]")
    for i in range(0, 16, 2):
        a(f"v_pk_mov_b32 {pr(TOT+i)}, 0, 0")
    if int(OPT.get("presleep", 0)):
        a(f"s_sleep {OPT['presleep']}")
    a("@S23")
    if PP != "2":
        a("s_branch K_POLL_CHECK")
    a("K_POLL:")
    for k in range(8):
        a(f"buffer_load_dwordx2 {pr(PT+2*k)}, v4, s[32:35], s{40+k} offen sc1")
    a("K_POLL_CHECK:")
    a(f"v_mov_b32 v{V2}, 0")
    for k in range(8):
        a(f"s_waitcnt vmcnt({7-k})")
        a(f"v_xor_b32 v{V3}, v{PT+2*k}, v{V1}")
        a(f"v_xor_b32 v{V4}, v{PT+2*k+1}, v{V0}")
        a(f"v_and_or_b32 v{V2}, v{V3}, s49, v{V2}")
        a(f"v_and_b32 v{VTT+k}, 0x0fff0fff, v{PT+2*k}")
        a(f"v_or_b32 v{V2}, v{V4}, v{V2}")
    a(f"""
v_cmp_ne_u32 vcc, 0, v{V2}
s_cbranch_vccnz K_POLL_RETRY
K_POLLOK:
@S24
s_mov_b64 exec, 1
ds_add_u32 v{VZ}, v{VFOUR} offset:{L_ACKS}
s_mov_b64 exec, -1
""")
    for k in range(8):
        a(f"v_mad_u32_u16 v{VRA+k}, v{VTT+k}, 12, v5")
        a(f"v_cmp_gt_u32_sdwa s[{80+2*k}:{81+2*k}], v{VTT+k}, v6 src0_sel:WORD_1 src1_sel:DWORD")
        if k < 7:
            a(f"v_add_u32 v5, {4*RECS}, v5")
        r = recset(8 + k)
        a(f"s_mov_b64 exec, s[{80+2*k}:{81+2*k}]")
        a(f"s_cbranch_execz K_M1L{k}")
        a(f"buffer_load_dwordx3 v[{r}:{r+2}], v{VRA+k}, s[32:35], 0 offen offset:192 sc1")
        a(f"K_M1L{k}:")
        a("s_mov_b64 exec, -1")
        a(f"v_cmp_gt_u32_sdwa s[{64+2*k}:{65+2*k}], v{VTT+k}, v2 src0_sel:WORD_1 src1_sel:DWORD")
    for k in range(8):
        r = recset(k)
        a(f"s_mov_b64 exec, s[{64+2*k}:{65+2*k}]")
        a(f"buffer_load_dwordx3 v[{r}:{r+2}], v{VRA+k}, s[32:35], 0 offen sc1")
    a(f"""
s_mov_b64 exec, -1
@S25
v_max3_u32 v4, v{VTT}, v{VTT+1}, v{VTT+2}
v_max3_u32 v5, v{VTT+3}, v{VTT+4}, v{VTT+5}
v_max3_u32 v4, v4, v{VTT+6}, v{VTT+7}
v_max_u32 v4, v4, v5
v_lshrrev_b32 v{VMAXL}, 16, v4
s_waitcnt vmcnt(8)
""")

    def A_(j):
        a(f"s_waitcnt vmcnt({7 - j})")
        a(f"s_mov_b64 exec, s[{64+2*j}:{65+2*j}]")
        place_atomic(a, recset(j), VCA + j)

    def W_(j, n):
        a(f"s_mov_b64 exec, s[{64+2*j}:{65+2*j}]")
        if n is not None:
            a(f"s_waitcnt lgkmcnt({n})")
        place_write(a, recset(j), VCA + j)
    for j in range(8):
        a(f"s_mov_b64 exec, s[{80+2*j}:{81+2*j}]")
        a(f"s_cbranch_execz K_M1A{j}")
        place_atomic(a, recset(8 + j), VCA + 8 + j)
        a(f"K_M1A{j}:")
    A_(0); A_(1)
    a("s_waitcnt lgkmcnt(2)")
    for j in range(8):
        a(f"s_mov_b64 exec, s[{80+2*j}:{81+2*j}]")
        a(f"s_cbranch_execz K_M1W{j}")
        place_write(a, recset(8 + j), VCA + 8 + j)
        a(f"K_M1W{j}:")
    A_(2)
    W_(0, 1)
    W_(1, None)
    A_(3)
    W_(2, 5)
    A_(4)
    W_(3, 3)
    A_(5)
    W_(4, 3)
    A_(6)
    a("s_mov_b64 exec, -1")
    a(f"ds_read_b32 v7, v{VZ} offset:{L_ACKS}")
    W_(5, 4)
    A_(7)
    a("@S26")
    npf, pfs = int(OPT["npf"]), int(OPT["pfs"])
    a(f"""
s_mov_b64 exec, -1
v_cmp_lt_u32 vcc, 32, v{VMAXL}
s_waitcnt lgkmcnt(3)
v_readfirstlane_b32 s40, v7
s_cbranch_vccnz K_LONG_ENTRY
K_PLACED:
s_cmp_lg_u32 s40, 32
s_cbranch_scc1 K_NOPF
""")
    if npf:
        a(f"""
s_lshr_b32 s40, s2, 3
s_mul_i32 s40, s40, {782*128}
v_mul_u32_u24 v7, {pfs}, v0
v_add_u32 v7, s40, v7
""")
        for p in range(-(-npf // 512)):
            if p:
                a(f"v_add_u32 v7, {512*pfs}, v7")
            if npf - 512 * p < 512:
                a(f"v_cmp_gt_u32 vcc, {npf - 512*p}, v0")
                a("s_mov_b64 exec, vcc")
            a(f"buffer_load_dword v{VPF}, v7, s[28:31], 0 offen sc1")
    R = X0
    a(f"""
K_NOPF:
s_waitcnt lgkmcnt(0)
@S27
s_barrier
@S28
""")
    W_(6, None)
    W_(7, None)
    a(f"""
s_mov_b64 exec, -1
K_RANK:
v_lshlrev_b32 v4, 2, v1
ds_read_b32 v{R}, v4 offset:{L_CNT}
""")
    for i in range(1, 6):
        a(f"s_add_u32 s{40+i}, s3, {8*i}")
    a(f"""
v_cmp_gt_u32_e64 s[52:53], 48, v1
v_lshl_add_u32 v{R+2}, v1, 3, s3
v_mul_u32_u24 v{R+6}, {CS*4}, v{R+2}
v_mul_u32_u24 v{R+7}, {US}, v{R+2}
v_add_u32 v{R+7}, {L_AP}, v{R+7}
v_lshlrev_b32 v{R+2}, 2, v{R+2}
s_waitcnt lgkmcnt(0)
v_cmp_lt_u32 vcc, {CAP*4}, v{R}
v_lshl_add_u32 v{R+1}, v{R}, 4, v1
v_add_u32 v{R+1}, 1, v{R+1}
s_cbranch_vccnz K_SLOW_ENTRY
v_cndmask_b32_e64 v{R+1}, 0, v{R+1}, s[52:53]
v_readlane_b32 s50, v{R}, 48
""")
    for i in range(6):
        a(f"v_readlane_b32 s{64+i}, v{R+1}, s{3 if i == 0 else 40+i}")
    a(f"s_add_u32 s51, s50, {4*(4*GS-1)}")
    for i in range(6):
        a(f"v_cmp_lt_u32_e64 s[{72+2*i}:{73+2*i}], s{64+i}, v{R+1}")
    if GS == 2:
        a("s_lshr_b32 s51, s51, 5")
    else:
        a("s_lshr_b32 s51, s51, 4")
        a("s_mul_i32 s51, s51, 0x5556")
        a("s_lshr_b32 s51, s51, 16")
    for i in range(6):
        a(f"v_writelane_b32 v{R+3}, s{64+i}, {i}")
        a(f"s_bcnt1_i32_b64 s{72+2*i}, s[{72+2*i}:{73+2*i}]")
    a(f"""
s_max_u32 s51, s51, {MINPS}
s_cmp_eq_u32 s50, 0
s_cselect_b32 s50, 0, s51
s_mul_i32 s50, s50, {GS}
""")
    for i in range(6):
        a(f"v_writelane_b32 v{R+4}, s{72+2*i}, {i}")
    a(f"""
v_lshrrev_b32 v{R+3}, 6, v{R+3}
v_add_u32 v{R+4}, 4, v{R+4}
v_lshlrev_b32 v{R+5}, 3, v{R+4}
v_lshlrev_b32 v{R+8}, 2, v{R+4}
s_mov_b64 exec, 63
ds_write_b64 v{R+5}, {pr(R+6)} offset:{L_TS}
ds_write_b32 v{R+8}, v{R+3} offset:{L_TC}
ds_write_b32 v{R+2}, v{R+4} offset:{L_RK}
s_mov_b64 exec, 15
v_mul_u32_u24 v{R+10}, s50, v4
v_add_u32 v{R+10}, {48*CS*4}, v{R+10}
v_mov_b32 v{R+11}, {L_AP + 48*US}
v_mov_b32 v{R+9}, s50
v_lshlrev_b32 v5, 3, v1
ds_write_b64 v5, {pr(R+10)} offset:{L_TS}
ds_write_b32 v4, v{R+9} offset:{L_TC}
ds_write_b32 v4, v1 offset:{L_RK + 192}
s_mov_b64 exec, -1
v_lshlrev_b32 v4, 4, v2
v_cmp_gt_u32_e64 s[52:53], 13, v2
s_and_b32 s18, s3, 3
s_lshl_b32 s18, s18, 1
s_lshr_b32 s15, s3, 2
s_add_u32 s18, s18, s15
s_add_u32 s15, s18, 1
s_waitcnt lgkmcnt(0)
s_barrier
@S29
; ---- split the group stream evenly over the 8 waves --------------------------------------------
ds_read_b32 v{R}, v4 offset:{L_TC}
v_mov_b32 v{R+4}, 1
v_mov_b32 v{R+5}, 0
s_waitcnt lgkmcnt(0)
v_cmp_ne_u32 vcc, 0, v{R}
v_add_u32 v{R}, {GS-1}, v{R}
""")
    if GS == 2:
        a(f"v_lshrrev_b32 v{R}, 1, v{R}")
    else:
        a(f"v_mul_u32_u24 v{R}, 0x5556, v{R}")
        a(f"v_lshrrev_b32 v{R}, 16, v{R}")
    a(f"""
s_and_b64 s[44:45], vcc, s[52:53]
v_max_u32 v{R}, {MINPS}, v{R}
v_cndmask_b32_e64 v{R}, 0, v{R}, s[44:45]
v_mov_b32 v{R+1}, v{R}
""")
    scan(a, R + 1, row_only=True)
    a(f"""
s_nop 0
v_readlane_b32 s14, v{R+1}, 15
v_sub_u32 v{R+2}, v{R+1}, v{R}
s_cmp_gt_u32 s14, {MAXIT*8}
s_cbranch_scc1 K_SLOW_ENTRY
s_mul_i32 s40, s14, s18
s_mul_i32 s41, s14, s15
s_lshr_b32 s40, s40, 3
s_lshr_b32 s41, s41, 3
s_sub_u32 s{S_IT}, s41, s40
s_cmp_eq_u32 s{S_IT}, 0
s_cbranch_scc1 K_NOWORK
v_cmp_ge_u32_e64 s[42:43], s40, v{R+1}
v_subrev_u32 v{R+3}, s40, v{R+2}
s_and_b32 s42, s42, 0x1fff
s_bcnt1_i32_b32 s42, s42
s_lshl_b32 s46, s42, 5
v_lshl_add_u32 v{VTK}, v3, 3, s46
v_and_b32 v{VTE}, 12, v2
v_lshl_add_u32 v{VTE}, v{VTE}, 1, s46
v_readlane_b32 s43, v{R+2}, s42
ds_read_b64 {pr(R+6)}, v{VTK} offset:{L_TS}
ds_read_b32 v{NXE}, v{VTE} offset:{L_TS}
ds_read_b64 {pr(NX)}, v{VTK} offset:{L_TS + 32}
v_add_u32 v{R+8}, -1, v{R+3}
v_cmp_gt_u32 vcc, 63, v{R+8}
v_lshlrev_b64 {pr(R+4)}, v{R+3}, {pr(R+4)}
s_and_b64 vcc, vcc, s[44:45]
s_sub_u32 s43, s40, s43
v_cndmask_b32 v{R+4}, 0, v{R+4}, vcc
v_cndmask_b32 v{R+5}, 0, v{R+5}, vcc
s_mul_i32 s45, s43, {4*GS}
s_lshl_b32 s47, s45, 1
""")
    for d in (1, 2, 4, 8):
        a(f"v_or_b32_dpp v{R+4}, v{R+4}, v{R+4} row_shr:{d} row_mask:0xf bank_mask:0xf")
        a(f"v_or_b32_dpp v{R+5}, v{R+5}, v{R+5} row_shr:{d} row_mask:0xf bank_mask:0xf")
        a("s_nop 0")
    TI = {1: [Y[0] + 2 * i for i in range(GS)]}
    nxt = HL
    for p in range(2, NB):
        TI[p] = [nxt + 2 * i for i in range(GS)]
        nxt += 2 * GS
    assert nxt <= DEN, (nxt, DEN)
    a(f"""
s_add_u32 s45, s45, {L_KEYS}
s_add_u32 s47, s47, {L_EA}
v_readlane_b32 s{S_MASK}, v{R+4}, 15
v_readlane_b32 s{S_MASK+1}, v{R+5}, 15
s_bfm_b64 s[48:49], s{S_IT}, 0
s_waitcnt lgkmcnt(1)
v_add_u32 v{VK}, s45, v{R+6}
v_add_u32 v{R+7}, v{R+7}, v{IDX[0]+1}
s_and_b64 s[{S_MASK}:{S_MASK+1}], s[{S_MASK}:{S_MASK+1}], s[48:49]
""")
    for i in range(GS):
        a(f"ds_read_b32 v{IDX[i]}, v{VK} offset:{4*i}")
    a(f"""
ds_read_b128 {q4(CA)}, v{R+7}
v_lshl_add_u32 v{VE}, v{NXE}, 1, s47
v_mov_b32 v4, {L_ZERO}
""")
    for p in range(1, NB):
        for i in range(GS):
            a(f"v_mov_b32 v{TI[p][i]+1}, v{IDX[0]+1}")
    a(f"v_cndmask_b32_e64 v{VE}, v4, v{VE}, s[{S_AM}:{S_AM+1}]")
    a("s_waitcnt lgkmcnt(1)")
    for l in gathers(0, IDX):
        a(l)
    for p in range(1, NB):
        a(f"s_bitcmp1_b32 s{S_MASK}, {p}")
        a(f"s_cbranch_scc0 K_PK{p}")
        ev_k(a, 4 * GS * p)
        a(f"K_PK{p}:")
        for i in range(GS):
            a(f"ds_read_b32 v{TI[p][i]}, v{VK} offset:{4*(GS*p+i)}")
    for i in range(GS):
        a(f"ds_read_b64 {pr(AOP[i])}, v{VE} offset:{8*i}")
    a(f"""
s_lshr_b64 s[{S_CM}:{S_CM+1}], s[{S_MASK}:{S_MASK+1}], 3
s_lshr_b64 s[48:49], s[{S_MASK}:{S_MASK+1}], {NB+1}
s_or_b64 s[{S_CM}:{S_CM+1}], s[{S_CM}:{S_CM+1}], s[48:49]
s_mov_b32 s{S_RAW}, s{S_MASK}
s_bitset1_b64 s[{S_MASK}:{S_MASK+1}], s{S_IT}
s_lshr_b64 s[48:49], s[{S_MASK}:{S_MASK+1}], 1
s_or_b64 s[{S_CM}:{S_CM+1}], s[{S_CM}:{S_CM+1}], s[48:49]
s_waitcnt lgkmcnt({GS})
""")
    NG0 = int(OPT["ng0"])
    NG1 = max(NG0, min(NB, 4 if GS == 2 else 3))
    for p in range(1, NG0):
        for l in gathers(p, TI[p]):
            a(l)
    if OPT["prio"] == "1":
        dflt = (24, 12, 4) if GS == 2 else (16, 8, 3)
        t1, t2, t3 = [int(OPT.get(f"thr{i+1}", dflt[i])) for i in range(3)]
        a(f"""
s_setprio 3
s_mov_b32 s{S_PR}, 3
s_mov_b64 s[54:55], 0
s_bitset1_b64 s[54:55], {63 - t1}
s_bitset1_b64 s[54:55], {63 - t2}
s_bitset1_b64 s[54:55], {63 - t3}
s_sub_u32 s46, 63, s{S_IT}
s_lshr_b64 s[54:55], s[54:55], s46
s_or_b64 s[{S_CM}:{S_CM+1}], s[{S_CM}:{S_CM+1}], s[54:55]
""")
    a(f"""
s_ff1_i32_b64 s{S_CNT}, s[{S_CM}:{S_CM+1}]
v_lshlrev_b32 v5, 9, v3
v_lshl_add_u32 v5, v2, 4, v5
s_lshl_b32 s45, s42, 11
s_add_u32 s45, s45, {L_ACC}
s_add_u32 s46, s45, 2048
v_add_u32 v{VFN}, s46, v5
s_cmp_eq_u32 s43, 0
s_cbranch_scc1 K_P2
s_lshl_b32 s45, s3, 11
s_add_u32 s45, s45, {L_EXT}
s_lshl_b32 s46, 1, s3
s_lshl_b32 s47, s42, 2
v_mov_b32 v6, s46
v_mov_b32 v7, s47
s_mov_b64 exec, 1
ds_or_b32 v7, v6 offset:{L_MASK}
s_mov_b64 exec, -1
K_P2:
v_add_u32 v{VF}, s45, v5
""")
    for i in range(0, 8, 2):
        a(f"v_pk_mov_b32 {pr(DEN+i)}, 0, 0")
    a(f"""
v_add_u32 v{VK}, {4*GS*NB}, v{VK}
s_bitcmp1_b32 s{S_RAW}, {NB}
s_cbranch_scc0 K_PK{NB}
""")
    ev_k(a, 0)
    a(f"""
K_PK{NB}:
v_mov_b32 v5, {16*GS}
""")
    eprep1(a)
    a(f"""
@S10
s_waitcnt vmcnt({GS*(NG0-1)}) lgkmcnt(0)
@S15
""")
    for l in mfmas(0):
        a(l)
    for p in range(NG0, NG1):
        for l in gathers(p, TI[p]):
            a(l)
    a(f"""
s_bitcmp1_b32 s{S_RAW}, 1
s_cbranch_scc0 K_PE1
s_nop 2
""")
    ev_e(a, 8 * GS)
    a("K_PE1:")
    for i in range(GS):
        a(f"ds_read_b64 {pr(AOP[i])}, v{VE} offset:{8*(GS+i)}")
    a(f"v_cndmask_b32_e64 v5, 0, v5, s[{S_AM}:{S_AM+1}]")
    eprep2(a)
    for i in range(4 * GS):
        a(f"v_exp_f32 v{Y[0]+i}, v{Y[0]+i}")
    a(f"v_add_u32 v{VE}, v5, v{VE}")
    a(f"s_waitcnt vmcnt({GS*(NG1-2)}) lgkmcnt(0)")
    for l in mfmas(1):
        a(l)
    for p in range(NG1, NB):
        for l in gathers(p, TI[p]):
            a(l)
    a(f"""
s_bitcmp1_b32 s{S_RAW}, 2
s_cbranch_scc0 K_PE2
s_nop 2
""")
    ev_e(a, 0)
    a(f"""
K_PE2:
@C20
s_nop 4
{f".p2align {OPT['align']}" if OPT.get('align') else ''}
K_LOOP:
""")
    order = ORDERS[GS][OPT["order"]].split()
    for k in range(UNR):
        d = ops(k)
        for x in order:
            a(d[x])
        if k == UNR - 1:
            a("s_cbranch_scc0 K_LOOP")
        else:
            a(f"s_cbranch_scc1 K_EV{k}")
            a(f"K_RET{k}:")
    for k in [UNR - 1] + list(range(UNR - 1)):
        kn = (k + 1) % UNR
        ret = f"K_RET{k}" if k < UNR - 1 else "K_LOOP"
        a(f"""
K_EV{k}:
s_ff1_i32_b64 s14, s[{S_CM}:{S_CM+1}]
s_bitset0_b64 s[{S_CM}:{S_CM+1}], s14
s_ff1_i32_b64 s{S_CNT}, s[{S_CM}:{S_CM+1}]
s_lshr_b64 s[40:41], s[{S_MASK}:{S_MASK+1}], s14
s_sub_u32 s{S_CNT}, s{S_CNT}, s14
s_sub_u32 s{S_CNT}, s{S_CNT}, 1
s_bitcmp1_b32 s40, 1
s_cbranch_scc0 K_EV{k}A
ds_write_b128 v{VF}, {q4(DEN)}
ds_write_b128 v{VF}, {q4(NUM)} offset:256
s_lshr_b64 s[42:43], s[40:41], 2
s_cbranch_scc0 K_LOOP_DONE
v_mov_b32 v{VF}, v{VFN}
v_add_u32 v{VFN}, 2048, v{VFN}
""")
        for i in range(0, 8, 2):
            a(f"v_pk_mov_b32 {pr(DEN+i)}, 0, 0")
        a(f"""
K_EV{k}A:
s_bitcmp1_b32 s40, 3
s_cbranch_scc0 K_EV{k}B
""")
        ev_e(a, 8 * GS * kn)
        a(f"""
K_EV{k}B:
s_lshr_b64 s[42:43], s[40:41], {NB+2}
s_cbranch_scc0 K_EV{k}C
s_bitcmp1_b32 s40, {NB+1}
s_cbranch_scc0 K_EV{k}C
""")
        ev_k(a, 4 * GS * kn)
        a(f"K_EV{k}C:")
        if OPT["prio"] == "1":
            a(f"""
s_bitcmp1_b64 s[54:55], s14
s_cbranch_scc0 {ret}
s_sub_u32 s{S_PR}, s{S_PR}, 1
s_setprio 0
s_cmp_eq_u32 s{S_PR}, 0
s_cbranch_scc1 {ret}
s_setprio 1
s_cmp_eq_u32 s{S_PR}, 1
s_cbranch_scc1 {ret}
s_setprio 2
""")
        a(f"s_branch {ret}")
    a(f"""
K_LOOP_DONE:
@C21
@S11
s_setprio 0
s_waitcnt lgkmcnt(0)
s_barrier
@S12
s_mov_b64 exec, s[20:21]
s_cbranch_execz K_COMB_DONE
ds_read_b32 v{R}, v{EMSK} offset:{L_MASK}
""")

    def reads(d, va):
        a(f"ds_read_b128 {q4(d)}, v{va}")
        a(f"ds_read_b128 {q4(d+4)}, v{va} offset:16")
        a(f"ds_read_b128 {q4(d+8)}, v{va} offset:256")
        a(f"ds_read_b128 {q4(d+12)}, v{va} offset:272")

    def adds(d):
        for i in range(0, 16, 2):
            a(f"v_pk_add_f32 {pr(TOT+i)}, {pr(TOT+i)}, {pr(d+i)}")

    def nxt_(lab_last):
        a(f"""
v_ffbl_b32 v{R+1}, v{R}
v_cmp_ne_u32 vcc, 0, v{R}
v_add_u32 v{R+2}, -1, v{R}
v_and_b32 v{R}, v{R}, v{R+2}
v_lshl_add_u32 v{R+1}, v{R+1}, 11, v{EEXT}
s_mov_b64 s[40:41], exec
s_and_b64 exec, exec, vcc
s_cbranch_execz {lab_last}
""")
    D1 = R + 4 + 16
    D0 = R + 4
    reads(D0, EACC)
    a("s_waitcnt lgkmcnt(4)")
    a("K_COMB_A:")
    nxt_("K_COMB_LA")
    reads(D1, R + 1)
    a("s_mov_b64 s[42:43], exec")
    a("s_mov_b64 exec, s[40:41]")
    a("s_waitcnt lgkmcnt(4)")
    adds(D0)
    a("s_mov_b64 exec, s[42:43]")
    nxt_("K_COMB_LB")
    reads(D0, R + 1)
    a("s_mov_b64 s[42:43], exec")
    a("s_mov_b64 exec, s[40:41]")
    a("s_waitcnt lgkmcnt(4)")
    adds(D1)
    a("s_mov_b64 exec, s[42:43]")
    a("s_branch K_COMB_A")
    a("K_COMB_LB:")
    a("s_mov_b64 exec, s[40:41]")
    a("s_waitcnt lgkmcnt(0)")
    adds(D1)
    a("s_branch K_COMB_DONE")
    a("K_COMB_LA:")
    a("s_mov_b64 exec, s[40:41]")
    a("s_waitcnt lgkmcnt(0)")
    adds(D0)
    a(f"""
K_COMB_DONE:
s_mov_b64 exec, -1
s_cmp_lg_u32 s{S_MODE}, 0
s_cbranch_scc1 K_SLOW_NEXT
K_FINAL:
s_cmp_lg_u32 s3, 6
s_cbranch_scc1 K_FIN2
""")
    for i in range(16):
        a(f"v_add_f32_dpp v{TOT+i}, v{TOT+i}, v{TOT+i} row_ror:8 row_mask:0xf bank_mask:0xf")
    for i in range(16):
        a(f"ds_swizzle_b32 v{D0+i}, v{TOT+i} offset:0x401F")
    a("s_waitcnt lgkmcnt(0)")
    for i in range(0, 16, 2):
        a(f"v_pk_add_f32 {pr(TOT+i)}, {pr(TOT+i)}, {pr(D0+i)}")
    eps = struct.unpack("<I", struct.pack("<f", 1e-6 * 2.0**KEXP))[0]
    a(f"""
K_FIN2:
s_mov_b32 s14, {eps:#x}
s_mov_b32 s15, {eps:#x}
""")
    for i in range(0, 8, 2):
        a(f"v_pk_add_f32 {pr(TOT+i)}, {pr(TOT+i)}, s[14:15]")
    for i in range(8):
        a(f"v_rcp_f32 v{TOT+i}, v{TOT+i}")
    a("s_nop 0")
    for i in range(0, 8, 2):
        a(f"v_pk_fma_f32 {pr(EU+i)}, {pr(TOT+8+i)}, {pr(TOT+i)}, {pr(EU+i)}")
    for i in range(8):
        a(f"v_max_f32 v{EU+i}, 0, v{EU+i}")
    for i in range(0, 8, 2):
        a(f"v_pk_add_f32 {pr(EX+i)}, {pr(EX+i)}, {pr(EU+i)}")
    for i in range(4):
        a(f"v_cvt_pk_bf16_f32 v{EX+i}, v{EX+2*i}, v{EX+2*i+1}")
    a(f"""
buffer_store_dwordx4 {q4(EX)}, v{EOUT}, s[36:39], 0 offen {OPT['st_out']}
@S13
@Wvmcnt(0)
@S14
@Vs{S_IT},22
@OUT
K_END:
s_endpgm
K_NOWORK:
""")
    eprep1(a)
    a("s_waitcnt lgkmcnt(0)")
    eprep2(a)
    a(f"""
s_branch K_LOOP_DONE
K_TAG_RETRY:
s_waitcnt lgkmcnt(0)
s_memrealtime s[52:53]
s_sleep 4
global_load_dword v64, v{VZ}, s[84:85] sc1
s_waitcnt vmcnt(0) lgkmcnt(0)
s_sub_u32 s52, s52, s50
s_cmp_lt_u32 s52, 0x400000
s_cbranch_scc1 K_TAGW
s_branch K_TAGOK
K_POLL_RETRY:
s_memrealtime s[52:53]
s_sleep {OPT['sleep']}
s_waitcnt lgkmcnt(0)
s_sub_u32 s52, s52, s50
s_cmp_lt_u32 s52, 0x400000
s_cbranch_scc1 K_POLL
""")
    for k in range(8):
        a(f"v_cndmask_b32 v{VTT+k}, v{VTT+k}, v{VZ}, vcc")
    a(f"""
s_branch K_POLLOK
K_LONG_ENTRY:
s_mov_b32 s14, 32
K_LONG:
v_add_u32 v6, s14, v2
s_mul_i32 s15, s14, 12
""")
    for k in range(8):
        a(f"""
s_mov_b64 exec, -1
v_cmp_gt_u32_sdwa vcc, v{VTT+k}, v6 src0_sel:WORD_1 src1_sel:DWORD
s_and_saveexec_b64 s[42:43], vcc
s_cbranch_execz K_LONG_S{k}
buffer_load_dwordx3 v[{R}:{R+2}], v{VRA+k}, s[32:35], s15 offen sc1
s_waitcnt vmcnt(0)
""")
        place_atomic(a, R, 4)
        a("s_waitcnt lgkmcnt(0)")
        place_write(a, R, 4)
        a(f"K_LONG_S{k}:")
    a(f"""
s_mov_b64 exec, -1
s_add_u32 s14, s14, 16
v_cmp_lt_u32 vcc, s14, v{VMAXL}
s_cbranch_vccnz K_LONG
s_branch K_PLACED
K_SLOW_ENTRY:
ds_max_u32 v{VZ}, v{VMAXL} offset:{L_MAXL}
s_waitcnt lgkmcnt(0)
s_barrier
ds_read_b32 v5, v{VZ} offset:{L_MAXL}
s_mov_b32 s{S_MODE}, 1
s_mov_b32 s{S_I}, 0
s_mov_b32 s{S_MO}, 0
s_waitcnt lgkmcnt(0)
v_readfirstlane_b32 s{S_ML}, v5
s_branch K_SLOW_BATCH
K_SLOW_NEXT:
s_add_u32 s{S_I}, s{S_I}, 1
s_cmp_lt_u32 s{S_I}, 64
s_cbranch_scc1 K_SLOW_BATCH
s_mov_b32 s{S_I}, 0
s_add_u32 s{S_MO}, s{S_MO}, 16
s_cmp_ge_u32 s{S_MO}, s{S_ML}
s_cbranch_scc1 K_FINAL
K_SLOW_BATCH:
s_waitcnt vmcnt(0) lgkmcnt(0)
s_barrier
""")
    slots_init(a, R, True)
    a(f"""
s_waitcnt lgkmcnt(0)
s_barrier
s_cmp_lg_u32 s3, 0
s_cbranch_scc1 K_SLOW_S
s_lshl_b32 s14, s{S_I}, 2
v_add_u32 v7, s14, v3
s_lshl_b32 s15, s{S_B}, 3
v_lshl_add_u32 v4, v7, 11, s15
buffer_load_dword v5, v4, s[32:35], 0 offen sc1
s_mov_b32 s15, {RECS}
v_mul_lo_u32 v7, v7, s15
v_add_u32 v6, s{S_MO}, v2
v_mad_u32_u24 v7, v6, 12, v7
v_add_u32 v7, {REC_REL}, v7
s_waitcnt vmcnt(0)
v_and_b32 v5, 0x0fff0fff, v5
v_mad_u32_u16 v4, v5, 12, v7
v_cmp_gt_u32_sdwa vcc, v5, v6 src0_sel:WORD_1 src1_sel:DWORD
s_and_saveexec_b64 s[40:41], vcc
s_cbranch_execz K_SLOW_S
buffer_load_dwordx3 v[{R}:{R+2}], v4, s[32:35], 0 offen sc1
s_waitcnt vmcnt(0)
""")
    place_atomic(a, R, 4)
    a("s_waitcnt lgkmcnt(0)")
    place_write(a, R, 4)
    a("""
K_SLOW_S:
s_mov_b64 exec, -1
s_waitcnt lgkmcnt(0)
s_barrier
s_branch K_RANK
""")
    return a.text()


HEADER = open("standalone__edge_featured_mpnn_gatedgcn__graph.s.ref").read().split("; Override launch")[0]


def main():
    out = HEADER
    out += f"; @launch grid=(256,1,1) block=(512,1,1) lds={LDS}\n"
    out += '.amdgcn_target "amdgcn-amd-amdhsa--gfx950"\n.text\n'
    out += f".globl {KNAME}\n.p2align 8\n.type {KNAME},@function\n" + kernel()
    out += f""".section .rodata,"a"
.p2align 6
.amdhsa_kernel {KNAME}
  .amdhsa_next_free_vgpr {NVGPR}
  .amdhsa_next_free_sgpr {101 if STAMPS else 98}
  .amdhsa_accum_offset {(NVGPR + 3) // 4 * 4}
  .amdhsa_group_segment_fixed_size 0
  .amdhsa_kernarg_size 96
  .amdhsa_user_sgpr_count 2
  .amdhsa_user_sgpr_kernarg_segment_ptr 1
  .amdhsa_system_sgpr_workgroup_id_x 1
.end_amdhsa_kernel
"""
    open(sys.argv[1], "w").write(out)


main()
```

```python
import sys
import struct
from math import gcd

N = 12500
E = 800000
QCH = 782
QH = QCH // 2
CH = QCH * 4
NQ = E // 4
RECB = CH * 12
RECS = 37760
TAB_ROWS = N + 1
TAB_BYTES = TAB_ROWS * 256
T_OFF = 0x310000
T2_REL = 0x80000
REC_REL = 0x81000
TR_BYTES = REC_REL + 256 * RECS
BIG = 0x40000000
NLOG2E = 0xbfb8aa3b
CAP = 128
CS = 132
XSS = 144
US = 272

OPT = dict(align="3", cpf="7", packpos="b", gs="2", nb="5", prio="1", order="c", npf="352", pfs="128", sleep="2", ng0="2", st_out="nt", cadd="1")
for a_ in sys.argv[2:]:
    k_, v_ = a_.split("=")
    OPT[k_] = v_
STAMPS = bool(OPT.get("stamps"))
GS = int(OPT["gs"])
NB = int(OPT["nb"] or (6 if GS == 2 else 4))
UNR = NB * 2 // gcd(NB, 2)
MINPS = NB + 1
MAXIT = 62
PLAIN = OPT.get('plain') == '1'
KEXP = 0 if PLAIN else (60 if GS == 2 else 40)
KBITS = (127 - KEXP) << 23
DBG_OFF = 0x1000000
KNAME = "standalone__edge_featured_mpnn_gatedgcn__graph_kernel"

L_CNT = 0
L_MASK = 256
L_MAXL = 324
L_ACKS = 328
L_ZERO = 384
L_TS = 640
L_TC = 1536
L_RK = 1792
L_HIST, L_START = 0, 1024
L_EA = 2048
EA_BYTES = 49 * CS * 8 + 32
L_KEYS = L_EA + EA_BYTES
KEY_BYTES = 49 * CS * 4 + 16
L_ACC = L_KEYS + KEY_BYTES
L_EXT = L_ACC + 52 * 512
L_STAGE = L_ACC
L_AP = L_EXT + 8 * 2048
L_U = L_AP + 49 * US
L_XS = L_U + 49 * US
L_WC = L_XS + 64 * XSS
LDS = L_WC + 512
assert 8 * GS * UNR + 8 <= L_TS - L_ZERO

_nv = [8]


def valloc(n, align=2):
    _nv[0] = (_nv[0] + align - 1) // align * align
    r = _nv[0]
    _nv[0] += n
    return r


GB = valloc(6 * GS * NB)
Y = (valloc(4 * GS), valloc(4 * GS))
HL = valloc(2 * GS)
P2, MM, SA, UU = valloc(4), valloc(4), valloc(4), valloc(4)
DEN = valloc(8)
NUM = DEN + 4
_nv[0] = max(_nv[0], 128)
AOP = [valloc(4) for _ in range(GS)]
CA, CN = valloc(4), valloc(4)
IDX = [valloc(2) for _ in range(GS)]
NX = valloc(2)
VK, VE, VF, VFN, VTK, VTE, NXE, VINC = [valloc(1, 1) for _ in range(8)]
TOT = valloc(16)
VTT = valloc(8)
VRA = valloc(8)
VCA = valloc(16)
PT = VCA
T2R = valloc(8)
VMAXL, VPF, VFOUR, VZ = [valloc(1, 1) for _ in range(4)]
EU, EX = valloc(8), valloc(8)
EACC, EEXT, EMSK, EOUT, ERK, ECN = [valloc(1, 1) for _ in range(6)]
VST = valloc(2)
NVGPR = _nv[0]
assert NVGPR <= 256, NVGPR
X0 = Y[0]
assert NUM + 4 - X0 >= 40

S_IT, S_MODE, S_I, S_MO, S_ML, S_CNT = 4, 5, 6, 7, 8, 9
S_K = 10
S_RAW = 12
S_B = 13
S_CM = 56
S_PR = 58
S_CS = 59
S_MASK = 60
S_AM = 62
S_TAG, S_TAG2, S_T2OK = 96, 97, 19


def stepbuf(p, i):
    return GB + 6 * (GS * (p % NB) + i)


def recset(j):
    return GB + 6 * j + 2 if j < GS * NB else X0 + 4 * (j - GS * NB)


class Asm:
    def __init__(self):
        self.L = []

    def __call__(self, s):
        for l in s.strip("\n").split("\n"):
            l = l.strip()
            if not l:
                continue
            if l.startswith("@"):
                if STAMPS:
                    self.special(l)
                continue
            self.L.append(l if l.endswith(":") else "    " + l)

    def special(self, l):
        if l.startswith("@S") or l.startswith("@C"):
            self(f"{'s_memtime' if l[1] == 'C' else 's_memrealtime'} s[98:99]")
            self("s_waitcnt lgkmcnt(0)")
            self(f"v_writelane_b32 v{VST}, s98, {int(l[2:])}")
        elif l.startswith("@W"):
            self("s_waitcnt " + l[2:])
        elif l.startswith("@V"):
            r, i = l[2:].split(",")
            self(f"v_writelane_b32 v{VST}, {r}, {i}")
        elif l.startswith("@OUT"):
            self(f"""
s_mov_b64 exec, -1
s_lshl_b32 s100, s2, 4
s_add_u32 s100, s100, s3
s_lshl_b32 s100, s100, 8
s_add_u32 s100, s100, {DBG_OFF + 0x100000:#x}
v_and_b32 v{VST+1}, 63, v0
v_lshl_add_u32 v{VST+1}, v{VST+1}, 2, s100
global_store_dword v{VST+1}, v{VST}, s[16:17]
""")

    def text(self):
        return "\n".join(self.L) + "\n"


def pr(r):
    return f"v[{r}:{r+1}]"


def q4(r):
    return f"v[{r}:{r+3}]"


def srd(a, d, lo, hi, nbytes, stride=0):
    a(f"s_mov_b32 s{d}, s{lo}")
    a(f"s_and_b32 s{d+1}, s{hi}, 0xffff")
    if stride:
        a(f"s_or_b32 s{d+1}, s{d+1}, {stride << 16:#x}")
    a(f"s_mov_b32 s{d+2}, {nbytes}")
    a(f"s_mov_b32 s{d+3}, 0x20000")


def scan(a, v, row_only=False, fill=()):
    fill = list(fill)
    steps = [f"row_shr:{d} row_mask:0xf" for d in (1, 2, 4, 8)]
    if not row_only:
        steps += ["row_bcast:15 row_mask:0xa", "row_bcast:31 row_mask:0xc"]
    for st in steps:
        if fill:
            a(fill.pop(0))
            a("s_nop 0")
        else:
            a("s_nop 1")
        a(f"v_add_u32_dpp v{v}, v{v}, v{v} {st} bank_mask:0xf")


SDWA_B0 = "dst_sel:DWORD dst_unused:UNUSED_PAD src0_sel:DWORD src1_sel:BYTE_0"


def tr_reads(a, vaddr, base, r0):
    for mat in range(2):
        for t in range(2):
            for s in range(2):
                r = r0 + 16 * mat + 8 * t + 4 * s
                o = base + mat * 8192 + s * 4096
                a(f"ds_read_b64_tr_b16 {pr(r)}, v{vaddr[t]} offset:{o}")
                a(f"ds_read_b64_tr_b16 {pr(r+2)}, v{vaddr[t]} offset:{o + 512}")


def tile_mfmas(a, r0, x0, d0):
    for s in range(2):
        for mat in range(2):
            for t in range(2):
                f = r0 + 16 * mat + 8 * t + 4 * s
                d = d0 + 8 * mat + 4 * t
                c = "0" if s == 0 else q4(d)
                a(f"v_mfma_f32_16x16x32_bf16 {q4(d)}, {q4(f)}, {q4(x0+4*s)}, {c}")


def slots_init(a, r, small):
    for i in range(4):
        a(f"v_mov_b32 v{r+i}, 0")
    for i in range(4):
        a(f"v_mov_b32 v{r+4+i}, {N}")
    z0 = 0 if small else L_EA
    a(f"v_lshlrev_b32 v{r+8}, 4, v0")
    a(f"v_add_u32 v{r+9}, {L_KEYS}, v{r+8}")
    nz, nk = (L_KEYS - z0) // 16, KEY_BYTES // 16
    for i in range(nz // 512):
        a(f"ds_write_b128 v{r+8}, {q4(r)} offset:{z0 + 8192*i}")
    for i in range(nk // 512):
        a(f"ds_write_b128 v{r+9}, {q4(r+4)} offset:{8192*i}")
    for rem, reg, data, off in sorted([(nz % 512, r + 8, r, z0 + 8192 * (nz // 512)), (nk % 512, r + 9, r + 4, 8192 * (nk // 512))], reverse=True):
        a(f"v_cmp_gt_u32 vcc, {rem}, v0")
        a("s_mov_b64 exec, vcc")
        a(f"ds_write_b128 v{reg}, {q4(data)} offset:{off}")
    a("s_mov_b64 exec, -1")


def place_atomic(a, r, ca):
    a(f"v_and_b32 v{ca}, 0xfc, v{r+2}")
    a(f"ds_add_rtn_u32 v{r+3}, v{ca}, v{VFOUR} offset:{L_CNT}")


def place_write(a, r, ca):
    a(f"v_min_u32 v{r+3}, {CAP*4}, v{r+3}")
    a(f"v_mad_u32_u24 v{ca}, v{ca}, s{S_CS}, v{r+3}")
    a(f"v_lshrrev_b32 v{r+2}, 8, v{r+2}")
    a(f"v_add_u32 v{r+3}, v{ca}, v{ca}")
    a(f"ds_write_b32 v{ca}, v{r+2} offset:{L_KEYS}")
    a(f"ds_write_b64 v{r+3}, {pr(r)} offset:{L_EA}")


def ev_k(a, sub):
    a(f"""
v_add_u32 v{VK}, {L_KEYS - sub}, v{NX}
v_add_u32 v4, v{NX+1}, v{IDX[0]+1}
v_add_u32 v{VTK}, 32, v{VTK}
v_add_u32 v{VTE}, 32, v{VTE}
ds_read_b128 {q4(CN)}, v4
ds_read_b32 v{NXE}, v{VTE} offset:{L_TS}
ds_read_b64 {pr(NX)}, v{VTK} offset:{L_TS + 32}
""")


def ev_e(a, sub):
    a(f"""
v_lshlrev_b32 v{VE}, 1, v{NXE}
v_add_u32 v{VE}, {L_EA - sub}, v{VE}
v_mov_b32 v4, {L_ZERO}
v_pk_mov_b32 {pr(CA)}, {pr(CN)}, {pr(CN)} op_sel:[0,1]
v_pk_mov_b32 {pr(CA+2)}, {pr(CN+2)}, {pr(CN+2)} op_sel:[0,1]
v_cndmask_b32_e64 v{VE}, v4, v{VE}, s[{S_AM}:{S_AM+1}]
""")


def gathers(p, idx):
    return [f"buffer_load_dwordx4 {q4(stepbuf(p, i) + 2)}, {pr(idx[i])}, s[24:27], 0 idxen offen sc1" for i in range(GS)]


def mfmas(p):
    y = Y[p & 1]
    return [f"v_mfma_f32_16x16x32_bf16 {q4(y+4*i)}, {q4(AOP[i])}, {q4(stepbuf(p, i))}, {q4(CA)}" for i in range(GS)]


def ops(k):
    y, yn = Y[k & 1], Y[1 - (k & 1)]
    b = [stepbuf(k, i) + 4 for i in range(GS)]
    sk = f"s[{S_K}:{S_K+1}]"
    d = {}
    for i in range(4 * GS):
        d[f"E{i}"] = f"v_exp_f32 v{yn+i}, v{yn+i}"
    for i in range(2 * GS):
        if OPT["cadd"] == "1":
            d[f"C{i}"] = f"v_pk_add_f32 {pr(y+2*i)}, {pr(y+2*i)}, {sk} clamp"
        else:
            d[f"C{i}"] = f"v_pk_fma_f32 {pr(y+2*i)}, {pr(y+2*i)}, {sk}, {sk} clamp"
    for i in range(4):
        d[f"R{i}"] = f"v_rcp_f32 v{MM+i}, v{MM+i}"
    for i in range(2):
        p = [pr(y + 4 * j + 2 * i) for j in range(GS)]
        h = [pr(HL + 2 * j) if i == 0 else pr(b[j]) for j in range(GS)]
        m, s, u, p2 = pr(MM + 2 * i), pr(SA + 2 * i), pr(UU + 2 * i), pr(P2 + 2 * i)
        d[f"m{i}"] = f"v_pk_mul_f32 {m if GS == 2 else p2}, {p[0]}, {p[1]}"
        d[f"a{i}"] = f"v_pk_add_f32 {s}, {p[0]}, {p[1]}"
        d[f"g{i}"] = f"v_pk_mul_f32 {u}, {p[1]}, {h[0]}"
        d[f"h{i}"] = f"v_pk_fma_f32 {u}, {p[0]}, {h[1]}, {u}"
        if GS == 3:
            d[f"M{i}"] = f"v_pk_mul_f32 {m}, {p2}, {p[2]}"
            d[f"s{i}"] = f"v_pk_fma_f32 {s}, {s}, {p[2]}, {p2}"
            d[f"i{i}"] = f"v_pk_mul_f32 {u}, {u}, {p[2]}"
            d[f"j{i}"] = f"v_pk_fma_f32 {u}, {p2}, {h[2]}, {u}"
        d[f"d{i}"] = f"v_pk_fma_f32 {pr(DEN+2*i)}, {s}, {m}, {pr(DEN+2*i)}"
        d[f"n{i}"] = f"v_pk_fma_f32 {pr(NUM+2*i)}, {u}, {m}, {pr(NUM+2*i)}"
    if PLAIN:
        for i in range(2 * GS):
            d[f"C{i}"] = f"v_pk_add_f32 {pr(y+2*i)}, {pr(y+2*i)}, {sk}"
            j, hf = i >> 1, i & 1
            hh = pr(HL + 2 * j) if hf == 0 else pr(b[j])
            d[f"D{i}"] = f"v_pk_add_f32 {pr(DEN+2*hf)}, {pr(DEN+2*hf)}, {pr(y+2*i)}"
            d[f"U{i}"] = f"v_pk_fma_f32 {pr(NUM+2*hf)}, {pr(y+2*i)}, {hh}, {pr(NUM+2*hf)}"
        for i in range(4 * GS):
            d[f"r{i}"] = f"v_rcp_f32 v{y+i}, v{y+i}"
    for i in range(GS):
        d[f"Q{i}"] = f"v_lshlrev_b64 {pr(HL+2*i)}, 16, {pr(b[i])}"
        d[f"N{i}"] = mfmas(k + 2)[i]
        d[f"L{i}"] = gathers(k, IDX)[i]
        d[f"k{i}"] = f"ds_read_b32 v{IDX[i]}, v{VK} offset:{4*(GS*k+i)}"
        d[f"e{i}"] = f"ds_read_b64 {pr(AOP[i])}, v{VE} offset:{8*(GS*k+i)}"
    if OPT.get("eam") == "1":
        d["e0"] = f"s_mov_b64 exec, s[{S_AM}:{S_AM+1}]\n" + d["e0"]
        d[f"e{GS-1}"] += "\ns_mov_b64 exec, -1"
    if OPT.get("exp") == "nold":
        for i in range(GS): d[f"L{i}"] = ""
    if OPT.get("exp") == "nolds":
        for i in range(GS): d[f"k{i}"] = ""; d[f"e{i}"] = ""
    if OPT.get("exp") == "nom":
        for i in range(GS): d[f"N{i}"] = ""
    for ch in OPT.get("drop", ""):
        for key in list(d):
            if key[0] == ch and key[1:].isdigit(): d[key] = ""
    d["W"] = f"s_waitcnt vmcnt({GS*(NB-3)}) lgkmcnt(0)"
    d["S"] = f"s_sub_u32 s{S_CNT}, s{S_CNT}, 1"
    d["A0"] = f"v_add_u32 v{VK}, {4*GS*UNR}, v{VK}" if k == UNR - 1 else ""
    d["A1"] = f"v_add_u32 v{VE}, v{VINC}, v{VE}" if k == UNR - 1 else ""
    return d


ORDERS = {
    2: {
        "p": "k0 k1 e0 e1 C0 C1 r0 C2 r1 C3 r2 Q0 r3 Q1 r4 D0 r5 U0 r6 D1 r7 U1 E0 D2 E1 U2 E2 D3 E3 U3 A0 A1 W L0 L1 S N0 E4 E5 N1 E6 E7",
        "q": "k0 k1 e0 e1 C0 C1 C2 C3 r0 r1 r2 r3 Q0 Q1 r4 r5 r6 r7 D0 U0 D1 U1 D2 U2 D3 U3 A0 A1 W L0 L1 S N0 E0 E1 E2 E3 N1 E4 E5 E6 E7",
        "b": "k0 k1 e0 e1 C0 E0 C2 E1 C1 E2 C3 E3 m0 E4 m1 E5 S Q0 Q1 A0 A1 a0 a1 g0 g1 h0 h1 W N0 R0 R1 N1 R2 R3 L0 L1 E6 d0 E7 d1 n0 n1",
        "c": "k0 k1 e0 e1 C0 C2 E0 m0 E1 C1 C3 E2 m1 E3 Q0 E4 Q1 E5 A0 A1 a0 a1 g0 g1 h0 h1 W L0 L1 S N0 R0 R1 N1 R2 R3 E6 d0 E7 d1 n0 n1",
        "d": "k0 k1 e0 e1 Q0 Q1 C0 E0 C2 E1 C1 E2 C3 E3 g0 E4 g1 E5 h0 h1 A0 A1 m0 m1 a0 a1 W L0 L1 S N0 R0 R1 N1 R2 R3 E6 d0 E7 d1 n0 n1",
        "e": "k0 k1 e0 e1 C0 E0 C2 E1 m0 E2 C1 R0 C3 R1 m1 E3 Q0 Q1 A0 A1 a0 a1 g0 g1 h0 h1 W L0 L1 S N0 R2 R3 N1 E4 E5 d0 E6 n0 E7 d1 n1",
        "f": "k0 k1 e0 e1 C0 E0 C2 E1 C1 E2 C3 E3 m0 m1 Q0 Q1 A0 A1 a0 a1 g0 g1 h0 h1 W L0 L1 S N0 R0 R1 E4 N1 R2 R3 E5 d0 E6 d1 E7 n0 n1",
        "g": "C0 E0 C2 E1 C1 E2 C3 E3 k0 k1 e0 e1 m0 E4 m1 E5 Q0 Q1 A0 A1 a0 a1 g0 g1 h0 h1 W L0 L1 S N0 R0 R1 N1 R2 R3 E6 d0 E7 d1 n0 n1",
        "h": "k0 k1 e0 e1 C0 E0 C2 E1 C1 E2 C3 E3 m0 E4 m1 E5 Q0 Q1 A0 A1 g0 g1 h0 h1 a0 a1 W L0 L1 S N0 R0 R1 N1 R2 R3 E6 E7 d0 d1 n0 n1",
        "": "k0 k1 e0 e1 C0 E0 C2 E1 C1 E2 C3 E3 m0 E4 m1 E5 Q0 Q1 A0 A1 a0 a1 g0 g1 h0 h1 W L0 L1 S N0 R0 R1 N1 R2 R3 E6 d0 E7 d1 n0 n1",
    },
    3: {
        "d": "k0 k1 k2 e0 e1 e2 C0 E0 C2 E1 C4 E2 C1 E3 C3 E4 C5 E5 m0 m1 M0 M1 Q0 Q1 Q2 A0 A1 a0 a1 g0 g1 s0 s1 h0 h1 i0 i1 j0 j1 W L0 L1 L2 S N0 R0 R1 N1 R2 R3 N2 E6 E7 E8 d0 E9 d1 E10 n0 E11 n1",
        "e": "k0 k1 k2 e0 e1 e2 Q0 Q1 Q2 C0 E0 C2 E1 C4 E2 C1 E3 C3 E4 C5 E5 m0 m1 g0 g1 M0 M1 A0 A1 h0 h1 a0 a1 i0 i1 s0 s1 j0 j1 W N0 R0 R1 N1 R2 R3 N2 E6 E7 L0 L1 L2 S E8 d0 E9 d1 E10 n0 E11 n1",
        "": "k0 k1 k2 e0 e1 e2 C0 E0 C2 E1 C4 E2 C1 E3 C3 E4 C5 E5 m0 E6 m1 E7 M0 M1 Q0 Q1 Q2 A0 A1 a0 a1 g0 g1 s0 s1 h0 h1 i0 i1 j0 j1 W L0 L1 L2 S N0 R0 R1 N1 R2 R3 N2 E8 E9 d0 E10 d1 E11 n0 n1",
        "b": "k0 k1 k2 e0 e1 e2 C0 E0 C2 E1 C4 E2 C1 E3 C3 E4 C5 E5 m0 m1 M0 M1 Q0 Q1 Q2 A0 A1 a0 a1 g0 g1 s0 s1 h0 h1 i0 i1 j0 j1 W N0 R0 R1 N1 R2 R3 N2 E6 E7 L0 L1 L2 S E8 d0 E9 d1 E10 n0 E11 n1",
        "c": "k0 k1 k2 e0 e1 e2 C0 E0 C2 E1 m0 E2 C4 E3 M0 E4 C1 E5 C3 E6 m1 E7 C5 M1 Q0 Q1 Q2 A0 A1 a0 a1 g0 g1 s0 s1 h0 h1 i0 i1 j0 j1 W L0 L1 L2 S N0 R0 R1 N1 R2 R3 N2 E8 E9 d0 E10 d1 E11 n0 n1",
    },
}


def eprep1(a):
    a(f"""
v_lshrrev_b32 v{EOUT}, 3, v0
v_min_u32 v{EACC}, 48, v{EOUT}
v_lshlrev_b32 v{ERK}, 2, v{EOUT}
v_lshlrev_b32 v{ECN}, 2, v{EACC}
v_and_b32 v{EMSK}, 7, v0
v_lshlrev_b32 v{EEXT}, 5, v{EMSK}
v_cmp_gt_u32_e64 s[20:21], 52, v{EOUT}
s_movk_i32 s22, {US}
v_mad_u32_u24 v6, v{EACC}, s22, v{EEXT}
v_add_u32 v6, {L_U}, v6
v_mul_u32_u24 v7, {XSS}, v{EACC}
v_lshl_add_u32 v7, v{EMSK}, 4, v7
v_add_u32 v7, {L_XS}, v7
ds_read_b32 v{ERK}, v{ERK} offset:{L_RK}
ds_read_b32 v{ECN}, v{ECN} offset:{L_CNT}
ds_read_b128 {q4(EU)}, v6
ds_read_b128 {q4(EU+4)}, v6 offset:16
ds_read_b128 {q4(EX+4)}, v7
v_lshlrev_b32 v{EOUT}, 8, v{EOUT}
v_add_u32 v{EOUT}, s{S_B}, v{EOUT}
v_lshlrev_b32 v{EOUT}, 7, v{EOUT}
v_lshl_add_u32 v{EOUT}, v{EMSK}, 4, v{EOUT}
""")


def eprep2(a):
    a(f"""
v_cmp_ne_u32_e64 s[22:23], 0, v{ECN}
v_and_b32 v{EMSK}, -4, v{ERK}
v_lshl_add_u32 v{EACC}, v{ERK}, 9, v{EEXT}
v_add_u32 v{EACC}, {L_ACC}, v{EACC}
v_and_b32 v{ERK}, 3, v{ERK}
v_lshl_add_u32 v{EEXT}, v{ERK}, 9, v{EEXT}
v_add_u32 v{EEXT}, {L_EXT}, v{EEXT}
s_and_b64 s[20:21], s[20:21], s[22:23]
""")
    for i in range(4):
        a(f"v_lshlrev_b32 v{EX+2*i}, 16, v{EX+4+i}" if i < 2 else "")
        a(f"v_and_b32 v{EX+2*i+1}, 0xffff0000, v{EX+4+i}" if i < 2 else "")
    a(f"v_lshlrev_b32 v{EX+4}, 16, v{EX+6}")
    a(f"v_and_b32 v{EX+5}, 0xffff0000, v{EX+6}")
    a(f"v_lshlrev_b32 v{EX+6}, 16, v{EX+7}")
    a(f"v_and_b32 v{EX+7}, 0xffff0000, v{EX+7}")


def t2_check(a):
    a(f"v_xor_b32 v4, s{S_TAG}, v{T2R}")
    for i in (2, 4, 6):
        a(f"v_xor_b32 v5, s{S_TAG}, v{T2R+i}")
        a("v_or_b32 v4, v4, v5")
    for i in (1, 3, 5, 7):
        a(f"v_xor_b32 v5, s{S_TAG2}, v{T2R+i}")
        a("v_or_b32 v4, v4, v5")
    a("v_cmp_ne_u32 vcc, 0, v4")


def t2_loads(a):
    a(f"""
v_lshlrev_b32 v4, 4, v1
s_mov_b32 s40, {T2_REL:#x}
buffer_load_dwordx4 {q4(T2R)}, v4, s[32:35], s40 offen sc1
buffer_load_dwordx4 {q4(T2R+4)}, v4, s[32:35], s40 offen offset:1024 sc1
""")


def kernel():
    a = Asm()
    VTR, VXA, VWC, VAU, VLOC = VK, VE, VF, VFN, NXE
    VE2, VT2 = VTK, VTE
    VTR1, VWG, XF = VMAXL, VPF, T2R
    a(f"""
{KNAME}:
s_cmp_ge_u32 s2, 256
s_cbranch_scc1 K_END
@S0
@C30
s_load_dwordx16 s[64:79], s[0:1], 0
s_load_dwordx8 s[80:87], s[0:1], 64
s_getpc_b64 s[42:43]
K_PC0:
v_and_b32 v6, 63, v0
v_lshlrev_b32 v6, 7, v6
v_add_u32 v7, 8192, v6
v_cmp_le_u32 vcc, {int(OPT.get('cw', 7))*64}, v0
s_mov_b64 exec, vcc
global_load_dword v{VFOUR}, v6, s[42:43]
v_cmp_gt_u32 vcc, K_LONG_ENTRY-K_PC0, v7
s_mov_b64 exec, vcc
global_load_dword v{VFOUR}, v7, s[42:43]
s_mov_b64 exec, -1
s_mul_i32 s40, s2, {QCH}
v_add_u32 v4, s40, v0
v_add_u32 v5, {QH}, v4
v_cmp_gt_u32 vcc, {QH}, v0
v_lshlrev_b32 v4, 4, v4
v_mov_b32 v6, {BIG:#x}
v_and_b32 v7, 255, v0
v_cndmask_b32 v4, v6, v4, vcc
v_lshlrev_b32 v7, 2, v7
v_mov_b32 v{VZ}, 0
ds_write_b32 v7, v{VZ} offset:{L_HIST}
s_mov_b32 s47, 0x20000
s_mov_b32 s46, {E*4}
s_movk_i32 s58, {QH*16}
s_waitcnt lgkmcnt(0)
s_mov_b32 s44, s70
s_and_b32 s45, s71, 0xffff
buffer_load_dwordx4 v[8:11], v4, s[44:47], 0 offen
buffer_load_dwordx4 v[12:15], v4, s[44:47], s58 offen
v_readfirstlane_b32 s3, v0
s_mov_b32 s41, {NQ}
v_cmp_gt_u32_e64 s[94:95], s41, v5
s_mov_b64 s[92:93], vcc
v_add_u32 v5, s58, v4
s_and_b32 s{S_B}, s2, 7
s_lshl_b32 s{S_B}, s{S_B}, 5
s_lshr_b32 s40, s2, 3
s_or_b32 s{S_B}, s{S_B}, s40
s_and_b64 s[94:95], s[94:95], vcc
s_lshr_b32 s3, s3, 6
v_lshlrev_b32 v61, 4, v0
v_and_b32 v96, 16, v0
v_lshlrev_b32 v96, 1, v96
v_and_b32 v97, 64, v0
v_or_b32 v96, v96, v97
v_xor_b32 v{VWG}, v96, v61
global_load_dwordx4 v[40:43], v{VWG}, s[74:75]
global_load_dwordx4 v[44:47], v{VWG}, s[80:81]
v_lshrrev_b32 v62, 3, v0
v_lshlrev_b32 v90, 8, v62
v_add_u32 v90, s{S_B}, v90
v_lshlrev_b32 v90, 7, v90
v_and_b32 v63, 7, v0
v_lshl_add_u32 v90, v63, 4, v90
""")
    srd(a, 20, 64, 65, N * 128)
    a(f"""
buffer_load_dwordx4 v[56:59], v90, s[20:23], 0 offen
s_or_b32 s40, s2, s3
s_cmp_lg_u32 s40, 0
s_cbranch_scc1 K_NONONCE
s_memrealtime s[40:41]
s_waitcnt lgkmcnt(0)
s_or_b32 s40, s40, 1
v_mov_b32 v7, s40
s_mov_b64 exec, 1
global_store_dword v{VZ}, v7, s[84:85] sc1
s_mov_b64 exec, -1
K_NONONCE:
""")
    srd(a, 48, 68, 69, E * 4)
    srd(a, 52, 66, 67, E * 8)
    a(f"""
v_lshlrev_b32 v6, 1, v4
v_lshlrev_b32 v7, 1, v5
v_mov_b32 v74, v4
v_mov_b32 v75, v5
@S1
""")
    NE = int(OPT.get("ne", 2))
    later = ["buffer_load_dwordx4 v[24:27], v6, s[52:55], 0 offen",
             "buffer_load_dwordx4 v[28:31], v6, s[52:55], 0 offen offset:16",
             "buffer_load_dwordx4 v[16:19], v74, s[48:51], 0 offen",
             "buffer_load_dwordx4 v[20:23], v75, s[48:51], 0 offen"]
    a("s_barrier")
    for l in later[:NE]:
        a(l)
    TLB = OPT.get("tlb", "2")
    if TLB != "0":
        a(f"""
s_cmp_lg_u32 s3, 7
s_cbranch_scc1 K_NOTLB
v_and_b32 v76, 63, v0
v_lshlrev_b32 v77, 14, v76
""")
        if TLB == "2":
            a(f"""
v_lshlrev_b32 v78, 8, v76
v_add_u32 v78, s{S_B}, v78
v_lshlrev_b32 v78, 8, v78
v_cmp_gt_u32 vcc, 48, v76
""")
        a(f"""
v_mul_u32_u24 v76, {4*RECS}, v76
v_add_u32 v76, {T_OFF + REC_REL - 128}, v76
global_load_dword v{VFOUR}, v76, s[86:87]
""")
        if TLB == "2":
            a(f"""
s_mov_b64 exec, vcc
global_load_dword v{VFOUR}, v78, s[86:87]
s_mov_b64 exec, 1
global_load_dword v{VFOUR}, v{VZ}, s[84:85] offset:128
s_mov_b32 exec_lo, 0x11111111
s_mov_b32 exec_hi, 0x11111111
""")
        a(f"""
global_load_dword v{VFOUR}, v77, s[82:83]
s_mov_b64 exec, -1
K_NOTLB:
""")
    slots_init(a, 64, False)
    a(f"""
v_and_b32 v1, 63, v0
v_and_b32 v2, 15, v0
v_bfe_u32 v3, v0, 4, 2
v_and_b32 v91, 127, v0
v_lshlrev_b32 v91, 2, v91
v_mul_u32_u24 v62, {XSS}, v62
v_lshl_add_u32 v62, v63, 4, v62
v_add_u32 v62, {L_XS}, v62
v_add_u32 v63, {L_AP}, v61
s_mov_b64 s[16:17], s[86:87]
s_lshr_b32 s18, s3, 1
s_lshl_b32 s18, s18, 4
s_and_b32 s19, s3, 1
v_lshrrev_b32 v{VE2}, 2, v2
v_lshl_add_u32 v{VTR}, v3, 3, v{VE2}
v_lshlrev_b32 v{VTR}, 7, v{VTR}
v_and_b32 v{VT2}, 3, v2
v_lshl_add_u32 v{VTR}, v{VT2}, 3, v{VTR}
s_lshl_b32 s40, s19, 6
v_add_u32 v{VTR}, s40, v{VTR}
v_and_b32 v4, 8, v2
v_lshlrev_b32 v4, 2, v4
v_and_b32 v5, 1, v3
v_lshl_or_b32 v4, v5, 6, v4
v_xor_b32 v{VTR}, v4, v{VTR}
v_xor_b32 v{VTR1}, 32, v{VTR}
v_add_u32 v{VTR}, {L_AP}, v{VTR}
v_add_u32 v{VTR1}, {L_AP}, v{VTR1}
v_add_u32 v{VLOC}, s18, v2
v_mul_u32_u24 v{VXA}, {XSS}, v{VLOC}
v_lshl_add_u32 v{VXA}, v3, 4, v{VXA}
v_add_u32 v{VXA}, {L_XS}, v{VXA}
""")
    srd(a, 28, 16, 17, TAB_BYTES)
    a(f"""
v_lshlrev_b32 v4, 8, v{VLOC}
v_add_u32 v4, s{S_B}, v4
v_lshlrev_b32 v60, 8, v4
v_lshl_add_u32 v60, v3, 4, v60
s_lshl_b32 s40, s19, 7
v_add_u32 v60, s40, v60
v_cmp_eq_u32 vcc, {N}, v4
v_mov_b32 v4, 0x7f000000
v_mov_b32 v5, 0x7f007f00
s_mov_b32 s56, 0x07060100
s_mov_b32 s57, 0x07060302
v_mov_b32 v76, 1
@S2
s_waitcnt vmcnt({4 + NE})
@S3
""")
    for i in range(4):
        a(f"v_lshlrev_b32_sdwa v{64+i}, 2, v{8+i} {SDWA_B0}")
    a("s_mov_b64 exec, s[92:93]")
    for i in range(4):
        a(f"ds_add_rtn_u32 v{80+i}, v{64+i}, v76 offset:{L_HIST}")
    a("s_mov_b64 exec, -1")
    a(f"s_waitcnt vmcnt({3 + NE})")
    for i in range(4, 8):
        a(f"v_lshlrev_b32_sdwa v{64+i}, 2, v{8+i} {SDWA_B0}")
    a("s_mov_b64 exec, s[94:95]")
    for i in range(4, 8):
        a(f"ds_add_rtn_u32 v{80+i}, v{64+i}, v76 offset:{L_HIST}")
    a(f"""
s_mov_b64 exec, -1
s_cmp_eq_u32 s3, 7
s_waitcnt vmcnt({NE + (4 if TLB == "2" else 2 if TLB == "1" else 0)})
s_cbranch_scc1 K_WOK
s_waitcnt vmcnt({NE})
K_WOK:
ds_write_b128 v63, v[40:43]
ds_write_b128 v63, v[44:47] offset:8192
ds_write_b128 v62, v[56:59]
""")
    NL = int(OPT.get("nl", 4))
    rest = later[NE:] + ["buffer_load_dwordx4 v[32:35], v7, s[52:55], 0 offen", "buffer_load_dwordx4 v[36:39], v7, s[52:55], 0 offen offset:16"]
    for l in rest[:NL]:
        a(l)
    for i in range(8):
        a(f"v_lshrrev_b32 v{8+i}, 6, v{8+i}")
    a("v_lshlrev_b32 v77, 4, v1")
    seqs = []
    for t in range(2):
        b, h, o, tm = TOT + 4 * t, TOT + 8 + 4 * t, 40 + 4 * t, 78 + t
        q = [f"v_mul_f32 v{b+i}, {NLOG2E:#x}, v{b+i}" for i in range(4)]
        q += [f"v_med3_f32 v{b+i}, v{b+i}, v4, -v4" for i in range(4)]
        q += [f"v_cvt_pk_bf16_f32 v{tm}, v{h}, v{h}"]
        q += [f"v_cvt_pk_bf16_f32 v{o}, v{b}, v{b+1}", f"v_cvt_pk_bf16_f32 v{o+1}, v{b+2}, v{b+3}"]
        q += [f"v_perm_b32 v{o+2}, v{h+2}, v{tm}, s56", f"v_perm_b32 v{o+3}, v{h+3}, v{h+1}, s57"]
        q += [f"v_cndmask_b32 v{o}, v{o}, v5, vcc", f"v_cndmask_b32 v{o+1}, v{o+1}, v5, vcc"]
        seqs.append(q)
    pack = [z for xy in zip(*seqs) for z in xy]
    stores = [f"buffer_store_dwordx4 {q4(40+4*t)}, v60, s[28:31], 0 offen offset:{64*t} sc1" for t in range(2)]
    wl = [f"global_load_dwordx4 v[48:51], v{VWG}, s[72:73]", f"global_load_dwordx4 v[52:55], v{VWG}, s[78:79]", "global_load_dword v56, v91, s[76:77]"]
    a(f"""
s_waitcnt lgkmcnt(0)
@S4
s_barrier
@S5
ds_read_b128 v[72:75], v77 offset:{L_HIST}
ds_read_b128 {q4(XF)}, v{VXA}
ds_read_b128 {q4(XF+4)}, v{VXA} offset:64
""")
    for l in rest[NL:]:
        a(l)
    tr = Asm()
    tr_reads(tr, (VTR, VTR1), 0, 96)
    tr = tr.L
    for l in tr[:4]:
        a(l)
    a(f"""
s_waitcnt lgkmcnt(6)
v_add_u32 v89, v72, v73
v_add_u32 v90, v89, v74
v_add_u32 v62, v90, v75
v_mov_b32 v63, v62
""")
    steps = [f"row_shr:{d} row_mask:0xf" for d in (1, 2, 4, 8)] + ["row_bcast:15 row_mask:0xa", "row_bcast:31 row_mask:0xc"]
    for i, st in enumerate(steps):
        a(tr[4 + 2 * i]); a(tr[5 + 2 * i])
        a(f"v_add_u32_dpp v62, v62, v62 {st} bank_mask:0xf")
    a(f"""
v_sub_u32 v88, v62, v63
v_add_u32 v91x, v88, v90
v_add_u32 v90, v88, v89
v_add_u32 v89, v88, v72
ds_write_b128 v77, v[88:91] offset:{L_START}
""".replace("v91x", "v91"))
    for i in range(8):
        a(f"ds_read_b32 v{64+i}, v{64+i} offset:{L_START}")
    for i in range(4):
        a(f"v_lshl_or_b32 v{92+i}, v{72+i}, 16, v{88+i}")
    a("s_waitcnt lgkmcnt(9)")
    tile_mfmas(a, 96, XF, TOT)
    a("v_and_b32 v91, 127, v0")
    a("v_lshlrev_b32 v91, 2, v91")
    srd(a, 24, 16, 17, TAB_ROWS, stride=256)
    srd(a, 36, 82, 83, N * 128)
    a(f"s_mov_b32 s40, {L_STAGE}")
    PKP = OPT.get("pkp", "0")
    if PKP == "0":
        for l in pack + stores + wl:
            a(l)
    a(f"""
s_add_u32 s32, s16, {T_OFF:#x}
s_addc_u32 s33, s17, 0
s_and_b32 s33, s33, 0xffff
s_mov_b32 s34, {TR_BYTES}
s_mov_b32 s35, 0x20000
s_mul_i32 s41, s2, {RECS}
s_add_u32 s41, s41, {T_OFF + REC_REL:#x}
s_add_u32 s88, s16, s41
s_addc_u32 s89, s17, 0
s_and_b32 s89, s89, 0xffff
s_mov_b32 s90, {RECB}
s_mov_b32 s91, 0x20000
s_waitcnt vmcnt({7 if PKP == "0" else 2})
""")
    for i in range(8):
        a(f"v_lshl_or_b32 v{16+i}, v{16+i}, 8, v{8+i}")
    for i in range(8):
        a(f"s_waitcnt lgkmcnt({7-i})")
        a(f"v_add_u32 v{64+i}, v{64+i}, v{80+i}")
        a(f"v_mad_u32_u24 v{64+i}, v{64+i}, 12, s40")
    a("s_mov_b64 exec, s[92:93]")
    for i in range(4):
        a(f"ds_write_b32 v{64+i}, v{16+i} offset:8")
        a(f"ds_write2_b32 v{64+i}, v{24+2*i}, v{25+2*i} offset0:0 offset1:1")
    a("s_mov_b64 exec, s[94:95]")
    for i in range(4, 8):
        a(f"ds_write_b32 v{64+i}, v{16+i} offset:8")
    a(f"s_waitcnt vmcnt({5 if PKP == '0' else 0})")
    for i in range(4, 8):
        a(f"ds_write2_b32 v{64+i}, v{24+2*i}, v{25+2*i} offset0:0 offset1:1")
    a("s_mov_b64 exec, -1")
    if PKP == "1":
        for l in pack + stores + wl:
            a(l)
    a(f"""
@S6
s_movk_i32 s14, {RECB//16 - 2048}
v_cmp_gt_u32_e64 s[14:15], s14, v0
v_add_u32 v63, {L_STAGE}, v61
v_add_u32 v91, {L_WC}, v91
s_movk_i32 s44, 0x2000
s_movk_i32 s45, 0x4000
s_movk_i32 s46, 0x6000
s_mov_b32 s47, 0x8000
v_cmp_gt_u32 vcc, 128, v0
global_load_dword v64, v{VZ}, s[84:85] sc1
s_waitcnt lgkmcnt(0)
@S7
s_barrier
@S8
""")
    for i in range(4):
        a(f"ds_read_b128 {q4(8+4*i)}, v63 offset:{8192*i}")
    a(f"""
s_mov_b64 exec, s[14:15]
ds_read_b128 v[24:27], v63 offset:32768
s_mov_b64 exec, -1
v_mov_b32 v28, 0
v_mov_b32 v29, 0
v_mov_b32 v30, 0
v_mov_b32 v31, 0
""")
    for i in range(4):
        a(f"s_waitcnt lgkmcnt({4-i})")
        so = "0" if i == 0 else f"s{43+i}"
        a(f"buffer_store_dwordx4 {q4(8+4*i)}, v61, s[88:91], {so} offen sc1")
    koff = struct.unpack("<I", struct.pack("<f", -float(KEXP) if OPT["cadd"] == "1" else 0.0))[0]
    a(f"""
s_mov_b64 exec, s[14:15]
s_waitcnt lgkmcnt(0)
buffer_store_dwordx4 v[24:27], v61, s[88:91], s47 offen sc1
s_mov_b64 exec, vcc
ds_write_b128 v61, v[28:31]
s_mov_b64 exec, -1
@S9
s_waitcnt vmcnt(5)
ds_write_b128 v63, v[48:51]
ds_write_b128 v63, v[52:55] offset:8192
ds_write_b32 v91, v56
v_add_u32 v{VTR}, {L_STAGE - L_AP}, v{VTR}
v_add_u32 v{VTR1}, {L_STAGE - L_AP}, v{VTR1}
v_lshl_add_u32 v{VWC}, v2, 2, v3
v_lshlrev_b32 v{VWC}, 1, v{VWC}
v_add_u32 v{VWC}, {L_WC}, v{VWC}
s_movk_i32 s40, {US}
s_lshl_b32 s41, s19, 7
s_add_u32 s41, s41, {L_AP}
v_mad_u32_u24 v{VAU}, v{VLOC}, s40, 0
v_lshl_add_u32 v{VAU}, v3, 4, v{VAU}
v_add_u32 v{VAU}, s41, v{VAU}
v_cmp_gt_u32_e64 s[14:15], 49, v{VLOC}
s_mov_b32 s{S_MODE}, 0
s_mov_b32 s{S_CS}, {CS}
s_mov_b32 s{S_AM}, 0x22221111
s_mov_b32 s{S_AM+1}, 0x88884444
s_mov_b32 s{S_K}, {KBITS:#x}
s_mov_b32 s{S_K+1}, {KBITS:#x}
s_mov_b32 s6, {NLOG2E:#x}
s_mov_b32 s7, {NLOG2E:#x}
v_mov_b32 v{NX}, {koff:#x}
v_mov_b32 v{NX+1}, {koff:#x}
v_and_b32 v5, 1, v{VT2}
v_lshlrev_b32 v5, 4, v5
v_mov_b32 v6, 0x3f80
v_lshlrev_b32 v5, v5, v6
v_cmp_eq_u32 vcc, v3, v{VE2}
v_cmp_gt_u32_e64 s[52:53], 2, v{VT2}
v_cmp_le_u32_e64 s[54:55], 2, v{VT2}
v_mov_b32 v6, {8*GS*UNR}
v_cndmask_b32 v5, 0, v5, vcc
v_cndmask_b32_e64 v{VINC}, 0, v6, s[{S_AM}:{S_AM+1}]
v_mov_b32 v{VFOUR}, 4
""")
    for i in range(GS):
        a(f"v_cndmask_b32_e64 v{AOP[i]+2}, 0, v5, s[52:53]")
        a(f"v_cndmask_b32_e64 v{AOP[i]+3}, 0, v5, s[54:55]")
        a(f"v_lshlrev_b32 v{IDX[i]+1}, 4, v2")
    a(f"""
s_lshl_b32 s41, s{S_B}, 3
v_lshl_add_u32 v4, v3, 11, s41
s_lshl_b32 s40, s3, 16
""")
    for k in range(1, 8):
        a(f"s_add_u32 s{40+k}, s40, {8192*k}")
    V0, V1, V2, V3, V4 = X0 + 16, X0 + 17, X0 + 18, X0 + 19, X0 + 20
    a(f"""
s_lshl_b32 s48, s3, 5
v_add_u32 v5, s48, v3
s_mov_b32 s49, {RECS}
v_mul_lo_u32 v5, v5, s49
v_mad_u32_u24 v5, v2, 12, v5
v_add_u32 v5, {REC_REL}, v5
v_add_u32 v6, 16, v2
s_memrealtime s[50:51]
K_TAGW:
v_readfirstlane_b32 s{S_TAG}, v64
s_cmp_lg_u32 s{S_TAG}, 0
s_cbranch_scc0 K_TAG_RETRY
K_TAGOK:
s_mul_i32 s48, s{S_TAG}, 0x9e3779b1
s_and_b32 s48, s48, 0xf000f000
v_or_b32 v32, s48, v92
v_mov_b32 v33, s{S_TAG}
v_or_b32 v34, s48, v93
v_mov_b32 v35, s{S_TAG}
v_or_b32 v36, s48, v94
v_mov_b32 v37, s{S_TAG}
v_or_b32 v38, s48, v95
v_mov_b32 v39, s{S_TAG}
v_lshlrev_b32 v40, 5, v1
s_lshl_b32 s49, s2, 11
s_cmp_lg_u32 s3, 0
@S18
s_waitcnt vmcnt(0) lgkmcnt(0)
@S19
s_barrier
s_cbranch_scc1 K_NOPUB
buffer_store_dwordx4 v[32:35], v40, s[32:35], s49 offen sc1
buffer_store_dwordx4 v[36:39], v40, s[32:35], s49 offen offset:16 sc1
K_NOPUB:
""")
    tr_reads(a, (VTR, VTR1), 0, 96)
    a(f"""
ds_read_u16 v{CA}, v{VWC}
ds_read_u16 v{CA+1}, v{VWC} offset:128
ds_read_u16 v{CA+2}, v{VWC} offset:256
ds_read_u16 v{CA+3}, v{VWC} offset:384
s_mov_b32 s49, 0xf000f000
s_waitcnt lgkmcnt(4)
""")
    PP = OPT.get("pollpos", "2")
    polls = [f"buffer_load_dwordx2 {pr(PT+2*k)}, v4, s[32:35], s{40+k} offen sc1" for k in range(8)]
    tile_mfmas(a, 96, XF, TOT)
    if PP == "0":
        for l in polls:
            a(l)
    a("s_waitcnt lgkmcnt(0)")
    for k in range(4):
        a(f"v_lshlrev_b32 v{CA+k}, 16, v{CA+k}")
    for k in range(4):
        a(f"v_mul_f32 v{CA+k}, {NLOG2E:#x}, v{CA+k}")
    a(f"v_cvt_pk_bf16_f32 v{CN}, v{CA}, v{CA+1}")
    a(f"v_cvt_pk_bf16_f32 v{CN+1}, v{CA+2}, v{CA+3}")
    a(f"v_mov_b32 v{V0}, s{S_TAG}")
    a(f"v_mov_b32 v{V1}, s48")
    a("s_mov_b64 exec, s[14:15]")
    a(f"ds_write_b128 v{VAU}, {q4(TOT+8)} offset:{L_U - L_AP}")
    a(f"ds_write_b128 v{VAU}, {q4(TOT+12)} offset:{L_U - L_AP + 64}")
    for i in range(0, 8, 2):
        a(f"v_pk_fma_f32 {pr(TOT+i)}, {pr(TOT+i)}, s[6:7], {pr(NX)}")
    a(f"""
ds_write_b128 v{VAU}, {q4(TOT)}
ds_write_b128 v{VAU}, {q4(TOT+4)} offset:64
s_mov_b64 exec, -1
""")
    if PP == "1":
        for l in polls:
            a(l)
    for p in range(NB):
        for i in range(GS):
            a(f"v_pk_mov_b32 {pr(stepbuf(p, i))}, {pr(CN)}, {pr(CN)} op_sel:[0,1]")
    for i in range(0, 16, 2):
        a(f"v_pk_mov_b32 {pr(TOT+i)}, 0, 0")
    if int(OPT.get("presleep", 0)):
        a(f"s_sleep {OPT['presleep']}")
    a("@S23")
    if PP != "2":
        a("s_branch K_POLL_CHECK")
    a("K_POLL:")
    for k in range(8):
        a(f"buffer_load_dwordx2 {pr(PT+2*k)}, v4, s[32:35], s{40+k} offen sc1")
    a("K_POLL_CHECK:")
    a(f"v_mov_b32 v{V2}, 0")
    for k in range(8):
        a(f"s_waitcnt vmcnt({7-k})")
        a(f"v_xor_b32 v{V3}, v{PT+2*k}, v{V1}")
        a(f"v_xor_b32 v{V4}, v{PT+2*k+1}, v{V0}")
        a(f"v_and_or_b32 v{V2}, v{V3}, s49, v{V2}")
        a(f"v_and_b32 v{VTT+k}, 0x0fff0fff, v{PT+2*k}")
        a(f"v_or_b32 v{V2}, v{V4}, v{V2}")
    a(f"""
v_cmp_ne_u32 vcc, 0, v{V2}
s_cbranch_vccnz K_POLL_RETRY
K_POLLOK:
@S24
s_mov_b64 exec, 1
ds_add_u32 v{VZ}, v{VFOUR} offset:{L_ACKS}
s_mov_b64 exec, -1
""")
    for k in range(8):
        a(f"v_mad_u32_u16 v{VRA+k}, v{VTT+k}, 12, v5")
        a(f"v_cmp_gt_u32_sdwa s[{80+2*k}:{81+2*k}], v{VTT+k}, v6 src0_sel:WORD_1 src1_sel:DWORD")
        if k < 7:
            a(f"v_add_u32 v5, {4*RECS}, v5")
        r = recset(8 + k)
        a(f"s_mov_b64 exec, s[{80+2*k}:{81+2*k}]")
        a(f"s_cbranch_execz K_M1L{k}")
        a(f"buffer_load_dwordx3 v[{r}:{r+2}], v{VRA+k}, s[32:35], 0 offen offset:192 sc1")
        a(f"K_M1L{k}:")
        a("s_mov_b64 exec, -1")
        a(f"v_cmp_gt_u32_sdwa s[{64+2*k}:{65+2*k}], v{VTT+k}, v2 src0_sel:WORD_1 src1_sel:DWORD")
    for k in range(8):
        r = recset(k)
        a(f"s_mov_b64 exec, s[{64+2*k}:{65+2*k}]")
        a(f"buffer_load_dwordx3 v[{r}:{r+2}], v{VRA+k}, s[32:35], 0 offen sc1")
    a(f"""
s_mov_b64 exec, -1
@S25
v_max3_u32 v4, v{VTT}, v{VTT+1}, v{VTT+2}
v_max3_u32 v5, v{VTT+3}, v{VTT+4}, v{VTT+5}
v_max3_u32 v4, v4, v{VTT+6}, v{VTT+7}
v_max_u32 v4, v4, v5
v_lshrrev_b32 v{VMAXL}, 16, v4
s_waitcnt vmcnt(8)
""")

    def A_(j):
        a(f"s_waitcnt vmcnt({7 - j})")
        a(f"s_mov_b64 exec, s[{64+2*j}:{65+2*j}]")
        place_atomic(a, recset(j), VCA + j)

    def W_(j, n):
        a(f"s_mov_b64 exec, s[{64+2*j}:{65+2*j}]")
        if n is not None:
            a(f"s_waitcnt lgkmcnt({n})")
        place_write(a, recset(j), VCA + j)
    for j in range(8):
        a(f"s_mov_b64 exec, s[{80+2*j}:{81+2*j}]")
        a(f"s_cbranch_execz K_M1A{j}")
        place_atomic(a, recset(8 + j), VCA + 8 + j)
        a(f"K_M1A{j}:")
    A_(0); A_(1)
    a("s_waitcnt lgkmcnt(2)")
    for j in range(8):
        a(f"s_mov_b64 exec, s[{80+2*j}:{81+2*j}]")
        a(f"s_cbranch_execz K_M1W{j}")
        place_write(a, recset(8 + j), VCA + 8 + j)
        a(f"K_M1W{j}:")
    A_(2)
    W_(0, 1)
    W_(1, None)
    A_(3)
    W_(2, 5)
    A_(4)
    W_(3, 3)
    A_(5)
    W_(4, 3)
    A_(6)
    a("s_mov_b64 exec, -1")
    a(f"ds_read_b32 v7, v{VZ} offset:{L_ACKS}")
    W_(5, 4)
    A_(7)
    a("@S26")
    npf, pfs = int(OPT["npf"]), int(OPT["pfs"])
    a(f"""
s_mov_b64 exec, -1
v_cmp_lt_u32 vcc, 32, v{VMAXL}
s_waitcnt lgkmcnt(3)
v_readfirstlane_b32 s40, v7
s_cbranch_vccnz K_LONG_ENTRY
K_PLACED:
s_cmp_lg_u32 s40, 32
s_cbranch_scc1 K_NOPF
""")
    if npf:
        a(f"""
s_lshr_b32 s40, s2, 3
s_mul_i32 s40, s40, {782*128}
v_mul_u32_u24 v7, {pfs}, v0
v_add_u32 v7, s40, v7
""")
        for p in range(-(-npf // 512)):
            if p:
                a(f"v_add_u32 v7, {512*pfs}, v7")
            if npf - 512 * p < 512:
                a(f"v_cmp_gt_u32 vcc, {npf - 512*p}, v0")
                a("s_mov_b64 exec, vcc")
            a(f"buffer_load_dword v{VPF}, v7, s[28:31], 0 offen sc1")
    R = X0
    a(f"""
K_NOPF:
s_waitcnt lgkmcnt(0)
@S27
s_barrier
@S28
""")
    W_(6, None)
    W_(7, None)
    a(f"""
s_mov_b64 exec, -1
K_RANK:
v_lshlrev_b32 v4, 2, v1
ds_read_b32 v{R}, v4 offset:{L_CNT}
""")
    for i in range(1, 6):
        a(f"s_add_u32 s{40+i}, s3, {8*i}")
    a(f"""
v_cmp_gt_u32_e64 s[52:53], 48, v1
v_lshl_add_u32 v{R+2}, v1, 3, s3
v_mul_u32_u24 v{R+6}, {CS*4}, v{R+2}
v_mul_u32_u24 v{R+7}, {US}, v{R+2}
v_add_u32 v{R+7}, {L_AP}, v{R+7}
v_lshlrev_b32 v{R+2}, 2, v{R+2}
s_waitcnt lgkmcnt(0)
v_cmp_lt_u32 vcc, {CAP*4}, v{R}
v_lshl_add_u32 v{R+1}, v{R}, 4, v1
v_add_u32 v{R+1}, 1, v{R+1}
s_cbranch_vccnz K_SLOW_ENTRY
v_cndmask_b32_e64 v{R+1}, 0, v{R+1}, s[52:53]
v_readlane_b32 s50, v{R}, 48
""")
    for i in range(6):
        a(f"v_readlane_b32 s{64+i}, v{R+1}, s{3 if i == 0 else 40+i}")
    a(f"s_add_u32 s51, s50, {4*(4*GS-1)}")
    for i in range(6):
        a(f"v_cmp_lt_u32_e64 s[{72+2*i}:{73+2*i}], s{64+i}, v{R+1}")
    if GS == 2:
        a("s_lshr_b32 s51, s51, 5")
    else:
        a("s_lshr_b32 s51, s51, 4")
        a("s_mul_i32 s51, s51, 0x5556")
        a("s_lshr_b32 s51, s51, 16")
    for i in range(6):
        a(f"v_writelane_b32 v{R+3}, s{64+i}, {i}")
        a(f"s_bcnt1_i32_b64 s{72+2*i}, s[{72+2*i}:{73+2*i}]")
    a(f"""
s_max_u32 s51, s51, {MINPS}
s_cmp_eq_u32 s50, 0
s_cselect_b32 s50, 0, s51
s_mul_i32 s50, s50, {GS}
""")
    for i in range(6):
        a(f"v_writelane_b32 v{R+4}, s{72+2*i}, {i}")
    a(f"""
v_lshrrev_b32 v{R+3}, 6, v{R+3}
v_add_u32 v{R+4}, 4, v{R+4}
v_lshlrev_b32 v{R+5}, 3, v{R+4}
v_lshlrev_b32 v{R+8}, 2, v{R+4}
s_mov_b64 exec, 63
ds_write_b64 v{R+5}, {pr(R+6)} offset:{L_TS}
ds_write_b32 v{R+8}, v{R+3} offset:{L_TC}
ds_write_b32 v{R+2}, v{R+4} offset:{L_RK}
s_mov_b64 exec, 15
v_mul_u32_u24 v{R+10}, s50, v4
v_add_u32 v{R+10}, {48*CS*4}, v{R+10}
v_mov_b32 v{R+11}, {L_AP + 48*US}
v_mov_b32 v{R+9}, s50
v_lshlrev_b32 v5, 3, v1
ds_write_b64 v5, {pr(R+10)} offset:{L_TS}
ds_write_b32 v4, v{R+9} offset:{L_TC}
ds_write_b32 v4, v1 offset:{L_RK + 192}
s_mov_b64 exec, -1
v_lshlrev_b32 v4, 4, v2
v_cmp_gt_u32_e64 s[52:53], 13, v2
s_and_b32 s18, s3, 3
s_lshl_b32 s18, s18, 1
s_lshr_b32 s15, s3, 2
s_add_u32 s18, s18, s15
s_add_u32 s15, s18, 1
s_waitcnt lgkmcnt(0)
s_barrier
@S29
; ---- split the group stream evenly over the 8 waves --------------------------------------------
ds_read_b32 v{R}, v4 offset:{L_TC}
v_mov_b32 v{R+4}, 1
v_mov_b32 v{R+5}, 0
s_waitcnt lgkmcnt(0)
v_cmp_ne_u32 vcc, 0, v{R}
v_add_u32 v{R}, {GS-1}, v{R}
""")
    if GS == 2:
        a(f"v_lshrrev_b32 v{R}, 1, v{R}")
    else:
        a(f"v_mul_u32_u24 v{R}, 0x5556, v{R}")
        a(f"v_lshrrev_b32 v{R}, 16, v{R}")
    a(f"""
s_and_b64 s[44:45], vcc, s[52:53]
v_max_u32 v{R}, {MINPS}, v{R}
v_cndmask_b32_e64 v{R}, 0, v{R}, s[44:45]
v_mov_b32 v{R+1}, v{R}
""")
    scan(a, R + 1, row_only=True)
    a(f"""
s_nop 0
v_readlane_b32 s14, v{R+1}, 15
v_sub_u32 v{R+2}, v{R+1}, v{R}
s_cmp_gt_u32 s14, {MAXIT*8}
s_cbranch_scc1 K_SLOW_ENTRY
s_mul_i32 s40, s14, s18
s_mul_i32 s41, s14, s15
s_lshr_b32 s40, s40, 3
s_lshr_b32 s41, s41, 3
s_sub_u32 s{S_IT}, s41, s40
s_cmp_eq_u32 s{S_IT}, 0
s_cbranch_scc1 K_NOWORK
v_cmp_ge_u32_e64 s[42:43], s40, v{R+1}
v_subrev_u32 v{R+3}, s40, v{R+2}
s_and_b32 s42, s42, 0x1fff
s_bcnt1_i32_b32 s42, s42
s_lshl_b32 s46, s42, 5
v_lshl_add_u32 v{VTK}, v3, 3, s46
v_and_b32 v{VTE}, 12, v2
v_lshl_add_u32 v{VTE}, v{VTE}, 1, s46
v_readlane_b32 s43, v{R+2}, s42
ds_read_b64 {pr(R+6)}, v{VTK} offset:{L_TS}
ds_read_b32 v{NXE}, v{VTE} offset:{L_TS}
ds_read_b64 {pr(NX)}, v{VTK} offset:{L_TS + 32}
v_add_u32 v{R+8}, -1, v{R+3}
v_cmp_gt_u32 vcc, 63, v{R+8}
v_lshlrev_b64 {pr(R+4)}, v{R+3}, {pr(R+4)}
s_and_b64 vcc, vcc, s[44:45]
s_sub_u32 s43, s40, s43
v_cndmask_b32 v{R+4}, 0, v{R+4}, vcc
v_cndmask_b32 v{R+5}, 0, v{R+5}, vcc
s_mul_i32 s45, s43, {4*GS}
s_lshl_b32 s47, s45, 1
""")
    for d in (1, 2, 4, 8):
        a(f"v_or_b32_dpp v{R+4}, v{R+4}, v{R+4} row_shr:{d} row_mask:0xf bank_mask:0xf")
        a(f"v_or_b32_dpp v{R+5}, v{R+5}, v{R+5} row_shr:{d} row_mask:0xf bank_mask:0xf")
        a("s_nop 0")
    TI = {1: [Y[0] + 2 * i for i in range(GS)]}
    nxt = HL
    for p in range(2, NB):
        TI[p] = [nxt + 2 * i for i in range(GS)]
        nxt += 2 * GS
    assert nxt <= DEN, (nxt, DEN)
    a(f"""
s_add_u32 s45, s45, {L_KEYS}
s_add_u32 s47, s47, {L_EA}
v_readlane_b32 s{S_MASK}, v{R+4}, 15
v_readlane_b32 s{S_MASK+1}, v{R+5}, 15
s_bfm_b64 s[48:49], s{S_IT}, 0
s_waitcnt lgkmcnt(1)
v_add_u32 v{VK}, s45, v{R+6}
v_add_u32 v{R+7}, v{R+7}, v{IDX[0]+1}
s_and_b64 s[{S_MASK}:{S_MASK+1}], s[{S_MASK}:{S_MASK+1}], s[48:49]
""")
    for i in range(GS):
        a(f"ds_read_b32 v{IDX[i]}, v{VK} offset:{4*i}")
    a(f"""
ds_read_b128 {q4(CA)}, v{R+7}
v_lshl_add_u32 v{VE}, v{NXE}, 1, s47
v_mov_b32 v4, {L_ZERO}
""")
    for p in range(1, NB):
        for i in range(GS):
            a(f"v_mov_b32 v{TI[p][i]+1}, v{IDX[0]+1}")
    a(f"v_cndmask_b32_e64 v{VE}, v4, v{VE}, s[{S_AM}:{S_AM+1}]")
    a("s_waitcnt lgkmcnt(1)")
    for l in gathers(0, IDX):
        a(l)
    for p in range(1, NB):
        a(f"s_bitcmp1_b32 s{S_MASK}, {p}")
        a(f"s_cbranch_scc0 K_PK{p}")
        ev_k(a, 4 * GS * p)
        a(f"K_PK{p}:")
        for i in range(GS):
            a(f"ds_read_b32 v{TI[p][i]}, v{VK} offset:{4*(GS*p+i)}")
    for i in range(GS):
        a(f"ds_read_b64 {pr(AOP[i])}, v{VE} offset:{8*i}")
    a(f"""
s_lshr_b64 s[{S_CM}:{S_CM+1}], s[{S_MASK}:{S_MASK+1}], 3
s_lshr_b64 s[48:49], s[{S_MASK}:{S_MASK+1}], {NB+1}
s_or_b64 s[{S_CM}:{S_CM+1}], s[{S_CM}:{S_CM+1}], s[48:49]
s_mov_b32 s{S_RAW}, s{S_MASK}
s_bitset1_b64 s[{S_MASK}:{S_MASK+1}], s{S_IT}
s_lshr_b64 s[48:49], s[{S_MASK}:{S_MASK+1}], 1
s_or_b64 s[{S_CM}:{S_CM+1}], s[{S_CM}:{S_CM+1}], s[48:49]
s_waitcnt lgkmcnt({GS})
""")
    NG0 = int(OPT["ng0"])
    NG1 = max(NG0, min(NB, 4 if GS == 2 else 3))
    for p in range(1, NG0):
        for l in gathers(p, TI[p]):
            a(l)
    if OPT["prio"] == "1":
        dflt = (24, 12, 4) if GS == 2 else (16, 8, 3)
        t1, t2, t3 = [int(OPT.get(f"thr{i+1}", dflt[i])) for i in range(3)]
        a(f"""
s_setprio 3
s_mov_b32 s{S_PR}, 3
s_mov_b64 s[54:55], 0
s_bitset1_b64 s[54:55], {63 - t1}
s_bitset1_b64 s[54:55], {63 - t2}
s_bitset1_b64 s[54:55], {63 - t3}
s_sub_u32 s46, 63, s{S_IT}
s_lshr_b64 s[54:55], s[54:55], s46
s_or_b64 s[{S_CM}:{S_CM+1}], s[{S_CM}:{S_CM+1}], s[54:55]
""")
    a(f"""
s_ff1_i32_b64 s{S_CNT}, s[{S_CM}:{S_CM+1}]
v_lshlrev_b32 v5, 9, v3
v_lshl_add_u32 v5, v2, 4, v5
s_lshl_b32 s45, s42, 11
s_add_u32 s45, s45, {L_ACC}
s_add_u32 s46, s45, 2048
v_add_u32 v{VFN}, s46, v5
s_cmp_eq_u32 s43, 0
s_cbranch_scc1 K_P2
s_lshl_b32 s45, s3, 11
s_add_u32 s45, s45, {L_EXT}
s_lshl_b32 s46, 1, s3
s_lshl_b32 s47, s42, 2
v_mov_b32 v6, s46
v_mov_b32 v7, s47
s_mov_b64 exec, 1
ds_or_b32 v7, v6 offset:{L_MASK}
s_mov_b64 exec, -1
K_P2:
v_add_u32 v{VF}, s45, v5
""")
    for i in range(0, 8, 2):
        a(f"v_pk_mov_b32 {pr(DEN+i)}, 0, 0")
    a(f"""
v_add_u32 v{VK}, {4*GS*NB}, v{VK}
s_bitcmp1_b32 s{S_RAW}, {NB}
s_cbranch_scc0 K_PK{NB}
""")
    ev_k(a, 0)
    a(f"""
K_PK{NB}:
v_mov_b32 v5, {16*GS}
""")
    eprep1(a)
    a(f"""
@S10
s_waitcnt vmcnt({GS*(NG0-1)}) lgkmcnt(0)
@S15
""")
    for l in mfmas(0):
        a(l)
    for p in range(NG0, NG1):
        for l in gathers(p, TI[p]):
            a(l)
    a(f"""
s_bitcmp1_b32 s{S_RAW}, 1
s_cbranch_scc0 K_PE1
s_nop 2
""")
    ev_e(a, 8 * GS)
    a("K_PE1:")
    for i in range(GS):
        a(f"ds_read_b64 {pr(AOP[i])}, v{VE} offset:{8*(GS+i)}")
    a(f"v_cndmask_b32_e64 v5, 0, v5, s[{S_AM}:{S_AM+1}]")
    eprep2(a)
    for i in range(4 * GS):
        a(f"v_exp_f32 v{Y[0]+i}, v{Y[0]+i}")
    a(f"v_add_u32 v{VE}, v5, v{VE}")
    a(f"s_waitcnt vmcnt({GS*(NG1-2)}) lgkmcnt(0)")
    for l in mfmas(1):
        a(l)
    for p in range(NG1, NB):
        for l in gathers(p, TI[p]):
            a(l)
    a(f"""
s_bitcmp1_b32 s{S_RAW}, 2
s_cbranch_scc0 K_PE2
s_nop 2
""")
    ev_e(a, 0)
    a(f"""
K_PE2:
@C20
s_nop 4
{f".p2align {OPT['align']}" if OPT.get('align') else ''}
K_LOOP:
""")
    order = ORDERS[GS][OPT["order"]].split()
    for k in range(UNR):
        d = ops(k)
        for x in order:
            a(d[x])
        if k == UNR - 1:
            a("s_cbranch_scc0 K_LOOP")
        else:
            a(f"s_cbranch_scc1 K_EV{k}")
            a(f"K_RET{k}:")
    for k in [UNR - 1] + list(range(UNR - 1)):
        kn = (k + 1) % UNR
        ret = f"K_RET{k}" if k < UNR - 1 else "K_LOOP"
        a(f"""
K_EV{k}:
s_ff1_i32_b64 s14, s[{S_CM}:{S_CM+1}]
s_bitset0_b64 s[{S_CM}:{S_CM+1}], s14
s_ff1_i32_b64 s{S_CNT}, s[{S_CM}:{S_CM+1}]
s_lshr_b64 s[40:41], s[{S_MASK}:{S_MASK+1}], s14
s_sub_u32 s{S_CNT}, s{S_CNT}, s14
s_sub_u32 s{S_CNT}, s{S_CNT}, 1
s_bitcmp1_b32 s40, 1
s_cbranch_scc0 K_EV{k}A
ds_write_b128 v{VF}, {q4(DEN)}
ds_write_b128 v{VF}, {q4(NUM)} offset:256
s_lshr_b64 s[42:43], s[40:41], 2
s_cbranch_scc0 K_LOOP_DONE
v_mov_b32 v{VF}, v{VFN}
v_add_u32 v{VFN}, 2048, v{VFN}
""")
        for i in range(0, 8, 2):
            a(f"v_pk_mov_b32 {pr(DEN+i)}, 0, 0")
        a(f"""
K_EV{k}A:
s_bitcmp1_b32 s40, 3
s_cbranch_scc0 K_EV{k}B
""")
        ev_e(a, 8 * GS * kn)
        a(f"""
K_EV{k}B:
s_lshr_b64 s[42:43], s[40:41], {NB+2}
s_cbranch_scc0 K_EV{k}C
s_bitcmp1_b32 s40, {NB+1}
s_cbranch_scc0 K_EV{k}C
""")
        ev_k(a, 4 * GS * kn)
        a(f"K_EV{k}C:")
        if OPT["prio"] == "1":
            a(f"""
s_bitcmp1_b64 s[54:55], s14
s_cbranch_scc0 {ret}
s_sub_u32 s{S_PR}, s{S_PR}, 1
s_setprio 0
s_cmp_eq_u32 s{S_PR}, 0
s_cbranch_scc1 {ret}
s_setprio 1
s_cmp_eq_u32 s{S_PR}, 1
s_cbranch_scc1 {ret}
s_setprio 2
""")
        a(f"s_branch {ret}")
    a(f"""
K_LOOP_DONE:
@C21
@S11
s_setprio 0
s_waitcnt lgkmcnt(0)
s_barrier
@S12
s_mov_b64 exec, s[20:21]
s_cbranch_execz K_COMB_DONE
ds_read_b32 v{R}, v{EMSK} offset:{L_MASK}
""")

    def reads(d, va):
        a(f"ds_read_b128 {q4(d)}, v{va}")
        a(f"ds_read_b128 {q4(d+4)}, v{va} offset:16")
        a(f"ds_read_b128 {q4(d+8)}, v{va} offset:256")
        a(f"ds_read_b128 {q4(d+12)}, v{va} offset:272")

    def adds(d):
        for i in range(0, 16, 2):
            a(f"v_pk_add_f32 {pr(TOT+i)}, {pr(TOT+i)}, {pr(d+i)}")

    def nxt_(lab_last):
        a(f"""
v_ffbl_b32 v{R+1}, v{R}
v_cmp_ne_u32 vcc, 0, v{R}
v_add_u32 v{R+2}, -1, v{R}
v_and_b32 v{R}, v{R}, v{R+2}
v_lshl_add_u32 v{R+1}, v{R+1}, 11, v{EEXT}
s_mov_b64 s[40:41], exec
s_and_b64 exec, exec, vcc
s_cbranch_execz {lab_last}
""")
    D1 = R + 4 + 16
    D0 = R + 4
    reads(D0, EACC)
    a("s_waitcnt lgkmcnt(4)")
    a("K_COMB_A:")
    nxt_("K_COMB_LA")
    reads(D1, R + 1)
    a("s_mov_b64 s[42:43], exec")
    a("s_mov_b64 exec, s[40:41]")
    a("s_waitcnt lgkmcnt(4)")
    adds(D0)
    a("s_mov_b64 exec, s[42:43]")
    nxt_("K_COMB_LB")
    reads(D0, R + 1)
    a("s_mov_b64 s[42:43], exec")
    a("s_mov_b64 exec, s[40:41]")
    a("s_waitcnt lgkmcnt(4)")
    adds(D1)
    a("s_mov_b64 exec, s[42:43]")
    a("s_branch K_COMB_A")
    a("K_COMB_LB:")
    a("s_mov_b64 exec, s[40:41]")
    a("s_waitcnt lgkmcnt(0)")
    adds(D1)
    a("s_branch K_COMB_DONE")
    a("K_COMB_LA:")
    a("s_mov_b64 exec, s[40:41]")
    a("s_waitcnt lgkmcnt(0)")
    adds(D0)
    a(f"""
K_COMB_DONE:
s_mov_b64 exec, -1
s_cmp_lg_u32 s{S_MODE}, 0
s_cbranch_scc1 K_SLOW_NEXT
K_FINAL:
s_cmp_lg_u32 s3, 6
s_cbranch_scc1 K_FIN2
""")
    for i in range(16):
        a(f"v_add_f32_dpp v{TOT+i}, v{TOT+i}, v{TOT+i} row_ror:8 row_mask:0xf bank_mask:0xf")
    for i in range(16):
        a(f"ds_swizzle_b32 v{D0+i}, v{TOT+i} offset:0x401F")
    a("s_waitcnt lgkmcnt(0)")
    for i in range(0, 16, 2):
        a(f"v_pk_add_f32 {pr(TOT+i)}, {pr(TOT+i)}, {pr(D0+i)}")
    eps = struct.unpack("<I", struct.pack("<f", 1e-6 * 2.0**KEXP))[0]
    a(f"""
K_FIN2:
s_mov_b32 s14, {eps:#x}
s_mov_b32 s15, {eps:#x}
""")
    for i in range(0, 8, 2):
        a(f"v_pk_add_f32 {pr(TOT+i)}, {pr(TOT+i)}, s[14:15]")
    for i in range(8):
        a(f"v_rcp_f32 v{TOT+i}, v{TOT+i}")
    a("s_nop 0")
    for i in range(0, 8, 2):
        a(f"v_pk_fma_f32 {pr(EU+i)}, {pr(TOT+8+i)}, {pr(TOT+i)}, {pr(EU+i)}")
    for i in range(8):
        a(f"v_max_f32 v{EU+i}, 0, v{EU+i}")
    for i in range(0, 8, 2):
        a(f"v_pk_add_f32 {pr(EX+i)}, {pr(EX+i)}, {pr(EU+i)}")
    for i in range(4):
        a(f"v_cvt_pk_bf16_f32 v{EX+i}, v{EX+2*i}, v{EX+2*i+1}")
    a(f"""
buffer_store_dwordx4 {q4(EX)}, v{EOUT}, s[36:39], 0 offen {OPT['st_out']}
@S13
@Wvmcnt(0)
@S14
@Vs{S_IT},22
@OUT
K_END:
s_endpgm
K_NOWORK:
""")
    eprep1(a)
    a("s_waitcnt lgkmcnt(0)")
    eprep2(a)
    a(f"""
s_branch K_LOOP_DONE
K_TAG_RETRY:
s_waitcnt lgkmcnt(0)
s_memrealtime s[52:53]
s_sleep 4
global_load_dword v64, v{VZ}, s[84:85] sc1
s_waitcnt vmcnt(0) lgkmcnt(0)
s_sub_u32 s52, s52, s50
s_cmp_lt_u32 s52, 0x400000
s_cbranch_scc1 K_TAGW
s_branch K_TAGOK
K_POLL_RETRY:
s_memrealtime s[52:53]
s_sleep {OPT['sleep']}
s_waitcnt lgkmcnt(0)
s_sub_u32 s52, s52, s50
s_cmp_lt_u32 s52, 0x400000
s_cbranch_scc1 K_POLL
""")
    for k in range(8):
        a(f"v_cndmask_b32 v{VTT+k}, v{VTT+k}, v{VZ}, vcc")
    a(f"""
s_branch K_POLLOK
K_LONG_ENTRY:
s_mov_b32 s14, 32
K_LONG:
v_add_u32 v6, s14, v2
s_mul_i32 s15, s14, 12
""")
    for k in range(8):
        a(f"""
s_mov_b64 exec, -1
v_cmp_gt_u32_sdwa vcc, v{VTT+k}, v6 src0_sel:WORD_1 src1_sel:DWORD
s_and_saveexec_b64 s[42:43], vcc
s_cbranch_execz K_LONG_S{k}
buffer_load_dwordx3 v[{R}:{R+2}], v{VRA+k}, s[32:35], s15 offen sc1
s_waitcnt vmcnt(0)
""")
        place_atomic(a, R, 4)
        a("s_waitcnt lgkmcnt(0)")
        place_write(a, R, 4)
        a(f"K_LONG_S{k}:")
    a(f"""
s_mov_b64 exec, -1
s_add_u32 s14, s14, 16
v_cmp_lt_u32 vcc, s14, v{VMAXL}
s_cbranch_vccnz K_LONG
s_branch K_PLACED
K_SLOW_ENTRY:
ds_max_u32 v{VZ}, v{VMAXL} offset:{L_MAXL}
s_waitcnt lgkmcnt(0)
s_barrier
ds_read_b32 v5, v{VZ} offset:{L_MAXL}
s_mov_b32 s{S_MODE}, 1
s_mov_b32 s{S_I}, 0
s_mov_b32 s{S_MO}, 0
s_waitcnt lgkmcnt(0)
v_readfirstlane_b32 s{S_ML}, v5
s_branch K_SLOW_BATCH
K_SLOW_NEXT:
s_add_u32 s{S_I}, s{S_I}, 1
s_cmp_lt_u32 s{S_I}, 64
s_cbranch_scc1 K_SLOW_BATCH
s_mov_b32 s{S_I}, 0
s_add_u32 s{S_MO}, s{S_MO}, 16
s_cmp_ge_u32 s{S_MO}, s{S_ML}
s_cbranch_scc1 K_FINAL
K_SLOW_BATCH:
s_waitcnt vmcnt(0) lgkmcnt(0)
s_barrier
""")
    slots_init(a, R, True)
    a(f"""
s_waitcnt lgkmcnt(0)
s_barrier
s_cmp_lg_u32 s3, 0
s_cbranch_scc1 K_SLOW_S
s_lshl_b32 s14, s{S_I}, 2
v_add_u32 v7, s14, v3
s_lshl_b32 s15, s{S_B}, 3
v_lshl_add_u32 v4, v7, 11, s15
buffer_load_dword v5, v4, s[32:35], 0 offen sc1
s_mov_b32 s15, {RECS}
v_mul_lo_u32 v7, v7, s15
v_add_u32 v6, s{S_MO}, v2
v_mad_u32_u24 v7, v6, 12, v7
v_add_u32 v7, {REC_REL}, v7
s_waitcnt vmcnt(0)
v_and_b32 v5, 0x0fff0fff, v5
v_mad_u32_u16 v4, v5, 12, v7
v_cmp_gt_u32_sdwa vcc, v5, v6 src0_sel:WORD_1 src1_sel:DWORD
s_and_saveexec_b64 s[40:41], vcc
s_cbranch_execz K_SLOW_S
buffer_load_dwordx3 v[{R}:{R+2}], v4, s[32:35], 0 offen sc1
s_waitcnt vmcnt(0)
""")
    place_atomic(a, R, 4)
    a("s_waitcnt lgkmcnt(0)")
    place_write(a, R, 4)
    a("""
K_SLOW_S:
s_mov_b64 exec, -1
s_waitcnt lgkmcnt(0)
s_barrier
s_branch K_RANK
""")
    return a.text()


HEADER = open("standalone__edge_featured_mpnn_gatedgcn__graph.s.ref").read().split("; Override launch")[0]


def main():
    out = HEADER
    out += f"; @launch grid=(256,1,1) block=(512,1,1) lds={LDS}\n"
    out += '.amdgcn_target "amdgcn-amd-amdhsa--gfx950"\n.text\n'
    out += f".globl {KNAME}\n.p2align 8\n.type {KNAME},@function\n" + kernel()
    out += f""".section .rodata,"a"
.p2align 6
.amdhsa_kernel {KNAME}
  .amdhsa_next_free_vgpr {NVGPR}
  .amdhsa_next_free_sgpr {101 if STAMPS else 98}
  .amdhsa_accum_offset {(NVGPR + 3) // 4 * 4}
  .amdhsa_group_segment_fixed_size 0
  .amdhsa_kernarg_size 96
  .amdhsa_user_sgpr_count 2
  .amdhsa_user_sgpr_kernarg_segment_ptr 1
  .amdhsa_system_sgpr_workgroup_id_x 1
.end_amdhsa_kernel
"""
    open(sys.argv[1], "w").write(out)


main()
```

```python
import sys
import struct
from math import gcd

N = 12500
E = 800000
QCH = 782
QH = QCH // 2
CH = QCH * 4
NQ = E // 4
RECB = CH * 12
RECS = 37760
TAB_ROWS = N + 1
TAB_BYTES = TAB_ROWS * 256
T_OFF = 0x310000
T2_REL = 0x80000
REC_REL = 0x81000
TR_BYTES = REC_REL + 256 * RECS
BIG = 0x40000000
NLOG2E = 0xbfb8aa3b
CAP = 128
CS = 132
XSS = 144
US = 272

OPT = dict(align="3", cpf="7", packpos="b", gs="2", nb="5", prio="1", order="c", npf="352", pfs="128", sleep="2", ng0="2", st_out="nt", cadd="1")
for a_ in sys.argv[2:]:
    k_, v_ = a_.split("=")
    OPT[k_] = v_
STAMPS = bool(OPT.get("stamps"))
GS = int(OPT["gs"])
NB = int(OPT["nb"] or (6 if GS == 2 else 4))
UNR = NB * 2 // gcd(NB, 2)
MINPS = NB + 1
MAXIT = 62
PLAIN = OPT.get('plain') == '1'
KEXP = 0 if PLAIN else (60 if GS == 2 else 40)
KBITS = (127 - KEXP) << 23
DBG_OFF = 0x1000000
KNAME = "standalone__edge_featured_mpnn_gatedgcn__graph_kernel"

L_CNT = 0
L_MASK = 256
L_MAXL = 324
L_ACKS = 328
L_ZERO = 384
L_TS = 640
L_TC = 1536
L_RK = 1792
L_HIST, L_START = 0, 1024
L_EA = 2048
EA_BYTES = 49 * CS * 8 + 32
L_KEYS = L_EA + EA_BYTES
KEY_BYTES = 49 * CS * 4 + 16
L_ACC = L_KEYS + KEY_BYTES
L_EXT = L_ACC + 52 * 512
L_STAGE = L_ACC
L_AP = L_EXT + 8 * 2048
L_U = L_AP + 49 * US
L_XS = L_U + 49 * US
L_WC = L_XS + 64 * XSS
LDS = L_WC + 512
assert 8 * GS * UNR + 8 <= L_TS - L_ZERO

_nv = [8]


def valloc(n, align=2):
    _nv[0] = (_nv[0] + align - 1) // align * align
    r = _nv[0]
    _nv[0] += n
    return r


GB = valloc(6 * GS * NB)
Y = (valloc(4 * GS), valloc(4 * GS))
HL = valloc(2 * GS)
P2, MM, SA, UU = valloc(4), valloc(4), valloc(4), valloc(4)
DEN = valloc(8)
NUM = DEN + 4
_nv[0] = max(_nv[0], 128)
AOP = [valloc(4) for _ in range(GS)]
CA, CN = valloc(4), valloc(4)
IDX = [valloc(2) for _ in range(GS)]
NX = valloc(2)
VK, VE, VF, VFN, VTK, VTE, NXE, VINC = [valloc(1, 1) for _ in range(8)]
TOT = valloc(16)
VTT = valloc(8)
VRA = valloc(8)
VCA = valloc(16)
PT = VCA
T2R = valloc(8)
VMAXL, VPF, VFOUR, VZ = [valloc(1, 1) for _ in range(4)]
EU, EX = valloc(8), valloc(8)
EACC, EEXT, EMSK, EOUT, ERK, ECN = [valloc(1, 1) for _ in range(6)]
VST = valloc(2)
NVGPR = _nv[0]
assert NVGPR <= 256, NVGPR
X0 = Y[0]
assert NUM + 4 - X0 >= 40

S_IT, S_MODE, S_I, S_MO, S_ML, S_CNT = 4, 5, 6, 7, 8, 9
S_K = 10
S_RAW = 12
S_B = 13
S_CM = 56
S_PR = 58
S_CS = 59
S_MASK = 60
S_AM = 62
S_TAG, S_TAG2, S_T2OK = 96, 97, 19


def stepbuf(p, i):
    return GB + 6 * (GS * (p % NB) + i)


def recset(j):
    return GB + 6 * j + 2 if j < GS * NB else X0 + 4 * (j - GS * NB)


class Asm:
    def __init__(self):
        self.L = []

    def __call__(self, s):
        for l in s.strip("\n").split("\n"):
            l = l.strip()
            if not l:
                continue
            if l.startswith("@"):
                if STAMPS:
                    self.special(l)
                continue
            self.L.append(l if l.endswith(":") else "    " + l)

    def special(self, l):
        if l.startswith("@S") or l.startswith("@C"):
            self(f"{'s_memtime' if l[1] == 'C' else 's_memrealtime'} s[98:99]")
            self("s_waitcnt lgkmcnt(0)")
            self(f"v_writelane_b32 v{VST}, s98, {int(l[2:])}")
        elif l.startswith("@W"):
            self("s_waitcnt " + l[2:])
        elif l.startswith("@V"):
            r, i = l[2:].split(",")
            self(f"v_writelane_b32 v{VST}, {r}, {i}")
        elif l.startswith("@OUT"):
            self(f"""
s_mov_b64 exec, -1
s_lshl_b32 s100, s2, 4
s_add_u32 s100, s100, s3
s_lshl_b32 s100, s100, 8
s_add_u32 s100, s100, {DBG_OFF + 0x100000:#x}
v_and_b32 v{VST+1}, 63, v0
v_lshl_add_u32 v{VST+1}, v{VST+1}, 2, s100
global_store_dword v{VST+1}, v{VST}, s[16:17]
""")

    def text(self):
        return "\n".join(self.L) + "\n"


def pr(r):
    return f"v[{r}:{r+1}]"


def q4(r):
    return f"v[{r}:{r+3}]"


def srd(a, d, lo, hi, nbytes, stride=0):
    a(f"s_mov_b32 s{d}, s{lo}")
    a(f"s_and_b32 s{d+1}, s{hi}, 0xffff")
    if stride:
        a(f"s_or_b32 s{d+1}, s{d+1}, {stride << 16:#x}")
    a(f"s_mov_b32 s{d+2}, {nbytes}")
    a(f"s_mov_b32 s{d+3}, 0x20000")


def scan(a, v, row_only=False, fill=()):
    fill = list(fill)
    steps = [f"row_shr:{d} row_mask:0xf" for d in (1, 2, 4, 8)]
    if not row_only:
        steps += ["row_bcast:15 row_mask:0xa", "row_bcast:31 row_mask:0xc"]
    for st in steps:
        if fill:
            a(fill.pop(0))
            a("s_nop 0")
        else:
            a("s_nop 1")
        a(f"v_add_u32_dpp v{v}, v{v}, v{v} {st} bank_mask:0xf")


SDWA_B0 = "dst_sel:DWORD dst_unused:UNUSED_PAD src0_sel:DWORD src1_sel:BYTE_0"


def tr_reads(a, vaddr, base, r0):
    for mat in range(2):
        for t in range(2):
            for s in range(2):
                r = r0 + 16 * mat + 8 * t + 4 * s
                o = base + mat * 8192 + s * 4096
                a(f"ds_read_b64_tr_b16 {pr(r)}, v{vaddr[t]} offset:{o}")
                a(f"ds_read_b64_tr_b16 {pr(r+2)}, v{vaddr[t]} offset:{o + 512}")


def tile_mfmas(a, r0, x0, d0):
    for s in range(2):
        for mat in range(2):
            for t in range(2):
                f = r0 + 16 * mat + 8 * t + 4 * s
                d = d0 + 8 * mat + 4 * t
                c = "0" if s == 0 else q4(d)
                a(f"v_mfma_f32_16x16x32_bf16 {q4(d)}, {q4(f)}, {q4(x0+4*s)}, {c}")


def slots_init(a, r, small):
    for i in range(4):
        a(f"v_mov_b32 v{r+i}, 0")
    for i in range(4):
        a(f"v_mov_b32 v{r+4+i}, {N}")
    z0 = 0 if small else L_EA
    a(f"v_lshlrev_b32 v{r+8}, 4, v0")
    a(f"v_add_u32 v{r+9}, {L_KEYS}, v{r+8}")
    nz, nk = (L_KEYS - z0) // 16, KEY_BYTES // 16
    for i in range(nz // 512):
        a(f"ds_write_b128 v{r+8}, {q4(r)} offset:{z0 + 8192*i}")
    for i in range(nk // 512):
        a(f"ds_write_b128 v{r+9}, {q4(r+4)} offset:{8192*i}")
    for rem, reg, data, off in sorted([(nz % 512, r + 8, r, z0 + 8192 * (nz // 512)), (nk % 512, r + 9, r + 4, 8192 * (nk // 512))], reverse=True):
        a(f"v_cmp_gt_u32 vcc, {rem}, v0")
        a("s_mov_b64 exec, vcc")
        a(f"ds_write_b128 v{reg}, {q4(data)} offset:{off}")
    a("s_mov_b64 exec, -1")


def place_atomic(a, r, ca):
    a(f"v_and_b32 v{ca}, 0xfc, v{r+2}")
    a(f"ds_add_rtn_u32 v{r+3}, v{ca}, v{VFOUR} offset:{L_CNT}")


def place_write(a, r, ca):
    a(f"v_min_u32 v{r+3}, {CAP*4}, v{r+3}")
    a(f"v_mad_u32_u24 v{ca}, v{ca}, s{S_CS}, v{r+3}")
    a(f"v_lshrrev_b32 v{r+2}, 8, v{r+2}")
    a(f"v_add_u32 v{r+3}, v{ca}, v{ca}")
    a(f"ds_write_b32 v{ca}, v{r+2} offset:{L_KEYS}")
    a(f"ds_write_b64 v{r+3}, {pr(r)} offset:{L_EA}")


def ev_k(a, sub):
    a(f"""
v_add_u32 v{VK}, {L_KEYS - sub}, v{NX}
v_add_u32 v4, v{NX+1}, v{IDX[0]+1}
v_add_u32 v{VTK}, 32, v{VTK}
v_add_u32 v{VTE}, 32, v{VTE}
ds_read_b128 {q4(CN)}, v4
ds_read_b32 v{NXE}, v{VTE} offset:{L_TS}
ds_read_b64 {pr(NX)}, v{VTK} offset:{L_TS + 32}
""")


def ev_e(a, sub):
    a(f"""
v_lshlrev_b32 v{VE}, 1, v{NXE}
v_add_u32 v{VE}, {L_EA - sub}, v{VE}
v_mov_b32 v4, {L_ZERO}
v_pk_mov_b32 {pr(CA)}, {pr(CN)}, {pr(CN)} op_sel:[0,1]
v_pk_mov_b32 {pr(CA+2)}, {pr(CN+2)}, {pr(CN+2)} op_sel:[0,1]
v_cndmask_b32_e64 v{VE}, v4, v{VE}, s[{S_AM}:{S_AM+1}]
""")


def gathers(p, idx):
    return [f"buffer_load_dwordx4 {q4(stepbuf(p, i) + 2)}, {pr(idx[i])}, s[24:27], 0 idxen offen sc1" for i in range(GS)]


def mfmas(p):
    y = Y[p & 1]
    return [f"v_mfma_f32_16x16x32_bf16 {q4(y+4*i)}, {q4(AOP[i])}, {q4(stepbuf(p, i))}, {q4(CA)}" for i in range(GS)]


def ops(k):
    y, yn = Y[k & 1], Y[1 - (k & 1)]
    b = [stepbuf(k, i) + 4 for i in range(GS)]
    sk = f"s[{S_K}:{S_K+1}]"
    d = {}
    for i in range(4 * GS):
        d[f"E{i}"] = f"v_exp_f32 v{yn+i}, v{yn+i}"
    for i in range(2 * GS):
        if OPT["cadd"] == "1":
            d[f"C{i}"] = f"v_pk_add_f32 {pr(y+2*i)}, {pr(y+2*i)}, {sk} clamp"
        else:
            d[f"C{i}"] = f"v_pk_fma_f32 {pr(y+2*i)}, {pr(y+2*i)}, {sk}, {sk} clamp"
    for i in range(4):
        d[f"R{i}"] = f"v_rcp_f32 v{MM+i}, v{MM+i}"
    for i in range(2):
        p = [pr(y + 4 * j + 2 * i) for j in range(GS)]
        h = [pr(HL + 2 * j) if i == 0 else pr(b[j]) for j in range(GS)]
        m, s, u, p2 = pr(MM + 2 * i), pr(SA + 2 * i), pr(UU + 2 * i), pr(P2 + 2 * i)
        d[f"m{i}"] = f"v_pk_mul_f32 {m if GS == 2 else p2}, {p[0]}, {p[1]}"
        d[f"a{i}"] = f"v_pk_add_f32 {s}, {p[0]}, {p[1]}"
        d[f"g{i}"] = f"v_pk_mul_f32 {u}, {p[1]}, {h[0]}"
        d[f"h{i}"] = f"v_pk_fma_f32 {u}, {p[0]}, {h[1]}, {u}"
        if GS == 3:
            d[f"M{i}"] = f"v_pk_mul_f32 {m}, {p2}, {p[2]}"
            d[f"s{i}"] = f"v_pk_fma_f32 {s}, {s}, {p[2]}, {p2}"
            d[f"i{i}"] = f"v_pk_mul_f32 {u}, {u}, {p[2]}"
            d[f"j{i}"] = f"v_pk_fma_f32 {u}, {p2}, {h[2]}, {u}"
        d[f"d{i}"] = f"v_pk_fma_f32 {pr(DEN+2*i)}, {s}, {m}, {pr(DEN+2*i)}"
        d[f"n{i}"] = f"v_pk_fma_f32 {pr(NUM+2*i)}, {u}, {m}, {pr(NUM+2*i)}"
    if PLAIN:
        for i in range(2 * GS):
            d[f"C{i}"] = f"v_pk_add_f32 {pr(y+2*i)}, {pr(y+2*i)}, {sk}"
            j, hf = i >> 1, i & 1
            hh = pr(HL + 2 * j) if hf == 0 else pr(b[j])
            d[f"D{i}"] = f"v_pk_add_f32 {pr(DEN+2*hf)}, {pr(DEN+2*hf)}, {pr(y+2*i)}"
            d[f"U{i}"] = f"v_pk_fma_f32 {pr(NUM+2*hf)}, {pr(y+2*i)}, {hh}, {pr(NUM+2*hf)}"
        for i in range(4 * GS):
            d[f"r{i}"] = f"v_rcp_f32 v{y+i}, v{y+i}"
    for i in range(GS):
        d[f"Q{i}"] = f"v_lshlrev_b64 {pr(HL+2*i)}, 16, {pr(b[i])}"
        d[f"N{i}"] = mfmas(k + 2)[i]
        d[f"L{i}"] = gathers(k, IDX)[i]
        d[f"k{i}"] = f"ds_read_b32 v{IDX[i]}, v{VK} offset:{4*(GS*k+i)}"
        d[f"e{i}"] = f"ds_read_b64 {pr(AOP[i])}, v{VE} offset:{8*(GS*k+i)}"
    if OPT.get("eam") == "1":
        d["e0"] = f"s_mov_b64 exec, s[{S_AM}:{S_AM+1}]\n" + d["e0"]
        d[f"e{GS-1}"] += "\ns_mov_b64 exec, -1"
    if OPT.get("exp") == "nold":
        for i in range(GS): d[f"L{i}"] = ""
    if OPT.get("exp") == "nolds":
        for i in range(GS): d[f"k{i}"] = ""; d[f"e{i}"] = ""
    if OPT.get("exp") == "nom":
        for i in range(GS): d[f"N{i}"] = ""
    for ch in OPT.get("drop", ""):
        for key in list(d):
            if key[0] == ch and key[1:].isdigit(): d[key] = ""
    d["W"] = f"s_waitcnt vmcnt({GS*(NB-3)}) lgkmcnt(0)"
    d["S"] = f"s_sub_u32 s{S_CNT}, s{S_CNT}, 1"
    d["A0"] = f"v_add_u32 v{VK}, {4*GS*UNR}, v{VK}" if k == UNR - 1 else ""
    d["A1"] = f"v_add_u32 v{VE}, v{VINC}, v{VE}" if k == UNR - 1 else ""
    return d


ORDERS = {
    2: {
        "p": "k0 k1 e0 e1 C0 C1 r0 C2 r1 C3 r2 Q0 r3 Q1 r4 D0 r5 U0 r6 D1 r7 U1 E0 D2 E1 U2 E2 D3 E3 U3 A0 A1 W L0 L1 S N0 E4 E5 N1 E6 E7",
        "q": "k0 k1 e0 e1 C0 C1 C2 C3 r0 r1 r2 r3 Q0 Q1 r4 r5 r6 r7 D0 U0 D1 U1 D2 U2 D3 U3 A0 A1 W L0 L1 S N0 E0 E1 E2 E3 N1 E4 E5 E6 E7",
        "b": "k0 k1 e0 e1 C0 E0 C2 E1 C1 E2 C3 E3 m0 E4 m1 E5 S Q0 Q1 A0 A1 a0 a1 g0 g1 h0 h1 W N0 R0 R1 N1 R2 R3 L0 L1 E6 d0 E7 d1 n0 n1",
        "c": "k0 k1 e0 e1 C0 C2 E0 m0 E1 C1 C3 E2 m1 E3 Q0 E4 Q1 E5 A0 A1 a0 a1 g0 g1 h0 h1 W L0 L1 S N0 R0 R1 N1 R2 R3 E6 d0 E7 d1 n0 n1",
        "d": "k0 k1 e0 e1 Q0 Q1 C0 E0 C2 E1 C1 E2 C3 E3 g0 E4 g1 E5 h0 h1 A0 A1 m0 m1 a0 a1 W L0 L1 S N0 R0 R1 N1 R2 R3 E6 d0 E7 d1 n0 n1",
        "e": "k0 k1 e0 e1 C0 E0 C2 E1 m0 E2 C1 R0 C3 R1 m1 E3 Q0 Q1 A0 A1 a0 a1 g0 g1 h0 h1 W L0 L1 S N0 R2 R3 N1 E4 E5 d0 E6 n0 E7 d1 n1",
        "f": "k0 k1 e0 e1 C0 E0 C2 E1 C1 E2 C3 E3 m0 m1 Q0 Q1 A0 A1 a0 a1 g0 g1 h0 h1 W L0 L1 S N0 R0 R1 E4 N1 R2 R3 E5 d0 E6 d1 E7 n0 n1",
        "g": "C0 E0 C2 E1 C1 E2 C3 E3 k0 k1 e0 e1 m0 E4 m1 E5 Q0 Q1 A0 A1 a0 a1 g0 g1 h0 h1 W L0 L1 S N0 R0 R1 N1 R2 R3 E6 d0 E7 d1 n0 n1",
        "h": "k0 k1 e0 e1 C0 E0 C2 E1 C1 E2 C3 E3 m0 E4 m1 E5 Q0 Q1 A0 A1 g0 g1 h0 h1 a0 a1 W L0 L1 S N0 R0 R1 N1 R2 R3 E6 E7 d0 d1 n0 n1",
        "": "k0 k1 e0 e1 C0 E0 C2 E1 C1 E2 C3 E3 m0 E4 m1 E5 Q0 Q1 A0 A1 a0 a1 g0 g1 h0 h1 W L0 L1 S N0 R0 R1 N1 R2 R3 E6 d0 E7 d1 n0 n1",
    },
    3: {
        "d": "k0 k1 k2 e0 e1 e2 C0 E0 C2 E1 C4 E2 C1 E3 C3 E4 C5 E5 m0 m1 M0 M1 Q0 Q1 Q2 A0 A1 a0 a1 g0 g1 s0 s1 h0 h1 i0 i1 j0 j1 W L0 L1 L2 S N0 R0 R1 N1 R2 R3 N2 E6 E7 E8 d0 E9 d1 E10 n0 E11 n1",
        "e": "k0 k1 k2 e0 e1 e2 Q0 Q1 Q2 C0 E0 C2 E1 C4 E2 C1 E3 C3 E4 C5 E5 m0 m1 g0 g1 M0 M1 A0 A1 h0 h1 a0 a1 i0 i1 s0 s1 j0 j1 W N0 R0 R1 N1 R2 R3 N2 E6 E7 L0 L1 L2 S E8 d0 E9 d1 E10 n0 E11 n1",
        "": "k0 k1 k2 e0 e1 e2 C0 E0 C2 E1 C4 E2 C1 E3 C3 E4 C5 E5 m0 E6 m1 E7 M0 M1 Q0 Q1 Q2 A0 A1 a0 a1 g0 g1 s0 s1 h0 h1 i0 i1 j0 j1 W L0 L1 L2 S N0 R0 R1 N1 R2 R3 N2 E8 E9 d0 E10 d1 E11 n0 n1",
        "b": "k0 k1 k2 e0 e1 e2 C0 E0 C2 E1 C4 E2 C1 E3 C3 E4 C5 E5 m0 m1 M0 M1 Q0 Q1 Q2 A0 A1 a0 a1 g0 g1 s0 s1 h0 h1 i0 i1 j0 j1 W N0 R0 R1 N1 R2 R3 N2 E6 E7 L0 L1 L2 S E8 d0 E9 d1 E10 n0 E11 n1",
        "c": "k0 k1 k2 e0 e1 e2 C0 E0 C2 E1 m0 E2 C4 E3 M0 E4 C1 E5 C3 E6 m1 E7 C5 M1 Q0 Q1 Q2 A0 A1 a0 a1 g0 g1 s0 s1 h0 h1 i0 i1 j0 j1 W L0 L1 L2 S N0 R0 R1 N1 R2 R3 N2 E8 E9 d0 E10 d1 E11 n0 n1",
    },
}


def eprep1(a):
    a(f"""
v_lshrrev_b32 v{EOUT}, 3, v0
v_min_u32 v{EACC}, 48, v{EOUT}
v_lshlrev_b32 v{ERK}, 2, v{EOUT}
v_lshlrev_b32 v{ECN}, 2, v{EACC}
v_and_b32 v{EMSK}, 7, v0
v_lshlrev_b32 v{EEXT}, 5, v{EMSK}
v_cmp_gt_u32_e64 s[20:21], 52, v{EOUT}
s_movk_i32 s22, {US}
v_mad_u32_u24 v6, v{EACC}, s22, v{EEXT}
v_add_u32 v6, {L_U}, v6
v_mul_u32_u24 v7, {XSS}, v{EACC}
v_lshl_add_u32 v7, v{EMSK}, 4, v7
v_add_u32 v7, {L_XS}, v7
ds_read_b32 v{ERK}, v{ERK} offset:{L_RK}
ds_read_b32 v{ECN}, v{ECN} offset:{L_CNT}
ds_read_b128 {q4(EU)}, v6
ds_read_b128 {q4(EU+4)}, v6 offset:16
ds_read_b128 {q4(EX+4)}, v7
v_lshlrev_b32 v{EOUT}, 8, v{EOUT}
v_add_u32 v{EOUT}, s{S_B}, v{EOUT}
v_lshlrev_b32 v{EOUT}, 7, v{EOUT}
v_lshl_add_u32 v{EOUT}, v{EMSK}, 4, v{EOUT}
""")


def eprep2(a):
    a(f"""
v_cmp_ne_u32_e64 s[22:23], 0, v{ECN}
v_and_b32 v{EMSK}, -4, v{ERK}
v_lshl_add_u32 v{EACC}, v{ERK}, 9, v{EEXT}
v_add_u32 v{EACC}, {L_ACC}, v{EACC}
v_and_b32 v{ERK}, 3, v{ERK}
v_lshl_add_u32 v{EEXT}, v{ERK}, 9, v{EEXT}
v_add_u32 v{EEXT}, {L_EXT}, v{EEXT}
s_and_b64 s[20:21], s[20:21], s[22:23]
""")
    for i in range(4):
        a(f"v_lshlrev_b32 v{EX+2*i}, 16, v{EX+4+i}" if i < 2 else "")
        a(f"v_and_b32 v{EX+2*i+1}, 0xffff0000, v{EX+4+i}" if i < 2 else "")
    a(f"v_lshlrev_b32 v{EX+4}, 16, v{EX+6}")
    a(f"v_and_b32 v{EX+5}, 0xffff0000, v{EX+6}")
    a(f"v_lshlrev_b32 v{EX+6}, 16, v{EX+7}")
    a(f"v_and_b32 v{EX+7}, 0xffff0000, v{EX+7}")


def t2_check(a):
    a(f"v_xor_b32 v4, s{S_TAG}, v{T2R}")
    for i in (2, 4, 6):
        a(f"v_xor_b32 v5, s{S_TAG}, v{T2R+i}")
        a("v_or_b32 v4, v4, v5")
    for i in (1, 3, 5, 7):
        a(f"v_xor_b32 v5, s{S_TAG2}, v{T2R+i}")
        a("v_or_b32 v4, v4, v5")
    a("v_cmp_ne_u32 vcc, 0, v4")


def t2_loads(a):
    a(f"""
v_lshlrev_b32 v4, 4, v1
s_mov_b32 s40, {T2_REL:#x}
buffer_load_dwordx4 {q4(T2R)}, v4, s[32:35], s40 offen sc1
buffer_load_dwordx4 {q4(T2R+4)}, v4, s[32:35], s40 offen offset:1024 sc1
""")


def kernel():
    a = Asm()
    VTR, VXA, VWC, VAU, VLOC = VK, VE, VF, VFN, NXE
    VE2, VT2 = VTK, VTE
    VTR1, VWG, XF = VMAXL, VPF, T2R
    a(f"""
{KNAME}:
s_cmp_ge_u32 s2, 256
s_cbranch_scc1 K_END
@S0
@C30
s_load_dwordx16 s[64:79], s[0:1], 0
s_load_dwordx8 s[80:87], s[0:1], 64
s_getpc_b64 s[42:43]
K_PC0:
v_and_b32 v6, 63, v0
v_lshlrev_b32 v6, 7, v6
v_add_u32 v7, 8192, v6
v_cmp_le_u32 vcc, {int(OPT.get('cw', 7))*64}, v0
s_mov_b64 exec, vcc
global_load_dword v{VFOUR}, v6, s[42:43]
v_cmp_gt_u32 vcc, K_LONG_ENTRY-K_PC0, v7
s_mov_b64 exec, vcc
global_load_dword v{VFOUR}, v7, s[42:43]
s_mov_b64 exec, -1
s_mul_i32 s40, s2, {QCH}
v_add_u32 v4, s40, v0
v_add_u32 v5, {QH}, v4
v_cmp_gt_u32 vcc, {QH}, v0
v_lshlrev_b32 v4, 4, v4
v_mov_b32 v6, {BIG:#x}
v_and_b32 v7, 255, v0
v_cndmask_b32 v4, v6, v4, vcc
v_lshlrev_b32 v7, 2, v7
v_mov_b32 v{VZ}, 0
ds_write_b32 v7, v{VZ} offset:{L_HIST}
s_mov_b32 s47, 0x20000
s_mov_b32 s46, {E*4}
s_movk_i32 s58, {QH*16}
s_waitcnt lgkmcnt(0)
s_mov_b32 s44, s70
s_and_b32 s45, s71, 0xffff
buffer_load_dwordx4 v[8:11], v4, s[44:47], 0 offen
buffer_load_dwordx4 v[12:15], v4, s[44:47], s58 offen
v_readfirstlane_b32 s3, v0
s_mov_b32 s41, {NQ}
v_cmp_gt_u32_e64 s[94:95], s41, v5
s_mov_b64 s[92:93], vcc
v_add_u32 v5, s58, v4
s_and_b32 s{S_B}, s2, 7
s_lshl_b32 s{S_B}, s{S_B}, 5
s_lshr_b32 s40, s2, 3
s_or_b32 s{S_B}, s{S_B}, s40
s_and_b64 s[94:95], s[94:95], vcc
s_lshr_b32 s3, s3, 6
v_lshlrev_b32 v61, 4, v0
v_and_b32 v96, 16, v0
v_lshlrev_b32 v96, 1, v96
v_and_b32 v97, 64, v0
v_or_b32 v96, v96, v97
v_xor_b32 v{VWG}, v96, v61
global_load_dwordx4 v[40:43], v{VWG}, s[74:75]
global_load_dwordx4 v[44:47], v{VWG}, s[80:81]
v_lshrrev_b32 v62, 3, v0
v_lshlrev_b32 v90, 8, v62
v_add_u32 v90, s{S_B}, v90
v_lshlrev_b32 v90, 7, v90
v_and_b32 v63, 7, v0
v_lshl_add_u32 v90, v63, 4, v90
""")
    srd(a, 20, 64, 65, N * 128)
    a(f"""
buffer_load_dwordx4 v[56:59], v90, s[20:23], 0 offen
s_or_b32 s40, s2, s3
s_cmp_lg_u32 s40, 0
s_cbranch_scc1 K_NONONCE
s_memrealtime s[40:41]
s_waitcnt lgkmcnt(0)
s_or_b32 s40, s40, 1
v_mov_b32 v7, s40
s_mov_b64 exec, 1
global_store_dword v{VZ}, v7, s[84:85] sc1
s_mov_b64 exec, -1
K_NONONCE:
""")
    srd(a, 48, 68, 69, E * 4)
    srd(a, 52, 66, 67, E * 8)
    a(f"""
v_lshlrev_b32 v6, 1, v4
v_lshlrev_b32 v7, 1, v5
v_mov_b32 v74, v4
v_mov_b32 v75, v5
@S1
""")
    NE = int(OPT.get("ne", 2))
    later = ["buffer_load_dwordx4 v[24:27], v6, s[52:55], 0 offen",
             "buffer_load_dwordx4 v[28:31], v6, s[52:55], 0 offen offset:16",
             "buffer_load_dwordx4 v[16:19], v74, s[48:51], 0 offen",
             "buffer_load_dwordx4 v[20:23], v75, s[48:51], 0 offen"]
    a("s_barrier")
    for l in later[:NE]:
        a(l)
    TLB = OPT.get("tlb", "3")
    if TLB == "1":
        a(f"""
s_cmp_lg_u32 s3, 7
s_cbranch_scc1 K_NOTLB
v_and_b32 v76, 63, v0
v_lshlrev_b32 v77, 14, v76
v_mul_u32_u24 v76, {4*RECS}, v76
v_add_u32 v76, {T_OFF + REC_REL - 128}, v76
global_load_dword v{VFOUR}, v76, s[86:87]
global_load_dword v{VFOUR}, v77, s[82:83]
K_NOTLB:
""")
    if TLB in ("3", "4"):
        a(f"""
s_cmp_lg_u32 s3, 7
s_cbranch_scc1 K_NOTLB
s_add_u32 s40, s2, 1
v_and_b32 v76, 1, v0
v_mul_u32_u24 v76, s40, v76
s_mov_b32 s40, {RECS}
v_mul_lo_u32 v76, v76, s40
v_add_u32 v76, {T_OFF + REC_REL - 128}, v76
s_mov_b64 exec, 3
global_load_dword v{VFOUR}, v76, s[86:87]
s_mov_b64 exec, 1
global_load_dword v{VFOUR}, v{VZ}, s[82:83]
global_load_dword v{VFOUR}, v{VZ}, s[84:85] offset:128
s_mov_b64 exec, -1
K_NOTLB:
""")
    slots_init(a, 64, False)
    a(f"""
v_and_b32 v1, 63, v0
v_and_b32 v2, 15, v0
v_bfe_u32 v3, v0, 4, 2
v_and_b32 v91, 127, v0
v_lshlrev_b32 v91, 2, v91
v_mul_u32_u24 v62, {XSS}, v62
v_lshl_add_u32 v62, v63, 4, v62
v_add_u32 v62, {L_XS}, v62
v_add_u32 v63, {L_AP}, v61
s_mov_b64 s[16:17], s[86:87]
s_lshr_b32 s18, s3, 1
s_lshl_b32 s18, s18, 4
s_and_b32 s19, s3, 1
v_lshrrev_b32 v{VE2}, 2, v2
v_lshl_add_u32 v{VTR}, v3, 3, v{VE2}
v_lshlrev_b32 v{VTR}, 7, v{VTR}
v_and_b32 v{VT2}, 3, v2
v_lshl_add_u32 v{VTR}, v{VT2}, 3, v{VTR}
s_lshl_b32 s40, s19, 6
v_add_u32 v{VTR}, s40, v{VTR}
v_and_b32 v4, 8, v2
v_lshlrev_b32 v4, 2, v4
v_and_b32 v5, 1, v3
v_lshl_or_b32 v4, v5, 6, v4
v_xor_b32 v{VTR}, v4, v{VTR}
v_xor_b32 v{VTR1}, 32, v{VTR}
v_add_u32 v{VTR}, {L_AP}, v{VTR}
v_add_u32 v{VTR1}, {L_AP}, v{VTR1}
v_add_u32 v{VLOC}, s18, v2
v_mul_u32_u24 v{VXA}, {XSS}, v{VLOC}
v_lshl_add_u32 v{VXA}, v3, 4, v{VXA}
v_add_u32 v{VXA}, {L_XS}, v{VXA}
""")
    srd(a, 28, 16, 17, TAB_BYTES)
    a(f"""
v_lshlrev_b32 v4, 8, v{VLOC}
v_add_u32 v4, s{S_B}, v4
v_lshlrev_b32 v60, 8, v4
v_lshl_add_u32 v60, v3, 4, v60
s_lshl_b32 s40, s19, 7
v_add_u32 v60, s40, v60
v_cmp_eq_u32 vcc, {N}, v4
v_mov_b32 v4, 0x7f000000
v_mov_b32 v5, 0x7f007f00
s_mov_b32 s56, 0x07060100
s_mov_b32 s57, 0x07060302
v_mov_b32 v76, 1
@S2
s_waitcnt vmcnt({4 + NE})
@S3
""")
    for i in range(4):
        a(f"v_lshlrev_b32_sdwa v{64+i}, 2, v{8+i} {SDWA_B0}")
    a("s_mov_b64 exec, s[92:93]")
    for i in range(4):
        a(f"ds_add_rtn_u32 v{80+i}, v{64+i}, v76 offset:{L_HIST}")
    a("s_mov_b64 exec, -1")
    a(f"s_waitcnt vmcnt({3 + NE})")
    for i in range(4, 8):
        a(f"v_lshlrev_b32_sdwa v{64+i}, 2, v{8+i} {SDWA_B0}")
    a("s_mov_b64 exec, s[94:95]")
    for i in range(4, 8):
        a(f"ds_add_rtn_u32 v{80+i}, v{64+i}, v76 offset:{L_HIST}")
    a(f"""
s_mov_b64 exec, -1
s_cmp_eq_u32 s3, 7
s_waitcnt vmcnt({NE + (3 if TLB in ("3", "4") else 2 if TLB == "1" else 0)})
s_cbranch_scc1 K_WOK
s_waitcnt vmcnt({NE})
K_WOK:
ds_write_b128 v63, v[40:43]
ds_write_b128 v63, v[44:47] offset:8192
ds_write_b128 v62, v[56:59]
""")
    NL = int(OPT.get("nl", 4))
    rest = later[NE:] + ["buffer_load_dwordx4 v[32:35], v7, s[52:55], 0 offen", "buffer_load_dwordx4 v[36:39], v7, s[52:55], 0 offen offset:16"]
    for l in rest[:NL]:
        a(l)
    for i in range(8):
        a(f"v_lshrrev_b32 v{8+i}, 6, v{8+i}")
    a("v_lshlrev_b32 v77, 4, v1")
    seqs = []
    for t in range(2):
        b, h, o, tm = TOT + 4 * t, TOT + 8 + 4 * t, 40 + 4 * t, 78 + t
        q = [f"v_mul_f32 v{b+i}, {NLOG2E:#x}, v{b+i}" for i in range(4)]
        q += [f"v_med3_f32 v{b+i}, v{b+i}, v4, -v4" for i in range(4)]
        q += [f"v_cvt_pk_bf16_f32 v{tm}, v{h}, v{h}"]
        q += [f"v_cvt_pk_bf16_f32 v{o}, v{b}, v{b+1}", f"v_cvt_pk_bf16_f32 v{o+1}, v{b+2}, v{b+3}"]
        q += [f"v_perm_b32 v{o+2}, v{h+2}, v{tm}, s56", f"v_perm_b32 v{o+3}, v{h+3}, v{h+1}, s57"]
        q += [f"v_cndmask_b32 v{o}, v{o}, v5, vcc", f"v_cndmask_b32 v{o+1}, v{o+1}, v5, vcc"]
        seqs.append(q)
    pack = [z for xy in zip(*seqs) for z in xy]
    stores = [f"buffer_store_dwordx4 {q4(40+4*t)}, v60, s[28:31], 0 offen offset:{64*t} sc1" for t in range(2)]
    wl = [f"global_load_dwordx4 v[48:51], v{VWG}, s[72:73]", f"global_load_dwordx4 v[52:55], v{VWG}, s[78:79]", "global_load_dword v56, v91, s[76:77]"]
    a(f"""
s_waitcnt lgkmcnt(0)
@S4
s_barrier
@S5
ds_read_b128 v[72:75], v77 offset:{L_HIST}
ds_read_b128 {q4(XF)}, v{VXA}
ds_read_b128 {q4(XF+4)}, v{VXA} offset:64
""")
    for l in rest[NL:]:
        a(l)
    tr = Asm()
    tr_reads(tr, (VTR, VTR1), 0, 96)
    tr = tr.L
    for l in tr[:4]:
        a(l)
    a(f"""
s_waitcnt lgkmcnt(6)
v_add_u32 v89, v72, v73
v_add_u32 v90, v89, v74
v_add_u32 v62, v90, v75
v_mov_b32 v63, v62
""")
    steps = [f"row_shr:{d} row_mask:0xf" for d in (1, 2, 4, 8)] + ["row_bcast:15 row_mask:0xa", "row_bcast:31 row_mask:0xc"]
    for i, st in enumerate(steps):
        a(tr[4 + 2 * i]); a(tr[5 + 2 * i])
        a(f"v_add_u32_dpp v62, v62, v62 {st} bank_mask:0xf")
    a(f"""
v_sub_u32 v88, v62, v63
v_add_u32 v91x, v88, v90
v_add_u32 v90, v88, v89
v_add_u32 v89, v88, v72
ds_write_b128 v77, v[88:91] offset:{L_START}
""".replace("v91x", "v91"))
    for i in range(8):
        a(f"ds_read_b32 v{64+i}, v{64+i} offset:{L_START}")
    for i in range(4):
        a(f"v_lshl_or_b32 v{92+i}, v{72+i}, 16, v{88+i}")
    a("s_waitcnt lgkmcnt(9)")
    tile_mfmas(a, 96, XF, TOT)
    a("v_and_b32 v91, 127, v0")
    a("v_lshlrev_b32 v91, 2, v91")
    srd(a, 24, 16, 17, TAB_ROWS, stride=256)
    srd(a, 36, 82, 83, N * 128)
    a(f"s_mov_b32 s40, {L_STAGE}")
    PKP = OPT.get("pkp", "0")
    if PKP == "0":
        for l in pack + stores + wl:
            a(l)
    a(f"""
s_add_u32 s32, s16, {T_OFF:#x}
s_addc_u32 s33, s17, 0
s_and_b32 s33, s33, 0xffff
s_mov_b32 s34, {TR_BYTES}
s_mov_b32 s35, 0x20000
s_mul_i32 s41, s2, {RECS}
s_add_u32 s41, s41, {T_OFF + REC_REL:#x}
s_add_u32 s88, s16, s41
s_addc_u32 s89, s17, 0
s_and_b32 s89, s89, 0xffff
s_mov_b32 s90, {RECB}
s_mov_b32 s91, 0x20000
s_waitcnt vmcnt({7 if PKP == "0" else 2})
""")
    for i in range(8):
        a(f"v_lshl_or_b32 v{16+i}, v{16+i}, 8, v{8+i}")
    for i in range(8):
        a(f"s_waitcnt lgkmcnt({7-i})")
        a(f"v_add_u32 v{64+i}, v{64+i}, v{80+i}")
        a(f"v_mad_u32_u24 v{64+i}, v{64+i}, 12, s40")
    a("s_mov_b64 exec, s[92:93]")
    for i in range(4):
        a(f"ds_write_b32 v{64+i}, v{16+i} offset:8")
        a(f"ds_write2_b32 v{64+i}, v{24+2*i}, v{25+2*i} offset0:0 offset1:1")
    a("s_mov_b64 exec, s[94:95]")
    for i in range(4, 8):
        a(f"ds_write_b32 v{64+i}, v{16+i} offset:8")
    a(f"s_waitcnt vmcnt({5 if PKP == '0' else 0})")
    for i in range(4, 8):
        a(f"ds_write2_b32 v{64+i}, v{24+2*i}, v{25+2*i} offset0:0 offset1:1")
    a("s_mov_b64 exec, -1")
    if PKP == "1":
        for l in pack + stores + wl:
            a(l)
    a(f"""
@S6
s_movk_i32 s14, {RECB//16 - 2048}
v_cmp_gt_u32_e64 s[14:15], s14, v0
v_add_u32 v63, {L_STAGE}, v61
v_add_u32 v91, {L_WC}, v91
s_movk_i32 s44, 0x2000
s_movk_i32 s45, 0x4000
s_movk_i32 s46, 0x6000
s_mov_b32 s47, 0x8000
v_cmp_gt_u32 vcc, 128, v0
global_load_dword v64, v{VZ}, s[84:85] sc1
s_waitcnt lgkmcnt(0)
@S7
s_barrier
@S8
""")
    for i in range(4):
        a(f"ds_read_b128 {q4(8+4*i)}, v63 offset:{8192*i}")
    a(f"""
s_mov_b64 exec, s[14:15]
ds_read_b128 v[24:27], v63 offset:32768
s_mov_b64 exec, -1
v_mov_b32 v28, 0
v_mov_b32 v29, 0
v_mov_b32 v30, 0
v_mov_b32 v31, 0
""")
    for i in range(4):
        a(f"s_waitcnt lgkmcnt({4-i})")
        so = "0" if i == 0 else f"s{43+i}"
        a(f"buffer_store_dwordx4 {q4(8+4*i)}, v61, s[88:91], {so} offen sc1")
    koff = struct.unpack("<I", struct.pack("<f", -float(KEXP) if OPT["cadd"] == "1" else 0.0))[0]
    a(f"""
s_mov_b64 exec, s[14:15]
s_waitcnt lgkmcnt(0)
buffer_store_dwordx4 v[24:27], v61, s[88:91], s47 offen sc1
s_mov_b64 exec, vcc
ds_write_b128 v61, v[28:31]
s_mov_b64 exec, -1
@S9
s_waitcnt vmcnt(5)
ds_write_b128 v63, v[48:51]
ds_write_b128 v63, v[52:55] offset:8192
ds_write_b32 v91, v56
v_add_u32 v{VTR}, {L_STAGE - L_AP}, v{VTR}
v_add_u32 v{VTR1}, {L_STAGE - L_AP}, v{VTR1}
v_lshl_add_u32 v{VWC}, v2, 2, v3
v_lshlrev_b32 v{VWC}, 1, v{VWC}
v_add_u32 v{VWC}, {L_WC}, v{VWC}
s_movk_i32 s40, {US}
s_lshl_b32 s41, s19, 7
s_add_u32 s41, s41, {L_AP}
v_mad_u32_u24 v{VAU}, v{VLOC}, s40, 0
v_lshl_add_u32 v{VAU}, v3, 4, v{VAU}
v_add_u32 v{VAU}, s41, v{VAU}
v_cmp_gt_u32_e64 s[14:15], 49, v{VLOC}
s_mov_b32 s{S_MODE}, 0
s_mov_b32 s{S_CS}, {CS}
s_mov_b32 s{S_AM}, 0x22221111
s_mov_b32 s{S_AM+1}, 0x88884444
s_mov_b32 s{S_K}, {KBITS:#x}
s_mov_b32 s{S_K+1}, {KBITS:#x}
s_mov_b32 s6, {NLOG2E:#x}
s_mov_b32 s7, {NLOG2E:#x}
v_mov_b32 v{NX}, {koff:#x}
v_mov_b32 v{NX+1}, {koff:#x}
v_and_b32 v5, 1, v{VT2}
v_lshlrev_b32 v5, 4, v5
v_mov_b32 v6, 0x3f80
v_lshlrev_b32 v5, v5, v6
v_cmp_eq_u32 vcc, v3, v{VE2}
v_cmp_gt_u32_e64 s[52:53], 2, v{VT2}
v_cmp_le_u32_e64 s[54:55], 2, v{VT2}
v_mov_b32 v6, {8*GS*UNR}
v_cndmask_b32 v5, 0, v5, vcc
v_cndmask_b32_e64 v{VINC}, 0, v6, s[{S_AM}:{S_AM+1}]
v_mov_b32 v{VFOUR}, 4
""")
    for i in range(GS):
        a(f"v_cndmask_b32_e64 v{AOP[i]+2}, 0, v5, s[52:53]")
        a(f"v_cndmask_b32_e64 v{AOP[i]+3}, 0, v5, s[54:55]")
        a(f"v_lshlrev_b32 v{IDX[i]+1}, 4, v2")
    a(f"""
s_lshl_b32 s41, s{S_B}, 3
v_lshl_add_u32 v4, v3, 11, s41
s_lshl_b32 s40, s3, 16
""")
    for k in range(1, 8):
        a(f"s_add_u32 s{40+k}, s40, {8192*k}")
    V0, V1, V2, V3, V4 = X0 + 16, X0 + 17, X0 + 18, X0 + 19, X0 + 20
    a(f"""
s_lshl_b32 s48, s3, 5
v_add_u32 v5, s48, v3
s_mov_b32 s49, {RECS}
v_mul_lo_u32 v5, v5, s49
v_mad_u32_u24 v5, v2, 12, v5
v_add_u32 v5, {REC_REL}, v5
v_add_u32 v6, 16, v2
s_memrealtime s[50:51]
K_TAGW:
v_readfirstlane_b32 s{S_TAG}, v64
s_cmp_lg_u32 s{S_TAG}, 0
s_cbranch_scc0 K_TAG_RETRY
K_TAGOK:
s_mul_i32 s48, s{S_TAG}, 0x9e3779b1
s_and_b32 s48, s48, 0xf000f000
v_or_b32 v32, s48, v92
v_mov_b32 v33, s{S_TAG}
v_or_b32 v34, s48, v93
v_mov_b32 v35, s{S_TAG}
v_or_b32 v36, s48, v94
v_mov_b32 v37, s{S_TAG}
v_or_b32 v38, s48, v95
v_mov_b32 v39, s{S_TAG}
v_lshlrev_b32 v40, 5, v1
s_lshl_b32 s49, s2, 11
s_cmp_lg_u32 s3, 0
@S18
s_waitcnt vmcnt(0) lgkmcnt(0)
@S19
s_barrier
s_cbranch_scc1 K_NOPUB
buffer_store_dwordx4 v[32:35], v40, s[32:35], s49 offen sc1
buffer_store_dwordx4 v[36:39], v40, s[32:35], s49 offen offset:16 sc1
K_NOPUB:
""")
    if TLB == "3":
        a(f"""
s_cmp_lg_u32 s3, 7
s_cbranch_scc1 K_NOTLB2
v_mul_u32_u24 v8, {16*RECS}, v1
v_add_u32 v8, {T_OFF + REC_REL - 128}, v8
s_mov_b64 exec, 0x1ffff
global_load_dword v{VPF}, v8, s[16:17]
s_mov_b64 exec, -1
K_NOTLB2:
""")
    tr_reads(a, (VTR, VTR1), 0, 96)
    a(f"""
ds_read_u16 v{CA}, v{VWC}
ds_read_u16 v{CA+1}, v{VWC} offset:128
ds_read_u16 v{CA+2}, v{VWC} offset:256
ds_read_u16 v{CA+3}, v{VWC} offset:384
s_mov_b32 s49, 0xf000f000
s_waitcnt lgkmcnt(4)
""")
    PP = OPT.get("pollpos", "2")
    polls = [f"buffer_load_dwordx2 {pr(PT+2*k)}, v4, s[32:35], s{40+k} offen sc1" for k in range(8)]
    tile_mfmas(a, 96, XF, TOT)
    if PP == "0":
        for l in polls:
            a(l)
    a("s_waitcnt lgkmcnt(0)")
    for k in range(4):
        a(f"v_lshlrev_b32 v{CA+k}, 16, v{CA+k}")
    for k in range(4):
        a(f"v_mul_f32 v{CA+k}, {NLOG2E:#x}, v{CA+k}")
    a(f"v_cvt_pk_bf16_f32 v{CN}, v{CA}, v{CA+1}")
    a(f"v_cvt_pk_bf16_f32 v{CN+1}, v{CA+2}, v{CA+3}")
    a(f"v_mov_b32 v{V0}, s{S_TAG}")
    a(f"v_mov_b32 v{V1}, s48")
    a("s_mov_b64 exec, s[14:15]")
    a(f"ds_write_b128 v{VAU}, {q4(TOT+8)} offset:{L_U - L_AP}")
    a(f"ds_write_b128 v{VAU}, {q4(TOT+12)} offset:{L_U - L_AP + 64}")
    for i in range(0, 8, 2):
        a(f"v_pk_fma_f32 {pr(TOT+i)}, {pr(TOT+i)}, s[6:7], {pr(NX)}")
    a(f"""
ds_write_b128 v{VAU}, {q4(TOT)}
ds_write_b128 v{VAU}, {q4(TOT+4)} offset:64
s_mov_b64 exec, -1
""")
    if PP == "1":
        for l in polls:
            a(l)
    for p in range(NB):
        for i in range(GS):
            a(f"v_pk_mov_b32 {pr(stepbuf(p, i))}, {pr(CN)}, {pr(CN)} op_sel:[0,1]")
    for i in range(0, 16, 2):
        a(f"v_pk_mov_b32 {pr(TOT+i)}, 0, 0")
    if int(OPT.get("presleep", 0)):
        a(f"s_sleep {OPT['presleep']}")
    a("@S23")
    if PP != "2":
        a("s_branch K_POLL_CHECK")
    a("K_POLL:")
    for k in range(8):
        a(f"buffer_load_dwordx2 {pr(PT+2*k)}, v4, s[32:35], s{40+k} offen sc1")
    a("K_POLL_CHECK:")
    a(f"v_mov_b32 v{V2}, 0")
    for k in range(8):
        a(f"s_waitcnt vmcnt({7-k})")
        a(f"v_xor_b32 v{V3}, v{PT+2*k}, v{V1}")
        a(f"v_xor_b32 v{V4}, v{PT+2*k+1}, v{V0}")
        a(f"v_and_or_b32 v{V2}, v{V3}, s49, v{V2}")
        a(f"v_and_b32 v{VTT+k}, 0x0fff0fff, v{PT+2*k}")
        a(f"v_or_b32 v{V2}, v{V4}, v{V2}")
    a(f"""
v_cmp_ne_u32 vcc, 0, v{V2}
s_cbranch_vccnz K_POLL_RETRY
K_POLLOK:
@S24
s_mov_b64 exec, 1
ds_add_u32 v{VZ}, v{VFOUR} offset:{L_ACKS}
s_mov_b64 exec, -1
""")
    for k in range(8):
        a(f"v_mad_u32_u16 v{VRA+k}, v{VTT+k}, 12, v5")
        a(f"v_cmp_gt_u32_sdwa s[{80+2*k}:{81+2*k}], v{VTT+k}, v6 src0_sel:WORD_1 src1_sel:DWORD")
        if k < 7:
            a(f"v_add_u32 v5, {4*RECS}, v5")
        r = recset(8 + k)
        a(f"s_mov_b64 exec, s[{80+2*k}:{81+2*k}]")
        a(f"s_cbranch_execz K_M1L{k}")
        a(f"buffer_load_dwordx3 v[{r}:{r+2}], v{VRA+k}, s[32:35], 0 offen offset:192 sc1")
        a(f"K_M1L{k}:")
        a("s_mov_b64 exec, -1")
        a(f"v_cmp_gt_u32_sdwa s[{64+2*k}:{65+2*k}], v{VTT+k}, v2 src0_sel:WORD_1 src1_sel:DWORD")
    for k in range(8):
        r = recset(k)
        a(f"s_mov_b64 exec, s[{64+2*k}:{65+2*k}]")
        a(f"buffer_load_dwordx3 v[{r}:{r+2}], v{VRA+k}, s[32:35], 0 offen sc1")
    a(f"""
s_mov_b64 exec, -1
@S25
v_max3_u32 v4, v{VTT}, v{VTT+1}, v{VTT+2}
v_max3_u32 v5, v{VTT+3}, v{VTT+4}, v{VTT+5}
v_max3_u32 v4, v4, v{VTT+6}, v{VTT+7}
v_max_u32 v4, v4, v5
v_lshrrev_b32 v{VMAXL}, 16, v4
s_waitcnt vmcnt(8)
""")

    def A_(j):
        a(f"s_waitcnt vmcnt({7 - j})")
        a(f"s_mov_b64 exec, s[{64+2*j}:{65+2*j}]")
        place_atomic(a, recset(j), VCA + j)

    def W_(j, n):
        a(f"s_mov_b64 exec, s[{64+2*j}:{65+2*j}]")
        if n is not None:
            a(f"s_waitcnt lgkmcnt({n})")
        place_write(a, recset(j), VCA + j)
    for j in range(8):
        a(f"s_mov_b64 exec, s[{80+2*j}:{81+2*j}]")
        a(f"s_cbranch_execz K_M1A{j}")
        place_atomic(a, recset(8 + j), VCA + 8 + j)
        a(f"K_M1A{j}:")
    A_(0); A_(1)
    a("s_waitcnt lgkmcnt(2)")
    for j in range(8):
        a(f"s_mov_b64 exec, s[{80+2*j}:{81+2*j}]")
        a(f"s_cbranch_execz K_M1W{j}")
        place_write(a, recset(8 + j), VCA + 8 + j)
        a(f"K_M1W{j}:")
    A_(2)
    W_(0, 1)
    W_(1, None)
    A_(3)
    W_(2, 5)
    A_(4)
    W_(3, 3)
    A_(5)
    W_(4, 3)
    A_(6)
    a("s_mov_b64 exec, -1")
    a(f"ds_read_b32 v7, v{VZ} offset:{L_ACKS}")
    W_(5, 4)
    A_(7)
    a("@S26")
    npf, pfs = int(OPT["npf"]), int(OPT["pfs"])
    a(f"""
s_mov_b64 exec, -1
v_cmp_lt_u32 vcc, 32, v{VMAXL}
s_waitcnt lgkmcnt(3)
v_readfirstlane_b32 s40, v7
s_cbranch_vccnz K_LONG_ENTRY
K_PLACED:
s_cmp_lg_u32 s40, 32
s_cbranch_scc1 K_NOPF
""")
    if npf:
        a(f"""
s_lshr_b32 s40, s2, 3
s_mul_i32 s40, s40, {782*128}
v_mul_u32_u24 v7, {pfs}, v0
v_add_u32 v7, s40, v7
""")
        for p in range(-(-npf // 512)):
            if p:
                a(f"v_add_u32 v7, {512*pfs}, v7")
            if npf - 512 * p < 512:
                a(f"v_cmp_gt_u32 vcc, {npf - 512*p}, v0")
                a("s_mov_b64 exec, vcc")
            a(f"buffer_load_dword v{VPF}, v7, s[28:31], 0 offen sc1")
    R = X0
    a(f"""
K_NOPF:
s_waitcnt lgkmcnt(0)
@S27
s_barrier
@S28
""")
    W_(6, None)
    W_(7, None)
    a(f"""
s_mov_b64 exec, -1
K_RANK:
v_lshlrev_b32 v4, 2, v1
ds_read_b32 v{R}, v4 offset:{L_CNT}
""")
    for i in range(1, 6):
        a(f"s_add_u32 s{40+i}, s3, {8*i}")
    a(f"""
v_cmp_gt_u32_e64 s[52:53], 48, v1
v_lshl_add_u32 v{R+2}, v1, 3, s3
v_mul_u32_u24 v{R+6}, {CS*4}, v{R+2}
v_mul_u32_u24 v{R+7}, {US}, v{R+2}
v_add_u32 v{R+7}, {L_AP}, v{R+7}
v_lshlrev_b32 v{R+2}, 2, v{R+2}
s_waitcnt lgkmcnt(0)
v_cmp_lt_u32 vcc, {CAP*4}, v{R}
v_lshl_add_u32 v{R+1}, v{R}, 4, v1
v_add_u32 v{R+1}, 1, v{R+1}
s_cbranch_vccnz K_SLOW_ENTRY
v_cndmask_b32_e64 v{R+1}, 0, v{R+1}, s[52:53]
v_readlane_b32 s50, v{R}, 48
""")
    for i in range(6):
        a(f"v_readlane_b32 s{64+i}, v{R+1}, s{3 if i == 0 else 40+i}")
    a(f"s_add_u32 s51, s50, {4*(4*GS-1)}")
    for i in range(6):
        a(f"v_cmp_lt_u32_e64 s[{72+2*i}:{73+2*i}], s{64+i}, v{R+1}")
    if GS == 2:
        a("s_lshr_b32 s51, s51, 5")
    else:
        a("s_lshr_b32 s51, s51, 4")
        a("s_mul_i32 s51, s51, 0x5556")
        a("s_lshr_b32 s51, s51, 16")
    for i in range(6):
        a(f"v_writelane_b32 v{R+3}, s{64+i}, {i}")
        a(f"s_bcnt1_i32_b64 s{72+2*i}, s[{72+2*i}:{73+2*i}]")
    a(f"""
s_max_u32 s51, s51, {MINPS}
s_cmp_eq_u32 s50, 0
s_cselect_b32 s50, 0, s51
s_mul_i32 s50, s50, {GS}
""")
    for i in range(6):
        a(f"v_writelane_b32 v{R+4}, s{72+2*i}, {i}")
    a(f"""
v_lshrrev_b32 v{R+3}, 6, v{R+3}
v_add_u32 v{R+4}, 4, v{R+4}
v_lshlrev_b32 v{R+5}, 3, v{R+4}
v_lshlrev_b32 v{R+8}, 2, v{R+4}
s_mov_b64 exec, 63
ds_write_b64 v{R+5}, {pr(R+6)} offset:{L_TS}
ds_write_b32 v{R+8}, v{R+3} offset:{L_TC}
ds_write_b32 v{R+2}, v{R+4} offset:{L_RK}
s_mov_b64 exec, 15
v_mul_u32_u24 v{R+10}, s50, v4
v_add_u32 v{R+10}, {48*CS*4}, v{R+10}
v_mov_b32 v{R+11}, {L_AP + 48*US}
v_mov_b32 v{R+9}, s50
v_lshlrev_b32 v5, 3, v1
ds_write_b64 v5, {pr(R+10)} offset:{L_TS}
ds_write_b32 v4, v{R+9} offset:{L_TC}
ds_write_b32 v4, v1 offset:{L_RK + 192}
s_mov_b64 exec, -1
v_lshlrev_b32 v4, 4, v2
v_cmp_gt_u32_e64 s[52:53], 13, v2
s_and_b32 s18, s3, 3
s_lshl_b32 s18, s18, 1
s_lshr_b32 s15, s3, 2
s_add_u32 s18, s18, s15
s_add_u32 s15, s18, 1
s_waitcnt lgkmcnt(0)
s_barrier
@S29
; ---- split the group stream evenly over the 8 waves --------------------------------------------
ds_read_b32 v{R}, v4 offset:{L_TC}
v_mov_b32 v{R+4}, 1
v_mov_b32 v{R+5}, 0
s_waitcnt lgkmcnt(0)
v_cmp_ne_u32 vcc, 0, v{R}
v_add_u32 v{R}, {GS-1}, v{R}
""")
    if GS == 2:
        a(f"v_lshrrev_b32 v{R}, 1, v{R}")
    else:
        a(f"v_mul_u32_u24 v{R}, 0x5556, v{R}")
        a(f"v_lshrrev_b32 v{R}, 16, v{R}")
    a(f"""
s_and_b64 s[44:45], vcc, s[52:53]
v_max_u32 v{R}, {MINPS}, v{R}
v_cndmask_b32_e64 v{R}, 0, v{R}, s[44:45]
v_mov_b32 v{R+1}, v{R}
""")
    scan(a, R + 1, row_only=True)
    a(f"""
s_nop 0
v_readlane_b32 s14, v{R+1}, 15
v_sub_u32 v{R+2}, v{R+1}, v{R}
s_cmp_gt_u32 s14, {MAXIT*8}
s_cbranch_scc1 K_SLOW_ENTRY
s_mul_i32 s40, s14, s18
s_mul_i32 s41, s14, s15
s_lshr_b32 s40, s40, 3
s_lshr_b32 s41, s41, 3
s_sub_u32 s{S_IT}, s41, s40
s_cmp_eq_u32 s{S_IT}, 0
s_cbranch_scc1 K_NOWORK
v_cmp_ge_u32_e64 s[42:43], s40, v{R+1}
v_subrev_u32 v{R+3}, s40, v{R+2}
s_and_b32 s42, s42, 0x1fff
s_bcnt1_i32_b32 s42, s42
s_lshl_b32 s46, s42, 5
v_lshl_add_u32 v{VTK}, v3, 3, s46
v_and_b32 v{VTE}, 12, v2
v_lshl_add_u32 v{VTE}, v{VTE}, 1, s46
v_readlane_b32 s43, v{R+2}, s42
ds_read_b64 {pr(R+6)}, v{VTK} offset:{L_TS}
ds_read_b32 v{NXE}, v{VTE} offset:{L_TS}
ds_read_b64 {pr(NX)}, v{VTK} offset:{L_TS + 32}
v_add_u32 v{R+8}, -1, v{R+3}
v_cmp_gt_u32 vcc, 63, v{R+8}
v_lshlrev_b64 {pr(R+4)}, v{R+3}, {pr(R+4)}
s_and_b64 vcc, vcc, s[44:45]
s_sub_u32 s43, s40, s43
v_cndmask_b32 v{R+4}, 0, v{R+4}, vcc
v_cndmask_b32 v{R+5}, 0, v{R+5}, vcc
s_mul_i32 s45, s43, {4*GS}
s_lshl_b32 s47, s45, 1
""")
    for d in (1, 2, 4, 8):
        a(f"v_or_b32_dpp v{R+4}, v{R+4}, v{R+4} row_shr:{d} row_mask:0xf bank_mask:0xf")
        a(f"v_or_b32_dpp v{R+5}, v{R+5}, v{R+5} row_shr:{d} row_mask:0xf bank_mask:0xf")
        a("s_nop 0")
    TI = {1: [Y[0] + 2 * i for i in range(GS)]}
    nxt = HL
    for p in range(2, NB):
        TI[p] = [nxt + 2 * i for i in range(GS)]
        nxt += 2 * GS
    assert nxt <= DEN, (nxt, DEN)
    a(f"""
s_add_u32 s45, s45, {L_KEYS}
s_add_u32 s47, s47, {L_EA}
v_readlane_b32 s{S_MASK}, v{R+4}, 15
v_readlane_b32 s{S_MASK+1}, v{R+5}, 15
s_bfm_b64 s[48:49], s{S_IT}, 0
s_waitcnt lgkmcnt(1)
v_add_u32 v{VK}, s45, v{R+6}
v_add_u32 v{R+7}, v{R+7}, v{IDX[0]+1}
s_and_b64 s[{S_MASK}:{S_MASK+1}], s[{S_MASK}:{S_MASK+1}], s[48:49]
""")
    for i in range(GS):
        a(f"ds_read_b32 v{IDX[i]}, v{VK} offset:{4*i}")
    a(f"""
ds_read_b128 {q4(CA)}, v{R+7}
v_lshl_add_u32 v{VE}, v{NXE}, 1, s47
v_mov_b32 v4, {L_ZERO}
""")
    for p in range(1, NB):
        for i in range(GS):
            a(f"v_mov_b32 v{TI[p][i]+1}, v{IDX[0]+1}")
    a(f"v_cndmask_b32_e64 v{VE}, v4, v{VE}, s[{S_AM}:{S_AM+1}]")
    a("s_waitcnt lgkmcnt(1)")
    for l in gathers(0, IDX):
        a(l)
    for p in range(1, NB):
        a(f"s_bitcmp1_b32 s{S_MASK}, {p}")
        a(f"s_cbranch_scc0 K_PK{p}")
        ev_k(a, 4 * GS * p)
        a(f"K_PK{p}:")
        for i in range(GS):
            a(f"ds_read_b32 v{TI[p][i]}, v{VK} offset:{4*(GS*p+i)}")
    for i in range(GS):
        a(f"ds_read_b64 {pr(AOP[i])}, v{VE} offset:{8*i}")
    a(f"""
s_lshr_b64 s[{S_CM}:{S_CM+1}], s[{S_MASK}:{S_MASK+1}], 3
s_lshr_b64 s[48:49], s[{S_MASK}:{S_MASK+1}], {NB+1}
s_or_b64 s[{S_CM}:{S_CM+1}], s[{S_CM}:{S_CM+1}], s[48:49]
s_mov_b32 s{S_RAW}, s{S_MASK}
s_bitset1_b64 s[{S_MASK}:{S_MASK+1}], s{S_IT}
s_lshr_b64 s[48:49], s[{S_MASK}:{S_MASK+1}], 1
s_or_b64 s[{S_CM}:{S_CM+1}], s[{S_CM}:{S_CM+1}], s[48:49]
s_waitcnt lgkmcnt({GS})
""")
    NG0 = int(OPT["ng0"])
    NG1 = max(NG0, min(NB, 4 if GS == 2 else 3))
    for p in range(1, NG0):
        for l in gathers(p, TI[p]):
            a(l)
    if OPT["prio"] == "1":
        dflt = (24, 12, 4) if GS == 2 else (16, 8, 3)
        t1, t2, t3 = [int(OPT.get(f"thr{i+1}", dflt[i])) for i in range(3)]
        a(f"""
s_setprio 3
s_mov_b32 s{S_PR}, 3
s_mov_b64 s[54:55], 0
s_bitset1_b64 s[54:55], {63 - t1}
s_bitset1_b64 s[54:55], {63 - t2}
s_bitset1_b64 s[54:55], {63 - t3}
s_sub_u32 s46, 63, s{S_IT}
s_lshr_b64 s[54:55], s[54:55], s46
s_or_b64 s[{S_CM}:{S_CM+1}], s[{S_CM}:{S_CM+1}], s[54:55]
""")
    a(f"""
s_ff1_i32_b64 s{S_CNT}, s[{S_CM}:{S_CM+1}]
v_lshlrev_b32 v5, 9, v3
v_lshl_add_u32 v5, v2, 4, v5
s_lshl_b32 s45, s42, 11
s_add_u32 s45, s45, {L_ACC}
s_add_u32 s46, s45, 2048
v_add_u32 v{VFN}, s46, v5
s_cmp_eq_u32 s43, 0
s_cbranch_scc1 K_P2
s_lshl_b32 s45, s3, 11
s_add_u32 s45, s45, {L_EXT}
s_lshl_b32 s46, 1, s3
s_lshl_b32 s47, s42, 2
v_mov_b32 v6, s46
v_mov_b32 v7, s47
s_mov_b64 exec, 1
ds_or_b32 v7, v6 offset:{L_MASK}
s_mov_b64 exec, -1
K_P2:
v_add_u32 v{VF}, s45, v5
""")
    for i in range(0, 8, 2):
        a(f"v_pk_mov_b32 {pr(DEN+i)}, 0, 0")
    a(f"""
v_add_u32 v{VK}, {4*GS*NB}, v{VK}
s_bitcmp1_b32 s{S_RAW}, {NB}
s_cbranch_scc0 K_PK{NB}
""")
    ev_k(a, 0)
    a(f"""
K_PK{NB}:
v_mov_b32 v5, {16*GS}
""")
    eprep1(a)
    a(f"""
@S10
s_waitcnt vmcnt({GS*(NG0-1)}) lgkmcnt(0)
@S15
""")
    for l in mfmas(0):
        a(l)
    for p in range(NG0, NG1):
        for l in gathers(p, TI[p]):
            a(l)
    a(f"""
s_bitcmp1_b32 s{S_RAW}, 1
s_cbranch_scc0 K_PE1
s_nop 2
""")
    ev_e(a, 8 * GS)
    a("K_PE1:")
    for i in range(GS):
        a(f"ds_read_b64 {pr(AOP[i])}, v{VE} offset:{8*(GS+i)}")
    a(f"v_cndmask_b32_e64 v5, 0, v5, s[{S_AM}:{S_AM+1}]")
    eprep2(a)
    for i in range(4 * GS):
        a(f"v_exp_f32 v{Y[0]+i}, v{Y[0]+i}")
    a(f"v_add_u32 v{VE}, v5, v{VE}")
    a(f"s_waitcnt vmcnt({GS*(NG1-2)}) lgkmcnt(0)")
    for l in mfmas(1):
        a(l)
    for p in range(NG1, NB):
        for l in gathers(p, TI[p]):
            a(l)
    a(f"""
s_bitcmp1_b32 s{S_RAW}, 2
s_cbranch_scc0 K_PE2
s_nop 2
""")
    ev_e(a, 0)
    a(f"""
K_PE2:
@C20
s_nop 4
{f".p2align {OPT['align']}" if OPT.get('align') else ''}
K_LOOP:
""")
    order = ORDERS[GS][OPT["order"]].split()
    for k in range(UNR):
        d = ops(k)
        for x in order:
            a(d[x])
        if k == UNR - 1:
            a("s_cbranch_scc0 K_LOOP")
        else:
            a(f"s_cbranch_scc1 K_EV{k}")
            a(f"K_RET{k}:")
    for k in [UNR - 1] + list(range(UNR - 1)):
        kn = (k + 1) % UNR
        ret = f"K_RET{k}" if k < UNR - 1 else "K_LOOP"
        a(f"""
K_EV{k}:
s_ff1_i32_b64 s14, s[{S_CM}:{S_CM+1}]
s_bitset0_b64 s[{S_CM}:{S_CM+1}], s14
s_ff1_i32_b64 s{S_CNT}, s[{S_CM}:{S_CM+1}]
s_lshr_b64 s[40:41], s[{S_MASK}:{S_MASK+1}], s14
s_sub_u32 s{S_CNT}, s{S_CNT}, s14
s_sub_u32 s{S_CNT}, s{S_CNT}, 1
s_bitcmp1_b32 s40, 1
s_cbranch_scc0 K_EV{k}A
ds_write_b128 v{VF}, {q4(DEN)}
ds_write_b128 v{VF}, {q4(NUM)} offset:256
s_lshr_b64 s[42:43], s[40:41], 2
s_cbranch_scc0 K_LOOP_DONE
v_mov_b32 v{VF}, v{VFN}
v_add_u32 v{VFN}, 2048, v{VFN}
""")
        for i in range(0, 8, 2):
            a(f"v_pk_mov_b32 {pr(DEN+i)}, 0, 0")
        a(f"""
K_EV{k}A:
s_bitcmp1_b32 s40, 3
s_cbranch_scc0 K_EV{k}B
""")
        ev_e(a, 8 * GS * kn)
        a(f"""
K_EV{k}B:
s_lshr_b64 s[42:43], s[40:41], {NB+2}
s_cbranch_scc0 K_EV{k}C
s_bitcmp1_b32 s40, {NB+1}
s_cbranch_scc0 K_EV{k}C
""")
        ev_k(a, 4 * GS * kn)
        a(f"K_EV{k}C:")
        if OPT["prio"] == "1":
            a(f"""
s_bitcmp1_b64 s[54:55], s14
s_cbranch_scc0 {ret}
s_sub_u32 s{S_PR}, s{S_PR}, 1
s_setprio 0
s_cmp_eq_u32 s{S_PR}, 0
s_cbranch_scc1 {ret}
s_setprio 1
s_cmp_eq_u32 s{S_PR}, 1
s_cbranch_scc1 {ret}
s_setprio 2
""")
        a(f"s_branch {ret}")
    a(f"""
K_LOOP_DONE:
@C21
@S11
s_setprio 0
s_waitcnt lgkmcnt(0)
s_barrier
@S12
s_mov_b64 exec, s[20:21]
s_cbranch_execz K_COMB_DONE
ds_read_b32 v{R}, v{EMSK} offset:{L_MASK}
""")

    def reads(d, va):
        a(f"ds_read_b128 {q4(d)}, v{va}")
        a(f"ds_read_b128 {q4(d+4)}, v{va} offset:16")
        a(f"ds_read_b128 {q4(d+8)}, v{va} offset:256")
        a(f"ds_read_b128 {q4(d+12)}, v{va} offset:272")

    def adds(d):
        for i in range(0, 16, 2):
            a(f"v_pk_add_f32 {pr(TOT+i)}, {pr(TOT+i)}, {pr(d+i)}")

    def nxt_(lab_last):
        a(f"""
v_ffbl_b32 v{R+1}, v{R}
v_cmp_ne_u32 vcc, 0, v{R}
v_add_u32 v{R+2}, -1, v{R}
v_and_b32 v{R}, v{R}, v{R+2}
v_lshl_add_u32 v{R+1}, v{R+1}, 11, v{EEXT}
s_mov_b64 s[40:41], exec
s_and_b64 exec, exec, vcc
s_cbranch_execz {lab_last}
""")
    D1 = R + 4 + 16
    D0 = R + 4
    reads(D0, EACC)
    a("s_waitcnt lgkmcnt(4)")
    a("K_COMB_A:")
    nxt_("K_COMB_LA")
    reads(D1, R + 1)
    a("s_mov_b64 s[42:43], exec")
    a("s_mov_b64 exec, s[40:41]")
    a("s_waitcnt lgkmcnt(4)")
    adds(D0)
    a("s_mov_b64 exec, s[42:43]")
    nxt_("K_COMB_LB")
    reads(D0, R + 1)
    a("s_mov_b64 s[42:43], exec")
    a("s_mov_b64 exec, s[40:41]")
    a("s_waitcnt lgkmcnt(4)")
    adds(D1)
    a("s_mov_b64 exec, s[42:43]")
    a("s_branch K_COMB_A")
    a("K_COMB_LB:")
    a("s_mov_b64 exec, s[40:41]")
    a("s_waitcnt lgkmcnt(0)")
    adds(D1)
    a("s_branch K_COMB_DONE")
    a("K_COMB_LA:")
    a("s_mov_b64 exec, s[40:41]")
    a("s_waitcnt lgkmcnt(0)")
    adds(D0)
    a(f"""
K_COMB_DONE:
s_mov_b64 exec, -1
s_cmp_lg_u32 s{S_MODE}, 0
s_cbranch_scc1 K_SLOW_NEXT
K_FINAL:
s_cmp_lg_u32 s3, 6
s_cbranch_scc1 K_FIN2
""")
    for i in range(16):
        a(f"v_add_f32_dpp v{TOT+i}, v{TOT+i}, v{TOT+i} row_ror:8 row_mask:0xf bank_mask:0xf")
    for i in range(16):
        a(f"ds_swizzle_b32 v{D0+i}, v{TOT+i} offset:0x401F")
    a("s_waitcnt lgkmcnt(0)")
    for i in range(0, 16, 2):
        a(f"v_pk_add_f32 {pr(TOT+i)}, {pr(TOT+i)}, {pr(D0+i)}")
    eps = struct.unpack("<I", struct.pack("<f", 1e-6 * 2.0**KEXP))[0]
    a(f"""
K_FIN2:
s_mov_b32 s14, {eps:#x}
s_mov_b32 s15, {eps:#x}
""")
    for i in range(0, 8, 2):
        a(f"v_pk_add_f32 {pr(TOT+i)}, {pr(TOT+i)}, s[14:15]")
    for i in range(8):
        a(f"v_rcp_f32 v{TOT+i}, v{TOT+i}")
    a("s_nop 0")
    for i in range(0, 8, 2):
        a(f"v_pk_fma_f32 {pr(EU+i)}, {pr(TOT+8+i)}, {pr(TOT+i)}, {pr(EU+i)}")
    for i in range(8):
        a(f"v_max_f32 v{EU+i}, 0, v{EU+i}")
    for i in range(0, 8, 2):
        a(f"v_pk_add_f32 {pr(EX+i)}, {pr(EX+i)}, {pr(EU+i)}")
    for i in range(4):
        a(f"v_cvt_pk_bf16_f32 v{EX+i}, v{EX+2*i}, v{EX+2*i+1}")
    a(f"""
buffer_store_dwordx4 {q4(EX)}, v{EOUT}, s[36:39], 0 offen {OPT['st_out']}
@S13
@Wvmcnt(0)
@S14
@Vs{S_IT},22
@OUT
K_END:
s_endpgm
K_NOWORK:
""")
    eprep1(a)
    a("s_waitcnt lgkmcnt(0)")
    eprep2(a)
    a(f"""
s_branch K_LOOP_DONE
K_TAG_RETRY:
s_waitcnt lgkmcnt(0)
s_memrealtime s[52:53]
s_sleep 4
global_load_dword v64, v{VZ}, s[84:85] sc1
s_waitcnt vmcnt(0) lgkmcnt(0)
s_sub_u32 s52, s52, s50
s_cmp_lt_u32 s52, 0x400000
s_cbranch_scc1 K_TAGW
s_branch K_TAGOK
K_POLL_RETRY:
s_memrealtime s[52:53]
s_sleep {OPT['sleep']}
s_waitcnt lgkmcnt(0)
s_sub_u32 s52, s52, s50
s_cmp_lt_u32 s52, 0x400000
s_cbranch_scc1 K_POLL
""")
    for k in range(8):
        a(f"v_cndmask_b32 v{VTT+k}, v{VTT+k}, v{VZ}, vcc")
    a(f"""
s_branch K_POLLOK
K_LONG_ENTRY:
s_mov_b32 s14, 32
K_LONG:
v_add_u32 v6, s14, v2
s_mul_i32 s15, s14, 12
""")
    for k in range(8):
        a(f"""
s_mov_b64 exec, -1
v_cmp_gt_u32_sdwa vcc, v{VTT+k}, v6 src0_sel:WORD_1 src1_sel:DWORD
s_and_saveexec_b64 s[42:43], vcc
s_cbranch_execz K_LONG_S{k}
buffer_load_dwordx3 v[{R}:{R+2}], v{VRA+k}, s[32:35], s15 offen sc1
s_waitcnt vmcnt(0)
""")
        place_atomic(a, R, 4)
        a("s_waitcnt lgkmcnt(0)")
        place_write(a, R, 4)
        a(f"K_LONG_S{k}:")
    a(f"""
s_mov_b64 exec, -1
s_add_u32 s14, s14, 16
v_cmp_lt_u32 vcc, s14, v{VMAXL}
s_cbranch_vccnz K_LONG
s_branch K_PLACED
K_SLOW_ENTRY:
ds_max_u32 v{VZ}, v{VMAXL} offset:{L_MAXL}
s_waitcnt lgkmcnt(0)
s_barrier
ds_read_b32 v5, v{VZ} offset:{L_MAXL}
s_mov_b32 s{S_MODE}, 1
s_mov_b32 s{S_I}, 0
s_mov_b32 s{S_MO}, 0
s_waitcnt lgkmcnt(0)
v_readfirstlane_b32 s{S_ML}, v5
s_branch K_SLOW_BATCH
K_SLOW_NEXT:
s_add_u32 s{S_I}, s{S_I}, 1
s_cmp_lt_u32 s{S_I}, 64
s_cbranch_scc1 K_SLOW_BATCH
s_mov_b32 s{S_I}, 0
s_add_u32 s{S_MO}, s{S_MO}, 16
s_cmp_ge_u32 s{S_MO}, s{S_ML}
s_cbranch_scc1 K_FINAL
K_SLOW_BATCH:
s_waitcnt vmcnt(0) lgkmcnt(0)
s_barrier
""")
    slots_init(a, R, True)
    a(f"""
s_waitcnt lgkmcnt(0)
s_barrier
s_cmp_lg_u32 s3, 0
s_cbranch_scc1 K_SLOW_S
s_lshl_b32 s14, s{S_I}, 2
v_add_u32 v7, s14, v3
s_lshl_b32 s15, s{S_B}, 3
v_lshl_add_u32 v4, v7, 11, s15
buffer_load_dword v5, v4, s[32:35], 0 offen sc1
s_mov_b32 s15, {RECS}
v_mul_lo_u32 v7, v7, s15
v_add_u32 v6, s{S_MO}, v2
v_mad_u32_u24 v7, v6, 12, v7
v_add_u32 v7, {REC_REL}, v7
s_waitcnt vmcnt(0)
v_and_b32 v5, 0x0fff0fff, v5
v_mad_u32_u16 v4, v5, 12, v7
v_cmp_gt_u32_sdwa vcc, v5, v6 src0_sel:WORD_1 src1_sel:DWORD
s_and_saveexec_b64 s[40:41], vcc
s_cbranch_execz K_SLOW_S
buffer_load_dwordx3 v[{R}:{R+2}], v4, s[32:35], 0 offen sc1
s_waitcnt vmcnt(0)
""")
    place_atomic(a, R, 4)
    a("s_waitcnt lgkmcnt(0)")
    place_write(a, R, 4)
    a("""
K_SLOW_S:
s_mov_b64 exec, -1
s_waitcnt lgkmcnt(0)
s_barrier
s_branch K_RANK
""")
    return a.text()


HEADER = open("standalone__edge_featured_mpnn_gatedgcn__graph.s.ref").read().split("; Override launch")[0]


def main():
    out = HEADER
    out += f"; @launch grid=(256,1,1) block=(512,1,1) lds={LDS}\n"
    out += '.amdgcn_target "amdgcn-amd-amdhsa--gfx950"\n.text\n'
    out += f".globl {KNAME}\n.p2align 8\n.type {KNAME},@function\n" + kernel()
    out += f""".section .rodata,"a"
.p2align 6
.amdhsa_kernel {KNAME}
  .amdhsa_next_free_vgpr {NVGPR}
  .amdhsa_next_free_sgpr {101 if STAMPS else 98}
  .amdhsa_accum_offset {(NVGPR + 3) // 4 * 4}
  .amdhsa_group_segment_fixed_size 0
  .amdhsa_kernarg_size 96
  .amdhsa_user_sgpr_count 2
  .amdhsa_user_sgpr_kernarg_segment_ptr 1
  .amdhsa_system_sgpr_workgroup_id_x 1
.end_amdhsa_kernel
"""
    open(sys.argv[1], "w").write(out)


main()
```

```python
import sys
import struct
from math import gcd

N = 12500
E = 800000
QCH = 782
QH = QCH // 2
CH = QCH * 4
NQ = E // 4
RECB = CH * 12
RECS = 37760
TAB_ROWS = N + 1
TAB_BYTES = TAB_ROWS * 256
T_OFF = 0x310000
T2_REL = 0x80000
REC_REL = 0x81000
TR_BYTES = REC_REL + 256 * RECS
BIG = 0x40000000
NLOG2E = 0xbfb8aa3b
CAP = 128
CS = 132
XSS = 144
US = 272

OPT = dict(align="3", cpf="7", packpos="b", gs="2", nb="5", prio="1", order="c", npf="352", pfs="128", sleep="2", ng0="2", st_out="nt", cadd="1")
for a_ in sys.argv[2:]:
    k_, v_ = a_.split("=")
    OPT[k_] = v_
STAMPS = bool(OPT.get("stamps"))
GS = int(OPT["gs"])
NB = int(OPT["nb"] or (6 if GS == 2 else 4))
UNR = NB * 2 // gcd(NB, 2)
MINPS = NB + 1
MAXIT = 62
PLAIN = OPT.get('plain') == '1'
KEXP = 0 if PLAIN else (60 if GS == 2 else 40)
KBITS = (127 - KEXP) << 23
DBG_OFF = 0x1000000
KNAME = "standalone__edge_featured_mpnn_gatedgcn__graph_kernel"

L_CNT = 0
L_MASK = 256
L_MAXL = 324
L_ACKS = 328
L_ZERO = 384
L_TS = 640
L_TC = 1536
L_RK = 1792
L_HIST, L_START = 0, 1024
L_EA = 2048
EA_BYTES = 49 * CS * 8 + 32
L_KEYS = L_EA + EA_BYTES
KEY_BYTES = 49 * CS * 4 + 16
L_ACC = L_KEYS + KEY_BYTES
L_EXT = L_ACC + 52 * 512
L_STAGE = L_ACC
L_AP = L_EXT + 8 * 2048
L_U = L_AP + 49 * US
L_XS = L_U + 49 * US
L_WC = L_XS + 64 * XSS
LDS = L_WC + 512
assert 8 * GS * UNR + 8 <= L_TS - L_ZERO

_nv = [8]


def valloc(n, align=2):
    _nv[0] = (_nv[0] + align - 1) // align * align
    r = _nv[0]
    _nv[0] += n
    return r


GB = valloc(6 * GS * NB)
Y = (valloc(4 * GS), valloc(4 * GS))
HL = valloc(2 * GS)
P2, MM, SA, UU = valloc(4), valloc(4), valloc(4), valloc(4)
DEN = valloc(8)
NUM = DEN + 4
_nv[0] = max(_nv[0], 128)
AOP = [valloc(4) for _ in range(GS)]
CA, CN = valloc(4), valloc(4)
IDX = [valloc(2) for _ in range(GS)]
NX = valloc(2)
VK, VE, VF, VFN, VTK, VTE, NXE, VINC = [valloc(1, 1) for _ in range(8)]
TOT = valloc(16)
VTT = valloc(8)
VRA = valloc(8)
VCA = valloc(16)
PT = VCA
T2R = valloc(8)
VMAXL, VPF, VFOUR, VZ = [valloc(1, 1) for _ in range(4)]
EU, EX = valloc(8), valloc(8)
EACC, EEXT, EMSK, EOUT, ERK, ECN = [valloc(1, 1) for _ in range(6)]
VST = valloc(2)
NVGPR = _nv[0]
assert NVGPR <= 256, NVGPR
X0 = Y[0]
assert NUM + 4 - X0 >= 40

S_IT, S_MODE, S_I, S_MO, S_ML, S_CNT = 4, 5, 6, 7, 8, 9
S_K = 10
S_RAW = 12
S_B = 13
S_CM = 56
S_PR = 58
S_CS = 59
S_MASK = 60
S_AM = 62
S_TAG, S_TAG2, S_T2OK = 96, 97, 19


def stepbuf(p, i):
    return GB + 6 * (GS * (p % NB) + i)


def recset(j):
    return GB + 6 * j + 2 if j < GS * NB else X0 + 4 * (j - GS * NB)


class Asm:
    def __init__(self):
        self.L = []

    def __call__(self, s):
        for l in s.strip("\n").split("\n"):
            l = l.strip()
            if not l:
                continue
            if l.startswith("@"):
                if STAMPS:
                    self.special(l)
                elif OPT.get("jitter") and l[1] == "S" and int(l[2:]) in (1, 5, 8, 9, 19, 23, 24, 25, 28, 29, 10, 11):
                    n = l[2:]
                    self(f"""
s_cselect_b32 s101, 1, 0
s_waitcnt lgkmcnt(0)
s_memrealtime s[98:99]
s_waitcnt lgkmcnt(0)
s_mul_i32 s98, s98, 0x9e3779b1
s_mul_i32 s99, s2, 0x85ebca6b
s_xor_b32 s98, s98, s99
s_mul_i32 s98, s98, 0xc2b2ae35
s_lshr_b32 s98, s98, 24
s_cmp_lt_u32 s98, 224
s_cbranch_scc1 J_SKIP{n}
s_sub_u32 s98, s98, 220
J_LOOP{n}:
s_sleep 16
s_sub_u32 s98, s98, 1
s_cmp_lg_u32 s98, 0
s_cbranch_scc1 J_LOOP{n}
J_SKIP{n}:
s_cmp_lg_u32 s101, 0
""")
                continue
            self.L.append(l if l.endswith(":") else "    " + l)

    def special(self, l):
        if l.startswith("@S") or l.startswith("@C"):
            self(f"{'s_memtime' if l[1] == 'C' else 's_memrealtime'} s[98:99]")
            self("s_waitcnt lgkmcnt(0)")
            self(f"v_writelane_b32 v{VST}, s98, {int(l[2:])}")
        elif l.startswith("@W"):
            self("s_waitcnt " + l[2:])
        elif l.startswith("@V"):
            r, i = l[2:].split(",")
            self(f"v_writelane_b32 v{VST}, {r}, {i}")
        elif l.startswith("@OUT"):
            self(f"""
s_mov_b64 exec, -1
s_lshl_b32 s100, s2, 4
s_add_u32 s100, s100, s3
s_lshl_b32 s100, s100, 8
s_add_u32 s100, s100, {DBG_OFF + 0x100000:#x}
v_and_b32 v{VST+1}, 63, v0
v_lshl_add_u32 v{VST+1}, v{VST+1}, 2, s100
global_store_dword v{VST+1}, v{VST}, s[16:17]
""")

    def text(self):
        return "\n".join(self.L) + "\n"


def pr(r):
    return f"v[{r}:{r+1}]"


def q4(r):
    return f"v[{r}:{r+3}]"


def srd(a, d, lo, hi, nbytes, stride=0):
    a(f"s_mov_b32 s{d}, s{lo}")
    a(f"s_and_b32 s{d+1}, s{hi}, 0xffff")
    if stride:
        a(f"s_or_b32 s{d+1}, s{d+1}, {stride << 16:#x}")
    a(f"s_mov_b32 s{d+2}, {nbytes}")
    a(f"s_mov_b32 s{d+3}, 0x20000")


def scan(a, v, row_only=False, fill=()):
    fill = list(fill)
    steps = [f"row_shr:{d} row_mask:0xf" for d in (1, 2, 4, 8)]
    if not row_only:
        steps += ["row_bcast:15 row_mask:0xa", "row_bcast:31 row_mask:0xc"]
    for st in steps:
        if fill:
            a(fill.pop(0))
            a("s_nop 0")
        else:
            a("s_nop 1")
        a(f"v_add_u32_dpp v{v}, v{v}, v{v} {st} bank_mask:0xf")


SDWA_B0 = "dst_sel:DWORD dst_unused:UNUSED_PAD src0_sel:DWORD src1_sel:BYTE_0"


def tr_reads(a, vaddr, base, r0):
    for mat in range(2):
        for t in range(2):
            for s in range(2):
                r = r0 + 16 * mat + 8 * t + 4 * s
                o = base + mat * 8192 + s * 4096
                a(f"ds_read_b64_tr_b16 {pr(r)}, v{vaddr[t]} offset:{o}")
                a(f"ds_read_b64_tr_b16 {pr(r+2)}, v{vaddr[t]} offset:{o + 512}")


def tile_mfmas(a, r0, x0, d0):
    for s in range(2):
        for mat in range(2):
            for t in range(2):
                f = r0 + 16 * mat + 8 * t + 4 * s
                d = d0 + 8 * mat + 4 * t
                c = "0" if s == 0 else q4(d)
                a(f"v_mfma_f32_16x16x32_bf16 {q4(d)}, {q4(f)}, {q4(x0+4*s)}, {c}")


def slots_init(a, r, small):
    for i in range(4):
        a(f"v_mov_b32 v{r+i}, 0")
    for i in range(4):
        a(f"v_mov_b32 v{r+4+i}, {N}")
    z0 = 0 if small else L_EA
    a(f"v_lshlrev_b32 v{r+8}, 4, v0")
    a(f"v_add_u32 v{r+9}, {L_KEYS}, v{r+8}")
    nz, nk = (L_KEYS - z0) // 16, KEY_BYTES // 16
    for i in range(nz // 512):
        a(f"ds_write_b128 v{r+8}, {q4(r)} offset:{z0 + 8192*i}")
    for i in range(nk // 512):
        a(f"ds_write_b128 v{r+9}, {q4(r+4)} offset:{8192*i}")
    for rem, reg, data, off in sorted([(nz % 512, r + 8, r, z0 + 8192 * (nz // 512)), (nk % 512, r + 9, r + 4, 8192 * (nk // 512))], reverse=True):
        a(f"v_cmp_gt_u32 vcc, {rem}, v0")
        a("s_mov_b64 exec, vcc")
        a(f"ds_write_b128 v{reg}, {q4(data)} offset:{off}")
    a("s_mov_b64 exec, -1")


def place_atomic(a, r, ca):
    a(f"v_and_b32 v{ca}, 0xfc, v{r+2}")
    a(f"ds_add_rtn_u32 v{r+3}, v{ca}, v{VFOUR} offset:{L_CNT}")


def place_write(a, r, ca):
    a(f"v_min_u32 v{r+3}, {CAP*4}, v{r+3}")
    a(f"v_mad_u32_u24 v{ca}, v{ca}, s{S_CS}, v{r+3}")
    a(f"v_lshrrev_b32 v{r+2}, 8, v{r+2}")
    a(f"v_add_u32 v{r+3}, v{ca}, v{ca}")
    a(f"ds_write_b32 v{ca}, v{r+2} offset:{L_KEYS}")
    a(f"ds_write_b64 v{r+3}, {pr(r)} offset:{L_EA}")


def ev_k(a, sub):
    a(f"""
v_add_u32 v{VK}, {L_KEYS - sub}, v{NX}
v_add_u32 v4, v{NX+1}, v{IDX[0]+1}
v_add_u32 v{VTK}, 32, v{VTK}
v_add_u32 v{VTE}, 32, v{VTE}
ds_read_b128 {q4(CN)}, v4
ds_read_b32 v{NXE}, v{VTE} offset:{L_TS}
ds_read_b64 {pr(NX)}, v{VTK} offset:{L_TS + 32}
""")


def ev_e(a, sub):
    a(f"""
v_lshlrev_b32 v{VE}, 1, v{NXE}
v_add_u32 v{VE}, {L_EA - sub}, v{VE}
v_mov_b32 v4, {L_ZERO}
v_pk_mov_b32 {pr(CA)}, {pr(CN)}, {pr(CN)} op_sel:[0,1]
v_pk_mov_b32 {pr(CA+2)}, {pr(CN+2)}, {pr(CN+2)} op_sel:[0,1]
v_cndmask_b32_e64 v{VE}, v4, v{VE}, s[{S_AM}:{S_AM+1}]
""")


def gathers(p, idx):
    return [f"buffer_load_dwordx4 {q4(stepbuf(p, i) + 2)}, {pr(idx[i])}, s[24:27], 0 idxen offen sc1" for i in range(GS)]


def mfmas(p):
    y = Y[p & 1]
    return [f"v_mfma_f32_16x16x32_bf16 {q4(y+4*i)}, {q4(AOP[i])}, {q4(stepbuf(p, i))}, {q4(CA)}" for i in range(GS)]


def ops(k):
    y, yn = Y[k & 1], Y[1 - (k & 1)]
    b = [stepbuf(k, i) + 4 for i in range(GS)]
    sk = f"s[{S_K}:{S_K+1}]"
    d = {}
    for i in range(4 * GS):
        d[f"E{i}"] = f"v_exp_f32 v{yn+i}, v{yn+i}"
    for i in range(2 * GS):
        if OPT["cadd"] == "1":
            d[f"C{i}"] = f"v_pk_add_f32 {pr(y+2*i)}, {pr(y+2*i)}, {sk} clamp"
        else:
            d[f"C{i}"] = f"v_pk_fma_f32 {pr(y+2*i)}, {pr(y+2*i)}, {sk}, {sk} clamp"
    for i in range(4):
        d[f"R{i}"] = f"v_rcp_f32 v{MM+i}, v{MM+i}"
    for i in range(2):
        p = [pr(y + 4 * j + 2 * i) for j in range(GS)]
        h = [pr(HL + 2 * j) if i == 0 else pr(b[j]) for j in range(GS)]
        m, s, u, p2 = pr(MM + 2 * i), pr(SA + 2 * i), pr(UU + 2 * i), pr(P2 + 2 * i)
        d[f"m{i}"] = f"v_pk_mul_f32 {m if GS == 2 else p2}, {p[0]}, {p[1]}"
        d[f"a{i}"] = f"v_pk_add_f32 {s}, {p[0]}, {p[1]}"
        d[f"g{i}"] = f"v_pk_mul_f32 {u}, {p[1]}, {h[0]}"
        d[f"h{i}"] = f"v_pk_fma_f32 {u}, {p[0]}, {h[1]}, {u}"
        if GS == 3:
            d[f"M{i}"] = f"v_pk_mul_f32 {m}, {p2}, {p[2]}"
            d[f"s{i}"] = f"v_pk_fma_f32 {s}, {s}, {p[2]}, {p2}"
            d[f"i{i}"] = f"v_pk_mul_f32 {u}, {u}, {p[2]}"
            d[f"j{i}"] = f"v_pk_fma_f32 {u}, {p2}, {h[2]}, {u}"
        d[f"d{i}"] = f"v_pk_fma_f32 {pr(DEN+2*i)}, {s}, {m}, {pr(DEN+2*i)}"
        d[f"n{i}"] = f"v_pk_fma_f32 {pr(NUM+2*i)}, {u}, {m}, {pr(NUM+2*i)}"
    if PLAIN:
        for i in range(2 * GS):
            d[f"C{i}"] = f"v_pk_add_f32 {pr(y+2*i)}, {pr(y+2*i)}, {sk}"
            j, hf = i >> 1, i & 1
            hh = pr(HL + 2 * j) if hf == 0 else pr(b[j])
            d[f"D{i}"] = f"v_pk_add_f32 {pr(DEN+2*hf)}, {pr(DEN+2*hf)}, {pr(y+2*i)}"
            d[f"U{i}"] = f"v_pk_fma_f32 {pr(NUM+2*hf)}, {pr(y+2*i)}, {hh}, {pr(NUM+2*hf)}"
        for i in range(4 * GS):
            d[f"r{i}"] = f"v_rcp_f32 v{y+i}, v{y+i}"
    for i in range(GS):
        d[f"Q{i}"] = f"v_lshlrev_b64 {pr(HL+2*i)}, 16, {pr(b[i])}"
        d[f"N{i}"] = mfmas(k + 2)[i]
        d[f"L{i}"] = gathers(k, IDX)[i]
        d[f"k{i}"] = f"ds_read_b32 v{IDX[i]}, v{VK} offset:{4*(GS*k+i)}"
        d[f"e{i}"] = f"ds_read_b64 {pr(AOP[i])}, v{VE} offset:{8*(GS*k+i)}"
    if OPT.get("eam") == "1":
        d["e0"] = f"s_mov_b64 exec, s[{S_AM}:{S_AM+1}]\n" + d["e0"]
        d[f"e{GS-1}"] += "\ns_mov_b64 exec, -1"
    if OPT.get("exp") == "nold":
        for i in range(GS): d[f"L{i}"] = ""
    if OPT.get("exp") == "nolds":
        for i in range(GS): d[f"k{i}"] = ""; d[f"e{i}"] = ""
    if OPT.get("exp") == "nom":
        for i in range(GS): d[f"N{i}"] = ""
    for ch in OPT.get("drop", ""):
        for key in list(d):
            if key[0] == ch and key[1:].isdigit(): d[key] = ""
    d["W"] = f"s_waitcnt vmcnt({GS*(NB-3)}) lgkmcnt(0)"
    d["S"] = f"s_sub_u32 s{S_CNT}, s{S_CNT}, 1"
    d["A0"] = f"v_add_u32 v{VK}, {4*GS*UNR}, v{VK}" if k == UNR - 1 else ""
    d["A1"] = f"v_add_u32 v{VE}, v{VINC}, v{VE}" if k == UNR - 1 else ""
    return d


ORDERS = {
    2: {
        "p": "k0 k1 e0 e1 C0 C1 r0 C2 r1 C3 r2 Q0 r3 Q1 r4 D0 r5 U0 r6 D1 r7 U1 E0 D2 E1 U2 E2 D3 E3 U3 A0 A1 W L0 L1 S N0 E4 E5 N1 E6 E7",
        "q": "k0 k1 e0 e1 C0 C1 C2 C3 r0 r1 r2 r3 Q0 Q1 r4 r5 r6 r7 D0 U0 D1 U1 D2 U2 D3 U3 A0 A1 W L0 L1 S N0 E0 E1 E2 E3 N1 E4 E5 E6 E7",
        "b": "k0 k1 e0 e1 C0 E0 C2 E1 C1 E2 C3 E3 m0 E4 m1 E5 S Q0 Q1 A0 A1 a0 a1 g0 g1 h0 h1 W N0 R0 R1 N1 R2 R3 L0 L1 E6 d0 E7 d1 n0 n1",
        "c": "k0 k1 e0 e1 C0 C2 E0 m0 E1 C1 C3 E2 m1 E3 Q0 E4 Q1 E5 A0 A1 a0 a1 g0 g1 h0 h1 W L0 L1 S N0 R0 R1 N1 R2 R3 E6 d0 E7 d1 n0 n1",
        "d": "k0 k1 e0 e1 Q0 Q1 C0 E0 C2 E1 C1 E2 C3 E3 g0 E4 g1 E5 h0 h1 A0 A1 m0 m1 a0 a1 W L0 L1 S N0 R0 R1 N1 R2 R3 E6 d0 E7 d1 n0 n1",
        "e": "k0 k1 e0 e1 C0 E0 C2 E1 m0 E2 C1 R0 C3 R1 m1 E3 Q0 Q1 A0 A1 a0 a1 g0 g1 h0 h1 W L0 L1 S N0 R2 R3 N1 E4 E5 d0 E6 n0 E7 d1 n1",
        "f": "k0 k1 e0 e1 C0 E0 C2 E1 C1 E2 C3 E3 m0 m1 Q0 Q1 A0 A1 a0 a1 g0 g1 h0 h1 W L0 L1 S N0 R0 R1 E4 N1 R2 R3 E5 d0 E6 d1 E7 n0 n1",
        "g": "C0 E0 C2 E1 C1 E2 C3 E3 k0 k1 e0 e1 m0 E4 m1 E5 Q0 Q1 A0 A1 a0 a1 g0 g1 h0 h1 W L0 L1 S N0 R0 R1 N1 R2 R3 E6 d0 E7 d1 n0 n1",
        "h": "k0 k1 e0 e1 C0 E0 C2 E1 C1 E2 C3 E3 m0 E4 m1 E5 Q0 Q1 A0 A1 g0 g1 h0 h1 a0 a1 W L0 L1 S N0 R0 R1 N1 R2 R3 E6 E7 d0 d1 n0 n1",
        "": "k0 k1 e0 e1 C0 E0 C2 E1 C1 E2 C3 E3 m0 E4 m1 E5 Q0 Q1 A0 A1 a0 a1 g0 g1 h0 h1 W L0 L1 S N0 R0 R1 N1 R2 R3 E6 d0 E7 d1 n0 n1",
    },
    3: {
        "d": "k0 k1 k2 e0 e1 e2 C0 E0 C2 E1 C4 E2 C1 E3 C3 E4 C5 E5 m0 m1 M0 M1 Q0 Q1 Q2 A0 A1 a0 a1 g0 g1 s0 s1 h0 h1 i0 i1 j0 j1 W L0 L1 L2 S N0 R0 R1 N1 R2 R3 N2 E6 E7 E8 d0 E9 d1 E10 n0 E11 n1",
        "e": "k0 k1 k2 e0 e1 e2 Q0 Q1 Q2 C0 E0 C2 E1 C4 E2 C1 E3 C3 E4 C5 E5 m0 m1 g0 g1 M0 M1 A0 A1 h0 h1 a0 a1 i0 i1 s0 s1 j0 j1 W N0 R0 R1 N1 R2 R3 N2 E6 E7 L0 L1 L2 S E8 d0 E9 d1 E10 n0 E11 n1",
        "": "k0 k1 k2 e0 e1 e2 C0 E0 C2 E1 C4 E2 C1 E3 C3 E4 C5 E5 m0 E6 m1 E7 M0 M1 Q0 Q1 Q2 A0 A1 a0 a1 g0 g1 s0 s1 h0 h1 i0 i1 j0 j1 W L0 L1 L2 S N0 R0 R1 N1 R2 R3 N2 E8 E9 d0 E10 d1 E11 n0 n1",
        "b": "k0 k1 k2 e0 e1 e2 C0 E0 C2 E1 C4 E2 C1 E3 C3 E4 C5 E5 m0 m1 M0 M1 Q0 Q1 Q2 A0 A1 a0 a1 g0 g1 s0 s1 h0 h1 i0 i1 j0 j1 W N0 R0 R1 N1 R2 R3 N2 E6 E7 L0 L1 L2 S E8 d0 E9 d1 E10 n0 E11 n1",
        "c": "k0 k1 k2 e0 e1 e2 C0 E0 C2 E1 m0 E2 C4 E3 M0 E4 C1 E5 C3 E6 m1 E7 C5 M1 Q0 Q1 Q2 A0 A1 a0 a1 g0 g1 s0 s1 h0 h1 i0 i1 j0 j1 W L0 L1 L2 S N0 R0 R1 N1 R2 R3 N2 E8 E9 d0 E10 d1 E11 n0 n1",
    },
}


def eprep1(a):
    a(f"""
v_lshrrev_b32 v{EOUT}, 3, v0
v_min_u32 v{EACC}, 48, v{EOUT}
v_lshlrev_b32 v{ERK}, 2, v{EOUT}
v_lshlrev_b32 v{ECN}, 2, v{EACC}
v_and_b32 v{EMSK}, 7, v0
v_lshlrev_b32 v{EEXT}, 5, v{EMSK}
v_cmp_gt_u32_e64 s[20:21], 52, v{EOUT}
s_movk_i32 s22, {US}
v_mad_u32_u24 v6, v{EACC}, s22, v{EEXT}
v_add_u32 v6, {L_U}, v6
v_mul_u32_u24 v7, {XSS}, v{EACC}
v_lshl_add_u32 v7, v{EMSK}, 4, v7
v_add_u32 v7, {L_XS}, v7
ds_read_b32 v{ERK}, v{ERK} offset:{L_RK}
ds_read_b32 v{ECN}, v{ECN} offset:{L_CNT}
ds_read_b128 {q4(EU)}, v6
ds_read_b128 {q4(EU+4)}, v6 offset:16
ds_read_b128 {q4(EX+4)}, v7
v_lshlrev_b32 v{EOUT}, 8, v{EOUT}
v_add_u32 v{EOUT}, s{S_B}, v{EOUT}
v_lshlrev_b32 v{EOUT}, 7, v{EOUT}
v_lshl_add_u32 v{EOUT}, v{EMSK}, 4, v{EOUT}
""")


def eprep2(a):
    a(f"""
v_cmp_ne_u32_e64 s[22:23], 0, v{ECN}
v_and_b32 v{EMSK}, -4, v{ERK}
v_lshl_add_u32 v{EACC}, v{ERK}, 9, v{EEXT}
v_add_u32 v{EACC}, {L_ACC}, v{EACC}
v_and_b32 v{ERK}, 3, v{ERK}
v_lshl_add_u32 v{EEXT}, v{ERK}, 9, v{EEXT}
v_add_u32 v{EEXT}, {L_EXT}, v{EEXT}
s_and_b64 s[20:21], s[20:21], s[22:23]
""")
    for i in range(4):
        a(f"v_lshlrev_b32 v{EX+2*i}, 16, v{EX+4+i}" if i < 2 else "")
        a(f"v_and_b32 v{EX+2*i+1}, 0xffff0000, v{EX+4+i}" if i < 2 else "")
    a(f"v_lshlrev_b32 v{EX+4}, 16, v{EX+6}")
    a(f"v_and_b32 v{EX+5}, 0xffff0000, v{EX+6}")
    a(f"v_lshlrev_b32 v{EX+6}, 16, v{EX+7}")
    a(f"v_and_b32 v{EX+7}, 0xffff0000, v{EX+7}")


def t2_check(a):
    a(f"v_xor_b32 v4, s{S_TAG}, v{T2R}")
    for i in (2, 4, 6):
        a(f"v_xor_b32 v5, s{S_TAG}, v{T2R+i}")
        a("v_or_b32 v4, v4, v5")
    for i in (1, 3, 5, 7):
        a(f"v_xor_b32 v5, s{S_TAG2}, v{T2R+i}")
        a("v_or_b32 v4, v4, v5")
    a("v_cmp_ne_u32 vcc, 0, v4")


def t2_loads(a):
    a(f"""
v_lshlrev_b32 v4, 4, v1
s_mov_b32 s40, {T2_REL:#x}
buffer_load_dwordx4 {q4(T2R)}, v4, s[32:35], s40 offen sc1
buffer_load_dwordx4 {q4(T2R+4)}, v4, s[32:35], s40 offen offset:1024 sc1
""")


def kernel():
    a = Asm()
    VTR, VXA, VWC, VAU, VLOC = VK, VE, VF, VFN, NXE
    VE2, VT2 = VTK, VTE
    VTR1, VWG, XF = VMAXL, VPF, T2R
    a(f"""
{KNAME}:
s_cmp_ge_u32 s2, 256
s_cbranch_scc1 K_END
@S0
@C30
s_load_dwordx16 s[64:79], s[0:1], 0
s_load_dwordx8 s[80:87], s[0:1], 64
s_getpc_b64 s[42:43]
K_PC0:
v_and_b32 v6, 63, v0
v_lshlrev_b32 v6, 7, v6
v_add_u32 v7, 8192, v6
v_cmp_le_u32 vcc, {int(OPT.get('cw', 7))*64}, v0
s_mov_b64 exec, vcc
s_cbranch_execz K_NOCPF
global_load_dword v{VFOUR}, v6, s[42:43]
v_cmp_gt_u32 vcc, K_LONG_ENTRY-K_PC0, v7
s_mov_b64 exec, vcc
global_load_dword v{VFOUR}, v7, s[42:43]
K_NOCPF:
s_mov_b64 exec, -1
s_mul_i32 s40, s2, {QCH}
v_add_u32 v4, s40, v0
v_add_u32 v5, {QH}, v4
v_cmp_gt_u32 vcc, {QH}, v0
v_lshlrev_b32 v4, 4, v4
v_mov_b32 v6, {BIG:#x}
v_and_b32 v7, 255, v0
v_cndmask_b32 v4, v6, v4, vcc
v_lshlrev_b32 v7, 2, v7
v_mov_b32 v{VZ}, 0
ds_write_b32 v7, v{VZ} offset:{L_HIST}
s_mov_b32 s47, 0x20000
s_mov_b32 s46, {E*4}
s_movk_i32 s58, {QH*16}
s_waitcnt lgkmcnt(0)
s_mov_b32 s44, s70
s_and_b32 s45, s71, 0xffff
buffer_load_dwordx4 v[8:11], v4, s[44:47], 0 offen
buffer_load_dwordx4 v[12:15], v4, s[44:47], s58 offen
v_readfirstlane_b32 s3, v0
s_mov_b32 s41, {NQ}
v_cmp_gt_u32_e64 s[94:95], s41, v5
s_mov_b64 s[92:93], vcc
v_add_u32 v5, s58, v4
s_and_b32 s{S_B}, s2, 7
s_lshl_b32 s{S_B}, s{S_B}, 5
s_lshr_b32 s40, s2, 3
s_or_b32 s{S_B}, s{S_B}, s40
s_and_b64 s[94:95], s[94:95], vcc
s_lshr_b32 s3, s3, 6
v_lshlrev_b32 v61, 4, v0
v_and_b32 v96, 16, v0
v_lshlrev_b32 v96, 1, v96
v_and_b32 v97, 64, v0
v_or_b32 v96, v96, v97
v_xor_b32 v{VWG}, v96, v61
global_load_dwordx4 v[40:43], v{VWG}, s[74:75]
global_load_dwordx4 v[44:47], v{VWG}, s[80:81]
v_lshrrev_b32 v62, 3, v0
v_lshlrev_b32 v90, 8, v62
v_add_u32 v90, s{S_B}, v90
v_lshlrev_b32 v90, 7, v90
v_and_b32 v63, 7, v0
v_lshl_add_u32 v90, v63, 4, v90
""")
    srd(a, 20, 64, 65, N * 128)
    a(f"""
buffer_load_dwordx4 v[56:59], v90, s[20:23], 0 offen
s_or_b32 s40, s2, s3
s_cmp_lg_u32 s40, 0
s_cbranch_scc1 K_NONONCE
s_memrealtime s[40:41]
s_waitcnt lgkmcnt(0)
s_or_b32 s40, s40, 1
v_mov_b32 v7, s40
s_mov_b64 exec, 1
global_store_dword v{VZ}, v7, s[84:85] sc1
s_mov_b64 exec, -1
K_NONONCE:
""")
    srd(a, 48, 68, 69, E * 4)
    srd(a, 52, 66, 67, E * 8)
    a(f"""
v_lshlrev_b32 v6, 1, v4
v_lshlrev_b32 v7, 1, v5
v_mov_b32 v74, v4
v_mov_b32 v75, v5
@S1
""")
    NE = int(OPT.get("ne", 2))
    later = ["buffer_load_dwordx4 v[24:27], v6, s[52:55], 0 offen",
             "buffer_load_dwordx4 v[28:31], v6, s[52:55], 0 offen offset:16",
             "buffer_load_dwordx4 v[16:19], v74, s[48:51], 0 offen",
             "buffer_load_dwordx4 v[20:23], v75, s[48:51], 0 offen"]
    a("s_barrier")
    for l in later[:NE]:
        a(l)
    TLB = OPT.get("tlb", "3")
    if TLB == "1":
        a(f"""
s_cmp_lg_u32 s3, 7
s_cbranch_scc1 K_NOTLB
v_and_b32 v76, 63, v0
v_lshlrev_b32 v77, 14, v76
v_mul_u32_u24 v76, {4*RECS}, v76
v_add_u32 v76, {T_OFF + REC_REL - 128}, v76
global_load_dword v{VFOUR}, v76, s[86:87]
global_load_dword v{VFOUR}, v77, s[82:83]
K_NOTLB:
""")
    if TLB in ("3", "4"):
        a(f"""
s_cmp_lg_u32 s3, 7
s_cbranch_scc1 K_NOTLB
s_add_u32 s40, s2, 1
v_and_b32 v76, 1, v0
v_mul_u32_u24 v76, s40, v76
s_mov_b32 s40, {RECS}
v_mul_lo_u32 v76, v76, s40
v_add_u32 v76, {T_OFF + REC_REL - 128}, v76
s_mov_b64 exec, 3
global_load_dword v{VFOUR}, v76, s[86:87]
s_mov_b64 exec, 1
global_load_dword v{VFOUR}, v{VZ}, s[82:83]
global_load_dword v{VFOUR}, v{VZ}, s[84:85] offset:128
s_mov_b64 exec, -1
K_NOTLB:
""")
    if OPT.get("sinit", "a") == "a":
        slots_init(a, 64, False)
    a(f"""
v_and_b32 v1, 63, v0
v_and_b32 v2, 15, v0
v_bfe_u32 v3, v0, 4, 2
v_and_b32 v91, 127, v0
v_lshlrev_b32 v91, 2, v91
v_mul_u32_u24 v62, {XSS}, v62
v_lshl_add_u32 v62, v63, 4, v62
v_add_u32 v62, {L_XS}, v62
v_add_u32 v63, {L_AP}, v61
s_mov_b64 s[16:17], s[86:87]
s_lshr_b32 s18, s3, 1
s_lshl_b32 s18, s18, 4
s_and_b32 s19, s3, 1
v_lshrrev_b32 v{VE2}, 2, v2
v_lshl_add_u32 v{VTR}, v3, 3, v{VE2}
v_lshlrev_b32 v{VTR}, 7, v{VTR}
v_and_b32 v{VT2}, 3, v2
v_lshl_add_u32 v{VTR}, v{VT2}, 3, v{VTR}
s_lshl_b32 s40, s19, 6
v_add_u32 v{VTR}, s40, v{VTR}
v_and_b32 v4, 8, v2
v_lshlrev_b32 v4, 2, v4
v_and_b32 v5, 1, v3
v_lshl_or_b32 v4, v5, 6, v4
v_xor_b32 v{VTR}, v4, v{VTR}
v_xor_b32 v{VTR1}, 32, v{VTR}
v_add_u32 v{VTR}, {L_AP}, v{VTR}
v_add_u32 v{VTR1}, {L_AP}, v{VTR1}
v_add_u32 v{VLOC}, s18, v2
v_mul_u32_u24 v{VXA}, {XSS}, v{VLOC}
v_lshl_add_u32 v{VXA}, v3, 4, v{VXA}
v_add_u32 v{VXA}, {L_XS}, v{VXA}
""")
    srd(a, 28, 16, 17, TAB_BYTES)
    a(f"""
v_lshlrev_b32 v4, 8, v{VLOC}
v_add_u32 v4, s{S_B}, v4
v_lshlrev_b32 v60, 8, v4
v_lshl_add_u32 v60, v3, 4, v60
s_lshl_b32 s40, s19, 7
v_add_u32 v60, s40, v60
v_cmp_eq_u32 vcc, {N}, v4
v_mov_b32 v4, 0x7f000000
v_mov_b32 v5, 0x7f007f00
s_mov_b32 s56, 0x07060100
s_mov_b32 s57, 0x07060302
v_mov_b32 v76, 1
@S2
s_waitcnt vmcnt({4 + NE})
@S3
""")
    for i in range(4):
        a(f"v_lshlrev_b32_sdwa v{64+i}, 2, v{8+i} {SDWA_B0}")
    a("s_mov_b64 exec, s[92:93]")
    for i in range(4):
        a(f"ds_add_rtn_u32 v{80+i}, v{64+i}, v76 offset:{L_HIST}")
    a("s_mov_b64 exec, -1")
    a(f"s_waitcnt vmcnt({3 + NE})")
    for i in range(4, 8):
        a(f"v_lshlrev_b32_sdwa v{64+i}, 2, v{8+i} {SDWA_B0}")
    a("s_mov_b64 exec, s[94:95]")
    for i in range(4, 8):
        a(f"ds_add_rtn_u32 v{80+i}, v{64+i}, v76 offset:{L_HIST}")
    a(f"""
s_mov_b64 exec, -1
s_cmp_eq_u32 s3, 7
s_waitcnt vmcnt({NE + (3 if TLB in ("3", "4") else 2 if TLB == "1" else 0)})
s_cbranch_scc1 K_WOK
s_waitcnt vmcnt({NE})
K_WOK:
ds_write_b128 v63, v[40:43]
ds_write_b128 v63, v[44:47] offset:8192
ds_write_b128 v62, v[56:59]
""")
    NL = int(OPT.get("nl", 4))
    rest = later[NE:] + ["buffer_load_dwordx4 v[32:35], v7, s[52:55], 0 offen", "buffer_load_dwordx4 v[36:39], v7, s[52:55], 0 offen offset:16"]
    for l in rest[:NL]:
        a(l)
    for i in range(8):
        a(f"v_lshrrev_b32 v{8+i}, 6, v{8+i}")
    a("v_lshlrev_b32 v77, 4, v1")
    seqs = []
    for t in range(2):
        b, h, o, tm = TOT + 4 * t, TOT + 8 + 4 * t, 40 + 4 * t, 78 + t
        q = [f"v_mul_f32 v{b+i}, {NLOG2E:#x}, v{b+i}" for i in range(4)]
        q += [f"v_med3_f32 v{b+i}, v{b+i}, v4, -v4" for i in range(4)]
        q += [f"v_cvt_pk_bf16_f32 v{tm}, v{h}, v{h}"]
        q += [f"v_cvt_pk_bf16_f32 v{o}, v{b}, v{b+1}", f"v_cvt_pk_bf16_f32 v{o+1}, v{b+2}, v{b+3}"]
        q += [f"v_perm_b32 v{o+2}, v{h+2}, v{tm}, s56", f"v_perm_b32 v{o+3}, v{h+3}, v{h+1}, s57"]
        q += [f"v_cndmask_b32 v{o}, v{o}, v5, vcc", f"v_cndmask_b32 v{o+1}, v{o+1}, v5, vcc"]
        seqs.append(q)
    pack = [z for xy in zip(*seqs) for z in xy]
    stores = [f"buffer_store_dwordx4 {q4(40+4*t)}, v60, s[28:31], 0 offen offset:{64*t} sc1" for t in range(2)]
    wl = [f"global_load_dwordx4 v[48:51], v{VWG}, s[72:73]", f"global_load_dwordx4 v[52:55], v{VWG}, s[78:79]", "global_load_dword v56, v91, s[76:77]"]
    a(f"""
s_waitcnt lgkmcnt(0)
@S4
s_barrier
@S5
ds_read_b128 v[72:75], v77 offset:{L_HIST}
ds_read_b128 {q4(XF)}, v{VXA}
ds_read_b128 {q4(XF+4)}, v{VXA} offset:64
""")
    for l in rest[NL:]:
        a(l)
    tr = Asm()
    tr_reads(tr, (VTR, VTR1), 0, 96)
    tr = tr.L
    for l in tr[:4]:
        a(l)
    a(f"""
s_waitcnt lgkmcnt(6)
v_add_u32 v89, v72, v73
v_add_u32 v90, v89, v74
v_add_u32 v62, v90, v75
v_mov_b32 v63, v62
""")
    steps = [f"row_shr:{d} row_mask:0xf" for d in (1, 2, 4, 8)] + ["row_bcast:15 row_mask:0xa", "row_bcast:31 row_mask:0xc"]
    for i, st in enumerate(steps):
        a(tr[4 + 2 * i]); a(tr[5 + 2 * i])
        a(f"v_add_u32_dpp v62, v62, v62 {st} bank_mask:0xf")
    a(f"""
v_sub_u32 v88, v62, v63
v_add_u32 v91x, v88, v90
v_add_u32 v90, v88, v89
v_add_u32 v89, v88, v72
ds_write_b128 v77, v[88:91] offset:{L_START}
""".replace("v91x", "v91"))
    for i in range(8):
        a(f"ds_read_b32 v{64+i}, v{64+i} offset:{L_START}")
    for i in range(4):
        a(f"v_lshl_or_b32 v{92+i}, v{72+i}, 16, v{88+i}")
    a("s_waitcnt lgkmcnt(9)")
    tile_mfmas(a, 96, XF, TOT)
    a("v_and_b32 v91, 127, v0")
    a("v_lshlrev_b32 v91, 2, v91")
    srd(a, 24, 16, 17, TAB_ROWS, stride=256)
    srd(a, 36, 82, 83, N * 128)
    a(f"s_mov_b32 s40, {L_STAGE}")
    PKP = OPT.get("pkp", "0")
    if PKP == "0":
        for l in pack + stores + wl:
            a(l)
    a(f"""
s_add_u32 s32, s16, {T_OFF:#x}
s_addc_u32 s33, s17, 0
s_and_b32 s33, s33, 0xffff
s_mov_b32 s34, {TR_BYTES}
s_mov_b32 s35, 0x20000
s_mul_i32 s41, s2, {RECS}
s_add_u32 s41, s41, {T_OFF + REC_REL:#x}
s_add_u32 s88, s16, s41
s_addc_u32 s89, s17, 0
s_and_b32 s89, s89, 0xffff
s_mov_b32 s90, {RECB}
s_mov_b32 s91, 0x20000
s_waitcnt vmcnt({7 if PKP == "0" else 2})
""")
    for i in range(8):
        a(f"v_lshl_or_b32 v{16+i}, v{16+i}, 8, v{8+i}")
    for i in range(8):
        a(f"s_waitcnt lgkmcnt({7-i})")
        a(f"v_add_u32 v{64+i}, v{64+i}, v{80+i}")
        a(f"v_mad_u32_u24 v{64+i}, v{64+i}, 12, s40")
    a("s_mov_b64 exec, s[92:93]")
    for i in range(4):
        a(f"ds_write_b32 v{64+i}, v{16+i} offset:8")
        a(f"ds_write2_b32 v{64+i}, v{24+2*i}, v{25+2*i} offset0:0 offset1:1")
    a("s_mov_b64 exec, s[94:95]")
    for i in range(4, 8):
        a(f"ds_write_b32 v{64+i}, v{16+i} offset:8")
    a(f"s_waitcnt vmcnt({5 if PKP == '0' else 0})")
    for i in range(4, 8):
        a(f"ds_write2_b32 v{64+i}, v{24+2*i}, v{25+2*i} offset0:0 offset1:1")
    a("s_mov_b64 exec, -1")
    if PKP == "1":
        for l in pack + stores + wl:
            a(l)
    a(f"""
@S6
s_movk_i32 s14, {RECB//16 - 2048}
v_cmp_gt_u32_e64 s[14:15], s14, v0
v_add_u32 v63, {L_STAGE}, v61
v_add_u32 v91, {L_WC}, v91
s_movk_i32 s44, 0x2000
s_movk_i32 s45, 0x4000
s_movk_i32 s46, 0x6000
s_mov_b32 s47, 0x8000
v_cmp_gt_u32 vcc, 128, v0
global_load_dword v64, v{VZ}, s[84:85] sc1
s_waitcnt lgkmcnt(0)
@S7
s_barrier
@S8
""")
    for i in range(4):
        a(f"ds_read_b128 {q4(8+4*i)}, v63 offset:{8192*i}")
    a(f"""
s_mov_b64 exec, s[14:15]
ds_read_b128 v[24:27], v63 offset:32768
s_mov_b64 exec, -1
v_mov_b32 v28, 0
v_mov_b32 v29, 0
v_mov_b32 v30, 0
v_mov_b32 v31, 0
""")
    for i in range(4):
        a(f"s_waitcnt lgkmcnt({4-i})")
        so = "0" if i == 0 else f"s{43+i}"
        a(f"buffer_store_dwordx4 {q4(8+4*i)}, v61, s[88:91], {so} offen sc1")
    koff = struct.unpack("<I", struct.pack("<f", -float(KEXP) if OPT["cadd"] == "1" else 0.0))[0]
    a(f"""
s_mov_b64 exec, s[14:15]
s_waitcnt lgkmcnt(0)
buffer_store_dwordx4 v[24:27], v61, s[88:91], s47 offen sc1
s_mov_b64 exec, vcc
ds_write_b128 v61, v[28:31]
s_mov_b64 exec, -1
@S9
s_waitcnt vmcnt(5)
ds_write_b128 v63, v[48:51]
ds_write_b128 v63, v[52:55] offset:8192
ds_write_b32 v91, v56
""")
    if OPT.get("sinit", "a") == "b":
        slots_init(a, 66, False)
    a(f"""
v_add_u32 v{VTR}, {L_STAGE - L_AP}, v{VTR}
v_add_u32 v{VTR1}, {L_STAGE - L_AP}, v{VTR1}
v_lshl_add_u32 v{VWC}, v2, 2, v3
v_lshlrev_b32 v{VWC}, 1, v{VWC}
v_add_u32 v{VWC}, {L_WC}, v{VWC}
s_movk_i32 s40, {US}
s_lshl_b32 s41, s19, 7
s_add_u32 s41, s41, {L_AP}
v_mad_u32_u24 v{VAU}, v{VLOC}, s40, 0
v_lshl_add_u32 v{VAU}, v3, 4, v{VAU}
v_add_u32 v{VAU}, s41, v{VAU}
v_cmp_gt_u32_e64 s[14:15], 49, v{VLOC}
s_mov_b32 s{S_MODE}, 0
s_mov_b32 s{S_CS}, {CS}
s_mov_b32 s{S_AM}, 0x22221111
s_mov_b32 s{S_AM+1}, 0x88884444
s_mov_b32 s{S_K}, {KBITS:#x}
s_mov_b32 s{S_K+1}, {KBITS:#x}
s_mov_b32 s6, {NLOG2E:#x}
s_mov_b32 s7, {NLOG2E:#x}
v_mov_b32 v{NX}, {koff:#x}
v_mov_b32 v{NX+1}, {koff:#x}
v_and_b32 v5, 1, v{VT2}
v_lshlrev_b32 v5, 4, v5
v_mov_b32 v6, 0x3f80
v_lshlrev_b32 v5, v5, v6
v_cmp_eq_u32 vcc, v3, v{VE2}
v_cmp_gt_u32_e64 s[52:53], 2, v{VT2}
v_cmp_le_u32_e64 s[54:55], 2, v{VT2}
v_mov_b32 v6, {8*GS*UNR}
v_cndmask_b32 v5, 0, v5, vcc
v_cndmask_b32_e64 v{VINC}, 0, v6, s[{S_AM}:{S_AM+1}]
v_mov_b32 v{VFOUR}, 4
""")
    for i in range(GS):
        a(f"v_cndmask_b32_e64 v{AOP[i]+2}, 0, v5, s[52:53]")
        a(f"v_cndmask_b32_e64 v{AOP[i]+3}, 0, v5, s[54:55]")
        a(f"v_lshlrev_b32 v{IDX[i]+1}, 4, v2")
    a(f"""
s_lshl_b32 s41, s{S_B}, 3
v_lshl_add_u32 v4, v3, 11, s41
s_lshl_b32 s40, s3, 16
""")
    for k in range(1, 8):
        a(f"s_add_u32 s{40+k}, s40, {8192*k}")
    V0, V1, V2, V3, V4 = X0 + 16, X0 + 17, X0 + 18, X0 + 19, X0 + 20
    a(f"""
s_lshl_b32 s48, s3, 5
v_add_u32 v5, s48, v3
s_mov_b32 s49, {RECS}
v_mul_lo_u32 v5, v5, s49
v_mad_u32_u24 v5, v2, 12, v5
v_add_u32 v5, {REC_REL}, v5
v_add_u32 v6, 16, v2
s_memrealtime s[50:51]
K_TAGW:
v_readfirstlane_b32 s{S_TAG}, v64
s_cmp_lg_u32 s{S_TAG}, 0
s_cbranch_scc0 K_TAG_RETRY
K_TAGOK:
s_mul_i32 s48, s{S_TAG}, 0x9e3779b1
s_and_b32 s48, s48, 0xf000f000
v_or_b32 v32, s48, v92
v_mov_b32 v33, s{S_TAG}
v_or_b32 v34, s48, v93
v_mov_b32 v35, s{S_TAG}
v_or_b32 v36, s48, v94
v_mov_b32 v37, s{S_TAG}
v_or_b32 v38, s48, v95
v_mov_b32 v39, s{S_TAG}
v_lshlrev_b32 v40, 5, v1
s_lshl_b32 s49, s2, 11
s_cmp_lg_u32 s3, 0
@S18
s_waitcnt vmcnt(0) lgkmcnt(0)
@S19
s_barrier
s_cbranch_scc1 K_NOPUB
buffer_store_dwordx4 v[32:35], v40, s[32:35], s49 offen sc1
buffer_store_dwordx4 v[36:39], v40, s[32:35], s49 offen offset:16 sc1
K_NOPUB:
""")
    if int(OPT.get("epf", 0)):
        a(f"""
s_lshr_b32 s52, s2, 3
s_mul_i32 s52, s52, {782*128}
s_add_u32 s52, s52, {int(OPT['npf'])*128}
v_lshl_add_u32 v8, v0, 7, s52
v_cmp_gt_u32 vcc, {int(OPT['epf'])}, v0
s_mov_b64 exec, vcc
buffer_load_dword v{VPF}, v8, s[28:31], 0 offen sc1
s_mov_b64 exec, -1
""")
    if TLB == "3":
        a(f"""
s_cmp_lg_u32 s3, 7
s_cbranch_scc1 K_NOTLB2
v_mul_u32_u24 v8, {16*RECS}, v1
v_add_u32 v8, {T_OFF + REC_REL - 128}, v8
s_mov_b64 exec, 0x1ffff
global_load_dword v{VPF}, v8, s[16:17]
s_mov_b64 exec, -1
K_NOTLB2:
""")
    tr_reads(a, (VTR, VTR1), 0, 96)
    a(f"""
ds_read_u16 v{CA}, v{VWC}
ds_read_u16 v{CA+1}, v{VWC} offset:128
ds_read_u16 v{CA+2}, v{VWC} offset:256
ds_read_u16 v{CA+3}, v{VWC} offset:384
s_mov_b32 s49, 0xf000f000
s_waitcnt lgkmcnt(4)
""")
    PP = OPT.get("pollpos", "2")
    polls = [f"buffer_load_dwordx2 {pr(PT+2*k)}, v4, s[32:35], s{40+k} offen sc1" for k in range(8)]
    tile_mfmas(a, 96, XF, TOT)
    if PP == "0":
        for l in polls:
            a(l)
    a("s_waitcnt lgkmcnt(0)")
    for k in range(4):
        a(f"v_lshlrev_b32 v{CA+k}, 16, v{CA+k}")
    for k in range(4):
        a(f"v_mul_f32 v{CA+k}, {NLOG2E:#x}, v{CA+k}")
    a(f"v_cvt_pk_bf16_f32 v{CN}, v{CA}, v{CA+1}")
    a(f"v_cvt_pk_bf16_f32 v{CN+1}, v{CA+2}, v{CA+3}")
    a(f"v_mov_b32 v{V0}, s{S_TAG}")
    a(f"v_mov_b32 v{V1}, s48")
    a("s_mov_b64 exec, s[14:15]")
    a(f"ds_write_b128 v{VAU}, {q4(TOT+8)} offset:{L_U - L_AP}")
    a(f"ds_write_b128 v{VAU}, {q4(TOT+12)} offset:{L_U - L_AP + 64}")
    for i in range(0, 8, 2):
        a(f"v_pk_fma_f32 {pr(TOT+i)}, {pr(TOT+i)}, s[6:7], {pr(NX)}")
    a(f"""
ds_write_b128 v{VAU}, {q4(TOT)}
ds_write_b128 v{VAU}, {q4(TOT+4)} offset:64
s_mov_b64 exec, -1
""")
    if PP == "1":
        for l in polls:
            a(l)
    for p in range(NB):
        for i in range(GS):
            a(f"v_pk_mov_b32 {pr(stepbuf(p, i))}, {pr(CN)}, {pr(CN)} op_sel:[0,1]")
    for i in range(0, 16, 2):
        a(f"v_pk_mov_b32 {pr(TOT+i)}, 0, 0")
    if int(OPT.get("presleep", 0)):
        a(f"s_sleep {OPT['presleep']}")
    a("@S23")
    if PP != "2":
        a("s_branch K_POLL_CHECK")
    a("K_POLL:")
    for k in range(8):
        a(f"buffer_load_dwordx2 {pr(PT+2*k)}, v4, s[32:35], s{40+k} offen sc1")
    a("K_POLL_CHECK:")
    a(f"v_mov_b32 v{V2}, 0")
    for k in range(8):
        a(f"s_waitcnt vmcnt({7-k})")
        a(f"v_xor_b32 v{V3}, v{PT+2*k}, v{V1}")
        a(f"v_xor_b32 v{V4}, v{PT+2*k+1}, v{V0}")
        a(f"v_and_or_b32 v{V2}, v{V3}, s49, v{V2}")
        a(f"v_and_b32 v{VTT+k}, 0x0fff0fff, v{PT+2*k}")
        a(f"v_or_b32 v{V2}, v{V4}, v{V2}")
    a(f"""
v_cmp_ne_u32 vcc, 0, v{V2}
s_cbranch_vccnz K_POLL_RETRY
K_POLLOK:
@S24
s_mov_b64 exec, 1
ds_add_u32 v{VZ}, v{VFOUR} offset:{L_ACKS}
s_mov_b64 exec, -1
""")
    for k in range(8):
        a(f"v_mad_u32_u16 v{VRA+k}, v{VTT+k}, 12, v5")
        a(f"v_cmp_gt_u32_sdwa s[{80+2*k}:{81+2*k}], v{VTT+k}, v6 src0_sel:WORD_1 src1_sel:DWORD")
        if k < 7:
            a(f"v_add_u32 v5, {4*RECS}, v5")
        r = recset(8 + k)
        a(f"s_mov_b64 exec, s[{80+2*k}:{81+2*k}]")
        a(f"s_cbranch_execz K_M1L{k}")
        a(f"buffer_load_dwordx3 v[{r}:{r+2}], v{VRA+k}, s[32:35], 0 offen offset:192 sc1")
        a(f"K_M1L{k}:")
        a("s_mov_b64 exec, -1")
        a(f"v_cmp_gt_u32_sdwa s[{64+2*k}:{65+2*k}], v{VTT+k}, v2 src0_sel:WORD_1 src1_sel:DWORD")
    for k in range(8):
        r = recset(k)
        a(f"s_mov_b64 exec, s[{64+2*k}:{65+2*k}]")
        a(f"buffer_load_dwordx3 v[{r}:{r+2}], v{VRA+k}, s[32:35], 0 offen sc1")
    a(f"""
s_mov_b64 exec, -1
@S25
v_max3_u32 v4, v{VTT}, v{VTT+1}, v{VTT+2}
v_max3_u32 v5, v{VTT+3}, v{VTT+4}, v{VTT+5}
v_max3_u32 v4, v4, v{VTT+6}, v{VTT+7}
v_max_u32 v4, v4, v5
v_lshrrev_b32 v{VMAXL}, 16, v4
s_waitcnt vmcnt(8)
""")

    def A_(j):
        a(f"s_waitcnt vmcnt({7 - j})")
        a(f"s_mov_b64 exec, s[{64+2*j}:{65+2*j}]")
        place_atomic(a, recset(j), VCA + j)

    def W_(j, n):
        a(f"s_mov_b64 exec, s[{64+2*j}:{65+2*j}]")
        if n is not None:
            a(f"s_waitcnt lgkmcnt({n})")
        place_write(a, recset(j), VCA + j)
    for j in range(8):
        a(f"s_mov_b64 exec, s[{80+2*j}:{81+2*j}]")
        a(f"s_cbranch_execz K_M1A{j}")
        place_atomic(a, recset(8 + j), VCA + 8 + j)
        a(f"K_M1A{j}:")
    A_(0); A_(1)
    a("s_waitcnt lgkmcnt(2)")
    for j in range(8):
        a(f"s_mov_b64 exec, s[{80+2*j}:{81+2*j}]")
        a(f"s_cbranch_execz K_M1W{j}")
        place_write(a, recset(8 + j), VCA + 8 + j)
        a(f"K_M1W{j}:")
    A_(2)
    W_(0, 1)
    W_(1, None)
    A_(3)
    W_(2, 5)
    A_(4)
    W_(3, 3)
    A_(5)
    W_(4, 3)
    A_(6)
    a("s_mov_b64 exec, -1")
    a(f"ds_read_b32 v7, v{VZ} offset:{L_ACKS}")
    W_(5, 4)
    A_(7)
    a("@S26")
    npf, pfs = int(OPT["npf"]), int(OPT["pfs"])
    a(f"""
s_mov_b64 exec, -1
v_cmp_lt_u32 vcc, 32, v{VMAXL}
s_waitcnt lgkmcnt(3)
v_readfirstlane_b32 s40, v7
s_cbranch_vccnz K_LONG_ENTRY
K_PLACED:
s_cmp_lg_u32 s40, 32
s_cbranch_scc1 K_NOPF
""")
    if npf:
        a(f"""
s_lshr_b32 s40, s2, 3
s_mul_i32 s40, s40, {782*128}
v_mul_u32_u24 v7, {pfs}, v0
v_add_u32 v7, s40, v7
""")
        for p in range(-(-npf // 512)):
            if p:
                a(f"v_add_u32 v7, {512*pfs}, v7")
            if npf - 512 * p < 512:
                a(f"v_cmp_gt_u32 vcc, {npf - 512*p}, v0")
                a("s_mov_b64 exec, vcc")
            a(f"buffer_load_dword v{VPF}, v7, s[28:31], 0 offen sc1")
    R = X0
    a(f"""
K_NOPF:
s_waitcnt lgkmcnt(0)
@S27
s_barrier
@S28
""")
    W_(6, None)
    W_(7, None)
    a(f"""
s_mov_b64 exec, -1
K_RANK:
v_lshlrev_b32 v4, 2, v1
ds_read_b32 v{R}, v4 offset:{L_CNT}
""")
    for i in range(1, 6):
        a(f"s_add_u32 s{40+i}, s3, {8*i}")
    a(f"""
v_cmp_gt_u32_e64 s[52:53], 48, v1
v_lshl_add_u32 v{R+2}, v1, 3, s3
v_mul_u32_u24 v{R+6}, {CS*4}, v{R+2}
v_mul_u32_u24 v{R+7}, {US}, v{R+2}
v_add_u32 v{R+7}, {L_AP}, v{R+7}
v_lshlrev_b32 v{R+2}, 2, v{R+2}
s_waitcnt lgkmcnt(0)
v_cmp_lt_u32 vcc, {CAP*4}, v{R}
v_lshl_add_u32 v{R+1}, v{R}, 4, v1
v_add_u32 v{R+1}, 1, v{R+1}
s_cbranch_vccnz K_SLOW_ENTRY
v_cndmask_b32_e64 v{R+1}, 0, v{R+1}, s[52:53]
v_readlane_b32 s50, v{R}, 48
""")
    for i in range(6):
        a(f"v_readlane_b32 s{64+i}, v{R+1}, s{3 if i == 0 else 40+i}")
    a(f"s_add_u32 s51, s50, {4*(4*GS-1)}")
    for i in range(6):
        a(f"v_cmp_lt_u32_e64 s[{72+2*i}:{73+2*i}], s{64+i}, v{R+1}")
    if GS == 2:
        a("s_lshr_b32 s51, s51, 5")
    else:
        a("s_lshr_b32 s51, s51, 4")
        a("s_mul_i32 s51, s51, 0x5556")
        a("s_lshr_b32 s51, s51, 16")
    for i in range(6):
        a(f"v_writelane_b32 v{R+3}, s{64+i}, {i}")
        a(f"s_bcnt1_i32_b64 s{72+2*i}, s[{72+2*i}:{73+2*i}]")
    a(f"""
s_max_u32 s51, s51, {MINPS}
s_cmp_eq_u32 s50, 0
s_cselect_b32 s50, 0, s51
s_mul_i32 s50, s50, {GS}
""")
    for i in range(6):
        a(f"v_writelane_b32 v{R+4}, s{72+2*i}, {i}")
    a(f"""
v_lshrrev_b32 v{R+3}, 6, v{R+3}
v_add_u32 v{R+4}, 4, v{R+4}
v_lshlrev_b32 v{R+5}, 3, v{R+4}
v_lshlrev_b32 v{R+8}, 2, v{R+4}
s_mov_b64 exec, 63
ds_write_b64 v{R+5}, {pr(R+6)} offset:{L_TS}
ds_write_b32 v{R+8}, v{R+3} offset:{L_TC}
ds_write_b32 v{R+2}, v{R+4} offset:{L_RK}
s_mov_b64 exec, 15
v_mul_u32_u24 v{R+10}, s50, v4
v_add_u32 v{R+10}, {48*CS*4}, v{R+10}
v_mov_b32 v{R+11}, {L_AP + 48*US}
v_mov_b32 v{R+9}, s50
v_lshlrev_b32 v5, 3, v1
ds_write_b64 v5, {pr(R+10)} offset:{L_TS}
ds_write_b32 v4, v{R+9} offset:{L_TC}
ds_write_b32 v4, v1 offset:{L_RK + 192}
s_mov_b64 exec, -1
v_lshlrev_b32 v4, 4, v2
v_cmp_gt_u32_e64 s[52:53], 13, v2
s_and_b32 s18, s3, 3
s_lshl_b32 s18, s18, 1
s_lshr_b32 s15, s3, 2
s_add_u32 s18, s18, s15
s_add_u32 s15, s18, 1
s_waitcnt lgkmcnt(0)
s_barrier
@S29
; ---- split the group stream evenly over the 8 waves --------------------------------------------
ds_read_b32 v{R}, v4 offset:{L_TC}
v_mov_b32 v{R+4}, 1
v_mov_b32 v{R+5}, 0
s_waitcnt lgkmcnt(0)
v_cmp_ne_u32 vcc, 0, v{R}
v_add_u32 v{R}, {GS-1}, v{R}
""")
    if GS == 2:
        a(f"v_lshrrev_b32 v{R}, 1, v{R}")
    else:
        a(f"v_mul_u32_u24 v{R}, 0x5556, v{R}")
        a(f"v_lshrrev_b32 v{R}, 16, v{R}")
    a(f"""
s_and_b64 s[44:45], vcc, s[52:53]
v_max_u32 v{R}, {MINPS}, v{R}
v_cndmask_b32_e64 v{R}, 0, v{R}, s[44:45]
v_mov_b32 v{R+1}, v{R}
""")
    scan(a, R + 1, row_only=True)
    a(f"""
s_nop 0
v_readlane_b32 s14, v{R+1}, 15
v_sub_u32 v{R+2}, v{R+1}, v{R}
s_cmp_gt_u32 s14, {MAXIT*8}
s_cbranch_scc1 K_SLOW_ENTRY
s_mul_i32 s40, s14, s18
s_mul_i32 s41, s14, s15
s_lshr_b32 s40, s40, 3
s_lshr_b32 s41, s41, 3
s_sub_u32 s{S_IT}, s41, s40
s_cmp_eq_u32 s{S_IT}, 0
s_cbranch_scc1 K_NOWORK
v_cmp_ge_u32_e64 s[42:43], s40, v{R+1}
v_subrev_u32 v{R+3}, s40, v{R+2}
s_and_b32 s42, s42, 0x1fff
s_bcnt1_i32_b32 s42, s42
s_lshl_b32 s46, s42, 5
v_lshl_add_u32 v{VTK}, v3, 3, s46
v_and_b32 v{VTE}, 12, v2
v_lshl_add_u32 v{VTE}, v{VTE}, 1, s46
v_readlane_b32 s43, v{R+2}, s42
ds_read_b64 {pr(R+6)}, v{VTK} offset:{L_TS}
ds_read_b32 v{NXE}, v{VTE} offset:{L_TS}
ds_read_b64 {pr(NX)}, v{VTK} offset:{L_TS + 32}
v_add_u32 v{R+8}, -1, v{R+3}
v_cmp_gt_u32 vcc, 63, v{R+8}
v_lshlrev_b64 {pr(R+4)}, v{R+3}, {pr(R+4)}
s_and_b64 vcc, vcc, s[44:45]
s_sub_u32 s43, s40, s43
v_cndmask_b32 v{R+4}, 0, v{R+4}, vcc
v_cndmask_b32 v{R+5}, 0, v{R+5}, vcc
s_mul_i32 s45, s43, {4*GS}
s_lshl_b32 s47, s45, 1
""")
    for d in (1, 2, 4, 8):
        a(f"v_or_b32_dpp v{R+4}, v{R+4}, v{R+4} row_shr:{d} row_mask:0xf bank_mask:0xf")
        a(f"v_or_b32_dpp v{R+5}, v{R+5}, v{R+5} row_shr:{d} row_mask:0xf bank_mask:0xf")
        a("s_nop 0")
    TI = {1: [Y[0] + 2 * i for i in range(GS)]}
    nxt = HL
    for p in range(2, NB):
        TI[p] = [nxt + 2 * i for i in range(GS)]
        nxt += 2 * GS
    assert nxt <= DEN, (nxt, DEN)
    a(f"""
s_add_u32 s45, s45, {L_KEYS}
s_add_u32 s47, s47, {L_EA}
v_readlane_b32 s{S_MASK}, v{R+4}, 15
v_readlane_b32 s{S_MASK+1}, v{R+5}, 15
s_bfm_b64 s[48:49], s{S_IT}, 0
s_waitcnt lgkmcnt(1)
v_add_u32 v{VK}, s45, v{R+6}
v_add_u32 v{R+7}, v{R+7}, v{IDX[0]+1}
s_and_b64 s[{S_MASK}:{S_MASK+1}], s[{S_MASK}:{S_MASK+1}], s[48:49]
""")
    for i in range(GS):
        a(f"ds_read_b32 v{IDX[i]}, v{VK} offset:{4*i}")
    a(f"""
ds_read_b128 {q4(CA)}, v{R+7}
v_lshl_add_u32 v{VE}, v{NXE}, 1, s47
v_mov_b32 v4, {L_ZERO}
""")
    for p in range(1, NB):
        for i in range(GS):
            a(f"v_mov_b32 v{TI[p][i]+1}, v{IDX[0]+1}")
    a(f"v_cndmask_b32_e64 v{VE}, v4, v{VE}, s[{S_AM}:{S_AM+1}]")
    a("s_waitcnt lgkmcnt(1)")
    for l in gathers(0, IDX):
        a(l)
    for p in range(1, NB):
        a(f"s_bitcmp1_b32 s{S_MASK}, {p}")
        a(f"s_cbranch_scc0 K_PK{p}")
        ev_k(a, 4 * GS * p)
        a(f"K_PK{p}:")
        for i in range(GS):
            a(f"ds_read_b32 v{TI[p][i]}, v{VK} offset:{4*(GS*p+i)}")
    for i in range(GS):
        a(f"ds_read_b64 {pr(AOP[i])}, v{VE} offset:{8*i}")
    a(f"""
s_lshr_b64 s[{S_CM}:{S_CM+1}], s[{S_MASK}:{S_MASK+1}], 3
s_lshr_b64 s[48:49], s[{S_MASK}:{S_MASK+1}], {NB+1}
s_or_b64 s[{S_CM}:{S_CM+1}], s[{S_CM}:{S_CM+1}], s[48:49]
s_mov_b32 s{S_RAW}, s{S_MASK}
s_bitset1_b64 s[{S_MASK}:{S_MASK+1}], s{S_IT}
s_lshr_b64 s[48:49], s[{S_MASK}:{S_MASK+1}], 1
s_or_b64 s[{S_CM}:{S_CM+1}], s[{S_CM}:{S_CM+1}], s[48:49]
s_waitcnt lgkmcnt({GS})
""")
    NG0 = int(OPT["ng0"])
    NG1 = max(NG0, min(NB, 4 if GS == 2 else 3))
    for p in range(1, NG0):
        for l in gathers(p, TI[p]):
            a(l)
    if OPT["prio"] == "1":
        dflt = (24, 12, 4) if GS == 2 else (16, 8, 3)
        t1, t2, t3 = [int(OPT.get(f"thr{i+1}", dflt[i])) for i in range(3)]
        a(f"""
s_setprio 3
s_mov_b32 s{S_PR}, 3
s_mov_b64 s[54:55], 0
s_bitset1_b64 s[54:55], {63 - t1}
s_bitset1_b64 s[54:55], {63 - t2}
s_bitset1_b64 s[54:55], {63 - t3}
s_sub_u32 s46, 63, s{S_IT}
s_lshr_b64 s[54:55], s[54:55], s46
s_or_b64 s[{S_CM}:{S_CM+1}], s[{S_CM}:{S_CM+1}], s[54:55]
""")
    a(f"""
s_ff1_i32_b64 s{S_CNT}, s[{S_CM}:{S_CM+1}]
v_lshlrev_b32 v5, 9, v3
v_lshl_add_u32 v5, v2, 4, v5
s_lshl_b32 s45, s42, 11
s_add_u32 s45, s45, {L_ACC}
s_add_u32 s46, s45, 2048
v_add_u32 v{VFN}, s46, v5
s_cmp_eq_u32 s43, 0
s_cbranch_scc1 K_P2
s_lshl_b32 s45, s3, 11
s_add_u32 s45, s45, {L_EXT}
s_lshl_b32 s46, 1, s3
s_lshl_b32 s47, s42, 2
v_mov_b32 v6, s46
v_mov_b32 v7, s47
s_mov_b64 exec, 1
ds_or_b32 v7, v6 offset:{L_MASK}
s_mov_b64 exec, -1
K_P2:
v_add_u32 v{VF}, s45, v5
""")
    for i in range(0, 8, 2):
        a(f"v_pk_mov_b32 {pr(DEN+i)}, 0, 0")
    a(f"""
v_add_u32 v{VK}, {4*GS*NB}, v{VK}
s_bitcmp1_b32 s{S_RAW}, {NB}
s_cbranch_scc0 K_PK{NB}
""")
    ev_k(a, 0)
    a(f"""
K_PK{NB}:
v_mov_b32 v5, {16*GS}
""")
    eprep1(a)
    a(f"""
@S10
s_waitcnt vmcnt({GS*(NG0-1)}) lgkmcnt(0)
@S15
""")
    for l in mfmas(0):
        a(l)
    for p in range(NG0, NG1):
        for l in gathers(p, TI[p]):
            a(l)
    a(f"""
s_bitcmp1_b32 s{S_RAW}, 1
s_cbranch_scc0 K_PE1
s_nop 2
""")
    ev_e(a, 8 * GS)
    a("K_PE1:")
    for i in range(GS):
        a(f"ds_read_b64 {pr(AOP[i])}, v{VE} offset:{8*(GS+i)}")
    a(f"v_cndmask_b32_e64 v5, 0, v5, s[{S_AM}:{S_AM+1}]")
    eprep2(a)
    for i in range(4 * GS):
        a(f"v_exp_f32 v{Y[0]+i}, v{Y[0]+i}")
    a(f"v_add_u32 v{VE}, v5, v{VE}")
    a(f"s_waitcnt vmcnt({GS*(NG1-2)}) lgkmcnt(0)")
    for l in mfmas(1):
        a(l)
    for p in range(NG1, NB):
        for l in gathers(p, TI[p]):
            a(l)
    a(f"""
s_bitcmp1_b32 s{S_RAW}, 2
s_cbranch_scc0 K_PE2
s_nop 2
""")
    ev_e(a, 0)
    a(f"""
K_PE2:
@C20
s_nop 4
{f".p2align {OPT['align']}" if OPT.get('align') else ''}
K_LOOP:
""")
    order = ORDERS[GS][OPT["order"]].split()
    for k in range(UNR):
        d = ops(k)
        for x in order:
            a(d[x])
        if k == UNR - 1:
            a("s_cbranch_scc0 K_LOOP")
        else:
            a(f"s_cbranch_scc1 K_EV{k}")
            a(f"K_RET{k}:")
    for k in [UNR - 1] + list(range(UNR - 1)):
        kn = (k + 1) % UNR
        ret = f"K_RET{k}" if k < UNR - 1 else "K_LOOP"
        a(f"""
K_EV{k}:
s_ff1_i32_b64 s14, s[{S_CM}:{S_CM+1}]
s_bitset0_b64 s[{S_CM}:{S_CM+1}], s14
s_ff1_i32_b64 s{S_CNT}, s[{S_CM}:{S_CM+1}]
s_lshr_b64 s[40:41], s[{S_MASK}:{S_MASK+1}], s14
s_sub_u32 s{S_CNT}, s{S_CNT}, s14
s_sub_u32 s{S_CNT}, s{S_CNT}, 1
s_bitcmp1_b32 s40, 1
s_cbranch_scc0 K_EV{k}A
ds_write_b128 v{VF}, {q4(DEN)}
ds_write_b128 v{VF}, {q4(NUM)} offset:256
s_lshr_b64 s[42:43], s[40:41], 2
s_cbranch_scc0 K_LOOP_DONE
v_mov_b32 v{VF}, v{VFN}
v_add_u32 v{VFN}, 2048, v{VFN}
""")
        for i in range(0, 8, 2):
            a(f"v_pk_mov_b32 {pr(DEN+i)}, 0, 0")
        a(f"""
K_EV{k}A:
s_bitcmp1_b32 s40, 3
s_cbranch_scc0 K_EV{k}B
""")
        ev_e(a, 8 * GS * kn)
        a(f"""
K_EV{k}B:
s_lshr_b64 s[42:43], s[40:41], {NB+2}
s_cbranch_scc0 K_EV{k}C
s_bitcmp1_b32 s40, {NB+1}
s_cbranch_scc0 K_EV{k}C
""")
        ev_k(a, 4 * GS * kn)
        a(f"K_EV{k}C:")
        if OPT["prio"] == "1":
            a(f"""
s_bitcmp1_b64 s[54:55], s14
s_cbranch_scc0 {ret}
s_sub_u32 s{S_PR}, s{S_PR}, 1
s_setprio 0
s_cmp_eq_u32 s{S_PR}, 0
s_cbranch_scc1 {ret}
s_setprio 1
s_cmp_eq_u32 s{S_PR}, 1
s_cbranch_scc1 {ret}
s_setprio 2
""")
        a(f"s_branch {ret}")
    a(f"""
K_LOOP_DONE:
@C21
@S11
s_setprio 0
s_waitcnt lgkmcnt(0)
s_barrier
@S12
s_mov_b64 exec, s[20:21]
s_cbranch_execz K_COMB_DONE
ds_read_b32 v{R}, v{EMSK} offset:{L_MASK}
""")

    def reads(d, va):
        a(f"ds_read_b128 {q4(d)}, v{va}")
        a(f"ds_read_b128 {q4(d+4)}, v{va} offset:16")
        a(f"ds_read_b128 {q4(d+8)}, v{va} offset:256")
        a(f"ds_read_b128 {q4(d+12)}, v{va} offset:272")

    def adds(d):
        for i in range(0, 16, 2):
            a(f"v_pk_add_f32 {pr(TOT+i)}, {pr(TOT+i)}, {pr(d+i)}")

    def nxt_(lab_last):
        a(f"""
v_ffbl_b32 v{R+1}, v{R}
v_cmp_ne_u32 vcc, 0, v{R}
v_add_u32 v{R+2}, -1, v{R}
v_and_b32 v{R}, v{R}, v{R+2}
v_lshl_add_u32 v{R+1}, v{R+1}, 11, v{EEXT}
s_mov_b64 s[40:41], exec
s_and_b64 exec, exec, vcc
s_cbranch_execz {lab_last}
""")
    D1 = R + 4 + 16
    D0 = R + 4
    reads(D0, EACC)
    a("s_waitcnt lgkmcnt(4)")
    a("K_COMB_A:")
    nxt_("K_COMB_LA")
    reads(D1, R + 1)
    a("s_mov_b64 s[42:43], exec")
    a("s_mov_b64 exec, s[40:41]")
    a("s_waitcnt lgkmcnt(4)")
    adds(D0)
    a("s_mov_b64 exec, s[42:43]")
    nxt_("K_COMB_LB")
    reads(D0, R + 1)
    a("s_mov_b64 s[42:43], exec")
    a("s_mov_b64 exec, s[40:41]")
    a("s_waitcnt lgkmcnt(4)")
    adds(D1)
    a("s_mov_b64 exec, s[42:43]")
    a("s_branch K_COMB_A")
    a("K_COMB_LB:")
    a("s_mov_b64 exec, s[40:41]")
    a("s_waitcnt lgkmcnt(0)")
    adds(D1)
    a("s_branch K_COMB_DONE")
    a("K_COMB_LA:")
    a("s_mov_b64 exec, s[40:41]")
    a("s_waitcnt lgkmcnt(0)")
    adds(D0)
    a(f"""
K_COMB_DONE:
s_mov_b64 exec, -1
s_cmp_lg_u32 s{S_MODE}, 0
s_cbranch_scc1 K_SLOW_NEXT
K_FINAL:
s_cmp_lg_u32 s3, 6
s_cbranch_scc1 K_FIN2
""")
    for i in range(16):
        a(f"v_add_f32_dpp v{TOT+i}, v{TOT+i}, v{TOT+i} row_ror:8 row_mask:0xf bank_mask:0xf")
    for i in range(16):
        a(f"ds_swizzle_b32 v{D0+i}, v{TOT+i} offset:0x401F")
    a("s_waitcnt lgkmcnt(0)")
    for i in range(0, 16, 2):
        a(f"v_pk_add_f32 {pr(TOT+i)}, {pr(TOT+i)}, {pr(D0+i)}")
    eps = struct.unpack("<I", struct.pack("<f", 1e-6 * 2.0**KEXP))[0]
    a(f"""
K_FIN2:
s_mov_b32 s14, {eps:#x}
s_mov_b32 s15, {eps:#x}
""")
    for i in range(0, 8, 2):
        a(f"v_pk_add_f32 {pr(TOT+i)}, {pr(TOT+i)}, s[14:15]")
    for i in range(8):
        a(f"v_rcp_f32 v{TOT+i}, v{TOT+i}")
    a("s_nop 0")
    for i in range(0, 8, 2):
        a(f"v_pk_fma_f32 {pr(EU+i)}, {pr(TOT+8+i)}, {pr(TOT+i)}, {pr(EU+i)}")
    for i in range(8):
        a(f"v_max_f32 v{EU+i}, 0, v{EU+i}")
    for i in range(0, 8, 2):
        a(f"v_pk_add_f32 {pr(EX+i)}, {pr(EX+i)}, {pr(EU+i)}")
    for i in range(4):
        a(f"v_cvt_pk_bf16_f32 v{EX+i}, v{EX+2*i}, v{EX+2*i+1}")
    a(f"""
buffer_store_dwordx4 {q4(EX)}, v{EOUT}, s[36:39], 0 offen {OPT['st_out']}
@S13
@Wvmcnt(0)
@S14
@Vs{S_IT},22
@OUT
K_END:
s_endpgm
K_NOWORK:
""")
    eprep1(a)
    a("s_waitcnt lgkmcnt(0)")
    eprep2(a)
    a(f"""
s_branch K_LOOP_DONE
K_TAG_RETRY:
s_waitcnt lgkmcnt(0)
s_memrealtime s[52:53]
s_sleep 4
global_load_dword v64, v{VZ}, s[84:85] sc1
s_waitcnt vmcnt(0) lgkmcnt(0)
s_sub_u32 s52, s52, s50
s_cmp_lt_u32 s52, 0x400000
s_cbranch_scc1 K_TAGW
s_branch K_TAGOK
K_POLL_RETRY:
s_memrealtime s[52:53]
s_sleep {OPT['sleep']}
s_waitcnt lgkmcnt(0)
s_sub_u32 s52, s52, s50
s_cmp_lt_u32 s52, 0x400000
s_cbranch_scc1 K_POLL
""")
    for k in range(8):
        a(f"v_cndmask_b32 v{VTT+k}, v{VTT+k}, v{VZ}, vcc")
    a(f"""
s_branch K_POLLOK
K_LONG_ENTRY:
s_mov_b32 s14, 32
K_LONG:
v_add_u32 v6, s14, v2
s_mul_i32 s15, s14, 12
""")
    for k in range(8):
        a(f"""
s_mov_b64 exec, -1
v_cmp_gt_u32_sdwa vcc, v{VTT+k}, v6 src0_sel:WORD_1 src1_sel:DWORD
s_and_saveexec_b64 s[42:43], vcc
s_cbranch_execz K_LONG_S{k}
buffer_load_dwordx3 v[{R}:{R+2}], v{VRA+k}, s[32:35], s15 offen sc1
s_waitcnt vmcnt(0)
""")
        place_atomic(a, R, 4)
        a("s_waitcnt lgkmcnt(0)")
        place_write(a, R, 4)
        a(f"K_LONG_S{k}:")
    a(f"""
s_mov_b64 exec, -1
s_add_u32 s14, s14, 16
v_cmp_lt_u32 vcc, s14, v{VMAXL}
s_cbranch_vccnz K_LONG
s_branch K_PLACED
K_SLOW_ENTRY:
ds_max_u32 v{VZ}, v{VMAXL} offset:{L_MAXL}
s_waitcnt lgkmcnt(0)
s_barrier
ds_read_b32 v5, v{VZ} offset:{L_MAXL}
s_mov_b32 s{S_MODE}, 1
s_mov_b32 s{S_I}, 0
s_mov_b32 s{S_MO}, 0
s_waitcnt lgkmcnt(0)
v_readfirstlane_b32 s{S_ML}, v5
s_branch K_SLOW_BATCH
K_SLOW_NEXT:
s_add_u32 s{S_I}, s{S_I}, 1
s_cmp_lt_u32 s{S_I}, 64
s_cbranch_scc1 K_SLOW_BATCH
s_mov_b32 s{S_I}, 0
s_add_u32 s{S_MO}, s{S_MO}, 16
s_cmp_ge_u32 s{S_MO}, s{S_ML}
s_cbranch_scc1 K_FINAL
K_SLOW_BATCH:
s_waitcnt vmcnt(0) lgkmcnt(0)
s_barrier
""")
    slots_init(a, R, True)
    a(f"""
s_waitcnt lgkmcnt(0)
s_barrier
s_cmp_lg_u32 s3, 0
s_cbranch_scc1 K_SLOW_S
s_lshl_b32 s14, s{S_I}, 2
v_add_u32 v7, s14, v3
s_lshl_b32 s15, s{S_B}, 3
v_lshl_add_u32 v4, v7, 11, s15
buffer_load_dword v5, v4, s[32:35], 0 offen sc1
s_mov_b32 s15, {RECS}
v_mul_lo_u32 v7, v7, s15
v_add_u32 v6, s{S_MO}, v2
v_mad_u32_u24 v7, v6, 12, v7
v_add_u32 v7, {REC_REL}, v7
s_waitcnt vmcnt(0)
v_and_b32 v5, 0x0fff0fff, v5
v_mad_u32_u16 v4, v5, 12, v7
v_cmp_gt_u32_sdwa vcc, v5, v6 src0_sel:WORD_1 src1_sel:DWORD
s_and_saveexec_b64 s[40:41], vcc
s_cbranch_execz K_SLOW_S
buffer_load_dwordx3 v[{R}:{R+2}], v4, s[32:35], 0 offen sc1
s_waitcnt vmcnt(0)
""")
    place_atomic(a, R, 4)
    a("s_waitcnt lgkmcnt(0)")
    place_write(a, R, 4)
    a("""
K_SLOW_S:
s_mov_b64 exec, -1
s_waitcnt lgkmcnt(0)
s_barrier
s_branch K_RANK
""")
    return a.text()


HEADER = open("standalone__edge_featured_mpnn_gatedgcn__graph.s.ref").read().split("; Override launch")[0]


def main():
    out = HEADER
    out += f"; @launch grid=(256,1,1) block=(512,1,1) lds={LDS}\n"
    out += '.amdgcn_target "amdgcn-amd-amdhsa--gfx950"\n.text\n'
    out += f".globl {KNAME}\n.p2align 8\n.type {KNAME},@function\n" + kernel()
    out += f""".section .rodata,"a"
.p2align 6
.amdhsa_kernel {KNAME}
  .amdhsa_next_free_vgpr {NVGPR}
  .amdhsa_next_free_sgpr {102 if OPT.get('jitter') else 101 if STAMPS else 98}
  .amdhsa_accum_offset {(NVGPR + 3) // 4 * 4}
  .amdhsa_group_segment_fixed_size 0
  .amdhsa_kernarg_size 96
  .amdhsa_user_sgpr_count 2
  .amdhsa_user_sgpr_kernarg_segment_ptr 1
  .amdhsa_system_sgpr_workgroup_id_x 1
.end_amdhsa_kernel
"""
    open(sys.argv[1], "w").write(out)


main()
```

```python
import sys
import struct
from math import gcd

N = 12500
E = 800000
QCH = 782
QH = QCH // 2
CH = QCH * 4
NQ = E // 4
RECB = CH * 12
RECS = 37760
TAB_ROWS = N + 1
TAB_BYTES = TAB_ROWS * 256
T_OFF = 0x310000
T2_REL = 0x80000
REC_REL = 0x81000
TR_BYTES = REC_REL + 256 * RECS
BIG = 0x40000000
NLOG2E = 0xbfb8aa3b
CAP = 128
CS = 132
XSS = 144
US = 272

OPT = dict(align="3", cpf="7", packpos="b", gs="2", nb="5", prio="1", order="c", npf="352", pfs="128", sleep="2", ng0="2", st_out="nt", cadd="1")
for a_ in sys.argv[2:]:
    k_, v_ = a_.split("=")
    OPT[k_] = v_
STAMPS = bool(OPT.get("stamps"))
GS = int(OPT["gs"])
NB = int(OPT["nb"] or (6 if GS == 2 else 4))
UNR = NB * 2 // gcd(NB, 2)
MINPS = NB + 1
MAXIT = 62
PLAIN = OPT.get('plain') == '1'
KEXP = 0 if PLAIN else (60 if GS == 2 else 40)
KBITS = (127 - KEXP) << 23
DBG_OFF = 0x1000000
KNAME = "standalone__edge_featured_mpnn_gatedgcn__graph_kernel"

L_CNT = 0
L_MASK = 256
L_MAXL = 324
L_ACKS = 328
L_ZERO = 384
L_TS = 640
L_OOB = 1280
L_TC = 1536
L_RK = 1792
L_HIST, L_START = 0, 1024
L_EA = 2048
EA_BYTES = 49 * CS * 8 + 32
L_KEYS = L_EA + EA_BYTES
KEY_BYTES = 49 * CS * 4 + 16
L_ACC = L_KEYS + KEY_BYTES
L_EXT = L_ACC + 52 * 512
L_STAGE = L_ACC
L_AP = L_EXT + 8 * 2048
L_U = L_AP + 49 * US
L_XS = L_U + 49 * US
L_WC = L_XS + 64 * XSS
LDS = L_WC + 512
assert 8 * GS * UNR + 8 <= L_TS - L_ZERO

_nv = [8]


def valloc(n, align=2):
    _nv[0] = (_nv[0] + align - 1) // align * align
    r = _nv[0]
    _nv[0] += n
    return r


GB = valloc(6 * GS * NB)
Y = (valloc(4 * GS), valloc(4 * GS))
HL = valloc(2 * GS)
P2, MM, SA, UU = valloc(4), valloc(4), valloc(4), valloc(4)
DEN = valloc(8)
NUM = DEN + 4
_nv[0] = max(_nv[0], 128)
AOP = [valloc(4) for _ in range(GS)]
CA, CN = valloc(4), valloc(4)
IDX = [valloc(2) for _ in range(GS)]
NX = valloc(2)
VK, VE, VF, VFN, VTK, VTE, NXE, VINC = [valloc(1, 1) for _ in range(8)]
TOT = valloc(16)
VTT = valloc(8)
VRA = valloc(8)
VCA = valloc(16)
PT = VCA
T2R = valloc(8)
VMAXL, VPF, VFOUR, VZ = [valloc(1, 1) for _ in range(4)]
EU, EX = valloc(8), valloc(8)
EACC, EEXT, EMSK, EOUT, ERK, ECN = [valloc(1, 1) for _ in range(6)]
VST = valloc(2)
NVGPR = _nv[0]
assert NVGPR <= 256, NVGPR
X0 = Y[0]
assert NUM + 4 - X0 >= 40

S_IT, S_MODE, S_I, S_MO, S_ML, S_CNT = 4, 5, 6, 7, 8, 9
S_K = 10
S_RAW = 12
S_B = 13
S_CM = 56
S_PR = 58
S_CS = 59
S_MASK = 60
S_AM = 62
S_TAG, S_TAG2, S_T2OK = 96, 97, 19


def stepbuf(p, i):
    return GB + 6 * (GS * (p % NB) + i)


def recset(j):
    return GB + 6 * j + 2 if j < GS * NB else X0 + 4 * (j - GS * NB)


class Asm:
    def __init__(self):
        self.L = []

    def __call__(self, s):
        for l in s.strip("\n").split("\n"):
            l = l.strip()
            if not l:
                continue
            if l.startswith("@"):
                if STAMPS:
                    self.special(l)
                elif OPT.get("jitter") and l[1] == "S" and int(l[2:]) in (1, 5, 8, 9, 19, 23, 24, 25, 28, 29, 10, 11):
                    n = l[2:]
                    self(f"""
s_cselect_b32 s101, 1, 0
s_waitcnt lgkmcnt(0)
s_memrealtime s[98:99]
s_waitcnt lgkmcnt(0)
s_mul_i32 s98, s98, 0x9e3779b1
s_mul_i32 s99, s2, 0x85ebca6b
s_xor_b32 s98, s98, s99
s_mul_i32 s98, s98, 0xc2b2ae35
s_lshr_b32 s98, s98, 24
s_cmp_lt_u32 s98, 224
s_cbranch_scc1 J_SKIP{n}
s_sub_u32 s98, s98, 220
J_LOOP{n}:
s_sleep 16
s_sub_u32 s98, s98, 1
s_cmp_lg_u32 s98, 0
s_cbranch_scc1 J_LOOP{n}
J_SKIP{n}:
s_cmp_lg_u32 s101, 0
""")
                continue
            self.L.append(l if l.endswith(":") else "    " + l)

    def special(self, l):
        if l.startswith("@S") or l.startswith("@C"):
            self(f"{'s_memtime' if l[1] == 'C' else 's_memrealtime'} s[98:99]")
            self("s_waitcnt lgkmcnt(0)")
            self(f"v_writelane_b32 v{VST}, s98, {int(l[2:])}")
        elif l.startswith("@P"):
            self(f"""
s_memrealtime s[98:99]
s_waitcnt lgkmcnt(0)
s_add_u32 m0, s{S_PR}, 40
s_nop 3
v_writelane_b32 v{VST}, s98, m0
s_memtime s[98:99]
s_waitcnt lgkmcnt(0)
s_add_u32 m0, s{S_PR}, 44
s_nop 3
v_writelane_b32 v{VST}, s98, m0
""")
        elif l.startswith("@W"):
            self("s_waitcnt " + l[2:])
        elif l.startswith("@V"):
            r, i = l[2:].split(",")
            self(f"v_writelane_b32 v{VST}, {r}, {i}")
        elif l.startswith("@OUT"):
            self(f"""
s_mov_b64 exec, -1
s_lshl_b32 s100, s2, 4
s_add_u32 s100, s100, s3
s_lshl_b32 s100, s100, 8
s_add_u32 s100, s100, {DBG_OFF + 0x100000:#x}
v_and_b32 v{VST+1}, 63, v0
v_lshl_add_u32 v{VST+1}, v{VST+1}, 2, s100
global_store_dword v{VST+1}, v{VST}, s[16:17]
""")

    def text(self):
        return "\n".join(self.L) + "\n"


def pr(r):
    return f"v[{r}:{r+1}]"


def q4(r):
    return f"v[{r}:{r+3}]"


def srd(a, d, lo, hi, nbytes, stride=0):
    a(f"s_mov_b32 s{d}, s{lo}")
    a(f"s_and_b32 s{d+1}, s{hi}, 0xffff")
    if stride:
        a(f"s_or_b32 s{d+1}, s{d+1}, {stride << 16:#x}")
    a(f"s_mov_b32 s{d+2}, {nbytes}")
    a(f"s_mov_b32 s{d+3}, 0x20000")


def scan(a, v, row_only=False, fill=()):
    fill = list(fill)
    steps = [f"row_shr:{d} row_mask:0xf" for d in (1, 2, 4, 8)]
    if not row_only:
        steps += ["row_bcast:15 row_mask:0xa", "row_bcast:31 row_mask:0xc"]
    for st in steps:
        if fill:
            a(fill.pop(0))
            a("s_nop 0")
        else:
            a("s_nop 1")
        a(f"v_add_u32_dpp v{v}, v{v}, v{v} {st} bank_mask:0xf")


SDWA_B0 = "dst_sel:DWORD dst_unused:UNUSED_PAD src0_sel:DWORD src1_sel:BYTE_0"


def tr_reads(a, vaddr, base, r0):
    for mat in range(2):
        for t in range(2):
            for s in range(2):
                r = r0 + 16 * mat + 8 * t + 4 * s
                o = base + mat * 8192 + s * 4096
                a(f"ds_read_b64_tr_b16 {pr(r)}, v{vaddr[t]} offset:{o}")
                a(f"ds_read_b64_tr_b16 {pr(r+2)}, v{vaddr[t]} offset:{o + 512}")


def tile_mfmas(a, r0, x0, d0):
    for s in range(2):
        for mat in range(2):
            for t in range(2):
                f = r0 + 16 * mat + 8 * t + 4 * s
                d = d0 + 8 * mat + 4 * t
                c = "0" if s == 0 else q4(d)
                a(f"v_mfma_f32_16x16x32_bf16 {q4(d)}, {q4(f)}, {q4(x0+4*s)}, {c}")


def slots_init(a, r, small):
    for i in range(4):
        a(f"v_mov_b32 v{r+i}, 0")
    for i in range(4):
        a(f"v_mov_b32 v{r+4+i}, {N}")
    z0 = 0 if small else L_EA
    a(f"v_lshlrev_b32 v{r+8}, 4, v0")
    a(f"v_add_u32 v{r+9}, {L_KEYS}, v{r+8}")
    nz, nk = (L_KEYS - z0) // 16, KEY_BYTES // 16
    for i in range(nz // 512):
        a(f"ds_write_b128 v{r+8}, {q4(r)} offset:{z0 + 8192*i}")
    for i in range(nk // 512):
        a(f"ds_write_b128 v{r+9}, {q4(r+4)} offset:{8192*i}")
    for rem, reg, data, off in sorted([(nz % 512, r + 8, r, z0 + 8192 * (nz // 512)), (nk % 512, r + 9, r + 4, 8192 * (nk // 512))], reverse=True):
        a(f"v_cmp_gt_u32 vcc, {rem}, v0")
        a("s_mov_b64 exec, vcc")
        a(f"ds_write_b128 v{reg}, {q4(data)} offset:{off}")
    a("s_mov_b64 exec, -1")


def place_atomic(a, r, ca):
    a(f"v_and_b32 v{ca}, 0xfc, v{r+2}")
    a(f"ds_add_rtn_u32 v{r+3}, v{ca}, v{VFOUR} offset:{L_CNT}")


def place_write(a, r, ca):
    a(f"v_min_u32 v{r+3}, {CAP*4}, v{r+3}")
    a(f"v_mad_u32_u24 v{ca}, v{ca}, s{S_CS}, v{r+3}")
    a(f"v_lshrrev_b32 v{r+2}, 8, v{r+2}")
    a(f"v_add_u32 v{r+3}, v{ca}, v{ca}")
    a(f"ds_write_b32 v{ca}, v{r+2} offset:{L_KEYS}")
    a(f"ds_write_b64 v{r+3}, {pr(r)} offset:{L_EA}")


def ev_k(a, sub):
    a(f"""
v_add_u32 v{VK}, {L_KEYS - sub}, v{NX}
v_add_u32 v4, v{NX+1}, v{IDX[0]+1}
v_add_u32 v{VTK}, 32, v{VTK}
v_add_u32 v{VTE}, 32, v{VTE}
ds_read_b128 {q4(CN)}, v4
ds_read_b32 v{NXE}, v{VTE} offset:{L_TS}
ds_read_b64 {pr(NX)}, v{VTK} offset:{L_TS + 32}
""")


def ev_e(a, sub):
    a(f"""
v_lshlrev_b32 v{VE}, 1, v{NXE}
v_add_u32 v{VE}, {L_EA - sub}, v{VE}
v_mov_b32 v4, {L_ZERO}
v_pk_mov_b32 {pr(CA)}, {pr(CN)}, {pr(CN)} op_sel:[0,1]
v_pk_mov_b32 {pr(CA+2)}, {pr(CN+2)}, {pr(CN+2)} op_sel:[0,1]
v_cndmask_b32_e64 v{VE}, v4, v{VE}, s[{S_AM}:{S_AM+1}]
""")


def gathers(p, idx):
    return [f"buffer_load_dwordx4 {q4(stepbuf(p, i) + 2)}, {pr(idx[i])}, s[24:27], 0 idxen offen sc1" for i in range(GS)]


def mfmas(p):
    y = Y[p & 1]
    return [f"v_mfma_f32_16x16x32_bf16 {q4(y+4*i)}, {q4(AOP[i])}, {q4(stepbuf(p, i))}, {q4(CA)}" for i in range(GS)]


def ops(k):
    y, yn = Y[k & 1], Y[1 - (k & 1)]
    b = [stepbuf(k, i) + 4 for i in range(GS)]
    sk = f"s[{S_K}:{S_K+1}]"
    d = {}
    for i in range(4 * GS):
        d[f"E{i}"] = f"v_exp_f32 v{yn+i}, v{yn+i}"
    for i in range(2 * GS):
        if OPT["cadd"] == "1":
            d[f"C{i}"] = f"v_pk_add_f32 {pr(y+2*i)}, {pr(y+2*i)}, {sk} clamp"
        else:
            d[f"C{i}"] = f"v_pk_fma_f32 {pr(y+2*i)}, {pr(y+2*i)}, {sk}, {sk} clamp"
    for i in range(4):
        d[f"R{i}"] = f"v_rcp_f32 v{MM+i}, v{MM+i}"
    for i in range(2):
        p = [pr(y + 4 * j + 2 * i) for j in range(GS)]
        h = [pr(HL + 2 * j) if i == 0 else pr(b[j]) for j in range(GS)]
        m, s, u, p2 = pr(MM + 2 * i), pr(SA + 2 * i), pr(UU + 2 * i), pr(P2 + 2 * i)
        d[f"m{i}"] = f"v_pk_mul_f32 {m if GS == 2 else p2}, {p[0]}, {p[1]}"
        d[f"a{i}"] = f"v_pk_add_f32 {s}, {p[0]}, {p[1]}"
        d[f"g{i}"] = f"v_pk_mul_f32 {u}, {p[1]}, {h[0]}"
        d[f"h{i}"] = f"v_pk_fma_f32 {u}, {p[0]}, {h[1]}, {u}"
        if GS == 3:
            d[f"M{i}"] = f"v_pk_mul_f32 {m}, {p2}, {p[2]}"
            d[f"s{i}"] = f"v_pk_fma_f32 {s}, {s}, {p[2]}, {p2}"
            d[f"i{i}"] = f"v_pk_mul_f32 {u}, {u}, {p[2]}"
            d[f"j{i}"] = f"v_pk_fma_f32 {u}, {p2}, {h[2]}, {u}"
        d[f"d{i}"] = f"v_pk_fma_f32 {pr(DEN+2*i)}, {s}, {m}, {pr(DEN+2*i)}"
        d[f"n{i}"] = f"v_pk_fma_f32 {pr(NUM+2*i)}, {u}, {m}, {pr(NUM+2*i)}"
    if PLAIN:
        for i in range(2 * GS):
            d[f"C{i}"] = f"v_pk_add_f32 {pr(y+2*i)}, {pr(y+2*i)}, {sk}"
            j, hf = i >> 1, i & 1
            hh = pr(HL + 2 * j) if hf == 0 else pr(b[j])
            d[f"D{i}"] = f"v_pk_add_f32 {pr(DEN+2*hf)}, {pr(DEN+2*hf)}, {pr(y+2*i)}"
            d[f"U{i}"] = f"v_pk_fma_f32 {pr(NUM+2*hf)}, {pr(y+2*i)}, {hh}, {pr(NUM+2*hf)}"
        for i in range(4 * GS):
            d[f"r{i}"] = f"v_rcp_f32 v{y+i}, v{y+i}"
    for i in range(GS):
        d[f"Q{i}"] = f"v_lshlrev_b64 {pr(HL+2*i)}, 16, {pr(b[i])}"
        d[f"N{i}"] = mfmas(k + 2)[i]
        d[f"L{i}"] = gathers(k, IDX)[i]
        d[f"k{i}"] = f"ds_read_b32 v{IDX[i]}, v{VK} offset:{4*(GS*k+i)}"
        d[f"e{i}"] = f"ds_read_b64 {pr(AOP[i])}, v{VE} offset:{8*(GS*k+i)}"
    if OPT.get("eam") == "1":
        d["e0"] = f"s_mov_b64 exec, s[{S_AM}:{S_AM+1}]\n" + d["e0"]
        d[f"e{GS-1}"] += "\ns_mov_b64 exec, -1"
    if OPT.get("exp") == "nold":
        for i in range(GS): d[f"L{i}"] = ""
    if OPT.get("exp") == "nolds":
        for i in range(GS): d[f"k{i}"] = ""; d[f"e{i}"] = ""
    if OPT.get("exp") == "nom":
        for i in range(GS): d[f"N{i}"] = ""
    for ch in OPT.get("drop", ""):
        for key in list(d):
            if key[0] == ch and key[1:].isdigit(): d[key] = ""
    d["W"] = f"s_waitcnt vmcnt({GS*(NB-3)}) lgkmcnt(0)"
    d["S"] = f"s_sub_u32 s{S_CNT}, s{S_CNT}, 1"
    d["A0"] = f"v_add_u32 v{VK}, {4*GS*UNR}, v{VK}" if k == UNR - 1 else ""
    d["A1"] = f"v_add_u32 v{VE}, v{VINC}, v{VE}" if k == UNR - 1 else ""
    return d


ORDERS = {
    2: {
        "p": "k0 k1 e0 e1 C0 C1 r0 C2 r1 C3 r2 Q0 r3 Q1 r4 D0 r5 U0 r6 D1 r7 U1 E0 D2 E1 U2 E2 D3 E3 U3 A0 A1 W L0 L1 S N0 E4 E5 N1 E6 E7",
        "q": "k0 k1 e0 e1 C0 C1 C2 C3 r0 r1 r2 r3 Q0 Q1 r4 r5 r6 r7 D0 U0 D1 U1 D2 U2 D3 U3 A0 A1 W L0 L1 S N0 E0 E1 E2 E3 N1 E4 E5 E6 E7",
        "b": "k0 k1 e0 e1 C0 E0 C2 E1 C1 E2 C3 E3 m0 E4 m1 E5 S Q0 Q1 A0 A1 a0 a1 g0 g1 h0 h1 W N0 R0 R1 N1 R2 R3 L0 L1 E6 d0 E7 d1 n0 n1",
        "c": "k0 k1 e0 e1 C0 C2 E0 m0 E1 C1 C3 E2 m1 E3 Q0 E4 Q1 E5 A0 A1 a0 a1 g0 g1 h0 h1 W L0 L1 S N0 R0 R1 N1 R2 R3 E6 d0 E7 d1 n0 n1",
        "d": "k0 k1 e0 e1 Q0 Q1 C0 E0 C2 E1 C1 E2 C3 E3 g0 E4 g1 E5 h0 h1 A0 A1 m0 m1 a0 a1 W L0 L1 S N0 R0 R1 N1 R2 R3 E6 d0 E7 d1 n0 n1",
        "e": "k0 k1 e0 e1 C0 E0 C2 E1 m0 E2 C1 R0 C3 R1 m1 E3 Q0 Q1 A0 A1 a0 a1 g0 g1 h0 h1 W L0 L1 S N0 R2 R3 N1 E4 E5 d0 E6 n0 E7 d1 n1",
        "f": "k0 k1 e0 e1 C0 E0 C2 E1 C1 E2 C3 E3 m0 m1 Q0 Q1 A0 A1 a0 a1 g0 g1 h0 h1 W L0 L1 S N0 R0 R1 E4 N1 R2 R3 E5 d0 E6 d1 E7 n0 n1",
        "g": "C0 E0 C2 E1 C1 E2 C3 E3 k0 k1 e0 e1 m0 E4 m1 E5 Q0 Q1 A0 A1 a0 a1 g0 g1 h0 h1 W L0 L1 S N0 R0 R1 N1 R2 R3 E6 d0 E7 d1 n0 n1",
        "h": "k0 k1 e0 e1 C0 E0 C2 E1 C1 E2 C3 E3 m0 E4 m1 E5 Q0 Q1 A0 A1 g0 g1 h0 h1 a0 a1 W L0 L1 S N0 R0 R1 N1 R2 R3 E6 E7 d0 d1 n0 n1",
        "": "k0 k1 e0 e1 C0 E0 C2 E1 C1 E2 C3 E3 m0 E4 m1 E5 Q0 Q1 A0 A1 a0 a1 g0 g1 h0 h1 W L0 L1 S N0 R0 R1 N1 R2 R3 E6 d0 E7 d1 n0 n1",
    },
    3: {
        "d": "k0 k1 k2 e0 e1 e2 C0 E0 C2 E1 C4 E2 C1 E3 C3 E4 C5 E5 m0 m1 M0 M1 Q0 Q1 Q2 A0 A1 a0 a1 g0 g1 s0 s1 h0 h1 i0 i1 j0 j1 W L0 L1 L2 S N0 R0 R1 N1 R2 R3 N2 E6 E7 E8 d0 E9 d1 E10 n0 E11 n1",
        "e": "k0 k1 k2 e0 e1 e2 Q0 Q1 Q2 C0 E0 C2 E1 C4 E2 C1 E3 C3 E4 C5 E5 m0 m1 g0 g1 M0 M1 A0 A1 h0 h1 a0 a1 i0 i1 s0 s1 j0 j1 W N0 R0 R1 N1 R2 R3 N2 E6 E7 L0 L1 L2 S E8 d0 E9 d1 E10 n0 E11 n1",
        "": "k0 k1 k2 e0 e1 e2 C0 E0 C2 E1 C4 E2 C1 E3 C3 E4 C5 E5 m0 E6 m1 E7 M0 M1 Q0 Q1 Q2 A0 A1 a0 a1 g0 g1 s0 s1 h0 h1 i0 i1 j0 j1 W L0 L1 L2 S N0 R0 R1 N1 R2 R3 N2 E8 E9 d0 E10 d1 E11 n0 n1",
        "b": "k0 k1 k2 e0 e1 e2 C0 E0 C2 E1 C4 E2 C1 E3 C3 E4 C5 E5 m0 m1 M0 M1 Q0 Q1 Q2 A0 A1 a0 a1 g0 g1 s0 s1 h0 h1 i0 i1 j0 j1 W N0 R0 R1 N1 R2 R3 N2 E6 E7 L0 L1 L2 S E8 d0 E9 d1 E10 n0 E11 n1",
        "c": "k0 k1 k2 e0 e1 e2 C0 E0 C2 E1 m0 E2 C4 E3 M0 E4 C1 E5 C3 E6 m1 E7 C5 M1 Q0 Q1 Q2 A0 A1 a0 a1 g0 g1 s0 s1 h0 h1 i0 i1 j0 j1 W L0 L1 L2 S N0 R0 R1 N1 R2 R3 N2 E8 E9 d0 E10 d1 E11 n0 n1",
    },
}


def eprep1(a):
    a(f"""
v_lshrrev_b32 v{EOUT}, 3, v0
v_min_u32 v{EACC}, 48, v{EOUT}
v_lshlrev_b32 v{ERK}, 2, v{EOUT}
v_lshlrev_b32 v{ECN}, 2, v{EACC}
v_and_b32 v{EMSK}, 7, v0
v_lshlrev_b32 v{EEXT}, 5, v{EMSK}
v_cmp_gt_u32_e64 s[20:21], 52, v{EOUT}
s_movk_i32 s22, {US}
v_mad_u32_u24 v6, v{EACC}, s22, v{EEXT}
v_add_u32 v6, {L_U}, v6
v_mul_u32_u24 v7, {XSS}, v{EACC}
v_lshl_add_u32 v7, v{EMSK}, 4, v7
v_add_u32 v7, {L_XS}, v7
ds_read_b32 v{ERK}, v{ERK} offset:{L_RK}
ds_read_b32 v{ECN}, v{ECN} offset:{L_CNT}
ds_read_b128 {q4(EU)}, v6
ds_read_b128 {q4(EU+4)}, v6 offset:16
ds_read_b128 {q4(EX+4)}, v7
v_lshlrev_b32 v{EOUT}, 8, v{EOUT}
v_add_u32 v{EOUT}, s{S_B}, v{EOUT}
v_lshlrev_b32 v{EOUT}, 7, v{EOUT}
v_lshl_add_u32 v{EOUT}, v{EMSK}, 4, v{EOUT}
""")


def eprep2(a):
    a(f"""
v_cmp_ne_u32_e64 s[22:23], 0, v{ECN}
v_and_b32 v{EMSK}, -4, v{ERK}
v_lshl_add_u32 v{EACC}, v{ERK}, 9, v{EEXT}
v_add_u32 v{EACC}, {L_ACC}, v{EACC}
v_and_b32 v{ERK}, 3, v{ERK}
v_lshl_add_u32 v{EEXT}, v{ERK}, 9, v{EEXT}
v_add_u32 v{EEXT}, {L_EXT}, v{EEXT}
s_and_b64 s[20:21], s[20:21], s[22:23]
""")
    for i in range(4):
        a(f"v_lshlrev_b32 v{EX+2*i}, 16, v{EX+4+i}" if i < 2 else "")
        a(f"v_and_b32 v{EX+2*i+1}, 0xffff0000, v{EX+4+i}" if i < 2 else "")
    a(f"v_lshlrev_b32 v{EX+4}, 16, v{EX+6}")
    a(f"v_and_b32 v{EX+5}, 0xffff0000, v{EX+6}")
    a(f"v_lshlrev_b32 v{EX+6}, 16, v{EX+7}")
    a(f"v_and_b32 v{EX+7}, 0xffff0000, v{EX+7}")


def t2_check(a):
    a(f"v_xor_b32 v4, s{S_TAG}, v{T2R}")
    for i in (2, 4, 6):
        a(f"v_xor_b32 v5, s{S_TAG}, v{T2R+i}")
        a("v_or_b32 v4, v4, v5")
    for i in (1, 3, 5, 7):
        a(f"v_xor_b32 v5, s{S_TAG2}, v{T2R+i}")
        a("v_or_b32 v4, v4, v5")
    a("v_cmp_ne_u32 vcc, 0, v4")


def t2_loads(a):
    a(f"""
v_lshlrev_b32 v4, 4, v1
s_mov_b32 s40, {T2_REL:#x}
buffer_load_dwordx4 {q4(T2R)}, v4, s[32:35], s40 offen sc1
buffer_load_dwordx4 {q4(T2R+4)}, v4, s[32:35], s40 offen offset:1024 sc1
""")


def kernel():
    a = Asm()
    VTR, VXA, VWC, VAU, VLOC = VK, VE, VF, VFN, NXE
    VE2, VT2 = VTK, VTE
    VTR1, VWG, XF = VMAXL, VPF, T2R
    a(f"""
{KNAME}:
s_cmp_ge_u32 s2, 256
s_cbranch_scc1 K_END
@S0
@C30
s_load_dwordx16 s[64:79], s[0:1], 0
s_load_dwordx8 s[80:87], s[0:1], 64
s_getpc_b64 s[42:43]
K_PC0:
v_and_b32 v6, 63, v0
v_lshlrev_b32 v6, 7, v6
v_add_u32 v7, 8192, v6
v_cmp_le_u32 vcc, {int(OPT.get('cw', 7))*64}, v0
s_mov_b64 exec, vcc
s_cbranch_execz K_NOCPF
global_load_dword v{VFOUR}, v6, s[42:43]
v_cmp_gt_u32 vcc, K_LONG_ENTRY-K_PC0, v7
s_mov_b64 exec, vcc
global_load_dword v{VFOUR}, v7, s[42:43]
K_NOCPF:
s_mov_b64 exec, -1
s_mul_i32 s40, s2, {QCH}
v_add_u32 v4, s40, v0
v_add_u32 v5, {QH}, v4
v_cmp_gt_u32 vcc, {QH}, v0
v_lshlrev_b32 v4, 4, v4
v_mov_b32 v6, {BIG:#x}
v_and_b32 v7, 255, v0
v_cndmask_b32 v4, v6, v4, vcc
v_lshlrev_b32 v7, 2, v7
v_mov_b32 v{VZ}, 0
ds_write_b32 v7, v{VZ} offset:{L_HIST}
s_mov_b32 s47, 0x20000
s_mov_b32 s46, {E*4}
s_movk_i32 s58, {QH*16}
s_waitcnt lgkmcnt(0)
s_mov_b32 s44, s70
s_and_b32 s45, s71, 0xffff
buffer_load_dwordx4 v[8:11], v4, s[44:47], 0 offen
buffer_load_dwordx4 v[12:15], v4, s[44:47], s58 offen
v_readfirstlane_b32 s3, v0
s_mov_b32 s41, {NQ}
v_cmp_gt_u32_e64 s[94:95], s41, v5
s_mov_b64 s[92:93], vcc
v_add_u32 v5, s58, v4
s_and_b32 s{S_B}, s2, 7
s_lshl_b32 s{S_B}, s{S_B}, 5
s_lshr_b32 s40, s2, 3
s_or_b32 s{S_B}, s{S_B}, s40
s_and_b64 s[94:95], s[94:95], vcc
s_lshr_b32 s3, s3, 6
v_lshlrev_b32 v61, 4, v0
v_and_b32 v96, 16, v0
v_lshlrev_b32 v96, 1, v96
v_and_b32 v97, 64, v0
v_or_b32 v96, v96, v97
v_xor_b32 v{VWG}, v96, v61
global_load_dwordx4 v[40:43], v{VWG}, s[74:75]
global_load_dwordx4 v[44:47], v{VWG}, s[80:81]
v_lshrrev_b32 v62, 3, v0
v_lshlrev_b32 v90, 8, v62
v_add_u32 v90, s{S_B}, v90
v_lshlrev_b32 v90, 7, v90
v_and_b32 v63, 7, v0
v_lshl_add_u32 v90, v63, 4, v90
""")
    srd(a, 20, 64, 65, N * 128)
    a(f"""
buffer_load_dwordx4 v[56:59], v90, s[20:23], 0 offen
s_or_b32 s40, s2, s3
s_cmp_lg_u32 s40, 0
s_cbranch_scc1 K_NONONCE
s_memrealtime s[40:41]
s_waitcnt lgkmcnt(0)
s_or_b32 s40, s40, 1
v_mov_b32 v7, s40
s_mov_b64 exec, 1
global_store_dword v{VZ}, v7, s[84:85] sc1
s_mov_b64 exec, -1
K_NONONCE:
""")
    srd(a, 48, 68, 69, E * 4)
    srd(a, 52, 66, 67, E * 8)
    a(f"""
v_lshlrev_b32 v6, 1, v4
v_lshlrev_b32 v7, 1, v5
v_mov_b32 v74, v4
v_mov_b32 v75, v5
@S1
""")
    NE = int(OPT.get("ne", 2))
    later = ["buffer_load_dwordx4 v[24:27], v6, s[52:55], 0 offen",
             "buffer_load_dwordx4 v[28:31], v6, s[52:55], 0 offen offset:16",
             "buffer_load_dwordx4 v[16:19], v74, s[48:51], 0 offen",
             "buffer_load_dwordx4 v[20:23], v75, s[48:51], 0 offen"]
    a("s_barrier")
    for l in later[:NE]:
        a(l)
    TLB = OPT.get("tlb", "3")
    if TLB == "1":
        a(f"""
s_cmp_lg_u32 s3, 7
s_cbranch_scc1 K_NOTLB
v_and_b32 v76, 63, v0
v_lshlrev_b32 v77, 14, v76
v_mul_u32_u24 v76, {4*RECS}, v76
v_add_u32 v76, {T_OFF + REC_REL - 128}, v76
global_load_dword v{VFOUR}, v76, s[86:87]
global_load_dword v{VFOUR}, v77, s[82:83]
K_NOTLB:
""")
    if TLB in ("3", "4"):
        a(f"""
s_cmp_lg_u32 s3, 7
s_cbranch_scc1 K_NOTLB
s_add_u32 s40, s2, 1
v_and_b32 v76, 1, v0
v_mul_u32_u24 v76, s40, v76
s_mov_b32 s40, {RECS}
v_mul_lo_u32 v76, v76, s40
v_add_u32 v76, {T_OFF + REC_REL - 128}, v76
s_mov_b64 exec, 3
global_load_dword v{VFOUR}, v76, s[86:87]
s_mov_b64 exec, 1
global_load_dword v{VFOUR}, v{VZ}, s[82:83]
global_load_dword v{VFOUR}, v{VZ}, s[84:85] offset:128
s_mov_b64 exec, -1
K_NOTLB:
""")
    if OPT.get("sinit", "a") == "a":
        slots_init(a, 64, False)
    a(f"""
v_and_b32 v1, 63, v0
v_and_b32 v2, 15, v0
v_bfe_u32 v3, v0, 4, 2
v_and_b32 v91, 127, v0
v_lshlrev_b32 v91, 2, v91
v_mul_u32_u24 v62, {XSS}, v62
v_lshl_add_u32 v62, v63, 4, v62
v_add_u32 v62, {L_XS}, v62
v_add_u32 v63, {L_AP}, v61
s_mov_b64 s[16:17], s[86:87]
s_lshr_b32 s18, s3, 1
s_lshl_b32 s18, s18, 4
s_and_b32 s19, s3, 1
v_lshrrev_b32 v{VE2}, 2, v2
v_lshl_add_u32 v{VTR}, v3, 3, v{VE2}
v_lshlrev_b32 v{VTR}, 7, v{VTR}
v_and_b32 v{VT2}, 3, v2
v_lshl_add_u32 v{VTR}, v{VT2}, 3, v{VTR}
s_lshl_b32 s40, s19, 6
v_add_u32 v{VTR}, s40, v{VTR}
v_and_b32 v4, 8, v2
v_lshlrev_b32 v4, 2, v4
v_and_b32 v5, 1, v3
v_lshl_or_b32 v4, v5, 6, v4
v_xor_b32 v{VTR}, v4, v{VTR}
v_xor_b32 v{VTR1}, 32, v{VTR}
v_add_u32 v{VTR}, {L_AP}, v{VTR}
v_add_u32 v{VTR1}, {L_AP}, v{VTR1}
v_add_u32 v{VLOC}, s18, v2
v_mul_u32_u24 v{VXA}, {XSS}, v{VLOC}
v_lshl_add_u32 v{VXA}, v3, 4, v{VXA}
v_add_u32 v{VXA}, {L_XS}, v{VXA}
""")
    srd(a, 28, 16, 17, TAB_BYTES)
    a(f"""
v_lshlrev_b32 v4, 8, v{VLOC}
v_add_u32 v4, s{S_B}, v4
v_lshlrev_b32 v60, 8, v4
v_lshl_add_u32 v60, v3, 4, v60
s_lshl_b32 s40, s19, 7
v_add_u32 v60, s40, v60
v_cmp_eq_u32 vcc, {N}, v4
v_mov_b32 v4, 0x7f000000
v_mov_b32 v5, 0x7f007f00
s_mov_b32 s56, 0x07060100
s_mov_b32 s57, 0x07060302
v_mov_b32 v76, 1
@S2
s_waitcnt vmcnt({4 + NE})
@S3
""")
    for i in range(4):
        a(f"v_lshlrev_b32_sdwa v{64+i}, 2, v{8+i} {SDWA_B0}")
    a("s_mov_b64 exec, s[92:93]")
    for i in range(4):
        a(f"ds_add_rtn_u32 v{80+i}, v{64+i}, v76 offset:{L_HIST}")
    a("s_mov_b64 exec, -1")
    a(f"s_waitcnt vmcnt({3 + NE})")
    for i in range(4, 8):
        a(f"v_lshlrev_b32_sdwa v{64+i}, 2, v{8+i} {SDWA_B0}")
    a("s_mov_b64 exec, s[94:95]")
    for i in range(4, 8):
        a(f"ds_add_rtn_u32 v{80+i}, v{64+i}, v76 offset:{L_HIST}")
    a(f"""
s_mov_b64 exec, -1
s_cmp_eq_u32 s3, 7
s_waitcnt vmcnt({NE + (3 if TLB in ("3", "4") else 2 if TLB == "1" else 0)})
s_cbranch_scc1 K_WOK
s_waitcnt vmcnt({NE})
K_WOK:
ds_write_b128 v63, v[40:43]
ds_write_b128 v63, v[44:47] offset:8192
ds_write_b128 v62, v[56:59]
""")
    NL = int(OPT.get("nl", 4))
    rest = later[NE:] + ["buffer_load_dwordx4 v[32:35], v7, s[52:55], 0 offen", "buffer_load_dwordx4 v[36:39], v7, s[52:55], 0 offen offset:16"]
    for l in rest[:NL]:
        a(l)
    for i in range(8):
        a(f"v_lshrrev_b32 v{8+i}, 6, v{8+i}")
    a("v_lshlrev_b32 v77, 4, v1")
    seqs = []
    for t in range(2):
        b, h, o, tm = TOT + 4 * t, TOT + 8 + 4 * t, 40 + 4 * t, 78 + t
        q = [f"v_mul_f32 v{b+i}, {NLOG2E:#x}, v{b+i}" for i in range(4)]
        q += [f"v_med3_f32 v{b+i}, v{b+i}, v4, -v4" for i in range(4)]
        q += [f"v_cvt_pk_bf16_f32 v{tm}, v{h}, v{h}"]
        q += [f"v_cvt_pk_bf16_f32 v{o}, v{b}, v{b+1}", f"v_cvt_pk_bf16_f32 v{o+1}, v{b+2}, v{b+3}"]
        q += [f"v_perm_b32 v{o+2}, v{h+2}, v{tm}, s56", f"v_perm_b32 v{o+3}, v{h+3}, v{h+1}, s57"]
        q += [f"v_cndmask_b32 v{o}, v{o}, v5, vcc", f"v_cndmask_b32 v{o+1}, v{o+1}, v5, vcc"]
        seqs.append(q)
    pack = [z for xy in zip(*seqs) for z in xy]
    stores = [f"buffer_store_dwordx4 {q4(40+4*t)}, v60, s[28:31], 0 offen offset:{64*t} sc1" for t in range(2)]
    wl = [f"global_load_dwordx4 v[48:51], v{VWG}, s[72:73]", f"global_load_dwordx4 v[52:55], v{VWG}, s[78:79]", "global_load_dword v56, v91, s[76:77]"]
    a(f"""
s_waitcnt lgkmcnt(0)
@S4
s_barrier
@S5
ds_read_b128 v[72:75], v77 offset:{L_HIST}
ds_read_b128 {q4(XF)}, v{VXA}
ds_read_b128 {q4(XF+4)}, v{VXA} offset:64
""")
    for l in rest[NL:]:
        a(l)
    tr = Asm()
    tr_reads(tr, (VTR, VTR1), 0, 96)
    tr = tr.L
    for l in tr[:4]:
        a(l)
    a(f"""
s_waitcnt lgkmcnt(6)
v_add_u32 v89, v72, v73
v_add_u32 v90, v89, v74
v_add_u32 v62, v90, v75
v_mov_b32 v63, v62
""")
    steps = [f"row_shr:{d} row_mask:0xf" for d in (1, 2, 4, 8)] + ["row_bcast:15 row_mask:0xa", "row_bcast:31 row_mask:0xc"]
    for i, st in enumerate(steps):
        a(tr[4 + 2 * i]); a(tr[5 + 2 * i])
        a(f"v_add_u32_dpp v62, v62, v62 {st} bank_mask:0xf")
    a(f"""
v_sub_u32 v88, v62, v63
v_add_u32 v91x, v88, v90
v_add_u32 v90, v88, v89
v_add_u32 v89, v88, v72
ds_write_b128 v77, v[88:91] offset:{L_START}
""".replace("v91x", "v91"))
    for i in range(8):
        a(f"ds_read_b32 v{64+i}, v{64+i} offset:{L_START}")
    for i in range(4):
        a(f"v_lshl_or_b32 v{92+i}, v{72+i}, 16, v{88+i}")
    a("s_waitcnt lgkmcnt(9)")
    tile_mfmas(a, 96, XF, TOT)
    a("v_and_b32 v91, 127, v0")
    a("v_lshlrev_b32 v91, 2, v91")
    srd(a, 24, 16, 17, TAB_ROWS, stride=256)
    srd(a, 36, 82, 83, N * 128)
    a(f"s_mov_b32 s40, {L_STAGE}")
    PKP = OPT.get("pkp", "0")
    if PKP == "0":
        for l in pack + stores + wl:
            a(l)
    a(f"""
s_add_u32 s32, s16, {T_OFF:#x}
s_addc_u32 s33, s17, 0
s_and_b32 s33, s33, 0xffff
s_mov_b32 s34, {TR_BYTES}
s_mov_b32 s35, 0x20000
s_mul_i32 s41, s2, {RECS}
s_add_u32 s41, s41, {T_OFF + REC_REL:#x}
s_add_u32 s88, s16, s41
s_addc_u32 s89, s17, 0
s_and_b32 s89, s89, 0xffff
s_mov_b32 s90, {RECB}
s_mov_b32 s91, 0x20000
s_waitcnt vmcnt({7 if PKP == "0" else 2})
""")
    for i in range(8):
        a(f"v_lshl_or_b32 v{16+i}, v{16+i}, 8, v{8+i}")
    for i in range(8):
        a(f"s_waitcnt lgkmcnt({7-i})")
        a(f"v_add_u32 v{64+i}, v{64+i}, v{80+i}")
        a(f"v_mad_u32_u24 v{64+i}, v{64+i}, 12, s40")
    a("s_mov_b64 exec, s[92:93]")
    for i in range(4):
        a(f"ds_write_b32 v{64+i}, v{16+i} offset:8")
        a(f"ds_write2_b32 v{64+i}, v{24+2*i}, v{25+2*i} offset0:0 offset1:1")
    a("s_mov_b64 exec, s[94:95]")
    for i in range(4, 8):
        a(f"ds_write_b32 v{64+i}, v{16+i} offset:8")
    a(f"s_waitcnt vmcnt({5 if PKP == '0' else 0})")
    for i in range(4, 8):
        a(f"ds_write2_b32 v{64+i}, v{24+2*i}, v{25+2*i} offset0:0 offset1:1")
    a("s_mov_b64 exec, -1")
    if PKP == "1":
        for l in pack + stores + wl:
            a(l)
    a(f"""
@S6
s_movk_i32 s14, {RECB//16 - 2048}
v_cmp_gt_u32_e64 s[14:15], s14, v0
v_add_u32 v63, {L_STAGE}, v61
v_add_u32 v91, {L_WC}, v91
s_movk_i32 s44, 0x2000
s_movk_i32 s45, 0x4000
s_movk_i32 s46, 0x6000
s_mov_b32 s47, 0x8000
v_cmp_gt_u32 vcc, 128, v0
global_load_dword v64, v{VZ}, s[84:85] sc1
s_waitcnt lgkmcnt(0)
@S7
s_barrier
@S8
""")
    for i in range(4):
        a(f"ds_read_b128 {q4(8+4*i)}, v63 offset:{8192*i}")
    a(f"""
s_mov_b64 exec, s[14:15]
ds_read_b128 v[24:27], v63 offset:32768
s_mov_b64 exec, -1
v_mov_b32 v28, 0
v_mov_b32 v29, 0
v_mov_b32 v30, 0
v_mov_b32 v31, 0
""")
    for i in range(4):
        a(f"s_waitcnt lgkmcnt({4-i})")
        so = "0" if i == 0 else f"s{43+i}"
        a(f"buffer_store_dwordx4 {q4(8+4*i)}, v61, s[88:91], {so} offen sc1")
    koff = struct.unpack("<I", struct.pack("<f", -float(KEXP) if OPT["cadd"] == "1" else 0.0))[0]
    a(f"""
s_mov_b64 exec, s[14:15]
s_waitcnt lgkmcnt(0)
buffer_store_dwordx4 v[24:27], v61, s[88:91], s47 offen sc1
s_mov_b64 exec, vcc
ds_write_b128 v61, v[28:31]
s_mov_b64 exec, -1
@S9
s_waitcnt vmcnt(5)
ds_write_b128 v63, v[48:51]
ds_write_b128 v63, v[52:55] offset:8192
ds_write_b32 v91, v56
""")
    if OPT.get("sinit", "a") == "b":
        slots_init(a, 66, False)
    a(f"""
v_add_u32 v{VTR}, {L_STAGE - L_AP}, v{VTR}
v_add_u32 v{VTR1}, {L_STAGE - L_AP}, v{VTR1}
v_lshl_add_u32 v{VWC}, v2, 2, v3
v_lshlrev_b32 v{VWC}, 1, v{VWC}
v_add_u32 v{VWC}, {L_WC}, v{VWC}
s_movk_i32 s40, {US}
s_lshl_b32 s41, s19, 7
s_add_u32 s41, s41, {L_AP}
v_mad_u32_u24 v{VAU}, v{VLOC}, s40, 0
v_lshl_add_u32 v{VAU}, v3, 4, v{VAU}
v_add_u32 v{VAU}, s41, v{VAU}
v_cmp_gt_u32_e64 s[14:15], 49, v{VLOC}
s_mov_b32 s{S_MODE}, 0
s_mov_b32 s{S_CS}, {CS}
s_mov_b32 s{S_AM}, 0x22221111
s_mov_b32 s{S_AM+1}, 0x88884444
s_mov_b32 s{S_K}, {KBITS:#x}
s_mov_b32 s{S_K+1}, {KBITS:#x}
s_mov_b32 s6, {NLOG2E:#x}
s_mov_b32 s7, {NLOG2E:#x}
v_mov_b32 v{NX}, {koff:#x}
v_mov_b32 v{NX+1}, {koff:#x}
v_and_b32 v5, 1, v{VT2}
v_lshlrev_b32 v5, 4, v5
v_mov_b32 v6, 0x3f80
v_lshlrev_b32 v5, v5, v6
v_cmp_eq_u32 vcc, v3, v{VE2}
v_cmp_gt_u32_e64 s[52:53], 2, v{VT2}
v_cmp_le_u32_e64 s[54:55], 2, v{VT2}
v_mov_b32 v6, {8*GS*UNR}
v_cndmask_b32 v5, 0, v5, vcc
v_cndmask_b32_e64 v{VINC}, 0, v6, s[{S_AM}:{S_AM+1}]
v_mov_b32 v{VFOUR}, 4
""")
    for i in range(GS):
        a(f"v_cndmask_b32_e64 v{AOP[i]+2}, 0, v5, s[52:53]")
        a(f"v_cndmask_b32_e64 v{AOP[i]+3}, 0, v5, s[54:55]")
        a(f"v_lshlrev_b32 v{IDX[i]+1}, 4, v2")
    a(f"""
s_lshl_b32 s41, s{S_B}, 3
v_lshl_add_u32 v4, v3, 11, s41
s_lshl_b32 s40, s3, 16
""")
    for k in range(1, 8):
        a(f"s_add_u32 s{40+k}, s40, {8192*k}")
    V0, V1, V2, V3, V4 = X0 + 16, X0 + 17, X0 + 18, X0 + 19, X0 + 20
    a(f"""
s_lshl_b32 s48, s3, 5
v_add_u32 v5, s48, v3
s_mov_b32 s49, {RECS}
v_mul_lo_u32 v5, v5, s49
v_mad_u32_u24 v5, v2, 12, v5
v_add_u32 v5, {REC_REL}, v5
v_add_u32 v6, 16, v2
s_memrealtime s[50:51]
K_TAGW:
v_readfirstlane_b32 s{S_TAG}, v64
s_cmp_lg_u32 s{S_TAG}, 0
s_cbranch_scc0 K_TAG_RETRY
K_TAGOK:
s_mul_i32 s48, s{S_TAG}, 0x9e3779b1
s_and_b32 s48, s48, 0xf000f000
v_or_b32 v32, s48, v92
v_mov_b32 v33, s{S_TAG}
v_or_b32 v34, s48, v93
v_mov_b32 v35, s{S_TAG}
v_or_b32 v36, s48, v94
v_mov_b32 v37, s{S_TAG}
v_or_b32 v38, s48, v95
v_mov_b32 v39, s{S_TAG}
v_lshlrev_b32 v40, 5, v1
s_lshl_b32 s49, s2, 11
s_cmp_lg_u32 s3, 0
@S18
s_waitcnt vmcnt(0) lgkmcnt(0)
@S19
s_barrier
s_cbranch_scc1 K_NOPUB
buffer_store_dwordx4 v[32:35], v40, s[32:35], s49 offen sc1
buffer_store_dwordx4 v[36:39], v40, s[32:35], s49 offen offset:16 sc1
K_NOPUB:
""")
    if int(OPT.get("epf", 0)):
        a(f"""
s_lshr_b32 s52, s2, 3
s_mul_i32 s52, s52, {782*128}
s_add_u32 s52, s52, {int(OPT['npf'])*128}
v_lshl_add_u32 v8, v0, 7, s52
v_cmp_gt_u32 vcc, {int(OPT['epf'])}, v0
s_mov_b64 exec, vcc
buffer_load_dword v{VPF}, v8, s[28:31], 0 offen sc1
s_mov_b64 exec, -1
""")
    if TLB == "3":
        a(f"""
s_cmp_lg_u32 s3, 7
s_cbranch_scc1 K_NOTLB2
v_mul_u32_u24 v8, {16*RECS}, v1
v_add_u32 v8, {T_OFF + REC_REL - 128}, v8
s_mov_b64 exec, 0x1ffff
global_load_dword v{VPF}, v8, s[16:17]
s_mov_b64 exec, -1
K_NOTLB2:
""")
    tr_reads(a, (VTR, VTR1), 0, 96)
    a(f"""
ds_read_u16 v{CA}, v{VWC}
ds_read_u16 v{CA+1}, v{VWC} offset:128
ds_read_u16 v{CA+2}, v{VWC} offset:256
ds_read_u16 v{CA+3}, v{VWC} offset:384
s_mov_b32 s49, 0xf000f000
s_waitcnt lgkmcnt(4)
""")
    PP = OPT.get("pollpos", "2")
    polls = [f"buffer_load_dwordx2 {pr(PT+2*k)}, v4, s[32:35], s{40+k} offen sc1" for k in range(8)]
    tile_mfmas(a, 96, XF, TOT)
    if PP == "0":
        for l in polls:
            a(l)
    a("s_waitcnt lgkmcnt(0)")
    for k in range(4):
        a(f"v_lshlrev_b32 v{CA+k}, 16, v{CA+k}")
    for k in range(4):
        a(f"v_mul_f32 v{CA+k}, {NLOG2E:#x}, v{CA+k}")
    a(f"v_cvt_pk_bf16_f32 v{CN}, v{CA}, v{CA+1}")
    a(f"v_cvt_pk_bf16_f32 v{CN+1}, v{CA+2}, v{CA+3}")
    a(f"v_mov_b32 v{V0}, s{S_TAG}")
    a(f"v_mov_b32 v{V1}, s48")
    a("s_mov_b64 exec, s[14:15]")
    a(f"ds_write_b128 v{VAU}, {q4(TOT+8)} offset:{L_U - L_AP}")
    a(f"ds_write_b128 v{VAU}, {q4(TOT+12)} offset:{L_U - L_AP + 64}")
    for i in range(0, 8, 2):
        a(f"v_pk_fma_f32 {pr(TOT+i)}, {pr(TOT+i)}, s[6:7], {pr(NX)}")
    a(f"""
ds_write_b128 v{VAU}, {q4(TOT)}
ds_write_b128 v{VAU}, {q4(TOT+4)} offset:64
s_mov_b64 exec, -1
""")
    if PP == "1":
        for l in polls:
            a(l)
    for p in range(NB):
        for i in range(GS):
            a(f"v_pk_mov_b32 {pr(stepbuf(p, i))}, {pr(CN)}, {pr(CN)} op_sel:[0,1]")
    for i in range(0, 16, 2):
        a(f"v_pk_mov_b32 {pr(TOT+i)}, 0, 0")
    if int(OPT.get("presleep", 0)):
        a(f"s_sleep {OPT['presleep']}")
    a("@S23")
    if PP != "2":
        a("s_branch K_POLL_CHECK")
    a("K_POLL:")
    for k in range(8):
        a(f"buffer_load_dwordx2 {pr(PT+2*k)}, v4, s[32:35], s{40+k} offen sc1")
    a("K_POLL_CHECK:")
    a(f"v_mov_b32 v{V2}, 0")
    for k in range(8):
        a(f"s_waitcnt vmcnt({7-k})")
        a(f"v_xor_b32 v{V3}, v{PT+2*k}, v{V1}")
        a(f"v_xor_b32 v{V4}, v{PT+2*k+1}, v{V0}")
        a(f"v_and_or_b32 v{V2}, v{V3}, s49, v{V2}")
        a(f"v_and_b32 v{VTT+k}, 0x0fff0fff, v{PT+2*k}")
        a(f"v_or_b32 v{V2}, v{V4}, v{V2}")
    a(f"""
v_cmp_ne_u32 vcc, 0, v{V2}
s_cbranch_vccnz K_POLL_RETRY
K_POLLOK:
@S24
s_mov_b64 exec, 1
ds_add_u32 v{VZ}, v{VFOUR} offset:{L_ACKS}
s_mov_b64 exec, -1
""")
    for k in range(8):
        a(f"v_mad_u32_u16 v{VRA+k}, v{VTT+k}, 12, v5")
        a(f"v_cmp_gt_u32_sdwa s[{80+2*k}:{81+2*k}], v{VTT+k}, v6 src0_sel:WORD_1 src1_sel:DWORD")
        if k < 7:
            a(f"v_add_u32 v5, {4*RECS}, v5")
        r = recset(8 + k)
        a(f"s_mov_b64 exec, s[{80+2*k}:{81+2*k}]")
        a(f"s_cbranch_execz K_M1L{k}")
        a(f"buffer_load_dwordx3 v[{r}:{r+2}], v{VRA+k}, s[32:35], 0 offen offset:192 sc1")
        a(f"K_M1L{k}:")
        a("s_mov_b64 exec, -1")
        a(f"v_cmp_gt_u32_sdwa s[{64+2*k}:{65+2*k}], v{VTT+k}, v2 src0_sel:WORD_1 src1_sel:DWORD")
    for k in range(8):
        r = recset(k)
        a(f"s_mov_b64 exec, s[{64+2*k}:{65+2*k}]")
        a(f"buffer_load_dwordx3 v[{r}:{r+2}], v{VRA+k}, s[32:35], 0 offen sc1")
    a(f"""
s_mov_b64 exec, -1
@S25
v_max3_u32 v4, v{VTT}, v{VTT+1}, v{VTT+2}
v_max3_u32 v5, v{VTT+3}, v{VTT+4}, v{VTT+5}
v_max3_u32 v4, v4, v{VTT+6}, v{VTT+7}
v_max_u32 v4, v4, v5
v_lshrrev_b32 v{VMAXL}, 16, v4
s_waitcnt vmcnt(8)
""")

    def A_(j):
        a(f"s_waitcnt vmcnt({7 - j})")
        a(f"s_mov_b64 exec, s[{64+2*j}:{65+2*j}]")
        place_atomic(a, recset(j), VCA + j)

    def W_(j, n):
        a(f"s_mov_b64 exec, s[{64+2*j}:{65+2*j}]")
        if n is not None:
            a(f"s_waitcnt lgkmcnt({n})")
        place_write(a, recset(j), VCA + j)
    for j in range(8):
        a(f"s_mov_b64 exec, s[{80+2*j}:{81+2*j}]")
        a(f"s_cbranch_execz K_M1A{j}")
        place_atomic(a, recset(8 + j), VCA + 8 + j)
        a(f"K_M1A{j}:")
    A_(0); A_(1)
    a("s_waitcnt lgkmcnt(2)")
    for j in range(8):
        a(f"s_mov_b64 exec, s[{80+2*j}:{81+2*j}]")
        a(f"s_cbranch_execz K_M1W{j}")
        place_write(a, recset(8 + j), VCA + 8 + j)
        a(f"K_M1W{j}:")
    A_(2)
    W_(0, 1)
    W_(1, None)
    A_(3)
    W_(2, 5)
    A_(4)
    W_(3, 3)
    A_(5)
    W_(4, 3)
    A_(6)
    a("s_mov_b64 exec, -1")
    a(f"ds_read_b32 v7, v{VZ} offset:{L_ACKS}")
    W_(5, 4)
    A_(7)
    a("@S26")
    npf, pfs = int(OPT["npf"]), int(OPT["pfs"])
    a(f"""
s_mov_b64 exec, -1
v_cmp_lt_u32 vcc, 32, v{VMAXL}
s_waitcnt lgkmcnt(3)
v_readfirstlane_b32 s40, v7
s_cbranch_vccnz K_LONG_ENTRY
K_PLACED:
s_cmp_lg_u32 s40, 32
s_cbranch_scc1 K_NOPF
""")
    if npf:
        a(f"""
s_lshr_b32 s40, s2, 3
s_mul_i32 s40, s40, {782*128}
v_mul_u32_u24 v7, {pfs}, v0
v_add_u32 v7, s40, v7
""")
        for p in range(-(-npf // 512)):
            if p:
                a(f"v_add_u32 v7, {512*pfs}, v7")
            if npf - 512 * p < 512:
                a(f"v_cmp_gt_u32 vcc, {npf - 512*p}, v0")
                a("s_mov_b64 exec, vcc")
            a(f"buffer_load_dword v{VPF}, v7, s[28:31], 0 offen sc1")
    R = X0
    a(f"""
K_NOPF:
s_waitcnt lgkmcnt(0)
@S27
s_barrier
@S28
""")
    W_(6, None)
    W_(7, None)
    a(f"""
s_mov_b64 exec, -1
K_RANK:
v_lshlrev_b32 v4, 2, v1
ds_read_b32 v{R}, v4 offset:{L_CNT}
v_mov_b32 v5, 0x4000
ds_write_b32 v4, v5 offset:{L_OOB}
""")
    for i in range(1, 6):
        a(f"s_add_u32 s{40+i}, s3, {8*i}")
    a(f"""
v_cmp_gt_u32_e64 s[52:53], 48, v1
v_lshl_add_u32 v{R+2}, v1, 3, s3
v_mul_u32_u24 v{R+6}, {CS*4}, v{R+2}
v_mul_u32_u24 v{R+7}, {US}, v{R+2}
v_add_u32 v{R+7}, {L_AP}, v{R+7}
v_lshlrev_b32 v{R+2}, 2, v{R+2}
s_waitcnt lgkmcnt(0)
v_cmp_lt_u32 vcc, {CAP*4}, v{R}
v_lshl_add_u32 v{R+1}, v{R}, 4, v1
v_add_u32 v{R+1}, 1, v{R+1}
s_cbranch_vccnz K_SLOW_ENTRY
v_cndmask_b32_e64 v{R+1}, 0, v{R+1}, s[52:53]
v_readlane_b32 s50, v{R}, 48
""")
    for i in range(6):
        a(f"v_readlane_b32 s{64+i}, v{R+1}, s{3 if i == 0 else 40+i}")
    a(f"s_add_u32 s51, s50, {4*(4*GS-1)}")
    for i in range(6):
        a(f"v_cmp_lt_u32_e64 s[{72+2*i}:{73+2*i}], s{64+i}, v{R+1}")
    if GS == 2:
        a("s_lshr_b32 s51, s51, 5")
    else:
        a("s_lshr_b32 s51, s51, 4")
        a("s_mul_i32 s51, s51, 0x5556")
        a("s_lshr_b32 s51, s51, 16")
    for i in range(6):
        a(f"v_writelane_b32 v{R+3}, s{64+i}, {i}")
        a(f"s_bcnt1_i32_b64 s{72+2*i}, s[{72+2*i}:{73+2*i}]")
    a(f"""
s_max_u32 s51, s51, {MINPS}
s_cmp_eq_u32 s50, 0
s_cselect_b32 s50, 0, s51
s_mul_i32 s50, s50, {GS}
""")
    for i in range(6):
        a(f"v_writelane_b32 v{R+4}, s{72+2*i}, {i}")
    a(f"""
v_lshrrev_b32 v{R+3}, 6, v{R+3}
v_add_u32 v{R+4}, 4, v{R+4}
v_lshlrev_b32 v{R+5}, 3, v{R+4}
v_lshlrev_b32 v{R+8}, 2, v{R+4}
s_mov_b64 exec, 63
ds_write_b64 v{R+5}, {pr(R+6)} offset:{L_TS}
ds_write_b32 v{R+8}, v{R+3} offset:{L_TC}
ds_write_b32 v{R+2}, v{R+4} offset:{L_RK}
s_mov_b64 exec, 15
v_mul_u32_u24 v{R+10}, s50, v4
v_add_u32 v{R+10}, {48*CS*4}, v{R+10}
v_mov_b32 v{R+11}, {L_AP + 48*US}
v_mov_b32 v{R+9}, s50
v_lshlrev_b32 v5, 3, v1
ds_write_b64 v5, {pr(R+10)} offset:{L_TS}
ds_write_b32 v4, v{R+9} offset:{L_TC}
ds_write_b32 v4, v1 offset:{L_RK + 192}
s_mov_b64 exec, -1
v_lshlrev_b32 v4, 4, v2
v_cmp_gt_u32_e64 s[52:53], 13, v2
s_and_b32 s18, s3, 3
s_lshl_b32 s18, s18, 1
s_lshr_b32 s15, s3, 2
s_add_u32 s18, s18, s15
s_add_u32 s15, s18, 1
s_waitcnt lgkmcnt(0)
s_barrier
@S29
; ---- split the group stream evenly over the 8 waves --------------------------------------------
ds_read_b32 v{R}, v4 offset:{L_TC}
v_mov_b32 v{R+4}, 1
v_mov_b32 v{R+5}, 0
s_waitcnt lgkmcnt(0)
v_cmp_ne_u32 vcc, 0, v{R}
v_add_u32 v{R}, {GS-1}, v{R}
""")
    if GS == 2:
        a(f"v_lshrrev_b32 v{R}, 1, v{R}")
    else:
        a(f"v_mul_u32_u24 v{R}, 0x5556, v{R}")
        a(f"v_lshrrev_b32 v{R}, 16, v{R}")
    a(f"""
s_and_b64 s[44:45], vcc, s[52:53]
v_max_u32 v{R}, {MINPS}, v{R}
v_cndmask_b32_e64 v{R}, 0, v{R}, s[44:45]
v_mov_b32 v{R+1}, v{R}
""")
    scan(a, R + 1, row_only=True)
    a(f"""
s_nop 0
v_readlane_b32 s14, v{R+1}, 15
v_sub_u32 v{R+2}, v{R+1}, v{R}
s_cmp_gt_u32 s14, {MAXIT*8}
s_cbranch_scc1 K_SLOW_ENTRY
s_mul_i32 s40, s14, s18
s_mul_i32 s41, s14, s15
s_lshr_b32 s40, s40, 3
s_lshr_b32 s41, s41, 3
s_sub_u32 s{S_IT}, s41, s40
s_cmp_eq_u32 s{S_IT}, 0
s_cbranch_scc1 K_NOWORK
v_cmp_ge_u32_e64 s[42:43], s40, v{R+1}
v_subrev_u32 v{R+3}, s40, v{R+2}
s_and_b32 s42, s42, 0x1fff
s_bcnt1_i32_b32 s42, s42
s_lshl_b32 s46, s42, 5
v_lshl_add_u32 v{VTK}, v3, 3, s46
v_and_b32 v{VTE}, 12, v2
v_lshl_add_u32 v{VTE}, v{VTE}, 1, s46
v_readlane_b32 s43, v{R+2}, s42
ds_read_b64 {pr(R+6)}, v{VTK} offset:{L_TS}
ds_read_b32 v{NXE}, v{VTE} offset:{L_TS}
ds_read_b64 {pr(NX)}, v{VTK} offset:{L_TS + 32}
v_add_u32 v{R+8}, -1, v{R+3}
v_cmp_gt_u32 vcc, 63, v{R+8}
v_lshlrev_b64 {pr(R+4)}, v{R+3}, {pr(R+4)}
s_and_b64 vcc, vcc, s[44:45]
s_sub_u32 s43, s40, s43
v_cndmask_b32 v{R+4}, 0, v{R+4}, vcc
v_cndmask_b32 v{R+5}, 0, v{R+5}, vcc
s_mul_i32 s45, s43, {4*GS}
s_lshl_b32 s47, s45, 1
""")
    for d in (1, 2, 4, 8):
        a(f"v_or_b32_dpp v{R+4}, v{R+4}, v{R+4} row_shr:{d} row_mask:0xf bank_mask:0xf")
        a(f"v_or_b32_dpp v{R+5}, v{R+5}, v{R+5} row_shr:{d} row_mask:0xf bank_mask:0xf")
        a("s_nop 0")
    TI = {1: [Y[0] + 2 * i for i in range(GS)]}
    nxt = HL
    for p in range(2, NB):
        TI[p] = [nxt + 2 * i for i in range(GS)]
        nxt += 2 * GS
    assert nxt <= DEN, (nxt, DEN)
    a(f"""
s_add_u32 s45, s45, {L_KEYS}
s_add_u32 s47, s47, {L_EA}
v_readlane_b32 s{S_MASK}, v{R+4}, 15
v_readlane_b32 s{S_MASK+1}, v{R+5}, 15
s_bfm_b64 s[48:49], s{S_IT}, 0
s_waitcnt lgkmcnt(1)
v_add_u32 v{VK}, s45, v{R+6}
v_add_u32 v{R+7}, v{R+7}, v{IDX[0]+1}
s_and_b64 s[{S_MASK}:{S_MASK+1}], s[{S_MASK}:{S_MASK+1}], s[48:49]
""")
    for i in range(GS):
        a(f"ds_read_b32 v{IDX[i]}, v{VK} offset:{4*i}")
    a(f"""
ds_read_b128 {q4(CA)}, v{R+7}
v_lshl_add_u32 v{VE}, v{NXE}, 1, s47
v_mov_b32 v4, {L_ZERO}
""")
    for p in range(1, NB):
        for i in range(GS):
            a(f"v_mov_b32 v{TI[p][i]+1}, v{IDX[0]+1}")
    a(f"v_cndmask_b32_e64 v{VE}, v4, v{VE}, s[{S_AM}:{S_AM+1}]")
    a("s_waitcnt lgkmcnt(1)")
    for l in gathers(0, IDX):
        a(l)
    for p in range(1, NB):
        a(f"s_bitcmp1_b32 s{S_MASK}, {p}")
        a(f"s_cbranch_scc0 K_PK{p}")
        ev_k(a, 4 * GS * p)
        a(f"K_PK{p}:")
        for i in range(GS):
            a(f"ds_read_b32 v{TI[p][i]}, v{VK} offset:{4*(GS*p+i)}")
    for i in range(GS):
        a(f"ds_read_b64 {pr(AOP[i])}, v{VE} offset:{8*i}")
    a(f"""
s_lshr_b64 s[{S_CM}:{S_CM+1}], s[{S_MASK}:{S_MASK+1}], 3
s_mov_b32 s{S_RAW}, s{S_MASK}
s_bitset1_b64 s[{S_MASK}:{S_MASK+1}], s{S_IT}
s_lshr_b64 s[48:49], s[{S_MASK}:{S_MASK+1}], {NB+1}
s_or_b64 s[{S_CM}:{S_CM+1}], s[{S_CM}:{S_CM+1}], s[48:49]
s_lshr_b64 s[48:49], s[{S_MASK}:{S_MASK+1}], 1
s_or_b64 s[{S_CM}:{S_CM+1}], s[{S_CM}:{S_CM+1}], s[48:49]
s_waitcnt lgkmcnt({GS})
""")
    NG0 = int(OPT["ng0"])
    NG1 = max(NG0, min(NB, 4 if GS == 2 else 3))
    for p in range(1, NG0):
        for l in gathers(p, TI[p]):
            a(l)
    if OPT["prio"] == "1":
        dflt = (24, 12, 4) if GS == 2 else (16, 8, 3)
        t1, t2, t3 = [int(OPT.get(f"thr{i+1}", dflt[i])) for i in range(3)]
        a(f"""
s_setprio 3
s_mov_b32 s{S_PR}, 3
s_mov_b64 s[54:55], 0
s_bitset1_b64 s[54:55], {63 - t1}
s_bitset1_b64 s[54:55], {63 - t2}
s_bitset1_b64 s[54:55], {63 - t3}
s_sub_u32 s46, 63, s{S_IT}
s_lshr_b64 s[54:55], s[54:55], s46
s_or_b64 s[{S_CM}:{S_CM+1}], s[{S_CM}:{S_CM+1}], s[54:55]
""")
    a(f"""
s_ff1_i32_b64 s{S_CNT}, s[{S_CM}:{S_CM+1}]
v_lshlrev_b32 v5, 9, v3
v_lshl_add_u32 v5, v2, 4, v5
s_lshl_b32 s45, s42, 11
s_add_u32 s45, s45, {L_ACC}
s_add_u32 s46, s45, 2048
v_add_u32 v{VFN}, s46, v5
s_cmp_eq_u32 s43, 0
s_cbranch_scc1 K_P2
s_lshl_b32 s45, s3, 11
s_add_u32 s45, s45, {L_EXT}
s_lshl_b32 s46, 1, s3
s_lshl_b32 s47, s42, 2
v_mov_b32 v6, s46
v_mov_b32 v7, s47
s_mov_b64 exec, 1
ds_or_b32 v7, v6 offset:{L_MASK}
s_mov_b64 exec, -1
K_P2:
v_add_u32 v{VF}, s45, v5
""")
    for i in range(0, 8, 2):
        a(f"v_pk_mov_b32 {pr(DEN+i)}, 0, 0")
    a(f"""
v_add_u32 v{VK}, {4*GS*NB}, v{VK}
s_bitcmp1_b32 s{S_RAW}, {NB}
s_cbranch_scc0 K_PK{NB}
""")
    ev_k(a, 0)
    a(f"""
K_PK{NB}:
v_mov_b32 v5, {16*GS}
""")
    eprep1(a)
    a(f"""
@S10
s_waitcnt vmcnt({GS*(NG0-1)}) lgkmcnt(0)
@S15
""")
    for l in mfmas(0):
        a(l)
    for p in range(NG0, NG1):
        for l in gathers(p, TI[p]):
            a(l)
    a(f"""
s_bitcmp1_b32 s{S_RAW}, 1
s_cbranch_scc0 K_PE1
s_nop 2
""")
    ev_e(a, 8 * GS)
    a("K_PE1:")
    for i in range(GS):
        a(f"ds_read_b64 {pr(AOP[i])}, v{VE} offset:{8*(GS+i)}")
    a(f"v_cndmask_b32_e64 v5, 0, v5, s[{S_AM}:{S_AM+1}]")
    eprep2(a)
    for i in range(4 * GS):
        a(f"v_exp_f32 v{Y[0]+i}, v{Y[0]+i}")
    a(f"v_add_u32 v{VE}, v5, v{VE}")
    a(f"s_waitcnt vmcnt({GS*(NG1-2)}) lgkmcnt(0)")
    for l in mfmas(1):
        a(l)
    for p in range(NG1, NB):
        for l in gathers(p, TI[p]):
            a(l)
    a(f"""
s_bitcmp1_b32 s{S_RAW}, 2
s_cbranch_scc0 K_PE2
s_nop 2
""")
    ev_e(a, 0)
    a(f"""
K_PE2:
@C20
@S38
s_nop 4
{f".p2align {OPT['align']}" if OPT.get('align') else ''}
K_LOOP:
""")
    order = ORDERS[GS][OPT["order"]].split()
    for k in range(UNR):
        d = ops(k)
        for x in order:
            a(d[x])
        if k == UNR - 1:
            a("s_cbranch_scc0 K_LOOP")
        else:
            a(f"s_cbranch_scc1 K_EV{k}")
            a(f"K_RET{k}:")
    for k in [UNR - 1] + list(range(UNR - 1)):
        kn = (k + 1) % UNR
        ret = f"K_RET{k}" if k < UNR - 1 else "K_LOOP"
        a(f"""
K_EV{k}:
s_ff1_i32_b64 s14, s[{S_CM}:{S_CM+1}]
s_bitset0_b64 s[{S_CM}:{S_CM+1}], s14
s_ff1_i32_b64 s{S_CNT}, s[{S_CM}:{S_CM+1}]
s_lshr_b64 s[40:41], s[{S_MASK}:{S_MASK+1}], s14
s_sub_u32 s{S_CNT}, s{S_CNT}, s14
s_sub_u32 s{S_CNT}, s{S_CNT}, 1
s_bitcmp1_b32 s40, 1
s_cbranch_scc0 K_EV{k}A
ds_write_b128 v{VF}, {q4(DEN)}
ds_write_b128 v{VF}, {q4(NUM)} offset:256
s_lshr_b64 s[42:43], s[40:41], 2
s_cbranch_scc0 K_LOOP_DONE
v_mov_b32 v{VF}, v{VFN}
v_add_u32 v{VFN}, 2048, v{VFN}
""")
        for i in range(0, 8, 2):
            a(f"v_pk_mov_b32 {pr(DEN+i)}, 0, 0")
        a(f"""
K_EV{k}A:
s_bitcmp1_b32 s40, 3
s_cbranch_scc0 K_EV{k}B
""")
        ev_e(a, 8 * GS * kn)
        a(f"""
K_EV{k}B:
s_bitcmp1_b32 s40, {NB+1}
s_cbranch_scc0 K_EV{k}C
v_mov_b32 v{VK}, {L_OOB - 4*GS*kn}
s_lshr_b64 s[42:43], s[40:41], {NB+2}
s_cbranch_scc0 K_EV{k}C
""")
        ev_k(a, 4 * GS * kn)
        a(f"K_EV{k}C:")
        if OPT["prio"] == "1":
            a(f"""
s_bitcmp1_b64 s[54:55], s14
s_cbranch_scc0 {ret}
s_sub_u32 s{S_PR}, s{S_PR}, 1
@P
s_setprio 0
s_cmp_eq_u32 s{S_PR}, 0
s_cbranch_scc1 {ret}
s_setprio 1
s_cmp_eq_u32 s{S_PR}, 1
s_cbranch_scc1 {ret}
s_setprio 2
""")
        a(f"s_branch {ret}")
    a(f"""
K_LOOP_DONE:
@C21
@S11
s_setprio 0
s_waitcnt lgkmcnt(0)
s_barrier
@S12
s_mov_b64 exec, s[20:21]
s_cbranch_execz K_COMB_DONE
ds_read_b32 v{R}, v{EMSK} offset:{L_MASK}
""")

    def reads(d, va):
        a(f"ds_read_b128 {q4(d)}, v{va}")
        a(f"ds_read_b128 {q4(d+4)}, v{va} offset:16")
        a(f"ds_read_b128 {q4(d+8)}, v{va} offset:256")
        a(f"ds_read_b128 {q4(d+12)}, v{va} offset:272")

    def adds(d):
        for i in range(0, 16, 2):
            a(f"v_pk_add_f32 {pr(TOT+i)}, {pr(TOT+i)}, {pr(d+i)}")

    def nxt_(lab_last):
        a(f"""
v_ffbl_b32 v{R+1}, v{R}
v_cmp_ne_u32 vcc, 0, v{R}
v_add_u32 v{R+2}, -1, v{R}
v_and_b32 v{R}, v{R}, v{R+2}
v_lshl_add_u32 v{R+1}, v{R+1}, 11, v{EEXT}
s_mov_b64 s[40:41], exec
s_and_b64 exec, exec, vcc
s_cbranch_execz {lab_last}
""")
    D1 = R + 4 + 16
    D0 = R + 4
    reads(D0, EACC)
    a("s_waitcnt lgkmcnt(4)")
    a("K_COMB_A:")
    nxt_("K_COMB_LA")
    reads(D1, R + 1)
    a("s_mov_b64 s[42:43], exec")
    a("s_mov_b64 exec, s[40:41]")
    a("s_waitcnt lgkmcnt(4)")
    adds(D0)
    a("s_mov_b64 exec, s[42:43]")
    nxt_("K_COMB_LB")
    reads(D0, R + 1)
    a("s_mov_b64 s[42:43], exec")
    a("s_mov_b64 exec, s[40:41]")
    a("s_waitcnt lgkmcnt(4)")
    adds(D1)
    a("s_mov_b64 exec, s[42:43]")
    a("s_branch K_COMB_A")
    a("K_COMB_LB:")
    a("s_mov_b64 exec, s[40:41]")
    a("s_waitcnt lgkmcnt(0)")
    adds(D1)
    a("s_branch K_COMB_DONE")
    a("K_COMB_LA:")
    a("s_mov_b64 exec, s[40:41]")
    a("s_waitcnt lgkmcnt(0)")
    adds(D0)
    a(f"""
K_COMB_DONE:
s_mov_b64 exec, -1
s_cmp_lg_u32 s{S_MODE}, 0
s_cbranch_scc1 K_SLOW_NEXT
K_FINAL:
s_cmp_lg_u32 s3, 6
s_cbranch_scc1 K_FIN2
""")
    for i in range(16):
        a(f"v_add_f32_dpp v{TOT+i}, v{TOT+i}, v{TOT+i} row_ror:8 row_mask:0xf bank_mask:0xf")
    for i in range(16):
        a(f"ds_swizzle_b32 v{D0+i}, v{TOT+i} offset:0x401F")
    a("s_waitcnt lgkmcnt(0)")
    for i in range(0, 16, 2):
        a(f"v_pk_add_f32 {pr(TOT+i)}, {pr(TOT+i)}, {pr(D0+i)}")
    eps = struct.unpack("<I", struct.pack("<f", 1e-6 * 2.0**KEXP))[0]
    a(f"""
K_FIN2:
s_mov_b32 s14, {eps:#x}
s_mov_b32 s15, {eps:#x}
""")
    for i in range(0, 8, 2):
        a(f"v_pk_add_f32 {pr(TOT+i)}, {pr(TOT+i)}, s[14:15]")
    for i in range(8):
        a(f"v_rcp_f32 v{TOT+i}, v{TOT+i}")
    a("s_nop 0")
    for i in range(0, 8, 2):
        a(f"v_pk_fma_f32 {pr(EU+i)}, {pr(TOT+8+i)}, {pr(TOT+i)}, {pr(EU+i)}")
    for i in range(8):
        a(f"v_max_f32 v{EU+i}, 0, v{EU+i}")
    for i in range(0, 8, 2):
        a(f"v_pk_add_f32 {pr(EX+i)}, {pr(EX+i)}, {pr(EU+i)}")
    for i in range(4):
        a(f"v_cvt_pk_bf16_f32 v{EX+i}, v{EX+2*i}, v{EX+2*i+1}")
    a(f"""
buffer_store_dwordx4 {q4(EX)}, v{EOUT}, s[36:39], 0 offen {OPT['st_out']}
@S13
@Wvmcnt(0)
@S14
@Vs{S_IT},22
@OUT
K_END:
s_endpgm
K_NOWORK:
""")
    eprep1(a)
    a("s_waitcnt lgkmcnt(0)")
    eprep2(a)
    a(f"""
s_branch K_LOOP_DONE
K_TAG_RETRY:
s_waitcnt lgkmcnt(0)
s_memrealtime s[52:53]
s_sleep 4
global_load_dword v64, v{VZ}, s[84:85] sc1
s_waitcnt vmcnt(0) lgkmcnt(0)
s_sub_u32 s52, s52, s50
s_cmp_lt_u32 s52, 0x400000
s_cbranch_scc1 K_TAGW
s_branch K_TAGOK
K_POLL_RETRY:
s_memrealtime s[52:53]
s_sleep {OPT['sleep']}
s_waitcnt lgkmcnt(0)
s_sub_u32 s52, s52, s50
s_cmp_lt_u32 s52, 0x400000
s_cbranch_scc1 K_POLL
""")
    for k in range(8):
        a(f"v_cndmask_b32 v{VTT+k}, v{VTT+k}, v{VZ}, vcc")
    a(f"""
s_branch K_POLLOK
K_LONG_ENTRY:
s_mov_b32 s14, 32
K_LONG:
v_add_u32 v6, s14, v2
s_mul_i32 s15, s14, 12
""")
    for k in range(8):
        a(f"""
s_mov_b64 exec, -1
v_cmp_gt_u32_sdwa vcc, v{VTT+k}, v6 src0_sel:WORD_1 src1_sel:DWORD
s_and_saveexec_b64 s[42:43], vcc
s_cbranch_execz K_LONG_S{k}
buffer_load_dwordx3 v[{R}:{R+2}], v{VRA+k}, s[32:35], s15 offen sc1
s_waitcnt vmcnt(0)
""")
        place_atomic(a, R, 4)
        a("s_waitcnt lgkmcnt(0)")
        place_write(a, R, 4)
        a(f"K_LONG_S{k}:")
    a(f"""
s_mov_b64 exec, -1
s_add_u32 s14, s14, 16
v_cmp_lt_u32 vcc, s14, v{VMAXL}
s_cbranch_vccnz K_LONG
s_branch K_PLACED
K_SLOW_ENTRY:
ds_max_u32 v{VZ}, v{VMAXL} offset:{L_MAXL}
s_waitcnt lgkmcnt(0)
s_barrier
ds_read_b32 v5, v{VZ} offset:{L_MAXL}
s_mov_b32 s{S_MODE}, 1
s_mov_b32 s{S_I}, 0
s_mov_b32 s{S_MO}, 0
s_waitcnt lgkmcnt(0)
v_readfirstlane_b32 s{S_ML}, v5
s_branch K_SLOW_BATCH
K_SLOW_NEXT:
s_add_u32 s{S_I}, s{S_I}, 1
s_cmp_lt_u32 s{S_I}, 64
s_cbranch_scc1 K_SLOW_BATCH
s_mov_b32 s{S_I}, 0
s_add_u32 s{S_MO}, s{S_MO}, 16
s_cmp_ge_u32 s{S_MO}, s{S_ML}
s_cbranch_scc1 K_FINAL
K_SLOW_BATCH:
s_waitcnt vmcnt(0) lgkmcnt(0)
s_barrier
""")
    slots_init(a, R, True)
    a(f"""
s_waitcnt lgkmcnt(0)
s_barrier
s_cmp_lg_u32 s3, 0
s_cbranch_scc1 K_SLOW_S
s_lshl_b32 s14, s{S_I}, 2
v_add_u32 v7, s14, v3
s_lshl_b32 s15, s{S_B}, 3
v_lshl_add_u32 v4, v7, 11, s15
buffer_load_dword v5, v4, s[32:35], 0 offen sc1
s_mov_b32 s15, {RECS}
v_mul_lo_u32 v7, v7, s15
v_add_u32 v6, s{S_MO}, v2
v_mad_u32_u24 v7, v6, 12, v7
v_add_u32 v7, {REC_REL}, v7
s_waitcnt vmcnt(0)
v_and_b32 v5, 0x0fff0fff, v5
v_mad_u32_u16 v4, v5, 12, v7
v_cmp_gt_u32_sdwa vcc, v5, v6 src0_sel:WORD_1 src1_sel:DWORD
s_and_saveexec_b64 s[40:41], vcc
s_cbranch_execz K_SLOW_S
buffer_load_dwordx3 v[{R}:{R+2}], v4, s[32:35], 0 offen sc1
s_waitcnt vmcnt(0)
""")
    place_atomic(a, R, 4)
    a("s_waitcnt lgkmcnt(0)")
    place_write(a, R, 4)
    a("""
K_SLOW_S:
s_mov_b64 exec, -1
s_waitcnt lgkmcnt(0)
s_barrier
s_branch K_RANK
""")
    return a.text()


HEADER = open("standalone__edge_featured_mpnn_gatedgcn__graph.s.ref").read().split("; Override launch")[0]


def main():
    out = HEADER
    out += f"; @launch grid=(256,1,1) block=(512,1,1) lds={LDS}\n"
    out += '.amdgcn_target "amdgcn-amd-amdhsa--gfx950"\n.text\n'
    out += f".globl {KNAME}\n.p2align 8\n.type {KNAME},@function\n" + kernel()
    out += f""".section .rodata,"a"
.p2align 6
.amdhsa_kernel {KNAME}
  .amdhsa_next_free_vgpr {NVGPR}
  .amdhsa_next_free_sgpr {102 if OPT.get('jitter') else 101 if STAMPS else 98}
  .amdhsa_accum_offset {(NVGPR + 3) // 4 * 4}
  .amdhsa_group_segment_fixed_size 0
  .amdhsa_kernarg_size 96
  .amdhsa_user_sgpr_count 2
  .amdhsa_user_sgpr_kernarg_segment_ptr 1
  .amdhsa_system_sgpr_workgroup_id_x 1
.end_amdhsa_kernel
"""
    open(sys.argv[1], "w").write(out)


main()
```

```python
import sys
import struct
from math import gcd

N = 12500
E = 800000
QCH = 782
QH = QCH // 2
CH = QCH * 4
NQ = E // 4
RECB = CH * 12
RECS = 37760
TAB_ROWS = N + 1
TAB_BYTES = TAB_ROWS * 256
T_OFF = 0x310000
T2_REL = 0x80000
REC_REL = 0x89000
TR_BYTES = REC_REL + 256 * RECS
BIG = 0x40000000
NLOG2E = 0xbfb8aa3b
CAP = 128
CS = 132
XSS = 144
US = 272

OPT = dict(align="3", cpf="7", packpos="b", gs="2", nb="5", prio="1", order="c", npf="352", pfs="128", sleep="2", ng0="2", st_out="nt", cadd="1")
for a_ in sys.argv[2:]:
    k_, v_ = a_.split("=")
    OPT[k_] = v_
STAMPS = bool(OPT.get("stamps"))
TRS = int(OPT.get("trs", 2176))
GS = int(OPT["gs"])
NB = int(OPT["nb"] or (6 if GS == 2 else 4))
UNR = NB * 2 // gcd(NB, 2)
MINPS = NB + 1
MAXIT = 62
PLAIN = OPT.get('plain') == '1'
KEXP = 0 if PLAIN else (60 if GS == 2 else 40)
KBITS = (127 - KEXP) << 23
DBG_OFF = 0x1000000
KNAME = "standalone__edge_featured_mpnn_gatedgcn__graph_kernel"

L_CNT = 0
L_MASK = 256
L_MAXL = 324
L_ACKS = 328
L_ZERO = 384
L_TS = 640
L_OOB = 1280
L_TC = 1536
L_RK = 1792
L_HIST, L_START = 0, 1024
L_EA = 2048
EA_BYTES = 49 * CS * 8 + 32
L_KEYS = L_EA + EA_BYTES
KEY_BYTES = 49 * CS * 4 + 16
L_ACC = L_KEYS + KEY_BYTES
L_EXT = L_ACC + 52 * 512
L_STAGE = L_ACC
L_AP = L_EXT + 8 * 2048
L_U = L_AP + 49 * US
L_XS = L_U + 49 * US
L_WC = L_XS + 64 * XSS
LDS = L_WC + 512
assert 8 * GS * UNR + 8 <= L_TS - L_ZERO

_nv = [8]


def valloc(n, align=2):
    _nv[0] = (_nv[0] + align - 1) // align * align
    r = _nv[0]
    _nv[0] += n
    return r


GB = valloc(6 * GS * NB)
Y = (valloc(4 * GS), valloc(4 * GS))
HL = valloc(2 * GS)
P2, MM, SA, UU = valloc(4), valloc(4), valloc(4), valloc(4)
DEN = valloc(8)
NUM = DEN + 4
_nv[0] = max(_nv[0], 128)
AOP = [valloc(4) for _ in range(GS)]
CA, CN = valloc(4), valloc(4)
IDX = [valloc(2) for _ in range(GS)]
NX = valloc(2)
VK, VE, VF, VFN, VTK, VTE, NXE, VINC = [valloc(1, 1) for _ in range(8)]
TOT = valloc(16)
VTT = valloc(8)
VRA = valloc(8)
VCA = valloc(16)
PT = VCA
T2R = valloc(8)
VMAXL, VPF, VFOUR, VZ = [valloc(1, 1) for _ in range(4)]
EU, EX = valloc(8), valloc(8)
EACC, EEXT, EMSK, EOUT, ERK, ECN = [valloc(1, 1) for _ in range(6)]
VST = valloc(2)
NVGPR = _nv[0]
assert NVGPR <= 256, NVGPR
X0 = Y[0]
assert NUM + 4 - X0 >= 40

S_IT, S_MODE, S_I, S_MO, S_ML, S_CNT = 4, 5, 6, 7, 8, 9
S_K = 10
S_RAW = 12
S_B = 13
S_CM = 56
S_PR = 58
S_CS = 59
S_MASK = 60
S_AM = 62
S_TAG, S_TAG2, S_T2OK = 96, 97, 19


def stepbuf(p, i):
    return GB + 6 * (GS * (p % NB) + i)


def recset(j):
    return GB + 6 * j + 2 if j < GS * NB else X0 + 4 * (j - GS * NB)


class Asm:
    def __init__(self):
        self.L = []

    def __call__(self, s):
        for l in s.strip("\n").split("\n"):
            l = l.strip()
            if not l:
                continue
            if l.startswith("@"):
                if STAMPS:
                    self.special(l)
                elif OPT.get("jitter") and l[1] == "S" and int(l[2:]) in (1, 5, 8, 9, 19, 23, 24, 25, 28, 29, 10, 11):
                    n = l[2:]
                    self(f"""
s_cselect_b32 s101, 1, 0
s_waitcnt lgkmcnt(0)
s_memrealtime s[98:99]
s_waitcnt lgkmcnt(0)
s_mul_i32 s98, s98, 0x9e3779b1
s_mul_i32 s99, s2, 0x85ebca6b
s_xor_b32 s98, s98, s99
s_mul_i32 s98, s98, 0xc2b2ae35
s_lshr_b32 s98, s98, 24
s_cmp_lt_u32 s98, 224
s_cbranch_scc1 J_SKIP{n}
s_sub_u32 s98, s98, 220
J_LOOP{n}:
s_sleep 16
s_sub_u32 s98, s98, 1
s_cmp_lg_u32 s98, 0
s_cbranch_scc1 J_LOOP{n}
J_SKIP{n}:
s_cmp_lg_u32 s101, 0
""")
                continue
            self.L.append(l if l.endswith(":") else "    " + l)

    def special(self, l):
        if l.startswith("@S") or l.startswith("@C"):
            self(f"{'s_memtime' if l[1] == 'C' else 's_memrealtime'} s[98:99]")
            self("s_waitcnt lgkmcnt(0)")
            self(f"v_writelane_b32 v{VST}, s98, {int(l[2:])}")
        elif l.startswith("@P"):
            self(f"""
s_memrealtime s[98:99]
s_waitcnt lgkmcnt(0)
s_add_u32 m0, s{S_PR}, 40
s_nop 3
v_writelane_b32 v{VST}, s98, m0
s_memtime s[98:99]
s_waitcnt lgkmcnt(0)
s_add_u32 m0, s{S_PR}, 44
s_nop 3
v_writelane_b32 v{VST}, s98, m0
""")
        elif l.startswith("@W"):
            self("s_waitcnt " + l[2:])
        elif l.startswith("@V"):
            r, i = l[2:].split(",")
            self(f"v_writelane_b32 v{VST}, {r}, {i}")
        elif l.startswith("@OUT"):
            self(f"""
s_mov_b64 exec, -1
s_lshl_b32 s100, s2, 4
s_add_u32 s100, s100, s3
s_lshl_b32 s100, s100, 8
s_add_u32 s100, s100, {DBG_OFF + 0x100000:#x}
v_and_b32 v{VST+1}, 63, v0
v_lshl_add_u32 v{VST+1}, v{VST+1}, 2, s100
global_store_dword v{VST+1}, v{VST}, s[16:17]
""")

    def text(self):
        return "\n".join(self.L) + "\n"


def pr(r):
    return f"v[{r}:{r+1}]"


def q4(r):
    return f"v[{r}:{r+3}]"


def srd(a, d, lo, hi, nbytes, stride=0):
    a(f"s_mov_b32 s{d}, s{lo}")
    a(f"s_and_b32 s{d+1}, s{hi}, 0xffff")
    if stride:
        a(f"s_or_b32 s{d+1}, s{d+1}, {stride << 16:#x}")
    a(f"s_mov_b32 s{d+2}, {nbytes}")
    a(f"s_mov_b32 s{d+3}, 0x20000")


def scan(a, v, row_only=False, fill=()):
    fill = list(fill)
    steps = [f"row_shr:{d} row_mask:0xf" for d in (1, 2, 4, 8)]
    if not row_only:
        steps += ["row_bcast:15 row_mask:0xa", "row_bcast:31 row_mask:0xc"]
    for st in steps:
        if fill:
            a(fill.pop(0))
            a("s_nop 0")
        else:
            a("s_nop 1")
        a(f"v_add_u32_dpp v{v}, v{v}, v{v} {st} bank_mask:0xf")


SDWA_B0 = "dst_sel:DWORD dst_unused:UNUSED_PAD src0_sel:DWORD src1_sel:BYTE_0"


def tr_reads(a, vaddr, base, r0):
    for mat in range(2):
        for t in range(2):
            for s in range(2):
                r = r0 + 16 * mat + 8 * t + 4 * s
                o = base + mat * 8192 + s * 4096
                a(f"ds_read_b64_tr_b16 {pr(r)}, v{vaddr[t]} offset:{o}")
                a(f"ds_read_b64_tr_b16 {pr(r+2)}, v{vaddr[t]} offset:{o + 512}")


def tile_mfmas(a, r0, x0, d0):
    for s in range(2):
        for mat in range(2):
            for t in range(2):
                f = r0 + 16 * mat + 8 * t + 4 * s
                d = d0 + 8 * mat + 4 * t
                c = "0" if s == 0 else q4(d)
                a(f"v_mfma_f32_16x16x32_bf16 {q4(d)}, {q4(f)}, {q4(x0+4*s)}, {c}")


def slots_init(a, r, small):
    for i in range(4):
        a(f"v_mov_b32 v{r+i}, 0")
    for i in range(4):
        a(f"v_mov_b32 v{r+4+i}, {N}")
    z0 = 0 if small else L_EA
    a(f"v_lshlrev_b32 v{r+8}, 4, v0")
    a(f"v_add_u32 v{r+9}, {L_KEYS}, v{r+8}")
    nz, nk = (L_KEYS - z0) // 16, KEY_BYTES // 16
    for i in range(nz // 512):
        a(f"ds_write_b128 v{r+8}, {q4(r)} offset:{z0 + 8192*i}")
    for i in range(nk // 512):
        a(f"ds_write_b128 v{r+9}, {q4(r+4)} offset:{8192*i}")
    for rem, reg, data, off in sorted([(nz % 512, r + 8, r, z0 + 8192 * (nz // 512)), (nk % 512, r + 9, r + 4, 8192 * (nk // 512))], reverse=True):
        a(f"v_cmp_gt_u32 vcc, {rem}, v0")
        a("s_mov_b64 exec, vcc")
        a(f"ds_write_b128 v{reg}, {q4(data)} offset:{off}")
    a("s_mov_b64 exec, -1")


def place_atomic(a, r, ca):
    a(f"v_and_b32 v{ca}, 0xfc, v{r+2}")
    a(f"ds_add_rtn_u32 v{r+3}, v{ca}, v{VFOUR} offset:{L_CNT}")


def place_write(a, r, ca):
    a(f"v_min_u32 v{r+3}, {CAP*4}, v{r+3}")
    a(f"v_mad_u32_u24 v{ca}, v{ca}, s{S_CS}, v{r+3}")
    a(f"v_lshrrev_b32 v{r+2}, 8, v{r+2}")
    a(f"v_add_u32 v{r+3}, v{ca}, v{ca}")
    a(f"ds_write_b32 v{ca}, v{r+2} offset:{L_KEYS}")
    a(f"ds_write_b64 v{r+3}, {pr(r)} offset:{L_EA}")


def ev_k(a, sub):
    a(f"""
v_add_u32 v{VK}, {L_KEYS - sub}, v{NX}
v_add_u32 v4, v{NX+1}, v{IDX[0]+1}
v_add_u32 v{VTK}, 32, v{VTK}
v_add_u32 v{VTE}, 32, v{VTE}
ds_read_b128 {q4(CN)}, v4
ds_read_b32 v{NXE}, v{VTE} offset:{L_TS}
ds_read_b64 {pr(NX)}, v{VTK} offset:{L_TS + 32}
""")


def ev_e(a, sub):
    a(f"""
v_lshlrev_b32 v{VE}, 1, v{NXE}
v_add_u32 v{VE}, {L_EA - sub}, v{VE}
v_mov_b32 v4, {L_ZERO}
v_pk_mov_b32 {pr(CA)}, {pr(CN)}, {pr(CN)} op_sel:[0,1]
v_pk_mov_b32 {pr(CA+2)}, {pr(CN+2)}, {pr(CN+2)} op_sel:[0,1]
v_cndmask_b32_e64 v{VE}, v4, v{VE}, s[{S_AM}:{S_AM+1}]
""")


def gathers(p, idx):
    return [f"buffer_load_dwordx4 {q4(stepbuf(p, i) + 2)}, {pr(idx[i])}, s[24:27], 0 idxen offen sc1" for i in range(GS)]


def mfmas(p):
    y = Y[p & 1]
    return [f"v_mfma_f32_16x16x32_bf16 {q4(y+4*i)}, {q4(AOP[i])}, {q4(stepbuf(p, i))}, {q4(CA)}" for i in range(GS)]


def ops(k):
    y, yn = Y[k & 1], Y[1 - (k & 1)]
    b = [stepbuf(k, i) + 4 for i in range(GS)]
    sk = f"s[{S_K}:{S_K+1}]"
    d = {}
    for i in range(4 * GS):
        d[f"E{i}"] = f"v_exp_f32 v{yn+i}, v{yn+i}"
    for i in range(2 * GS):
        if OPT["cadd"] == "1":
            d[f"C{i}"] = f"v_pk_add_f32 {pr(y+2*i)}, {pr(y+2*i)}, {sk} clamp"
        else:
            d[f"C{i}"] = f"v_pk_fma_f32 {pr(y+2*i)}, {pr(y+2*i)}, {sk}, {sk} clamp"
    for i in range(4):
        d[f"R{i}"] = f"v_rcp_f32 v{MM+i}, v{MM+i}"
    for i in range(2):
        p = [pr(y + 4 * j + 2 * i) for j in range(GS)]
        h = [pr(HL + 2 * j) if i == 0 else pr(b[j]) for j in range(GS)]
        m, s, u, p2 = pr(MM + 2 * i), pr(SA + 2 * i), pr(UU + 2 * i), pr(P2 + 2 * i)
        d[f"m{i}"] = f"v_pk_mul_f32 {m if GS == 2 else p2}, {p[0]}, {p[1]}"
        d[f"a{i}"] = f"v_pk_add_f32 {s}, {p[0]}, {p[1]}"
        d[f"g{i}"] = f"v_pk_mul_f32 {u}, {p[1]}, {h[0]}"
        d[f"h{i}"] = f"v_pk_fma_f32 {u}, {p[0]}, {h[1]}, {u}"
        if GS == 3:
            d[f"M{i}"] = f"v_pk_mul_f32 {m}, {p2}, {p[2]}"
            d[f"s{i}"] = f"v_pk_fma_f32 {s}, {s}, {p[2]}, {p2}"
            d[f"i{i}"] = f"v_pk_mul_f32 {u}, {u}, {p[2]}"
            d[f"j{i}"] = f"v_pk_fma_f32 {u}, {p2}, {h[2]}, {u}"
        d[f"d{i}"] = f"v_pk_fma_f32 {pr(DEN+2*i)}, {s}, {m}, {pr(DEN+2*i)}"
        d[f"n{i}"] = f"v_pk_fma_f32 {pr(NUM+2*i)}, {u}, {m}, {pr(NUM+2*i)}"
    if PLAIN:
        for i in range(2 * GS):
            d[f"C{i}"] = f"v_pk_add_f32 {pr(y+2*i)}, {pr(y+2*i)}, {sk}"
            j, hf = i >> 1, i & 1
            hh = pr(HL + 2 * j) if hf == 0 else pr(b[j])
            d[f"D{i}"] = f"v_pk_add_f32 {pr(DEN+2*hf)}, {pr(DEN+2*hf)}, {pr(y+2*i)}"
            d[f"U{i}"] = f"v_pk_fma_f32 {pr(NUM+2*hf)}, {pr(y+2*i)}, {hh}, {pr(NUM+2*hf)}"
        for i in range(4 * GS):
            d[f"r{i}"] = f"v_rcp_f32 v{y+i}, v{y+i}"
    for i in range(GS):
        d[f"Q{i}"] = f"v_lshlrev_b64 {pr(HL+2*i)}, 16, {pr(b[i])}"
        d[f"N{i}"] = mfmas(k + 2)[i]
        d[f"L{i}"] = gathers(k, IDX)[i]
        d[f"k{i}"] = f"ds_read_b32 v{IDX[i]}, v{VK} offset:{4*(GS*k+i)}"
        d[f"e{i}"] = f"ds_read_b64 {pr(AOP[i])}, v{VE} offset:{8*(GS*k+i)}"
    if OPT.get("eam") == "1":
        d["e0"] = f"s_mov_b64 exec, s[{S_AM}:{S_AM+1}]\n" + d["e0"]
        d[f"e{GS-1}"] += "\ns_mov_b64 exec, -1"
    if OPT.get("exp") == "nold":
        for i in range(GS): d[f"L{i}"] = ""
    if OPT.get("exp") == "nolds":
        for i in range(GS): d[f"k{i}"] = ""; d[f"e{i}"] = ""
    if OPT.get("exp") == "nom":
        for i in range(GS): d[f"N{i}"] = ""
    for ch in OPT.get("drop", ""):
        for key in list(d):
            if key[0] == ch and key[1:].isdigit(): d[key] = ""
    d["W"] = f"s_waitcnt vmcnt({GS*(NB-3)}) lgkmcnt(0)"
    d["S"] = f"s_sub_u32 s{S_CNT}, s{S_CNT}, 1"
    d["A0"] = f"v_add_u32 v{VK}, {4*GS*UNR}, v{VK}" if k == UNR - 1 else ""
    d["A1"] = f"v_add_u32 v{VE}, v{VINC}, v{VE}" if k == UNR - 1 else ""
    return d


ORDERS = {
    2: {
        "p": "k0 k1 e0 e1 C0 C1 r0 C2 r1 C3 r2 Q0 r3 Q1 r4 D0 r5 U0 r6 D1 r7 U1 E0 D2 E1 U2 E2 D3 E3 U3 A0 A1 W L0 L1 S N0 E4 E5 N1 E6 E7",
        "q": "k0 k1 e0 e1 C0 C1 C2 C3 r0 r1 r2 r3 Q0 Q1 r4 r5 r6 r7 D0 U0 D1 U1 D2 U2 D3 U3 A0 A1 W L0 L1 S N0 E0 E1 E2 E3 N1 E4 E5 E6 E7",
        "b": "k0 k1 e0 e1 C0 E0 C2 E1 C1 E2 C3 E3 m0 E4 m1 E5 S Q0 Q1 A0 A1 a0 a1 g0 g1 h0 h1 W N0 R0 R1 N1 R2 R3 L0 L1 E6 d0 E7 d1 n0 n1",
        "c": "k0 k1 e0 e1 C0 C2 E0 m0 E1 C1 C3 E2 m1 E3 Q0 E4 Q1 E5 A0 A1 a0 a1 g0 g1 h0 h1 W L0 L1 S N0 R0 R1 N1 R2 R3 E6 d0 E7 d1 n0 n1",
        "d": "k0 k1 e0 e1 Q0 Q1 C0 E0 C2 E1 C1 E2 C3 E3 g0 E4 g1 E5 h0 h1 A0 A1 m0 m1 a0 a1 W L0 L1 S N0 R0 R1 N1 R2 R3 E6 d0 E7 d1 n0 n1",
        "e": "k0 k1 e0 e1 C0 E0 C2 E1 m0 E2 C1 R0 C3 R1 m1 E3 Q0 Q1 A0 A1 a0 a1 g0 g1 h0 h1 W L0 L1 S N0 R2 R3 N1 E4 E5 d0 E6 n0 E7 d1 n1",
        "f": "k0 k1 e0 e1 C0 E0 C2 E1 C1 E2 C3 E3 m0 m1 Q0 Q1 A0 A1 a0 a1 g0 g1 h0 h1 W L0 L1 S N0 R0 R1 E4 N1 R2 R3 E5 d0 E6 d1 E7 n0 n1",
        "g": "C0 E0 C2 E1 C1 E2 C3 E3 k0 k1 e0 e1 m0 E4 m1 E5 Q0 Q1 A0 A1 a0 a1 g0 g1 h0 h1 W L0 L1 S N0 R0 R1 N1 R2 R3 E6 d0 E7 d1 n0 n1",
        "h": "k0 k1 e0 e1 C0 E0 C2 E1 C1 E2 C3 E3 m0 E4 m1 E5 Q0 Q1 A0 A1 g0 g1 h0 h1 a0 a1 W L0 L1 S N0 R0 R1 N1 R2 R3 E6 E7 d0 d1 n0 n1",
        "": "k0 k1 e0 e1 C0 E0 C2 E1 C1 E2 C3 E3 m0 E4 m1 E5 Q0 Q1 A0 A1 a0 a1 g0 g1 h0 h1 W L0 L1 S N0 R0 R1 N1 R2 R3 E6 d0 E7 d1 n0 n1",
    },
    3: {
        "d": "k0 k1 k2 e0 e1 e2 C0 E0 C2 E1 C4 E2 C1 E3 C3 E4 C5 E5 m0 m1 M0 M1 Q0 Q1 Q2 A0 A1 a0 a1 g0 g1 s0 s1 h0 h1 i0 i1 j0 j1 W L0 L1 L2 S N0 R0 R1 N1 R2 R3 N2 E6 E7 E8 d0 E9 d1 E10 n0 E11 n1",
        "e": "k0 k1 k2 e0 e1 e2 Q0 Q1 Q2 C0 E0 C2 E1 C4 E2 C1 E3 C3 E4 C5 E5 m0 m1 g0 g1 M0 M1 A0 A1 h0 h1 a0 a1 i0 i1 s0 s1 j0 j1 W N0 R0 R1 N1 R2 R3 N2 E6 E7 L0 L1 L2 S E8 d0 E9 d1 E10 n0 E11 n1",
        "": "k0 k1 k2 e0 e1 e2 C0 E0 C2 E1 C4 E2 C1 E3 C3 E4 C5 E5 m0 E6 m1 E7 M0 M1 Q0 Q1 Q2 A0 A1 a0 a1 g0 g1 s0 s1 h0 h1 i0 i1 j0 j1 W L0 L1 L2 S N0 R0 R1 N1 R2 R3 N2 E8 E9 d0 E10 d1 E11 n0 n1",
        "b": "k0 k1 k2 e0 e1 e2 C0 E0 C2 E1 C4 E2 C1 E3 C3 E4 C5 E5 m0 m1 M0 M1 Q0 Q1 Q2 A0 A1 a0 a1 g0 g1 s0 s1 h0 h1 i0 i1 j0 j1 W N0 R0 R1 N1 R2 R3 N2 E6 E7 L0 L1 L2 S E8 d0 E9 d1 E10 n0 E11 n1",
        "c": "k0 k1 k2 e0 e1 e2 C0 E0 C2 E1 m0 E2 C4 E3 M0 E4 C1 E5 C3 E6 m1 E7 C5 M1 Q0 Q1 Q2 A0 A1 a0 a1 g0 g1 s0 s1 h0 h1 i0 i1 j0 j1 W L0 L1 L2 S N0 R0 R1 N1 R2 R3 N2 E8 E9 d0 E10 d1 E11 n0 n1",
    },
}


def eprep1(a):
    a(f"""
v_lshrrev_b32 v{EOUT}, 3, v0
v_min_u32 v{EACC}, 48, v{EOUT}
v_lshlrev_b32 v{ERK}, 2, v{EOUT}
v_lshlrev_b32 v{ECN}, 2, v{EACC}
v_and_b32 v{EMSK}, 7, v0
v_lshlrev_b32 v{EEXT}, 5, v{EMSK}
v_cmp_gt_u32_e64 s[20:21], 52, v{EOUT}
s_movk_i32 s22, {US}
v_mad_u32_u24 v6, v{EACC}, s22, v{EEXT}
v_add_u32 v6, {L_U}, v6
v_mul_u32_u24 v7, {XSS}, v{EACC}
v_lshl_add_u32 v7, v{EMSK}, 4, v7
v_add_u32 v7, {L_XS}, v7
ds_read_b32 v{ERK}, v{ERK} offset:{L_RK}
ds_read_b32 v{ECN}, v{ECN} offset:{L_CNT}
ds_read_b128 {q4(EU)}, v6
ds_read_b128 {q4(EU+4)}, v6 offset:16
ds_read_b128 {q4(EX+4)}, v7
v_lshlrev_b32 v{EOUT}, 8, v{EOUT}
v_add_u32 v{EOUT}, s{S_B}, v{EOUT}
v_lshlrev_b32 v{EOUT}, 7, v{EOUT}
v_lshl_add_u32 v{EOUT}, v{EMSK}, 4, v{EOUT}
""")


def eprep2(a):
    a(f"""
v_cmp_ne_u32_e64 s[22:23], 0, v{ECN}
v_and_b32 v{EMSK}, -4, v{ERK}
v_lshl_add_u32 v{EACC}, v{ERK}, 9, v{EEXT}
v_add_u32 v{EACC}, {L_ACC}, v{EACC}
v_and_b32 v{ERK}, 3, v{ERK}
v_lshl_add_u32 v{EEXT}, v{ERK}, 9, v{EEXT}
v_add_u32 v{EEXT}, {L_EXT}, v{EEXT}
s_and_b64 s[20:21], s[20:21], s[22:23]
""")
    for i in range(4):
        a(f"v_lshlrev_b32 v{EX+2*i}, 16, v{EX+4+i}" if i < 2 else "")
        a(f"v_and_b32 v{EX+2*i+1}, 0xffff0000, v{EX+4+i}" if i < 2 else "")
    a(f"v_lshlrev_b32 v{EX+4}, 16, v{EX+6}")
    a(f"v_and_b32 v{EX+5}, 0xffff0000, v{EX+6}")
    a(f"v_lshlrev_b32 v{EX+6}, 16, v{EX+7}")
    a(f"v_and_b32 v{EX+7}, 0xffff0000, v{EX+7}")


def t2_check(a):
    a(f"v_xor_b32 v4, s{S_TAG}, v{T2R}")
    for i in (2, 4, 6):
        a(f"v_xor_b32 v5, s{S_TAG}, v{T2R+i}")
        a("v_or_b32 v4, v4, v5")
    for i in (1, 3, 5, 7):
        a(f"v_xor_b32 v5, s{S_TAG2}, v{T2R+i}")
        a("v_or_b32 v4, v4, v5")
    a("v_cmp_ne_u32 vcc, 0, v4")


def t2_loads(a):
    a(f"""
v_lshlrev_b32 v4, 4, v1
s_mov_b32 s40, {T2_REL:#x}
buffer_load_dwordx4 {q4(T2R)}, v4, s[32:35], s40 offen sc1
buffer_load_dwordx4 {q4(T2R+4)}, v4, s[32:35], s40 offen offset:1024 sc1
""")


def kernel():
    a = Asm()
    VTR, VXA, VWC, VAU, VLOC = VK, VE, VF, VFN, NXE
    VE2, VT2 = VTK, VTE
    VTR1, VWG, XF = VMAXL, VPF, T2R
    a(f"""
{KNAME}:
s_cmp_ge_u32 s2, 256
s_cbranch_scc1 K_END
@S0
@C30
s_load_dwordx16 s[64:79], s[0:1], 0
s_load_dwordx8 s[80:87], s[0:1], 64
s_getpc_b64 s[42:43]
K_PC0:
v_and_b32 v6, 63, v0
v_lshlrev_b32 v6, 7, v6
v_add_u32 v7, 8192, v6
v_cmp_le_u32 vcc, {int(OPT.get('cw', 7))*64}, v0
s_mov_b64 exec, vcc
s_cbranch_execz K_NOCPF
global_load_dword v{VFOUR}, v6, s[42:43]
v_cmp_gt_u32 vcc, K_LONG_ENTRY-K_PC0, v7
s_mov_b64 exec, vcc
global_load_dword v{VFOUR}, v7, s[42:43]
K_NOCPF:
s_mov_b64 exec, -1
s_mul_i32 s40, s2, {QCH}
v_add_u32 v4, s40, v0
v_add_u32 v5, {QH}, v4
v_cmp_gt_u32 vcc, {QH}, v0
v_lshlrev_b32 v4, 4, v4
v_mov_b32 v6, {BIG:#x}
v_and_b32 v7, 255, v0
v_cndmask_b32 v4, v6, v4, vcc
v_lshlrev_b32 v7, 2, v7
v_mov_b32 v{VZ}, 0
ds_write_b32 v7, v{VZ} offset:{L_HIST}
s_mov_b32 s47, 0x20000
s_mov_b32 s46, {E*4}
s_movk_i32 s58, {QH*16}
s_waitcnt lgkmcnt(0)
s_mov_b32 s44, s70
s_and_b32 s45, s71, 0xffff
buffer_load_dwordx4 v[8:11], v4, s[44:47], 0 offen
buffer_load_dwordx4 v[12:15], v4, s[44:47], s58 offen
v_readfirstlane_b32 s3, v0
s_mov_b32 s41, {NQ}
v_cmp_gt_u32_e64 s[94:95], s41, v5
s_mov_b64 s[92:93], vcc
v_add_u32 v5, s58, v4
s_and_b32 s{S_B}, s2, 7
s_lshl_b32 s{S_B}, s{S_B}, 5
s_lshr_b32 s40, s2, 3
s_or_b32 s{S_B}, s{S_B}, s40
s_and_b64 s[94:95], s[94:95], vcc
s_lshr_b32 s3, s3, 6
v_lshlrev_b32 v61, 4, v0
v_and_b32 v96, 16, v0
v_lshlrev_b32 v96, 1, v96
v_and_b32 v97, 64, v0
v_or_b32 v96, v96, v97
v_xor_b32 v{VWG}, v96, v61
global_load_dwordx4 v[40:43], v{VWG}, s[74:75]
global_load_dwordx4 v[44:47], v{VWG}, s[80:81]
v_lshrrev_b32 v62, 3, v0
v_lshlrev_b32 v90, 8, v62
v_add_u32 v90, s{S_B}, v90
v_lshlrev_b32 v90, 7, v90
v_and_b32 v63, 7, v0
v_lshl_add_u32 v90, v63, 4, v90
""")
    srd(a, 20, 64, 65, N * 128)
    a(f"""
buffer_load_dwordx4 v[56:59], v90, s[20:23], 0 offen
s_or_b32 s40, s2, s3
s_cmp_lg_u32 s40, 0
s_cbranch_scc1 K_NONONCE
s_memrealtime s[40:41]
s_waitcnt lgkmcnt(0)
s_or_b32 s40, s40, 1
v_mov_b32 v7, s40
s_mov_b64 exec, 1
global_store_dword v{VZ}, v7, s[84:85] sc1
s_mov_b64 exec, -1
K_NONONCE:
""")
    srd(a, 48, 68, 69, E * 4)
    srd(a, 52, 66, 67, E * 8)
    a(f"""
v_lshlrev_b32 v6, 1, v4
v_lshlrev_b32 v7, 1, v5
v_mov_b32 v74, v4
v_mov_b32 v75, v5
@S1
""")
    NE = int(OPT.get("ne", 2))
    later = ["buffer_load_dwordx4 v[24:27], v6, s[52:55], 0 offen",
             "buffer_load_dwordx4 v[28:31], v6, s[52:55], 0 offen offset:16",
             "buffer_load_dwordx4 v[16:19], v74, s[48:51], 0 offen",
             "buffer_load_dwordx4 v[20:23], v75, s[48:51], 0 offen"]
    a("s_barrier")
    for l in later[:NE]:
        a(l)
    TLB = OPT.get("tlb", "3")
    if TLB == "1":
        a(f"""
s_cmp_lg_u32 s3, 7
s_cbranch_scc1 K_NOTLB
v_and_b32 v76, 63, v0
v_lshlrev_b32 v77, 14, v76
v_mul_u32_u24 v76, {4*RECS}, v76
v_add_u32 v76, {T_OFF + REC_REL - 128}, v76
global_load_dword v{VFOUR}, v76, s[86:87]
global_load_dword v{VFOUR}, v77, s[82:83]
K_NOTLB:
""")
    if TLB in ("3", "4"):
        a(f"""
s_cmp_lg_u32 s3, 7
s_cbranch_scc1 K_NOTLB
s_add_u32 s40, s2, 1
v_and_b32 v76, 1, v0
v_mul_u32_u24 v76, s40, v76
s_mov_b32 s40, {RECS}
v_mul_lo_u32 v76, v76, s40
v_add_u32 v76, {T_OFF + REC_REL - 128}, v76
s_mov_b64 exec, 3
global_load_dword v{VFOUR}, v76, s[86:87]
s_mov_b64 exec, 1
global_load_dword v{VFOUR}, v{VZ}, s[82:83]
global_load_dword v{VFOUR}, v{VZ}, s[84:85] offset:128
s_mov_b64 exec, -1
K_NOTLB:
""")
    if OPT.get("sinit", "a") == "a":
        slots_init(a, 64, False)
    a(f"""
v_and_b32 v1, 63, v0
v_and_b32 v2, 15, v0
v_bfe_u32 v3, v0, 4, 2
v_and_b32 v91, 127, v0
v_lshlrev_b32 v91, 2, v91
v_mul_u32_u24 v62, {XSS}, v62
v_lshl_add_u32 v62, v63, 4, v62
v_add_u32 v62, {L_XS}, v62
v_add_u32 v63, {L_AP}, v61
s_mov_b64 s[16:17], s[86:87]
s_lshr_b32 s18, s3, 1
s_lshl_b32 s18, s18, 4
s_and_b32 s19, s3, 1
v_lshrrev_b32 v{VE2}, 2, v2
v_lshl_add_u32 v{VTR}, v3, 3, v{VE2}
v_lshlrev_b32 v{VTR}, 7, v{VTR}
v_and_b32 v{VT2}, 3, v2
v_lshl_add_u32 v{VTR}, v{VT2}, 3, v{VTR}
s_lshl_b32 s40, s19, 6
v_add_u32 v{VTR}, s40, v{VTR}
v_and_b32 v4, 8, v2
v_lshlrev_b32 v4, 2, v4
v_and_b32 v5, 1, v3
v_lshl_or_b32 v4, v5, 6, v4
v_xor_b32 v{VTR}, v4, v{VTR}
v_xor_b32 v{VTR1}, 32, v{VTR}
v_add_u32 v{VTR}, {L_AP}, v{VTR}
v_add_u32 v{VTR1}, {L_AP}, v{VTR1}
v_add_u32 v{VLOC}, s18, v2
v_mul_u32_u24 v{VXA}, {XSS}, v{VLOC}
v_lshl_add_u32 v{VXA}, v3, 4, v{VXA}
v_add_u32 v{VXA}, {L_XS}, v{VXA}
""")
    srd(a, 28, 16, 17, TAB_BYTES)
    a(f"""
v_lshlrev_b32 v4, 8, v{VLOC}
v_add_u32 v4, s{S_B}, v4
v_lshlrev_b32 v60, 8, v4
v_lshl_add_u32 v60, v3, 4, v60
s_lshl_b32 s40, s19, 7
v_add_u32 v60, s40, v60
v_cmp_eq_u32 vcc, {N}, v4
v_mov_b32 v4, 0x7f000000
v_mov_b32 v5, 0x7f007f00
s_mov_b32 s56, 0x07060100
s_mov_b32 s57, 0x07060302
v_mov_b32 v76, 1
@S2
s_waitcnt vmcnt({4 + NE})
@S3
""")
    for i in range(4):
        a(f"v_lshlrev_b32_sdwa v{64+i}, 2, v{8+i} {SDWA_B0}")
    a("s_mov_b64 exec, s[92:93]")
    for i in range(4):
        a(f"ds_add_rtn_u32 v{80+i}, v{64+i}, v76 offset:{L_HIST}")
    a("s_mov_b64 exec, -1")
    a(f"s_waitcnt vmcnt({3 + NE})")
    for i in range(4, 8):
        a(f"v_lshlrev_b32_sdwa v{64+i}, 2, v{8+i} {SDWA_B0}")
    a("s_mov_b64 exec, s[94:95]")
    for i in range(4, 8):
        a(f"ds_add_rtn_u32 v{80+i}, v{64+i}, v76 offset:{L_HIST}")
    a(f"""
s_mov_b64 exec, -1
s_cmp_eq_u32 s3, 7
s_waitcnt vmcnt({NE + (3 if TLB in ("3", "4") else 2 if TLB == "1" else 0)})
s_cbranch_scc1 K_WOK
s_waitcnt vmcnt({NE})
K_WOK:
ds_write_b128 v63, v[40:43]
ds_write_b128 v63, v[44:47] offset:8192
ds_write_b128 v62, v[56:59]
""")
    NL = int(OPT.get("nl", 4))
    rest = later[NE:] + ["buffer_load_dwordx4 v[32:35], v7, s[52:55], 0 offen", "buffer_load_dwordx4 v[36:39], v7, s[52:55], 0 offen offset:16"]
    for l in rest[:NL]:
        a(l)
    for i in range(8):
        a(f"v_lshrrev_b32 v{8+i}, 6, v{8+i}")
    a("v_lshlrev_b32 v77, 4, v1")
    seqs = []
    for t in range(2):
        b, h, o, tm = TOT + 4 * t, TOT + 8 + 4 * t, 40 + 4 * t, 78 + t
        q = [f"v_mul_f32 v{b+i}, {NLOG2E:#x}, v{b+i}" for i in range(4)]
        q += [f"v_med3_f32 v{b+i}, v{b+i}, v4, -v4" for i in range(4)]
        q += [f"v_cvt_pk_bf16_f32 v{tm}, v{h}, v{h}"]
        q += [f"v_cvt_pk_bf16_f32 v{o}, v{b}, v{b+1}", f"v_cvt_pk_bf16_f32 v{o+1}, v{b+2}, v{b+3}"]
        q += [f"v_perm_b32 v{o+2}, v{h+2}, v{tm}, s56", f"v_perm_b32 v{o+3}, v{h+3}, v{h+1}, s57"]
        q += [f"v_cndmask_b32 v{o}, v{o}, v5, vcc", f"v_cndmask_b32 v{o+1}, v{o+1}, v5, vcc"]
        seqs.append(q)
    pack = [z for xy in zip(*seqs) for z in xy]
    stores = [f"buffer_store_dwordx4 {q4(40+4*t)}, v60, s[28:31], 0 offen offset:{64*t} sc1" for t in range(2)]
    wl = [f"global_load_dwordx4 v[48:51], v{VWG}, s[72:73]", f"global_load_dwordx4 v[52:55], v{VWG}, s[78:79]", "global_load_dword v56, v91, s[76:77]"]
    a(f"""
s_waitcnt lgkmcnt(0)
@S4
s_barrier
@S5
ds_read_b128 v[72:75], v77 offset:{L_HIST}
ds_read_b128 {q4(XF)}, v{VXA}
ds_read_b128 {q4(XF+4)}, v{VXA} offset:64
""")
    for l in rest[NL:]:
        a(l)
    tr = Asm()
    tr_reads(tr, (VTR, VTR1), 0, 96)
    tr = tr.L
    for l in tr[:4]:
        a(l)
    a(f"""
s_waitcnt lgkmcnt(6)
v_add_u32 v89, v72, v73
v_add_u32 v90, v89, v74
v_add_u32 v62, v90, v75
v_mov_b32 v63, v62
""")
    steps = [f"row_shr:{d} row_mask:0xf" for d in (1, 2, 4, 8)] + ["row_bcast:15 row_mask:0xa", "row_bcast:31 row_mask:0xc"]
    for i, st in enumerate(steps):
        a(tr[4 + 2 * i]); a(tr[5 + 2 * i])
        a(f"v_add_u32_dpp v62, v62, v62 {st} bank_mask:0xf")
    a(f"""
v_sub_u32 v88, v62, v63
v_add_u32 v91x, v88, v90
v_add_u32 v90, v88, v89
v_add_u32 v89, v88, v72
ds_write_b128 v77, v[88:91] offset:{L_START}
""".replace("v91x", "v91"))
    for i in range(8):
        a(f"ds_read_b32 v{64+i}, v{64+i} offset:{L_START}")
    for i in range(4):
        a(f"v_lshl_or_b32 v{92+i}, v{72+i}, 16, v{88+i}")
    a("s_waitcnt lgkmcnt(9)")
    tile_mfmas(a, 96, XF, TOT)
    a("v_and_b32 v91, 127, v0")
    a("v_lshlrev_b32 v91, 2, v91")
    srd(a, 24, 16, 17, TAB_ROWS, stride=256)
    srd(a, 36, 82, 83, N * 128)
    a(f"s_mov_b32 s40, {L_STAGE}")
    PKP = OPT.get("pkp", "0")
    if PKP == "0":
        for l in pack + stores + wl:
            a(l)
    a(f"""
s_add_u32 s32, s16, {T_OFF:#x}
s_addc_u32 s33, s17, 0
s_and_b32 s33, s33, 0xffff
s_mov_b32 s34, {TR_BYTES}
s_mov_b32 s35, 0x20000
s_mul_i32 s41, s2, {RECS}
s_add_u32 s41, s41, {T_OFF + REC_REL:#x}
s_add_u32 s88, s16, s41
s_addc_u32 s89, s17, 0
s_and_b32 s89, s89, 0xffff
s_mov_b32 s90, {RECB}
s_mov_b32 s91, 0x20000
s_waitcnt vmcnt({7 if PKP == "0" else 2})
""")
    for i in range(8):
        a(f"v_lshl_or_b32 v{16+i}, v{16+i}, 8, v{8+i}")
    for i in range(8):
        a(f"s_waitcnt lgkmcnt({7-i})")
        a(f"v_add_u32 v{64+i}, v{64+i}, v{80+i}")
        a(f"v_mad_u32_u24 v{64+i}, v{64+i}, 12, s40")
    a("s_mov_b64 exec, s[92:93]")
    for i in range(4):
        a(f"ds_write_b32 v{64+i}, v{16+i} offset:8")
        a(f"ds_write2_b32 v{64+i}, v{24+2*i}, v{25+2*i} offset0:0 offset1:1")
    a("s_mov_b64 exec, s[94:95]")
    for i in range(4, 8):
        a(f"ds_write_b32 v{64+i}, v{16+i} offset:8")
    a(f"s_waitcnt vmcnt({5 if PKP == '0' else 0})")
    for i in range(4, 8):
        a(f"ds_write2_b32 v{64+i}, v{24+2*i}, v{25+2*i} offset0:0 offset1:1")
    a("s_mov_b64 exec, -1")
    if PKP == "1":
        for l in pack + stores + wl:
            a(l)
    a(f"""
@S6
s_movk_i32 s14, {RECB//16 - 2048}
v_cmp_gt_u32_e64 s[14:15], s14, v0
v_add_u32 v63, {L_STAGE}, v61
v_add_u32 v91, {L_WC}, v91
s_movk_i32 s44, 0x2000
s_movk_i32 s45, 0x4000
s_movk_i32 s46, 0x6000
s_mov_b32 s47, 0x8000
v_cmp_gt_u32 vcc, 128, v0
global_load_dword v64, v{VZ}, s[84:85] sc1
s_waitcnt lgkmcnt(0)
@S7
s_barrier
@S8
""")
    for i in range(4):
        a(f"ds_read_b128 {q4(8+4*i)}, v63 offset:{8192*i}")
    a(f"""
s_mov_b64 exec, s[14:15]
ds_read_b128 v[24:27], v63 offset:32768
s_mov_b64 exec, -1
v_mov_b32 v28, 0
v_mov_b32 v29, 0
v_mov_b32 v30, 0
v_mov_b32 v31, 0
""")
    for i in range(4):
        a(f"s_waitcnt lgkmcnt({4-i})")
        so = "0" if i == 0 else f"s{43+i}"
        a(f"buffer_store_dwordx4 {q4(8+4*i)}, v61, s[88:91], {so} offen sc1")
    koff = struct.unpack("<I", struct.pack("<f", -float(KEXP) if OPT["cadd"] == "1" else 0.0))[0]
    a(f"""
s_mov_b64 exec, s[14:15]
s_waitcnt lgkmcnt(0)
buffer_store_dwordx4 v[24:27], v61, s[88:91], s47 offen sc1
s_mov_b64 exec, vcc
ds_write_b128 v61, v[28:31]
s_mov_b64 exec, -1
@S9
s_waitcnt vmcnt(5)
ds_write_b128 v63, v[48:51]
ds_write_b128 v63, v[52:55] offset:8192
ds_write_b32 v91, v56
""")
    if OPT.get("sinit", "a") == "b":
        slots_init(a, 66, False)
    a(f"""
v_add_u32 v{VTR}, {L_STAGE - L_AP}, v{VTR}
v_add_u32 v{VTR1}, {L_STAGE - L_AP}, v{VTR1}
v_lshl_add_u32 v{VWC}, v2, 2, v3
v_lshlrev_b32 v{VWC}, 1, v{VWC}
v_add_u32 v{VWC}, {L_WC}, v{VWC}
s_movk_i32 s40, {US}
s_lshl_b32 s41, s19, 7
s_add_u32 s41, s41, {L_AP}
v_mad_u32_u24 v{VAU}, v{VLOC}, s40, 0
v_lshl_add_u32 v{VAU}, v3, 4, v{VAU}
v_add_u32 v{VAU}, s41, v{VAU}
v_cmp_gt_u32_e64 s[14:15], 49, v{VLOC}
s_mov_b32 s{S_MODE}, 0
s_mov_b32 s{S_CS}, {CS}
s_mov_b32 s{S_AM}, 0x22221111
s_mov_b32 s{S_AM+1}, 0x88884444
s_mov_b32 s{S_K}, {KBITS:#x}
s_mov_b32 s{S_K+1}, {KBITS:#x}
s_mov_b32 s6, {NLOG2E:#x}
s_mov_b32 s7, {NLOG2E:#x}
v_mov_b32 v{NX}, {koff:#x}
v_mov_b32 v{NX+1}, {koff:#x}
v_and_b32 v5, 1, v{VT2}
v_lshlrev_b32 v5, 4, v5
v_mov_b32 v6, 0x3f80
v_lshlrev_b32 v5, v5, v6
v_cmp_eq_u32 vcc, v3, v{VE2}
v_cmp_gt_u32_e64 s[52:53], 2, v{VT2}
v_cmp_le_u32_e64 s[54:55], 2, v{VT2}
v_mov_b32 v6, {8*GS*UNR}
v_cndmask_b32 v5, 0, v5, vcc
v_cndmask_b32_e64 v{VINC}, 0, v6, s[{S_AM}:{S_AM+1}]
v_mov_b32 v{VFOUR}, 4
""")
    for i in range(GS):
        a(f"v_cndmask_b32_e64 v{AOP[i]+2}, 0, v5, s[52:53]")
        a(f"v_cndmask_b32_e64 v{AOP[i]+3}, 0, v5, s[54:55]")
        a(f"v_lshlrev_b32 v{IDX[i]+1}, 4, v2")
    a(f"""
s_lshl_b32 s41, s{S_B}, 3
v_mul_u32_u24 v4, {TRS}, v3
v_add_u32 v4, s41, v4
s_mul_i32 s40, s3, {32*TRS}
""")
    for k in range(1, 8):
        a(f"s_add_u32 s{40+k}, s40, {4*TRS*k}")
    V0, V1, V2, V3, V4 = X0 + 16, X0 + 17, X0 + 18, X0 + 19, X0 + 20
    a(f"""
s_lshl_b32 s48, s3, 5
v_add_u32 v5, s48, v3
s_mov_b32 s49, {RECS}
v_mul_lo_u32 v5, v5, s49
v_mad_u32_u24 v5, v2, 12, v5
v_add_u32 v5, {REC_REL}, v5
v_add_u32 v6, 16, v2
s_memrealtime s[50:51]
K_TAGW:
v_readfirstlane_b32 s{S_TAG}, v64
s_cmp_lg_u32 s{S_TAG}, 0
s_cbranch_scc0 K_TAG_RETRY
K_TAGOK:
s_mul_i32 s48, s{S_TAG}, 0x9e3779b1
s_and_b32 s48, s48, 0xf000f000
v_or_b32 v32, s48, v92
v_mov_b32 v33, s{S_TAG}
v_or_b32 v34, s48, v93
v_mov_b32 v35, s{S_TAG}
v_or_b32 v36, s48, v94
v_mov_b32 v37, s{S_TAG}
v_or_b32 v38, s48, v95
v_mov_b32 v39, s{S_TAG}
v_lshlrev_b32 v40, 5, v1
s_mul_i32 s49, s2, {TRS}
s_cmp_lg_u32 s3, 0
@S18
s_waitcnt vmcnt(0) lgkmcnt(0)
@S19
s_barrier
s_cbranch_scc1 K_NOPUB
buffer_store_dwordx4 v[32:35], v40, s[32:35], s49 offen sc1
buffer_store_dwordx4 v[36:39], v40, s[32:35], s49 offen offset:16 sc1
K_NOPUB:
""")
    if int(OPT.get("epf", 0)):
        a(f"""
s_lshr_b32 s52, s2, 3
s_mul_i32 s52, s52, {782*128}
s_add_u32 s52, s52, {int(OPT['npf'])*128}
v_lshl_add_u32 v8, v0, 7, s52
v_cmp_gt_u32 vcc, {int(OPT['epf'])}, v0
s_mov_b64 exec, vcc
buffer_load_dword v{VPF}, v8, s[28:31], 0 offen sc1
s_mov_b64 exec, -1
""")
    if TLB == "3":
        a(f"""
s_cmp_lg_u32 s3, 7
s_cbranch_scc1 K_NOTLB2
v_mul_u32_u24 v8, {16*RECS}, v1
v_add_u32 v8, {T_OFF + REC_REL - 128}, v8
s_mov_b64 exec, 0x1ffff
global_load_dword v{VPF}, v8, s[16:17]
s_mov_b64 exec, -1
K_NOTLB2:
""")
    tr_reads(a, (VTR, VTR1), 0, 96)
    a(f"""
ds_read_u16 v{CA}, v{VWC}
ds_read_u16 v{CA+1}, v{VWC} offset:128
ds_read_u16 v{CA+2}, v{VWC} offset:256
ds_read_u16 v{CA+3}, v{VWC} offset:384
s_mov_b32 s49, 0xf000f000
s_waitcnt lgkmcnt(4)
""")
    PP = OPT.get("pollpos", "2")
    polls = [f"buffer_load_dwordx2 {pr(PT+2*k)}, v4, s[32:35], s{40+k} offen sc1" for k in range(8)]
    tile_mfmas(a, 96, XF, TOT)
    if PP == "0":
        for l in polls:
            a(l)
    a("s_waitcnt lgkmcnt(0)")
    for k in range(4):
        a(f"v_lshlrev_b32 v{CA+k}, 16, v{CA+k}")
    for k in range(4):
        a(f"v_mul_f32 v{CA+k}, {NLOG2E:#x}, v{CA+k}")
    a(f"v_cvt_pk_bf16_f32 v{CN}, v{CA}, v{CA+1}")
    a(f"v_cvt_pk_bf16_f32 v{CN+1}, v{CA+2}, v{CA+3}")
    a(f"v_mov_b32 v{V0}, s{S_TAG}")
    a(f"v_mov_b32 v{V1}, s48")
    a("s_mov_b64 exec, s[14:15]")
    a(f"ds_write_b128 v{VAU}, {q4(TOT+8)} offset:{L_U - L_AP}")
    a(f"ds_write_b128 v{VAU}, {q4(TOT+12)} offset:{L_U - L_AP + 64}")
    for i in range(0, 8, 2):
        a(f"v_pk_fma_f32 {pr(TOT+i)}, {pr(TOT+i)}, s[6:7], {pr(NX)}")
    a(f"""
ds_write_b128 v{VAU}, {q4(TOT)}
ds_write_b128 v{VAU}, {q4(TOT+4)} offset:64
s_mov_b64 exec, -1
""")
    if PP == "1":
        for l in polls:
            a(l)
    for p in range(NB):
        for i in range(GS):
            a(f"v_pk_mov_b32 {pr(stepbuf(p, i))}, {pr(CN)}, {pr(CN)} op_sel:[0,1]")
    for i in range(0, 16, 2):
        a(f"v_pk_mov_b32 {pr(TOT+i)}, 0, 0")
    if int(OPT.get("presleep", 0)):
        a(f"s_sleep {OPT['presleep']}")
    a("@S23")
    if PP != "2":
        a("s_branch K_POLL_CHECK")
    a("K_POLL:")
    for k in range(8):
        a(f"buffer_load_dwordx2 {pr(PT+2*k)}, v4, s[32:35], s{40+k} offen sc1")
    a("K_POLL_CHECK:")
    a(f"v_mov_b32 v{V2}, 0")
    for k in range(8):
        a(f"s_waitcnt vmcnt({7-k})")
        a(f"v_xor_b32 v{V3}, v{PT+2*k}, v{V1}")
        a(f"v_xor_b32 v{V4}, v{PT+2*k+1}, v{V0}")
        a(f"v_and_or_b32 v{V2}, v{V3}, s49, v{V2}")
        a(f"v_and_b32 v{VTT+k}, 0x0fff0fff, v{PT+2*k}")
        a(f"v_or_b32 v{V2}, v{V4}, v{V2}")
    a(f"""
v_cmp_ne_u32 vcc, 0, v{V2}
s_cbranch_vccnz K_POLL_RETRY
K_POLLOK:
@S24
s_mov_b64 exec, 1
ds_add_u32 v{VZ}, v{VFOUR} offset:{L_ACKS}
s_mov_b64 exec, -1
""")
    for k in range(8):
        a(f"v_mad_u32_u16 v{VRA+k}, v{VTT+k}, 12, v5")
        a(f"v_cmp_gt_u32_sdwa s[{80+2*k}:{81+2*k}], v{VTT+k}, v6 src0_sel:WORD_1 src1_sel:DWORD")
        if k < 7:
            a(f"v_add_u32 v5, {4*RECS}, v5")
        r = recset(8 + k)
        a(f"s_mov_b64 exec, s[{80+2*k}:{81+2*k}]")
        a(f"s_cbranch_execz K_M1L{k}")
        a(f"buffer_load_dwordx3 v[{r}:{r+2}], v{VRA+k}, s[32:35], 0 offen offset:192 sc1")
        a(f"K_M1L{k}:")
        a("s_mov_b64 exec, -1")
        a(f"v_cmp_gt_u32_sdwa s[{64+2*k}:{65+2*k}], v{VTT+k}, v2 src0_sel:WORD_1 src1_sel:DWORD")
    for k in range(8):
        r = recset(k)
        a(f"s_mov_b64 exec, s[{64+2*k}:{65+2*k}]")
        a(f"buffer_load_dwordx3 v[{r}:{r+2}], v{VRA+k}, s[32:35], 0 offen sc1")
    a(f"""
s_mov_b64 exec, -1
@S25
v_max3_u32 v4, v{VTT}, v{VTT+1}, v{VTT+2}
v_max3_u32 v5, v{VTT+3}, v{VTT+4}, v{VTT+5}
v_max3_u32 v4, v4, v{VTT+6}, v{VTT+7}
v_max_u32 v4, v4, v5
v_lshrrev_b32 v{VMAXL}, 16, v4
s_waitcnt vmcnt(8)
""")

    def A_(j):
        a(f"s_waitcnt vmcnt({7 - j})")
        a(f"s_mov_b64 exec, s[{64+2*j}:{65+2*j}]")
        place_atomic(a, recset(j), VCA + j)

    def W_(j, n):
        a(f"s_mov_b64 exec, s[{64+2*j}:{65+2*j}]")
        if n is not None:
            a(f"s_waitcnt lgkmcnt({n})")
        place_write(a, recset(j), VCA + j)
    for j in range(8):
        a(f"s_mov_b64 exec, s[{80+2*j}:{81+2*j}]")
        a(f"s_cbranch_execz K_M1A{j}")
        place_atomic(a, recset(8 + j), VCA + 8 + j)
        a(f"K_M1A{j}:")
    A_(0); A_(1)
    a("s_waitcnt lgkmcnt(2)")
    for j in range(8):
        a(f"s_mov_b64 exec, s[{80+2*j}:{81+2*j}]")
        a(f"s_cbranch_execz K_M1W{j}")
        place_write(a, recset(8 + j), VCA + 8 + j)
        a(f"K_M1W{j}:")
    A_(2)
    W_(0, 1)
    W_(1, None)
    A_(3)
    W_(2, 5)
    A_(4)
    W_(3, 3)
    A_(5)
    W_(4, 3)
    A_(6)
    a("s_mov_b64 exec, -1")
    a(f"ds_read_b32 v7, v{VZ} offset:{L_ACKS}")
    W_(5, 4)
    A_(7)
    a("@S26")
    npf, pfs = int(OPT["npf"]), int(OPT["pfs"])
    a(f"""
s_mov_b64 exec, -1
v_cmp_lt_u32 vcc, 32, v{VMAXL}
s_waitcnt lgkmcnt(3)
v_readfirstlane_b32 s40, v7
s_cbranch_vccnz K_LONG_ENTRY
K_PLACED:
s_cmp_lg_u32 s40, 32
s_cbranch_scc1 K_NOPF
""")
    if npf:
        a(f"""
s_lshr_b32 s40, s2, 3
s_mul_i32 s40, s40, {782*128}
v_mul_u32_u24 v7, {pfs}, v0
v_add_u32 v7, s40, v7
""")
        for p in range(-(-npf // 512)):
            if p:
                a(f"v_add_u32 v7, {512*pfs}, v7")
            if npf - 512 * p < 512:
                a(f"v_cmp_gt_u32 vcc, {npf - 512*p}, v0")
                a("s_mov_b64 exec, vcc")
            a(f"buffer_load_dword v{VPF}, v7, s[28:31], 0 offen sc1")
    R = X0
    a(f"""
K_NOPF:
s_waitcnt lgkmcnt(0)
@S27
s_barrier
@S28
""")
    W_(6, None)
    W_(7, None)
    a(f"""
s_mov_b64 exec, -1
K_RANK:
v_lshlrev_b32 v4, 2, v1
ds_read_b32 v{R}, v4 offset:{L_CNT}
v_mov_b32 v5, 0x4000
ds_write_b32 v4, v5 offset:{L_OOB}
""")
    for i in range(1, 6):
        a(f"s_add_u32 s{40+i}, s3, {8*i}")
    a(f"""
v_cmp_gt_u32_e64 s[52:53], 48, v1
v_lshl_add_u32 v{R+2}, v1, 3, s3
v_mul_u32_u24 v{R+6}, {CS*4}, v{R+2}
v_mul_u32_u24 v{R+7}, {US}, v{R+2}
v_add_u32 v{R+7}, {L_AP}, v{R+7}
v_lshlrev_b32 v{R+2}, 2, v{R+2}
s_waitcnt lgkmcnt(0)
v_cmp_lt_u32 vcc, {CAP*4}, v{R}
v_lshl_add_u32 v{R+1}, v{R}, 4, v1
v_add_u32 v{R+1}, 1, v{R+1}
s_cbranch_vccnz K_SLOW_ENTRY
v_cndmask_b32_e64 v{R+1}, 0, v{R+1}, s[52:53]
v_readlane_b32 s50, v{R}, 48
""")
    for i in range(6):
        a(f"v_readlane_b32 s{64+i}, v{R+1}, s{3 if i == 0 else 40+i}")
    a(f"s_add_u32 s51, s50, {4*(4*GS-1)}")
    for i in range(6):
        a(f"v_cmp_lt_u32_e64 s[{72+2*i}:{73+2*i}], s{64+i}, v{R+1}")
    if GS == 2:
        a("s_lshr_b32 s51, s51, 5")
    else:
        a("s_lshr_b32 s51, s51, 4")
        a("s_mul_i32 s51, s51, 0x5556")
        a("s_lshr_b32 s51, s51, 16")
    for i in range(6):
        a(f"v_writelane_b32 v{R+3}, s{64+i}, {i}")
        a(f"s_bcnt1_i32_b64 s{72+2*i}, s[{72+2*i}:{73+2*i}]")
    a(f"""
s_max_u32 s51, s51, {MINPS}
s_cmp_eq_u32 s50, 0
s_cselect_b32 s50, 0, s51
s_mul_i32 s50, s50, {GS}
""")
    for i in range(6):
        a(f"v_writelane_b32 v{R+4}, s{72+2*i}, {i}")
    a(f"""
v_lshrrev_b32 v{R+3}, 6, v{R+3}
v_add_u32 v{R+4}, 4, v{R+4}
v_lshlrev_b32 v{R+5}, 3, v{R+4}
v_lshlrev_b32 v{R+8}, 2, v{R+4}
s_mov_b64 exec, 63
ds_write_b64 v{R+5}, {pr(R+6)} offset:{L_TS}
ds_write_b32 v{R+8}, v{R+3} offset:{L_TC}
ds_write_b32 v{R+2}, v{R+4} offset:{L_RK}
s_mov_b64 exec, 15
v_mul_u32_u24 v{R+10}, s50, v4
v_add_u32 v{R+10}, {48*CS*4}, v{R+10}
v_mov_b32 v{R+11}, {L_AP + 48*US}
v_mov_b32 v{R+9}, s50
v_lshlrev_b32 v5, 3, v1
ds_write_b64 v5, {pr(R+10)} offset:{L_TS}
ds_write_b32 v4, v{R+9} offset:{L_TC}
ds_write_b32 v4, v1 offset:{L_RK + 192}
s_mov_b64 exec, -1
v_lshlrev_b32 v4, 4, v2
v_cmp_gt_u32_e64 s[52:53], 13, v2
s_and_b32 s18, s3, 3
s_lshl_b32 s18, s18, 1
s_lshr_b32 s15, s3, 2
s_add_u32 s18, s18, s15
s_add_u32 s15, s18, 1
s_waitcnt lgkmcnt(0)
s_barrier
@S29
; ---- split the group stream evenly over the 8 waves --------------------------------------------
ds_read_b32 v{R}, v4 offset:{L_TC}
v_mov_b32 v{R+4}, 1
v_mov_b32 v{R+5}, 0
s_waitcnt lgkmcnt(0)
v_cmp_ne_u32 vcc, 0, v{R}
v_add_u32 v{R}, {GS-1}, v{R}
""")
    if GS == 2:
        a(f"v_lshrrev_b32 v{R}, 1, v{R}")
    else:
        a(f"v_mul_u32_u24 v{R}, 0x5556, v{R}")
        a(f"v_lshrrev_b32 v{R}, 16, v{R}")
    a(f"""
s_and_b64 s[44:45], vcc, s[52:53]
v_max_u32 v{R}, {MINPS}, v{R}
v_cndmask_b32_e64 v{R}, 0, v{R}, s[44:45]
v_mov_b32 v{R+1}, v{R}
""")
    scan(a, R + 1, row_only=True)
    a(f"""
s_nop 0
v_readlane_b32 s14, v{R+1}, 15
v_sub_u32 v{R+2}, v{R+1}, v{R}
s_cmp_gt_u32 s14, {MAXIT*8}
s_cbranch_scc1 K_SLOW_ENTRY
s_mul_i32 s40, s14, s18
s_mul_i32 s41, s14, s15
s_lshr_b32 s40, s40, 3
s_lshr_b32 s41, s41, 3
s_sub_u32 s{S_IT}, s41, s40
s_cmp_eq_u32 s{S_IT}, 0
s_cbranch_scc1 K_NOWORK
v_cmp_ge_u32_e64 s[42:43], s40, v{R+1}
v_subrev_u32 v{R+3}, s40, v{R+2}
s_and_b32 s42, s42, 0x1fff
s_bcnt1_i32_b32 s42, s42
s_lshl_b32 s46, s42, 5
v_lshl_add_u32 v{VTK}, v3, 3, s46
v_and_b32 v{VTE}, 12, v2
v_lshl_add_u32 v{VTE}, v{VTE}, 1, s46
v_readlane_b32 s43, v{R+2}, s42
ds_read_b64 {pr(R+6)}, v{VTK} offset:{L_TS}
ds_read_b32 v{NXE}, v{VTE} offset:{L_TS}
ds_read_b64 {pr(NX)}, v{VTK} offset:{L_TS + 32}
v_add_u32 v{R+8}, -1, v{R+3}
v_cmp_gt_u32 vcc, 63, v{R+8}
v_lshlrev_b64 {pr(R+4)}, v{R+3}, {pr(R+4)}
s_and_b64 vcc, vcc, s[44:45]
s_sub_u32 s43, s40, s43
v_cndmask_b32 v{R+4}, 0, v{R+4}, vcc
v_cndmask_b32 v{R+5}, 0, v{R+5}, vcc
s_mul_i32 s45, s43, {4*GS}
s_lshl_b32 s47, s45, 1
""")
    for d in (1, 2, 4, 8):
        a(f"v_or_b32_dpp v{R+4}, v{R+4}, v{R+4} row_shr:{d} row_mask:0xf bank_mask:0xf")
        a(f"v_or_b32_dpp v{R+5}, v{R+5}, v{R+5} row_shr:{d} row_mask:0xf bank_mask:0xf")
        a("s_nop 0")
    TI = {1: [Y[0] + 2 * i for i in range(GS)]}
    nxt = HL
    for p in range(2, NB):
        TI[p] = [nxt + 2 * i for i in range(GS)]
        nxt += 2 * GS
    assert nxt <= DEN, (nxt, DEN)
    a(f"""
s_add_u32 s45, s45, {L_KEYS}
s_add_u32 s47, s47, {L_EA}
v_readlane_b32 s{S_MASK}, v{R+4}, 15
v_readlane_b32 s{S_MASK+1}, v{R+5}, 15
s_bfm_b64 s[48:49], s{S_IT}, 0
s_waitcnt lgkmcnt(1)
v_add_u32 v{VK}, s45, v{R+6}
v_add_u32 v{R+7}, v{R+7}, v{IDX[0]+1}
s_and_b64 s[{S_MASK}:{S_MASK+1}], s[{S_MASK}:{S_MASK+1}], s[48:49]
""")
    for i in range(GS):
        a(f"ds_read_b32 v{IDX[i]}, v{VK} offset:{4*i}")
    a(f"""
ds_read_b128 {q4(CA)}, v{R+7}
v_lshl_add_u32 v{VE}, v{NXE}, 1, s47
v_mov_b32 v4, {L_ZERO}
""")
    for p in range(1, NB):
        for i in range(GS):
            a(f"v_mov_b32 v{TI[p][i]+1}, v{IDX[0]+1}")
    a(f"v_cndmask_b32_e64 v{VE}, v4, v{VE}, s[{S_AM}:{S_AM+1}]")
    a("s_waitcnt lgkmcnt(1)")
    for l in gathers(0, IDX):
        a(l)
    for p in range(1, NB):
        a(f"s_bitcmp1_b32 s{S_MASK}, {p}")
        a(f"s_cbranch_scc0 K_PK{p}")
        ev_k(a, 4 * GS * p)
        a(f"K_PK{p}:")
        for i in range(GS):
            a(f"ds_read_b32 v{TI[p][i]}, v{VK} offset:{4*(GS*p+i)}")
    for i in range(GS):
        a(f"ds_read_b64 {pr(AOP[i])}, v{VE} offset:{8*i}")
    a(f"""
s_lshr_b64 s[{S_CM}:{S_CM+1}], s[{S_MASK}:{S_MASK+1}], 3
s_mov_b32 s{S_RAW}, s{S_MASK}
s_bitset1_b64 s[{S_MASK}:{S_MASK+1}], s{S_IT}
s_lshr_b64 s[48:49], s[{S_MASK}:{S_MASK+1}], {NB+1}
s_or_b64 s[{S_CM}:{S_CM+1}], s[{S_CM}:{S_CM+1}], s[48:49]
s_lshr_b64 s[48:49], s[{S_MASK}:{S_MASK+1}], 1
s_or_b64 s[{S_CM}:{S_CM+1}], s[{S_CM}:{S_CM+1}], s[48:49]
s_waitcnt lgkmcnt({GS})
""")
    NG0 = int(OPT["ng0"])
    NG1 = max(NG0, min(NB, 4 if GS == 2 else 3))
    for p in range(1, NG0):
        for l in gathers(p, TI[p]):
            a(l)
    if OPT["prio"] == "1":
        dflt = (24, 12, 4) if GS == 2 else (16, 8, 3)
        t1, t2, t3 = [int(OPT.get(f"thr{i+1}", dflt[i])) for i in range(3)]
        a(f"""
s_setprio 3
s_mov_b32 s{S_PR}, 3
s_mov_b64 s[54:55], 0
s_bitset1_b64 s[54:55], {63 - t1}
s_bitset1_b64 s[54:55], {63 - t2}
s_bitset1_b64 s[54:55], {63 - t3}
s_sub_u32 s46, 63, s{S_IT}
s_lshr_b64 s[54:55], s[54:55], s46
s_or_b64 s[{S_CM}:{S_CM+1}], s[{S_CM}:{S_CM+1}], s[54:55]
""")
    a(f"""
s_ff1_i32_b64 s{S_CNT}, s[{S_CM}:{S_CM+1}]
v_lshlrev_b32 v5, 9, v3
v_lshl_add_u32 v5, v2, 4, v5
s_lshl_b32 s45, s42, 11
s_add_u32 s45, s45, {L_ACC}
s_add_u32 s46, s45, 2048
v_add_u32 v{VFN}, s46, v5
s_cmp_eq_u32 s43, 0
s_cbranch_scc1 K_P2
s_lshl_b32 s45, s3, 11
s_add_u32 s45, s45, {L_EXT}
s_lshl_b32 s46, 1, s3
s_lshl_b32 s47, s42, 2
v_mov_b32 v6, s46
v_mov_b32 v7, s47
s_mov_b64 exec, 1
ds_or_b32 v7, v6 offset:{L_MASK}
s_mov_b64 exec, -1
K_P2:
v_add_u32 v{VF}, s45, v5
""")
    for i in range(0, 8, 2):
        a(f"v_pk_mov_b32 {pr(DEN+i)}, 0, 0")
    a(f"""
v_add_u32 v{VK}, {4*GS*NB}, v{VK}
s_bitcmp1_b32 s{S_RAW}, {NB}
s_cbranch_scc0 K_PK{NB}
""")
    ev_k(a, 0)
    a(f"""
K_PK{NB}:
v_mov_b32 v5, {16*GS}
""")
    eprep1(a)
    a(f"""
@S10
s_waitcnt vmcnt({GS*(NG0-1)}) lgkmcnt(0)
@S15
""")
    for l in mfmas(0):
        a(l)
    for p in range(NG0, NG1):
        for l in gathers(p, TI[p]):
            a(l)
    a(f"""
s_bitcmp1_b32 s{S_RAW}, 1
s_cbranch_scc0 K_PE1
s_nop 2
""")
    ev_e(a, 8 * GS)
    a("K_PE1:")
    for i in range(GS):
        a(f"ds_read_b64 {pr(AOP[i])}, v{VE} offset:{8*(GS+i)}")
    a(f"v_cndmask_b32_e64 v5, 0, v5, s[{S_AM}:{S_AM+1}]")
    eprep2(a)
    for i in range(4 * GS):
        a(f"v_exp_f32 v{Y[0]+i}, v{Y[0]+i}")
    a(f"v_add_u32 v{VE}, v5, v{VE}")
    a(f"s_waitcnt vmcnt({GS*(NG1-2)}) lgkmcnt(0)")
    for l in mfmas(1):
        a(l)
    for p in range(NG1, NB):
        for l in gathers(p, TI[p]):
            a(l)
    a(f"""
s_bitcmp1_b32 s{S_RAW}, 2
s_cbranch_scc0 K_PE2
s_nop 2
""")
    ev_e(a, 0)
    a(f"""
K_PE2:
@C20
@S38
s_nop 4
{f".p2align {OPT['align']}" if OPT.get('align') else ''}
K_LOOP:
""")
    order = ORDERS[GS][OPT["order"]].split()
    for k in range(UNR):
        d = ops(k)
        for x in order:
            a(d[x])
        if k == UNR - 1:
            a("s_cbranch_scc0 K_LOOP")
        else:
            a(f"s_cbranch_scc1 K_EV{k}")
            a(f"K_RET{k}:")
    for k in [UNR - 1] + list(range(UNR - 1)):
        kn = (k + 1) % UNR
        ret = f"K_RET{k}" if k < UNR - 1 else "K_LOOP"
        a(f"""
K_EV{k}:
s_ff1_i32_b64 s14, s[{S_CM}:{S_CM+1}]
s_bitset0_b64 s[{S_CM}:{S_CM+1}], s14
s_ff1_i32_b64 s{S_CNT}, s[{S_CM}:{S_CM+1}]
s_lshr_b64 s[40:41], s[{S_MASK}:{S_MASK+1}], s14
s_sub_u32 s{S_CNT}, s{S_CNT}, s14
s_sub_u32 s{S_CNT}, s{S_CNT}, 1
s_bitcmp1_b32 s40, 1
s_cbranch_scc0 K_EV{k}A
ds_write_b128 v{VF}, {q4(DEN)}
ds_write_b128 v{VF}, {q4(NUM)} offset:256
s_lshr_b64 s[42:43], s[40:41], 2
s_cbranch_scc0 K_LOOP_DONE
v_mov_b32 v{VF}, v{VFN}
v_add_u32 v{VFN}, 2048, v{VFN}
""")
        for i in range(0, 8, 2):
            a(f"v_pk_mov_b32 {pr(DEN+i)}, 0, 0")
        a(f"""
K_EV{k}A:
s_bitcmp1_b32 s40, 3
s_cbranch_scc0 K_EV{k}B
""")
        ev_e(a, 8 * GS * kn)
        a(f"""
K_EV{k}B:
s_bitcmp1_b32 s40, {NB+1}
s_cbranch_scc0 K_EV{k}C
v_mov_b32 v{VK}, {L_OOB - 4*GS*kn}
s_lshr_b64 s[42:43], s[40:41], {NB+2}
s_cbranch_scc0 K_EV{k}C
""")
        ev_k(a, 4 * GS * kn)
        a(f"K_EV{k}C:")
        if OPT["prio"] == "1":
            a(f"""
s_bitcmp1_b64 s[54:55], s14
s_cbranch_scc0 {ret}
s_sub_u32 s{S_PR}, s{S_PR}, 1
@P
s_setprio 0
s_cmp_eq_u32 s{S_PR}, 0
s_cbranch_scc1 {ret}
s_setprio 1
s_cmp_eq_u32 s{S_PR}, 1
s_cbranch_scc1 {ret}
s_setprio 2
""")
        a(f"s_branch {ret}")
    a(f"""
K_LOOP_DONE:
@C21
@S11
s_setprio 0
s_waitcnt lgkmcnt(0)
s_barrier
@S12
s_mov_b64 exec, s[20:21]
s_cbranch_execz K_COMB_DONE
ds_read_b32 v{R}, v{EMSK} offset:{L_MASK}
""")

    def reads(d, va):
        a(f"ds_read_b128 {q4(d)}, v{va}")
        a(f"ds_read_b128 {q4(d+4)}, v{va} offset:16")
        a(f"ds_read_b128 {q4(d+8)}, v{va} offset:256")
        a(f"ds_read_b128 {q4(d+12)}, v{va} offset:272")

    def adds(d):
        for i in range(0, 16, 2):
            a(f"v_pk_add_f32 {pr(TOT+i)}, {pr(TOT+i)}, {pr(d+i)}")

    def nxt_(lab_last):
        a(f"""
v_ffbl_b32 v{R+1}, v{R}
v_cmp_ne_u32 vcc, 0, v{R}
v_add_u32 v{R+2}, -1, v{R}
v_and_b32 v{R}, v{R}, v{R+2}
v_lshl_add_u32 v{R+1}, v{R+1}, 11, v{EEXT}
s_mov_b64 s[40:41], exec
s_and_b64 exec, exec, vcc
s_cbranch_execz {lab_last}
""")
    D1 = R + 4 + 16
    D0 = R + 4
    reads(D0, EACC)
    a("s_waitcnt lgkmcnt(4)")
    a("K_COMB_A:")
    nxt_("K_COMB_LA")
    reads(D1, R + 1)
    a("s_mov_b64 s[42:43], exec")
    a("s_mov_b64 exec, s[40:41]")
    a("s_waitcnt lgkmcnt(4)")
    adds(D0)
    a("s_mov_b64 exec, s[42:43]")
    nxt_("K_COMB_LB")
    reads(D0, R + 1)
    a("s_mov_b64 s[42:43], exec")
    a("s_mov_b64 exec, s[40:41]")
    a("s_waitcnt lgkmcnt(4)")
    adds(D1)
    a("s_mov_b64 exec, s[42:43]")
    a("s_branch K_COMB_A")
    a("K_COMB_LB:")
    a("s_mov_b64 exec, s[40:41]")
    a("s_waitcnt lgkmcnt(0)")
    adds(D1)
    a("s_branch K_COMB_DONE")
    a("K_COMB_LA:")
    a("s_mov_b64 exec, s[40:41]")
    a("s_waitcnt lgkmcnt(0)")
    adds(D0)
    a(f"""
K_COMB_DONE:
s_mov_b64 exec, -1
s_cmp_lg_u32 s{S_MODE}, 0
s_cbranch_scc1 K_SLOW_NEXT
K_FINAL:
s_cmp_lg_u32 s3, 6
s_cbranch_scc1 K_FIN2
""")
    for i in range(16):
        a(f"v_add_f32_dpp v{TOT+i}, v{TOT+i}, v{TOT+i} row_ror:8 row_mask:0xf bank_mask:0xf")
    for i in range(16):
        a(f"ds_swizzle_b32 v{D0+i}, v{TOT+i} offset:0x401F")
    a("s_waitcnt lgkmcnt(0)")
    for i in range(0, 16, 2):
        a(f"v_pk_add_f32 {pr(TOT+i)}, {pr(TOT+i)}, {pr(D0+i)}")
    eps = struct.unpack("<I", struct.pack("<f", 1e-6 * 2.0**KEXP))[0]
    a(f"""
K_FIN2:
s_mov_b32 s14, {eps:#x}
s_mov_b32 s15, {eps:#x}
""")
    for i in range(0, 8, 2):
        a(f"v_pk_add_f32 {pr(TOT+i)}, {pr(TOT+i)}, s[14:15]")
    for i in range(8):
        a(f"v_rcp_f32 v{TOT+i}, v{TOT+i}")
    a("s_nop 0")
    for i in range(0, 8, 2):
        a(f"v_pk_fma_f32 {pr(EU+i)}, {pr(TOT+8+i)}, {pr(TOT+i)}, {pr(EU+i)}")
    for i in range(8):
        a(f"v_max_f32 v{EU+i}, 0, v{EU+i}")
    for i in range(0, 8, 2):
        a(f"v_pk_add_f32 {pr(EX+i)}, {pr(EX+i)}, {pr(EU+i)}")
    for i in range(4):
        a(f"v_cvt_pk_bf16_f32 v{EX+i}, v{EX+2*i}, v{EX+2*i+1}")
    a(f"""
buffer_store_dwordx4 {q4(EX)}, v{EOUT}, s[36:39], 0 offen {OPT['st_out']}
@S13
@Wvmcnt(0)
@S14
@Vs{S_IT},22
@OUT
K_END:
s_endpgm
K_NOWORK:
""")
    eprep1(a)
    a("s_waitcnt lgkmcnt(0)")
    eprep2(a)
    a(f"""
s_branch K_LOOP_DONE
K_TAG_RETRY:
s_waitcnt lgkmcnt(0)
s_memrealtime s[52:53]
s_sleep 4
global_load_dword v64, v{VZ}, s[84:85] sc1
s_waitcnt vmcnt(0) lgkmcnt(0)
s_sub_u32 s52, s52, s50
s_cmp_lt_u32 s52, 0x400000
s_cbranch_scc1 K_TAGW
s_branch K_TAGOK
K_POLL_RETRY:
s_memrealtime s[52:53]
s_sleep {OPT['sleep']}
s_waitcnt lgkmcnt(0)
s_sub_u32 s52, s52, s50
s_cmp_lt_u32 s52, 0x400000
s_cbranch_scc1 K_POLL
""")
    for k in range(8):
        a(f"v_cndmask_b32 v{VTT+k}, v{VTT+k}, v{VZ}, vcc")
    a(f"""
s_branch K_POLLOK
K_LONG_ENTRY:
s_mov_b32 s14, 32
K_LONG:
v_add_u32 v6, s14, v2
s_mul_i32 s15, s14, 12
""")
    for k in range(8):
        a(f"""
s_mov_b64 exec, -1
v_cmp_gt_u32_sdwa vcc, v{VTT+k}, v6 src0_sel:WORD_1 src1_sel:DWORD
s_and_saveexec_b64 s[42:43], vcc
s_cbranch_execz K_LONG_S{k}
buffer_load_dwordx3 v[{R}:{R+2}], v{VRA+k}, s[32:35], s15 offen sc1
s_waitcnt vmcnt(0)
""")
        place_atomic(a, R, 4)
        a("s_waitcnt lgkmcnt(0)")
        place_write(a, R, 4)
        a(f"K_LONG_S{k}:")
    a(f"""
s_mov_b64 exec, -1
s_add_u32 s14, s14, 16
v_cmp_lt_u32 vcc, s14, v{VMAXL}
s_cbranch_vccnz K_LONG
s_branch K_PLACED
K_SLOW_ENTRY:
ds_max_u32 v{VZ}, v{VMAXL} offset:{L_MAXL}
s_waitcnt lgkmcnt(0)
s_barrier
ds_read_b32 v5, v{VZ} offset:{L_MAXL}
s_mov_b32 s{S_MODE}, 1
s_mov_b32 s{S_I}, 0
s_mov_b32 s{S_MO}, 0
s_waitcnt lgkmcnt(0)
v_readfirstlane_b32 s{S_ML}, v5
s_branch K_SLOW_BATCH
K_SLOW_NEXT:
s_add_u32 s{S_I}, s{S_I}, 1
s_cmp_lt_u32 s{S_I}, 64
s_cbranch_scc1 K_SLOW_BATCH
s_mov_b32 s{S_I}, 0
s_add_u32 s{S_MO}, s{S_MO}, 16
s_cmp_ge_u32 s{S_MO}, s{S_ML}
s_cbranch_scc1 K_FINAL
K_SLOW_BATCH:
s_waitcnt vmcnt(0) lgkmcnt(0)
s_barrier
""")
    slots_init(a, R, True)
    a(f"""
s_waitcnt lgkmcnt(0)
s_barrier
s_cmp_lg_u32 s3, 0
s_cbranch_scc1 K_SLOW_S
s_lshl_b32 s14, s{S_I}, 2
v_add_u32 v7, s14, v3
s_lshl_b32 s15, s{S_B}, 3
v_mul_u32_u24 v4, {TRS}, v7
v_add_u32 v4, s15, v4
buffer_load_dword v5, v4, s[32:35], 0 offen sc1
s_mov_b32 s15, {RECS}
v_mul_lo_u32 v7, v7, s15
v_add_u32 v6, s{S_MO}, v2
v_mad_u32_u24 v7, v6, 12, v7
v_add_u32 v7, {REC_REL}, v7
s_waitcnt vmcnt(0)
v_and_b32 v5, 0x0fff0fff, v5
v_mad_u32_u16 v4, v5, 12, v7
v_cmp_gt_u32_sdwa vcc, v5, v6 src0_sel:WORD_1 src1_sel:DWORD
s_and_saveexec_b64 s[40:41], vcc
s_cbranch_execz K_SLOW_S
buffer_load_dwordx3 v[{R}:{R+2}], v4, s[32:35], 0 offen sc1
s_waitcnt vmcnt(0)
""")
    place_atomic(a, R, 4)
    a("s_waitcnt lgkmcnt(0)")
    place_write(a, R, 4)
    a("""
K_SLOW_S:
s_mov_b64 exec, -1
s_waitcnt lgkmcnt(0)
s_barrier
s_branch K_RANK
""")
    return a.text()


HEADER = open("standalone__edge_featured_mpnn_gatedgcn__graph.s.ref").read().split("; Override launch")[0]


DOC = '''; ---------------------------------------------------------------------------------------------------
;          {e_attr, src<<8 | dst>>6} and writes the gather-table rows {bf16 -log2e*x@w_b, bf16 x@w_v} of 49 nodes.
; Hand-off: write-through (sc1) stores, acknowledged, then one tagged granule {start,len | tag} per bucket; the tag
;          exp2, one reciprocal per edge pair (values carried scaled by 2^60, clamped), f32 sums; epilogue.
; ---------------------------------------------------------------------------------------------------
'''


def main():
    out = HEADER
    out += f"; @launch grid=(256,1,1) block=(512,1,1) lds={LDS}\n"
    out += DOC
    out += '.amdgcn_target "amdgcn-amd-amdhsa--gfx950"\n.text\n'
    out += f".globl {KNAME}\n.p2align 8\n.type {KNAME},@function\n" + kernel()
    out += f""".section .rodata,"a"
.p2align 6
.amdhsa_kernel {KNAME}
  .amdhsa_next_free_vgpr {NVGPR}
  .amdhsa_next_free_sgpr {102 if OPT.get('jitter') else 101 if STAMPS else 98}
  .amdhsa_accum_offset {(NVGPR + 3) // 4 * 4}
  .amdhsa_group_segment_fixed_size 0
  .amdhsa_kernarg_size 96
  .amdhsa_user_sgpr_count 2
  .amdhsa_user_sgpr_kernarg_segment_ptr 1
  .amdhsa_system_sgpr_workgroup_id_x 1
.end_amdhsa_kernel
"""
    open(sys.argv[1], "w").write(out)


main()
```
